```python
import torch

def _softmax(x, axis=-1):
    return torch.softmax(x, dim=axis)
def _gelu(x):
    return torch.nn.functional.gelu(x, approximate="tanh")
def _silu(x):
    return torch.nn.functional.silu(x)
def _sigmoid(x):
    return torch.sigmoid(x)
def _layernorm(x, axis=-1, eps=1e-5):
    m = x.mean(dim=axis, keepdim=True)
    v = x.var(dim=axis, keepdim=True, unbiased=False)
    return (x - m) / torch.sqrt(v + eps)
def _scatter_add(tgt, idx, src, axis=0):
    return tgt.clone().index_add_(axis, idx, src)
def _segment_sum(src, seg, n):
    out = torch.zeros((n,) + src.shape[1:], dtype=src.dtype)
    return out.index_add_(0, seg, src)
def _pad(x, pw):
    flat = tuple(v for pair in reversed(pw) for v in pair)
    return torch.nn.functional.pad(x, flat)

kernel_name = 'gated_mix__mha_block__glu_gated_glu__prompt'

def setup_inputs():

    _w = (lambda a: (lambda t: t.to(torch.bfloat16) if t.is_floating_point() else t)(torch.as_tensor(a)))
    def _A_setup():
        B, S, D, H = 1, 2048, 640, 32
        return {
            "x": _w((lambda *s: torch.randn(*s, dtype=torch.bfloat16) * 0.05)(B, S, D)),
            "wqkv": _w((lambda *s: torch.randn(*s, dtype=torch.bfloat16) * 0.8)(D, 3 * D)),
            "wo": _w((lambda *s: torch.randn(*s, dtype=torch.bfloat16) * 0.1)(D, D)),
        }
    _A_in = _A_setup()

    def _B_setup():
        B, S, D, F = 1, 2048, 640, 1728
        return {
            "x": _w((lambda *s: torch.randn(*s, dtype=torch.bfloat16) * 0.05)(B, S, D)),
            "w_gate": _w((lambda *s: torch.randn(*s, dtype=torch.bfloat16) * 0.8)(D, F)),
            "w_up": _w((lambda *s: torch.randn(*s, dtype=torch.bfloat16) * 0.05)(D, F)),
            "w_down": _w((lambda *s: torch.randn(*s, dtype=torch.bfloat16) * 0.05)(F, D)),
        }
    _B_in = _B_setup()

    return {
        "A_x": _A_in["x"],
        "A_wqkv": _A_in["wqkv"],
        "A_wo": _A_in["wo"],
        "B_x": _B_in["x"],
        "B_w_gate": _B_in["w_gate"],
        "B_w_up": _B_in["w_up"],
        "B_w_down": _B_in["w_down"],
        "gate_w": _w((lambda *s: torch.randn(*s, dtype=torch.bfloat16) * 0.05)(640) * 16.0),
    }

def reference(A_x, A_wqkv, A_wo, B_x, B_w_gate, B_w_up, B_w_down, gate_w):
    def _A_ref(x, wqkv, wo):
        B, S, D = x.shape
        H = 32
        Dh = D // H
        qkv = (lambda x, *d: x.permute(*d))((x @ wqkv).reshape(B, S, 3, H, Dh), 2, 0, 3, 1, 4)
        q, k, v = qkv[0], qkv[1], qkv[2]
        scores = torch.einsum("bhqd,bhkd->bhqk", q, k) * (Dh ** -0.5)
        p = _softmax(scores, axis=-1)
        o = torch.einsum("bhqk,bhkd->bhqd", p, v)
        return (lambda x, *d: x.permute(*d))(o, 0, 2, 1, 3).reshape(B, S, D) @ wo

    def _B_ref(x, w_gate, w_up, w_down):
        g = torch.einsum("bsd,df->bsf", x, w_gate)
        u = torch.einsum("bsd,df->bsf", x, w_up)
        h = _sigmoid(g) * u
        return torch.einsum("bsf,fd->bsd", h, w_down)

    x = A_x
    g = _sigmoid((x * gate_w).sum(-1, keepdims=True))
    a = _A_ref(x, A_wqkv, A_wo)
    b = _B_ref(x, B_w_gate, B_w_up, B_w_down)
    return g * a + (1 - g) * b
```

```python
from dsl import *
KA_AX, KA_WQKV, KA_WO, KA_BX, KA_WG, KA_WU, KA_WD, KA_GW, KA_OUT, KA_DBG, KA_WS = [8*i for i in range(11)]
S, D, H, DH, F = 2048, 640, 32, 20, 1728
QF_OFF = 0;                      QF_HS = 64*1280; QF_TS = 1280
KV_OFF = QF_OFF + 32*QF_HS;      KV_HS = 64*2560; KV_TS = 2560
HF_OFF = KV_OFF + 32*KV_HS
OF_OFF = HF_OFF + 64*108*1024
G_OFF  = OF_OFF + 64*40*1024
BF_OFF = G_OFF + 2048*8
CNT_OFF = BF_OFF + 2048*1280
C_Q, C_H, C_G = 8, 14, 30
WS_END = CNT_OFF + 48*128
WS_BYTES = 268435456
LOG2E = 1.4426950408889634
import struct
def f2u(x): return struct.unpack("<I", struct.pack("<f", x))[0]
def hexf(x): return "0x%08x" % f2u(x)

def kernel_header(name):
    return f""".globl {name}
.p2align 8
.type {name},@function
{name}:
"""
def kernel_desc(name, vgpr, sgpr=102):
    acc = (vgpr + 3)//4*4
    return f""".section .rodata,"a"
.p2align 6
.amdhsa_kernel {name}
  .amdhsa_next_free_vgpr {vgpr}
  .amdhsa_next_free_sgpr {sgpr}
  .amdhsa_accum_offset {acc}
  .amdhsa_group_segment_fixed_size 0
  .amdhsa_kernarg_size 88
  .amdhsa_user_sgpr_count 2
  .amdhsa_user_sgpr_kernarg_segment_ptr 1
  .amdhsa_system_sgpr_workgroup_id_x 1
  .amdhsa_float_denorm_mode_32 3
.end_amdhsa_kernel
.text
"""
def srd(c, s, base_lo, size):
    c.e(f"s_mov_b32 s{s}, s{base_lo}")
    c.e(f"s_and_b32 s{s+1}, s{base_lo+1}, 0xffff")
    c.e(f"s_mov_b32 s{s+2}, {size}")
    c.e(f"s_mov_b32 s{s+3}, 0x20000")
def mfma32(d, a, b, cz=None):
    cs = vr(d,16) if cz is None else str(cz)
    return f"v_mfma_f32_32x32x16_bf16 {vr(d,16)}, {vr(a,4)}, {vr(b,4)}, {cs}"
def mfma32x8(d, a, b, cz=None):
    cs = vr(d,16) if cz is None else str(cz)
    return f"v_mfma_f32_32x32x8_bf16 {vr(d,16)}, {vr(a,2)}, {vr(b,2)}, {cs}"
def interleave(main, fill, first=0):
    out = []; n = len(main); k = 0; m = len(fill)
    for i, x in enumerate(main):
        out.append(x)
        tgt = (m*(i+1) + n - 1)//n if n else 0
        while k < min(tgt, m):
            f = fill[k]; out += f if isinstance(f, list) else [f]; k += 1
    while k < m:
        f = fill[k]; out += f if isinstance(f, list) else [f]; k += 1
    return out

def csel(dst, a, b):
    return f"s_mov_b32 s{dst}, {b}\ns_cselect_b32 s{dst}, {a}, s{dst}"

STAMP_OFF = 32*1024*1024
class Stamps:
    RT = False
    def __init__(self, Sg, on, kidx, n=8):
        self.on = on; self.k = kidx; self.n = n; self.i = 0
        if on:
            self.s = Sg.take(2*(n+1), 2)
    def stamp(self, c, real=False, wait=False):
        if not self.on: return
        assert self.i <= self.n
        r = self.s + 2*self.i
        c.e(f"s_memtime s[{r}:{r+1}]" if not (real or Stamps.RT) else f"s_memrealtime s[{r}:{r+1}]")
        if wait: c.e("s_waitcnt lgkmcnt(0)")
        self.i += 1
    def flush(self, c, sW, srdWS, vA, vB, sT):
        if not self.on: return
        c.e("s_waitcnt lgkmcnt(0)")
        c.e(f"s_lshl_b32 s{sT}, s2, 3\ns_add_u32 s{sT}, s{sT}, s{sW}\ns_lshl_b32 s{sT}, s{sT}, 5\ns_add_u32 s{sT}, s{sT}, {STAMP_OFF + self.k*65536}")
        c.e(f"v_mov_b32 v{vA}, 0")
        for i in range(self.i):
            c.e(f"v_mov_b32 v{vB}, s{self.s+2*i}\nbuffer_store_dword v{vB}, v{vA}, s[{srdWS}:{srdWS+3}], s{sT} offen offset:{4*i}\ns_nop 1")
```

```python
import re

class Alloc:
    def __init__(self, n, start=0, name="v"):
        self.n = n; self.next = start; self.name = name; self.hi = start; self.names = {}
    def take(self, cnt=1, align=1, tag=None):
        a = (self.next + align - 1)//align*align
        if a + cnt > self.n: raise RuntimeError(f"out of {self.name} regs: need {cnt} at {a} (tag {tag})")
        self.next = a + cnt; self.hi = max(self.hi, self.next)
        if tag: self.names[tag] = (a, cnt)
        return a
    def mark(self): return self.next
    def reset(self, m): self.next = m

def vr(a, n=1): return f"v{a}" if n == 1 else f"v[{a}:{a+n-1}]"
def sr(a, n=1): return f"s{a}" if n == 1 else f"s[{a}:{a+n-1}]"

class Code:
    def __init__(self):
        self.lines = []
    def e(self, s):
        for l in s.split("\n"):
            l = l.strip()
            if l: self.lines.append(l)
    def label(self, name): self.lines.append(name + ":")
    def c(self, s): self.lines.append("; " + s)
    def extend(self, other): self.lines += other.lines if isinstance(other, Code) else other
    def text(self):
        out = []
        for l in self.lines:
            if l.endswith(":") or l.startswith("."): out.append(l)
            else: out.append("    " + l)
        return "\n".join(out) + "\n"

REG = re.compile(r"^(-|\|)?(v|s|a)(\d+)\|?$")
RNG = re.compile(r"^(-|\|)?(v|s|a)\[(\d+):(\d+)\]\|?$")
def regs_of(tok):
    tok = tok.strip()
    tok = tok.replace("abs(", "").replace("neg(", "").rstrip(")")
    m = REG.match(tok)
    if m: return {(m.group(2), int(m.group(3)))}
    m = RNG.match(tok)
    if m: return {(m.group(2), i) for i in range(int(m.group(3)), int(m.group(4))+1)}
    if tok == "vcc": return {("s", "vcc")}
    if tok in ("vcc_lo", "vcc_hi"): return {("s", "vcc")}
    if tok in ("exec", "exec_lo", "exec_hi"): return {("s", "exec")}
    if tok == "m0": return {("s", "m0")}
    return set()

TRANS = ("v_exp_f32", "v_log_f32", "v_rcp_f32", "v_rsq_f32", "v_sqrt_f32", "v_sin_f32", "v_cos_f32", "v_rcp_iflag_f32")
class I:
    __slots__ = ("text","op","dst","src","kind","ops","nop","idx","srcA","srcB","srcC","passes","mods","vmN","lgN","target")
    def __init__(self, text):
        self.text = text
        t = text.split(";")[0].strip()
        parts = t.split(None, 1)
        self.op = parts[0]
        rest = parts[1] if len(parts) > 1 else ""
        ops = []; depth = 0; cur = ""
        for ch in rest:
            if ch == "[": depth += 1
            if ch == "]": depth -= 1
            if ch == "," and depth == 0: ops.append(cur.strip()); cur = ""
            else: cur += ch
        if cur.strip(): ops.append(cur.strip())
        self.mods = ""
        if ops:
            sp = ops[-1].split(None, 1)
            if len(sp) > 1 and not self.op.startswith("s_waitcnt"):
                ops[-1] = sp[0]; self.mods = sp[1]
        self.ops = ops
        self.dst = set(); self.src = set(); self.nop = 1
        self.srcA = self.srcB = self.srcC = set(); self.passes = 0
        self.vmN = self.lgN = None; self.target = None
        op = self.op
        R = [regs_of(o) for o in ops]
        def U(l):
            s = set()
            for x in l: s |= x
            return s
        if op.startswith("v_mfma") or op.startswith("v_smfmac"):
            self.kind = "mfma"; self.dst = R[0]; self.srcA = R[1]; self.srcB = R[2]; self.srcC = R[3]
            self.src = U(R[1:])
            self.passes = 8 if "32x32" in op else 4
        elif op.startswith("v_cmp"):
            self.kind = "valu"; self.dst = R[0]; self.src = U(R[1:])
            if op.startswith("v_cmpx"): raise RuntimeError("avoid v_cmpx")
        elif op in ("v_readfirstlane_b32", "v_readlane_b32"):
            self.kind = "valu"; self.dst = R[0]; self.src = U(R[1:])
        elif op.startswith("v_permlane32_swap") or op.startswith("v_permlane16_swap"):
            self.kind = "valu"; self.dst = U(R[:2]); self.src = U(R[:2])
        elif op.startswith("v_add_co") or op.startswith("v_sub_co") or op.startswith("v_addc_co") or op.startswith("v_subb_co"):
            self.kind = "valu"; self.dst = R[0] | R[1]; self.src = U(R[2:])
        elif op.startswith("v_"):
            self.kind = "valu"; self.dst = R[0]; self.src = U(R[1:])
            if op.startswith("v_fmac") or op.startswith("v_pk_fmac") or op.startswith("v_dot2c") or "UNUSED_PRESERVE" in self.mods or op.startswith("v_writelane") or op.startswith("v_fma_mixhi") or op.startswith("v_fma_mixlo"):
                self.src |= R[0]
            if op.startswith("v_cndmask") and len(ops) == 3: self.src |= {("s", "vcc")}
        elif op.startswith("ds_read") or op.startswith("ds_bpermute") or op.startswith("ds_permute") or op.startswith("ds_swizzle"):
            self.kind = "ds"; self.dst = R[0]; self.src = U(R[1:])
        elif op.startswith("ds_write") or op.startswith("ds_add") or op.startswith("ds_max") or op.startswith("ds_or"):
            self.kind = "ds"; self.src = U(R)
        elif op.startswith("buffer_load") or op.startswith("global_load"):
            self.kind = "vmem"
            if " lds" in (" " + self.mods) or self.mods.endswith("lds") or (ops and ops[-1] == "lds"):
                self.src = U(R) | {("s", "m0")}; self.kind = "vmem_lds"
            else:
                self.dst = R[0]; self.src = U(R[1:])
        elif op.startswith("buffer_store") or op.startswith("global_store"):
            self.kind = "vmem_st"; self.src = U(R)
        elif op.startswith("buffer_atomic") or op.startswith("global_atomic"):
            self.kind = "vmem_st"; self.src = U(R)
            if "sc0" in self.mods and op.startswith("buffer_atomic"): self.dst = R[0]; self.kind = "vmem"
        elif op in ("buffer_wbl2", "buffer_inv"):
            self.kind = "vmem_st"
        elif op.startswith("s_load") or op.startswith("s_buffer_load") or op in ("s_memtime", "s_memrealtime"):
            self.kind = "smem"; self.dst = R[0]; self.src = U(R[1:])
        elif op == "s_waitcnt":
            self.kind = "wait"
            m = re.search(r"vmcnt\((\d+)\)", t);  self.vmN = int(m.group(1)) if m else None
            m = re.search(r"lgkmcnt\((\d+)\)", t); self.lgN = int(m.group(1)) if m else None
        elif op == "s_nop":
            self.kind = "nop"; self.nop = int(ops[0], 0) + 1
        elif op in ("s_barrier", "s_endpgm", "s_setprio", "s_sleep"):
            self.kind = "misc"
        elif op in ("s_branch",) or op.startswith("s_cbranch"):
            self.kind = "branch"; self.target = ops[0]
            if "vcc" in op: self.src = {("s", "vcc")}
            if "exec" in op: self.src = {("s", "exec")}
        elif op.startswith("s_cmp") or op.startswith("s_bitcmp"):
            self.kind = "salu"; self.src = U(R)
        elif op.startswith("s_and_saveexec") or op.startswith("s_or_saveexec"):
            self.kind = "salu"; self.dst = R[0] | {("s", "exec")}; self.src = U(R[1:]) | {("s", "exec")}
        elif op.startswith("s_getreg"):
            self.kind = "salu"; self.dst = R[0]
        elif op.startswith("s_"):
            self.kind = "salu"; self.dst = R[0]; self.src = U(R[1:])
            if op in ("s_addk_i32", "s_mulk_i32"): self.src |= R[0]
        else:
            raise RuntimeError("unknown op: " + text)

def vonly(s): return {x for x in s if x[0] in ("v", "a")}
def sonly(s): return {x for x in s if x[0] == "s"}

def need(prod, cons):
    n = 0; why = ""
    def upd(k, w):
        nonlocal n, why
        if k > n: n = k; why = w
    pk, ck = prod.kind, cons.kind
    if pk == "valu":
        pv = vonly(prod.dst); ps = sonly(prod.dst)
        if ck == "mfma" and pv & vonly(cons.src): upd(2, "VALU->MFMA")
        if ck == "valu":
            if (cons.op.startswith("v_readfirstlane") or cons.op.startswith("v_readlane")) and pv & vonly(cons.src): upd(1, "VALU->readlane")
            if cons.op.startswith("v_permlane") and pv & vonly(cons.src): upd(2, "VALU->permlane")
            if ("dpp" in cons.op or "row_" in cons.mods or "quad_perm" in cons.mods) and pv & vonly(cons.src): upd(2, "VALU->DPP")
            if ps & sonly(cons.src): upd(4 if cons.op.startswith("v_readlane") or cons.op.startswith("v_writelane") else 2, "VALU sgpr->VALU")
            if prod.op in TRANS and pv & vonly(cons.src) and cons.op not in TRANS: upd(1, "trans->VALU")
            if prod.op in TRANS and pv & vonly(cons.src) and cons.op in TRANS: upd(1, "trans->trans(cons.)")
            if ("sdwa" in prod.op or "op_sel" in prod.mods) and pv & (vonly(cons.src) | vonly(cons.dst)): upd(1, "sdwa/opsel->VALU")
        if ck in ("vmem", "vmem_lds", "vmem_st") and ps & sonly(cons.src): upd(5, "VALU sgpr->VMEM")
        if ck in ("vmem", "vmem_lds", "vmem_st", "ds") and prod.op in TRANS and pv & vonly(cons.src): upd(1, "trans->mem")
        if ck in ("salu", "smem", "branch") and ps & sonly(cons.src): upd(4, "VALU sgpr->SALU (conservative)")
    if pk == "mfma":
        D = prod.dst; P = prod.passes
        if ck == "mfma":
            if D & cons.srcC:
                if cons.srcC == D and cons.passes == P: pass
                else: upd(P + 2, "MFMA D->C overlap")
            if D & (cons.srcA | cons.srcB): upd(P + 4, "MFMA D->A/B")
            if D & cons.dst and not (D & cons.srcC): upd(P + 2, "MFMA D->D WAW (conservative)")
        if ck == "valu":
            if D & (cons.src | cons.dst): upd(P + 4, "MFMA D->VALU")
            if prod.srcC & cons.dst: upd(P - 1, "MFMA C WAR VALU")
        if ck in ("vmem", "vmem_lds", "vmem_st", "ds") and D & (cons.src | cons.dst): upd(P + 4, "MFMA D->mem")
    if pk == "salu" and ("s", "m0") in prod.dst and ck == "vmem_lds": upd(1, "m0->ldsdma")
    if pk == "vmem_st" and ("x4" in prod.op or "x3" in prod.op):
        data = regs_of(prod.ops[0]) if prod.op.startswith("buffer") else regs_of(prod.ops[1])
        if data & cons.dst: upd(2 if ck == "valu" else 1, "wide store WAR")
    if pk == "ds" and prod.op.startswith("ds_write") and ("b128" in prod.op or "b96" in prod.op):
        pass
    return n, why

def flatten(lines):
    ins = []; labels = {}
    for l in lines:
        l = l.strip()
        if not l or l.startswith(";"): continue
        if l.endswith(":"): labels[l[:-1]] = len(ins); continue
        if l.startswith("."): continue
        i = I(l); i.idx = len(ins); ins.append(i)
    return ins, labels

def traces(ins, labels, scen, loops=2, maxlen=400000):
    pc = 0; cnt = {}; out = []
    while pc < len(ins):
        i = ins[pc]; out.append(i)
        if len(out) > maxlen: raise RuntimeError("trace too long")
        if i.op == "s_endpgm": break
        if i.kind == "branch":
            tgt = labels[i.target]
            key = (i.target, pc)
            c = cnt.get(key, 0); cnt[key] = c + 1
            if i.op == "s_branch": taken = True
            elif i.target in scen:
                s = scen[i.target]; taken = s(c) if callable(s) else s
            elif tgt <= pc: taken = (c % (loops + 1)) < loops
            else: raise RuntimeError(f"no scenario for forward branch {i.text}")
            pc = tgt if taken else pc + 1
        else: pc += 1
    return out

def check_trace(tr, name=""):
    errs = []
    W = 24
    for k, cons in enumerate(tr):
        ws = 0
        j = k - 1
        while j >= 0 and ws < W:
            prod = tr[j]
            n, why = need(prod, cons)
            if n > ws: errs.append(f"[{name}] hazard {why}: need {n} have {ws}: '{prod.text}' -> '{cons.text}' (idx {prod.idx}->{cons.idx})")
            ws += prod.nop
            j -= 1
    vm = []; lg = []
    for cons in tr:
        if cons.kind == "wait":
            if cons.vmN is not None:
                while len(vm) > cons.vmN: vm.pop(0)
            if cons.lgN is not None:
                if any(x[1] == "smem" for x in lg) and cons.lgN != 0:
                    pass
                    errs.append(f"[{name}] counted lgkmcnt with SMEM outstanding at idx {cons.idx}")
                while len(lg) > cons.lgN: lg.pop(0)
            continue
        touched = cons.src | cons.dst
        for q, nm in ((vm, "vmcnt"), (lg, "lgkmcnt")):
            for (d, kind, p) in q:
                if d & touched:
                    if (d & cons.src) or (cons.kind not in ("ds", "vmem") and d & cons.dst) or (cons.kind in ("ds","vmem") and d & cons.dst and ((nm=="vmcnt") != (cons.kind=="vmem"))):
                        errs.append(f"[{name}] missing {nm} wait: '{p.text}' (idx {p.idx}) -> '{cons.text}' (idx {cons.idx})")
        if cons.kind in ("vmem", "vmem_lds", "vmem_st"): vm.append((cons.dst, cons.kind, cons))
        if cons.kind == "ds": lg.append((cons.dst, "ds", cons))
        if cons.kind == "smem":
            lg.append((cons.dst, "smem", cons))
            if len(cons.dst) >= 2: lg.append((set(), "smem", cons))
        if len(vm) > 63: errs.append(f"[{name}] vmcnt overflow >63 at idx {cons.idx}")
        if len(lg) > 15 and cons.kind in ("ds","smem"): errs.append(f"[{name}] lgkmcnt overflow >15 at idx {cons.idx}: {cons.text}")
    seen = set(); out = []
    for e in errs:
        if e not in seen: seen.add(e); out.append(e)
    return out

def check(lines, scenarios, name=""):
    ins, labels = flatten(lines)
    allerr = []
    for sname, scen in scenarios.items():
        tr = traces(ins, labels, scen)
        allerr += check_trace(tr, f"{name}:{sname}")
    return allerr
```

```python
from common import *

NST = 20
WSLOT = 24640; WRING = 4
XSLOT = 16384; XRING = 3
XBASE = WSLOT*WRING
DUMMY = XBASE + XSLOT*XRING
K1_LDS = DUMMY
UOFF = 12288 + 64

def gen_k1(name="k1_kernel", stamps=False, exp=""):
    c = Code()
    V = Alloc(256, 1, "v"); Sg = Alloc(100, 18, "s")
    sAX, sWQ, sBX, sGW, sWG, sWU, sWS = 4, 6, 8, 10, 12, 14, 16
    sX = Sg.take(); sJ = Sg.take(); sCG = Sg.take(); sRT = Sg.take(); sW = Sg.take(); sTQ = Sg.take(); sFH = Sg.take()
    sRS = Sg.take(); sT0 = Sg.take(); sT1 = Sg.take(); sT2 = Sg.take(); sT3 = Sg.take()
    srdX = Sg.take(4, 4); srdW = [Sg.take(4, 4) for _ in range(3)]; srdWS = Sg.take(4, 4)
    sMw = [Sg.take() for _ in range(3)]; sMx = Sg.take()
    sStage = Sg.take(); sSlotR = Sg.take(); sXslotR = Sg.take(); sSlotW = Sg.take(); sXslotW = Sg.take()
    sKx = Sg.take(); sKw = Sg.take(); sKwStep = Sg.take(); sXhalf = Sg.take()
    sBase = Sg.take(); sHS = Sg.take(); sScale = Sg.take()
    ST = Stamps(Sg, stamps, 0)
    vL = V.take(); vT = [V.take() for _ in range(8)]
    vOffX = V.take(); vOffW = [V.take() for _ in range(3)]
    vXA = V.take(); vWA = [V.take(), V.take()]
    vX4 = [V.take() for _ in range(4)]; vWH = [V.take(), V.take()]
    setA_x = V.take(4, 4); setA_w = V.take(24, 4)
    setB_x = V.take(4, 4); setB_w = V.take(24, 4)
    acc = V.take(96, 4)
    vAV = [V.take() for _ in range(5)]
    vE = V.take(16, 4)

    c.e(f"""
    s_cmp_ge_u32 s2, 256
    s_cbranch_scc1 {name}_END
    s_load_dwordx4 s[4:7], s[0:1], {KA_AX}
    s_load_dwordx2 s[8:9], s[0:1], {KA_BX}
    s_load_dwordx2 s[10:11], s[0:1], {KA_GW}
    s_load_dwordx4 s[12:15], s[0:1], {KA_WG}
    s_load_dwordx2 s[16:17], s[0:1], {KA_WS}
    v_and_b32 v{vL}, 63, v0
    v_lshrrev_b32 v{vT[0]}, 6, v0
    s_and_b32 s{sX}, s2, 7
    s_lshr_b32 s{sJ}, s2, 3
    v_readfirstlane_b32 s{sW}, v{vT[0]}
    s_lshl_b32 s{sCG}, s{sX}, 1
    s_and_b32 s{sT0}, s{sJ}, 1
    s_add_u32 s{sCG}, s{sCG}, s{sT0}
    s_lshr_b32 s{sRT}, s{sJ}, 1
    """)
    if "A" in exp: c.e(f"s_mov_b32 s{sRT}, 0")
    ST.stamp(c, real=True); ST.stamp(c)
    c.e(f"""
    v_lshrrev_b32 v{vT[1]}, 3, v{vL}
    v_lshrrev_b32 v{vT[2]}, 4, v{vL}
    s_and_b32 s{sTQ}, s{sW}, 3
    s_lshr_b32 s{sFH}, s{sW}, 2
    s_lshl_b32 s{sT0}, s{sW}, 2
    v_add_u32 v{vT[2]}, s{sT0}, v{vT[2]}
    v_xor_b32 v{vT[2]}, v{vT[2]}, v{vL}
    v_and_b32 v{vT[2]}, 7, v{vT[2]}
    v_lshlrev_b32 v{vT[2]}, 4, v{vT[2]}
    s_lshl_b32 s{sT0}, s{sRT}, 7
    s_lshl_b32 s{sT1}, s{sW}, 3
    s_add_u32 s{sT0}, s{sT0}, s{sT1}
    v_add_u32 v{vT[1]}, s{sT0}, v{vT[1]}
    v_mul_u32_u24 v{vT[1]}, 1280, v{vT[1]}
    v_add_u32 v{vOffX}, v{vT[1]}, v{vT[2]}
    s_lshl_b32 s{sMx}, s{sW}, 10
    s_add_u32 s{sMx}, s{sMx}, {XBASE}
    s_cmp_eq_u32 s{sCG}, 15
    s_cbranch_scc1 {name}_GATE
    s_waitcnt lgkmcnt(0)
    s_cmp_lt_u32 s{sCG}, 6
    s_cbranch_scc0 {name}_GLU
    """)
    srd(c, srdX, sAX, 2048*1280)
    for i in range(3):
        srd(c, srdW[i], sWQ, 640*3840)
        c.e(f"""
        s_mul_i32 s{sT0}, s{sW}, 3
        s_add_u32 s{sT0}, s{sT0}, {i}
        s_lshl_b32 s{sT1}, s{sT0}, 10
        s_cmp_lt_u32 s{sT0}, 20
        s_cselect_b32 s{sMw[i]}, s{sT1}, 20480
        s_cselect_b32 s{sT2}, 0, 0x7f000000
        s_lshl_b32 s{sT0}, s{sT0}, 6
        v_add_u32 v{vT[1]}, s{sT0}, v{vL}
        v_mul_u32_u24 v{vT[2]}, 1639, v{vT[1]}
        v_lshrrev_b32 v{vT[2]}, 16, v{vT[2]}
        v_mul_u32_u24 v{vT[3]}, 40, v{vT[2]}
        v_sub_u32 v{vT[3]}, v{vT[1]}, v{vT[3]}
        v_lshlrev_b32 v{vT[4]}, 1, v{vT[2]}
        v_and_b32 v{vT[4]}, 4, v{vT[4]}
        v_xor_b32 v{vT[3]}, v{vT[3]}, v{vT[4]}
        v_mul_u32_u24 v{vT[2]}, 3840, v{vT[2]}
        v_lshl_add_u32 v{vT[2]}, v{vT[3]}, 4, v{vT[2]}
        s_mul_i32 s{sT3}, s{sCG}, 640
        s_add_u32 s{sT3}, s{sT3}, s{sT2}
        v_add_u32 v{vOffW[i]}, s{sT3}, v{vT[2]}
        """)
    c.e(f"s_mov_b32 s{sKwStep}, {32*3840}\ns_branch {name}_DEC")
    c.label(f"{name}_GLU")
    srd(c, srdX, sAX, 2048*1280)
    for i in range(3):
        c.e(f"""
        s_mul_i32 s{sT0}, s{sW}, 3
        s_add_u32 s{sT0}, s{sT0}, {i}
        s_cmp_lt_u32 s{sT0}, 12
        s_cselect_b32 s{srdW[i]}, s{sWG}, s{sWU}
        s_cselect_b32 s{srdW[i]+1}, s{sWG+1}, s{sWU+1}
        s_cselect_b32 s{sT1}, 0, 12
        s_cselect_b32 s{sT3}, 0, {UOFF}
        s_and_b32 s{srdW[i]+1}, s{srdW[i]+1}, 0xffff
        s_mov_b32 s{srdW[i]+2}, {640*3456}
        s_mov_b32 s{srdW[i]+3}, 0x20000
        s_sub_u32 s{sT0}, s{sT0}, s{sT1}
        s_lshl_b32 s{sT1}, s{sT0}, 10
        s_add_u32 s{sMw[i]}, s{sT3}, s{sT1}
        s_lshl_b32 s{sT0}, s{sT0}, 6
        v_add_u32 v{vT[1]}, s{sT0}, v{vL}
        v_mul_u32_u24 v{vT[2]}, 2731, v{vT[1]}
        v_lshrrev_b32 v{vT[2]}, 16, v{vT[2]}
        v_mul_u32_u24 v{vT[3]}, 24, v{vT[2]}
        v_sub_u32 v{vT[3]}, v{vT[1]}, v{vT[3]}
        v_and_b32 v{vT[4]}, 2, v{vT[2]}
        v_xor_b32 v{vT[3]}, v{vT[3]}, v{vT[4]}
        v_mul_u32_u24 v{vT[2]}, 3456, v{vT[2]}
        v_lshl_add_u32 v{vT[2]}, v{vT[3]}, 4, v{vT[2]}
        s_sub_u32 s{sT3}, s{sCG}, 6
        s_mul_i32 s{sT3}, s{sT3}, 384
        v_add_u32 v{vOffW[i]}, s{sT3}, v{vT[2]}
        """)
    c.e(f"s_mov_b32 s{sKwStep}, {32*3456}")
    c.label(f"{name}_DEC")
    c.e(f"""
    s_mov_b32 s{sKx}, 0
    s_mov_b32 s{sKw}, 0
    s_mov_b32 s{sSlotW}, 0
    s_mov_b32 s{sXslotW}, 0
    s_mov_b32 s{sXhalf}, 0
    """)
    def dma_x():
        return [f"s_add_u32 m0, s{sXslotW}, s{sMx}", "s_nop 0", f"buffer_load_dwordx4 v{vOffX}, s[{srdX}:{srdX+3}], s{sKx} offen lds"]
    def adv_x():
        return [f"s_xor_b32 s{sXhalf}, s{sXhalf}, 1", f"s_cmp_eq_u32 s{sXhalf}, 1",
                f"s_mov_b32 s{sT0}, {(128 - 64*1280) & 0xffffffff}", f"s_cselect_b32 s{sT0}, {64*1280}, s{sT0}", f"s_add_u32 s{sKx}, s{sKx}, s{sT0}",
                f"s_add_u32 s{sXslotW}, s{sXslotW}, 8192", f"s_cmp_eq_u32 s{sXslotW}, {XSLOT*XRING}", f"s_cselect_b32 s{sXslotW}, 0, s{sXslotW}"]
    def dma_w(i):
        return [f"s_add_u32 m0, s{sSlotW}, s{sMw[i]}", "s_nop 0", f"buffer_load_dwordx4 v{vOffW[i]}, s[{srdW[i]}:{srdW[i]+3}], s{sKw} offen lds"]
    def adv_w():
        return [f"s_add_u32 s{sKw}, s{sKw}, s{sKwStep}", f"s_add_u32 s{sSlotW}, s{sSlotW}, {WSLOT}",
                f"s_cmp_eq_u32 s{sSlotW}, {WSLOT*WRING}", f"s_cselect_b32 s{sSlotW}, 0, s{sSlotW}"]
    return_scen = {}
    c.e("\n".join(dma_x() + adv_x()))
    for st in range(3):
        for i in range(3): c.e("\n".join(dma_w(i)))
        c.e("\n".join(dma_x() + adv_w() + adv_x()))
    c.e(f"""
    v_and_b32 v{vT[1]}, 31, v{vL}
    v_lshrrev_b32 v{vT[2]}, 5, v{vL}
    v_lshrrev_b32 v{vT[3]}, 1, v{vT[1]}
    v_xor_b32 v{vT[3]}, v{vT[3]}, v{vT[2]}
    v_and_b32 v{vT[3]}, 7, v{vT[3]}
    v_lshlrev_b32 v{vT[3]}, 4, v{vT[3]}
    v_lshl_add_u32 v{vT[3]}, v{vT[1]}, 7, v{vT[3]}
    s_lshl_b32 s{sT0}, s{sTQ}, 12
    s_add_u32 s{sT0}, s{sT0}, {XBASE}
    v_add_u32 v{vXA}, s{sT0}, v{vT[3]}
    v_and_b32 v{vT[3]}, 15, v{vL}
    v_lshrrev_b32 v{vT[4]}, 2, v{vT[3]}
    v_lshl_add_u32 v{vT[5]}, v{vT[2]}, 3, v{vT[4]}
    v_lshrrev_b32 v{vT[4]}, 1, v{vT[4]}
    v_and_b32 v{vT[3]}, 3, v{vT[3]}
    v_lshlrev_b32 v{vT[3]}, 3, v{vT[3]}
    v_lshrrev_b32 v{vT[6]}, 4, v{vL}
    v_and_b32 v{vT[6]}, 1, v{vT[6]}
    s_cmp_lt_u32 s{sCG}, 6
    s_cbranch_scc0 {name}_RA_GLU
    v_mul_u32_u24 v{vT[5]}, 640, v{vT[5]}
    v_lshl_add_u32 v{vT[5]}, v{vT[6]}, 5, v{vT[5]}
    v_add_u32 v{vT[5]}, v{vT[5]}, v{vT[3]}
    s_mul_i32 s{sT0}, s{sFH}, 320
    v_lshlrev_b32 v{vT[4]}, 6, v{vT[4]}
    s_branch {name}_RA
    {name}_RA_GLU:
    v_mul_u32_u24 v{vT[5]}, 384, v{vT[5]}
    v_mul_u32_u24 v{vT[6]}, {UOFF}, v{vT[6]}
    v_add3_u32 v{vT[5]}, v{vT[5]}, v{vT[6]}, v{vT[3]}
    s_mul_i32 s{sT0}, s{sFH}, 192
    v_lshlrev_b32 v{vT[4]}, 5, v{vT[4]}
    {name}_RA:
    v_add_u32 v{vT[5]}, s{sT0}, v{vT[5]}
    """)
    c.e(f"""
    v_add_u32 v{vWA[0]}, v{vT[5]}, v{vT[4]}
    v_sub_u32 v{vWA[1]}, v{vT[5]}, v{vT[4]}
    s_cmp_lt_u32 s{sCG}, 6
    s_cselect_b32 s{sT0}, s{sFH}, 0
    s_cmp_eq_u32 s{sT0}, 1
    s_cbranch_scc0 {name}_NOSWAP
    v_mov_b32 v{vT[5]}, v{vWA[0]}
    v_mov_b32 v{vWA[0]}, v{vWA[1]}
    v_mov_b32 v{vWA[1]}, v{vT[5]}
    {name}_NOSWAP:
    """)
    c.e(f"""
    v_add_u32 v{vWH[0]}, {2*WSLOT}, v{vWA[0]}
    v_add_u32 v{vWH[1]}, {2*WSLOT}, v{vWA[1]}
    v_mov_b32 v{vX4[0]}, v{vXA}
    v_xor_b32 v{vX4[1]}, 32, v{vXA}
    v_xor_b32 v{vX4[2]}, 64, v{vXA}
    v_xor_b32 v{vX4[3]}, 96, v{vXA}
    """)
    for r in range(96): c.e(f"v_mov_b32 v{acc+r}, 0")
    for r in range(4): c.e(f"v_mov_b32 v{setB_x+r}, 0")
    for r in range(24): c.e(f"v_mov_b32 v{setB_w+r}, 0")
    c.e(f"s_mov_b32 s{sStage}, 0\ns_mov_b32 s{sSlotR}, 0\ns_mov_b32 s{sXslotR}, 0")
    srd(c, srdWS, sWS, WS_BYTES)
    ST.stamp(c)
    c.e(f"""
    s_cmp_lt_u32 s{sCG}, 4
    s_cbranch_scc1 {name}_ENTER_T5
    s_cmp_lt_u32 s{sCG}, 6
    s_cbranch_scc1 {name}_ENTER_N5
    """)
    def reads(setx, setw, st, kk, NB, bstep, rs):
        p = st & 1; xslot = (st >> 1) % XRING; ws = st % WRING
        L = [f"ds_read_b128 {vr(setx,4)}, v{vX4[2*p+kk]} offset:{xslot*XSLOT}"]
        base = (vWA if ws < 2 else vWH); so = (ws & 1)*WSLOT
        for j in range(NB):
            a_ = base[j % 2]
            if "HR" in exp and j >= NB//2: continue
            L.append(f"ds_read_b64_tr_b16 {vr(setw+4*j,2)}, v{a_} offset:{so + kk*16*rs + bstep*j}")
            L.append(f"ds_read_b64_tr_b16 {vr(setw+4*j+2,2)}, v{a_} offset:{so + kk*16*rs + 4*rs + bstep*j}")
        return L
    def mfmas(setx, setw, NB, orient):
        if "M16" in exp:
            return [f"v_mfma_f32_16x16x32_bf16 {vr(acc+16*j,4)}, {vr(setw+4*j,4)}, {vr(setx,4)}, {vr(acc+16*j,4)}\nv_mfma_f32_16x16x32_bf16 {vr(acc+16*j+4,4)}, {vr(setw+4*j,4)}, {vr(setx,4)}, {vr(acc+16*j+4,4)}" for j in range(NB)]
        if "C" in exp: return [f"v_mfma_nop_placeholder" if False else "s_nop 0" for j in range(NB)]
        return [mfma32(acc+16*j, setw+4*j, setx) if orient == "T" else mfma32(acc+16*j, setx, setw+4*j) for j in range(NB)]
    def ins(seq, items, after):
        out = []; k = 0; cnt = 0
        for x in seq:
            out.append(x)
            if x.startswith("v_mfma") or ("C" in exp and x == "s_nop 0"):
                cnt += 1
                while k < len(items) and cnt == after[k]: out += items[k]; k += 1
        assert k == len(items)
        return out
    for (NB, orient, bstep, rs) in ((6, "T", 32, 384), (5, "T", 64, 640), (5, "N", 64, 640)):
        tag = f"{orient}{NB}"
        lp = f"{name}_LOOP_{tag}"
        c.label(f"{name}_ENTER_{tag}")
        def place(main, groups):
            out = []
            for i, x in enumerate(main):
                out.append(x); out += groups.get(i, [])
            return out
        def split_reads(rd, first, nslots):
            g = {}; per = (len(rd) + nslots - 1)//nslots
            for k in range(nslots): g[first + k] = rd[k*per:(k+1)*per]
            return g
        def udma_w(i, st):
            return [f"s_add_u32 m0, s{sMw[i]}, {(st % WRING)*WSLOT}", f"buffer_load_dwordx4 v{vOffW[i]}, s[{srdW[i]}:{srdW[i]+3}], s{sKw} offen lds"]
        def udma_x(u):
            m, hf = u >> 1, u & 1
            return [f"s_add_u32 m0, s{sMx}, {(m % XRING)*XSLOT + hf*8192}", f"s_mov_b32 s{sKx}, {m*128 + hf*64*1280}",
                    f"buffer_load_dwordx4 v{vOffX}, s[{srdX}:{srdX+3}], s{sKx} offen lds"]
        def sep(l):
            return l if len(l) > 2 else [l[0], "s_nop 0", l[1]]
        for st in range(NST):
            wdma = st + 3 < NST and "B" not in exp; xdma = st + 4 < NST and "B" not in exp
            def cnt(x): return (3 if x + 3 < NST else 0) + (1 if x + 4 < NST else 0)
            wait = "s_nop 0" if "B" in exp else f"s_waitcnt vmcnt({cnt(st-2) + cnt(st-1)})"
            c.e("s_waitcnt lgkmcnt(0)")
            g = split_reads(reads(setA_x, setA_w, st, 0, NB, bstep, rs), 0, NB-2)
            g[0] = [wait, "s_barrier"] + g[0]
            if wdma:
                g[NB-2] = g.get(NB-2, []) + sep(udma_w(0, st+3))
                g[NB-1] = g.get(NB-1, []) + sep(udma_w(1, st+3))
            c.e("\n".join(place(mfmas(setB_x, setB_w, NB, orient), g)))
            c.e("s_waitcnt lgkmcnt(0)")
            g = split_reads(reads(setB_x, setB_w, st, 1, NB, bstep, rs), 0, NB-2)
            if wdma: g[NB-2] = g.get(NB-2, []) + sep(udma_w(2, st+3)) + [f"s_add_u32 s{sKw}, s{sKw}, s{sKwStep}"]
            if xdma: g[NB-1] = g.get(NB-1, []) + udma_x(st+4)
            c.e("\n".join(place(mfmas(setA_x, setA_w, NB, orient), g)))
            if stamps and st in (2, 14):
                r = ST.s + 2*(5 if st == 2 else 6); c.e(f"s_memtime s[{r}:{r+1}]")
        c.e("s_waitcnt lgkmcnt(0)")
        c.e("\n".join(mfmas(setB_x, setB_w, NB, orient)))
        ST.i = 3; ST.stamp(c, wait=True)
        c.e(f"""
        s_lshl_b32 s{sT0}, s{sRT}, 2
        s_add_u32 s{sT0}, s{sT0}, s{sTQ}
        """)
        if NB == 6:
            c.e(f"""
            s_mul_i32 s{sBase}, s{sT0}, 108
            s_sub_u32 s{sT1}, s{sCG}, 6
            s_mul_i32 s{sT1}, s{sT1}, 12
            s_add_u32 s{sBase}, s{sBase}, s{sT1}
            s_mul_i32 s{sT1}, s{sFH}, 6
            s_add_u32 s{sBase}, s{sBase}, s{sT1}
            s_lshl_b32 s{sBase}, s{sBase}, 10
            s_add_u32 s{sBase}, s{sBase}, {HF_OFF}
            v_lshlrev_b32 v{vT[0]}, 4, v{vL}
            s_mov_b32 s{sT1}, {hexf(-LOG2E)}
            s_nop 7
            """)
            for j in range(NB):
                a = acc + 16*j; e = vE + 8*(j % 2)
                for r in range(8): c.e(f"v_mul_f32 v{a+r}, s{sT1}, v{a+r}")
                for r in range(8): c.e(f"v_exp_f32 v{a+r}, v{a+r}")
                for r in range(8): c.e(f"v_add_f32 v{a+r}, 1.0, v{a+r}")
                for r in range(8): c.e(f"v_rcp_f32 v{a+r}, v{a+r}")
                for r in range(8): c.e(f"v_mul_f32 v{a+r}, v{a+r}, v{a+8+r}")
                for p in range(4): c.e(f"v_cvt_pk_bf16_f32 v{e+p}, v{a+2*p}, v{a+2*p+1}")
                c.e(f"buffer_store_dwordx4 {vr(e,4)}, v{vT[0]}, s[{srdWS}:{srdWS+3}], s{sBase} offen")
                c.e(f"s_add_u32 s{sBase}, s{sBase}, 1024")
            c.e(f"s_branch {name}_FIN")
        else:
            c.e(f"s_barrier\ns_mul_i32 s{sT1}, s{sW}, 10240")
            if orient == "T":
                c.e(f"""
                s_cmp_lt_u32 s{sCG}, 2
                {csel(sHS, QF_HS, KV_HS)}
                {csel(sT2, QF_TS, KV_TS)}
                {csel(sBase, QF_OFF, KV_OFF)}
                {csel(sScale, hexf(LOG2E*20**-0.5), hexf(1.0))}
                v_and_b32 v{vT[0]}, 31, v{vL}
                v_lshl_add_u32 v{vT[1]}, v{vT[0]}, 4, s{sT1}
                v_lshl_add_u32 v{vT[2]}, v{vT[0]}, 3, s{sT1}
                v_cmp_lt_u32 vcc, 31, v{vL}
                """)
                for qd in range(5):
                    def off(q, dst):
                        if q < 4: return f"v_add_u32 v{dst}, {(q>>1)*512 + (q&1)*8}, v{vT[1]}"
                        if q == 4: return f"v_add_u32 v{dst}, 1024, v{vT[2]}"
                        return f"v_add_u32 v{dst}, 1280, v{vT[1]}"
                    c.e(off(qd, vT[3])); c.e(off(qd+1, vT[4]))
                    c.e(f"v_cndmask_b32 v{vAV[qd]}, v{vT[3]}, v{vT[4]}, vcc")
                for jj in range(5):
                    a = acc + 16*jj; e = vE + 8*(jj % 2)
                    for r in range(16): c.e(f"v_mul_f32 v{a+r}, s{sScale}, v{a+r}")
                    for p in range(8): c.e(f"v_cvt_pk_bf16_f32 v{e+p}, v{a+2*p}, v{a+2*p+1}")
                    for g in range(4):
                        h0, q0 = divmod(8*jj + 2*g, 5)
                        c.e(f"ds_write_b64 v{vAV[q0]}, {vr(e+2*g,2)} offset:{h0*1280}")
                    c.e("s_waitcnt lgkmcnt(4)")
            else:
                c.e(f"""
                s_mov_b32 s{sHS}, {KV_HS}
                s_mov_b32 s{sT2}, {KV_TS}
                s_mov_b32 s{sBase}, {KV_OFF + 1280}
                v_and_b32 v{vT[0]}, 31, v{vL}
                v_lshrrev_b32 v{vT[1]}, 5, v{vL}
                v_mul_u32_u24 v{vT[1]}, 320, v{vT[1]}
                v_add_u32 v{vT[1]}, s{sT1}, v{vT[1]}
                """)
                for jj in range(5):
                    a = acc + 16*jj; e = vE + 8*(jj % 2)
                    c.e(f"""
                    v_add_u32 v{vT[2]}, {32*jj}, v{vT[0]}
                    v_mul_u32_u24 v{vT[3]}, 3277, v{vT[2]}
                    v_lshrrev_b32 v{vT[3]}, 16, v{vT[3]}
                    v_mul_u32_u24 v{vT[4]}, 20, v{vT[3]}
                    v_sub_u32 v{vT[2]}, v{vT[2]}, v{vT[4]}
                    v_mul_u32_u24 v{vT[3]}, 1280, v{vT[3]}
                    v_lshl_add_u32 v{vT[2]}, v{vT[2]}, 4, v{vT[3]}
                    v_add_u32 v{vAV[jj]}, v{vT[2]}, v{vT[1]}
                    """)
                    for p in range(8): c.e(f"v_cvt_pk_bf16_f32 v{e+p}, v{a+2*p}, v{a+2*p+1}")
                    c.e(f"ds_write_b128 v{vAV[jj]}, {vr(e,4)}")
                    c.e(f"ds_write_b128 v{vAV[jj]}, {vr(e+4,4)} offset:640")
            c.e(f"""
            s_mul_i32 s{sT0}, s{sT0}, s{sT2}
            s_add_u32 s{sBase}, s{sBase}, s{sT0}
            s_and_b32 s{sT0}, s{sCG}, 1
            s_lshl_b32 s{sT0}, s{sT0}, 1
            s_add_u32 s{sT0}, s{sT0}, s{sFH}
            s_lshl_b32 s{sT0}, s{sT0}, 3
            s_mul_i32 s{sT0}, s{sT0}, s{sHS}
            s_add_u32 s{sBase}, s{sBase}, s{sT0}
            s_lshl_b32 s{sT2}, s{sHS}, 2
            s_add_u32 s{sT2}, s{sT2}, s{sBase}
            v_lshl_add_u32 v{vT[0]}, v{vL}, 4, s{sT1}
            """)
            for i in range(5):
                c.e(f"""
                v_add_u32 v{vT[1]}, {64*i}, v{vL}
                v_mul_u32_u24 v{vT[2]}, 820, v{vT[1]}
                v_lshrrev_b32 v{vT[2]}, 16, v{vT[2]}
                v_mul_u32_u24 v{vT[3]}, 80, v{vT[2]}
                v_sub_u32 v{vT[3]}, v{vT[1]}, v{vT[3]}
                v_mul_lo_u32 v{vT[2]}, v{vT[2]}, s{sHS}
                v_lshl_add_u32 v{vAV[i]}, v{vT[3]}, 4, v{vT[2]}
                """)
            c.e("s_waitcnt lgkmcnt(0)")
            for i in range(10):
                c.e(f"ds_read_b128 {vr(acc+4*i,4)}, v{vT[0]} offset:{1024*i}")
            for i in range(10):
                c.e(f"s_waitcnt lgkmcnt({9-i})")
                c.e(f"buffer_store_dwordx4 {vr(acc+4*i,4)}, v{vAV[i%5]}, s[{srdWS}:{srdWS+3}], s{sBase if i < 5 else sT2} offen")
            c.e(f"s_branch {name}_FIN")
    c.label(f"{name}_GATE")
    c.e("s_waitcnt lgkmcnt(0)")
    srd(c, srdX, sAX, 2048*1280)
    srd(c, srdW[0], sGW, 1280)
    srd(c, srdWS, sWS, WS_BYTES)
    vG = acc
    c.e(f"""
    v_lshlrev_b32 v{vT[5]}, 2, v{vL}
    s_lshl_b32 s{sT0}, s{sRT}, 7
    s_lshl_b32 s{sT1}, s{sW}, 4
    s_add_u32 s{sStage}, s{sT0}, s{sT1}
    s_add_u32 s{sBase}, s{sStage}, 16
    """)
    for i in range(5):
        c.e(f"buffer_load_dword v{vG+5+i}, v{vT[5]}, s[{srdW[0]}:{srdW[0]+3}], 0 offen offset:{256*i}")
    c.label(f"{name}_GLOOP")
    c.e(f"s_mul_i32 s{sT1}, s{sStage}, 1280")
    for i in range(5):
        c.e(f"buffer_load_dword v{vG+i}, v{vT[5]}, s[{srdX}:{srdX+3}], s{sT1} offen offset:{256*i}")
    c.e("s_waitcnt vmcnt(0)")
    for i in range(5):
        c.e(f"""
        v_lshlrev_b32 v{vT[0]}, 16, v{vG+i}
        v_and_b32 v{vT[1]}, 0xffff0000, v{vG+i}
        v_lshlrev_b32 v{vT[2]}, 16, v{vG+5+i}
        v_and_b32 v{vT[3]}, 0xffff0000, v{vG+5+i}
        v_mul_f32 v{vT[0]}, v{vT[0]}, v{vT[2]}
        v_mul_f32 v{vT[1]}, v{vT[1]}, v{vT[3]}
        v_cvt_pk_bf16_f32 v{vT[0]}, v{vT[0]}, v{vT[1]}
        v_lshlrev_b32 v{vT[2]}, 16, v{vT[0]}
        v_and_b32 v{vT[3]}, 0xffff0000, v{vT[0]}
        """)
        if i == 0: c.e(f"v_add_f32 v{vT[4]}, v{vT[2]}, v{vT[3]}")
        else: c.e(f"v_add_f32 v{vT[2]}, v{vT[2]}, v{vT[3]}\nv_add_f32 v{vT[4]}, v{vT[4]}, v{vT[2]}")
    for sh in ("row_shr:1", "row_shr:2", "row_shr:4", "row_shr:8"):
        c.e(f"s_nop 1\nv_add_f32_dpp v{vT[4]}, v{vT[4]}, v{vT[4]} {sh} row_mask:0xf bank_mask:0xf bound_ctrl:0")
    c.e(f"""
    s_nop 1
    v_readlane_b32 s{sT0}, v{vT[4]}, 15
    v_readlane_b32 s{sT1}, v{vT[4]}, 31
    v_readlane_b32 s{sT2}, v{vT[4]}, 47
    v_readlane_b32 s{sT3}, v{vT[4]}, 63
    s_nop 1
    v_mov_b32 v{vT[0]}, s{sT0}
    v_add_f32 v{vT[0]}, s{sT1}, v{vT[0]}
    v_add_f32 v{vT[0]}, s{sT2}, v{vT[0]}
    v_add_f32 v{vT[0]}, s{sT3}, v{vT[0]}
    v_cvt_pk_bf16_f32 v{vT[0]}, v{vT[0]}, v{vT[0]}
    v_lshlrev_b32 v{vT[0]}, 16, v{vT[0]}
    v_mul_f32 v{vT[0]}, {hexf(-LOG2E)}, v{vT[0]}
    v_exp_f32 v{vT[0]}, v{vT[0]}
    s_nop 0
    v_add_f32 v{vT[0]}, 1.0, v{vT[0]}
    v_rcp_f32 v{vT[0]}, v{vT[0]}
    s_nop 0
    v_cvt_pk_bf16_f32 v{vT[0]}, v{vT[0]}, v{vT[0]}
    v_lshlrev_b32 v{vE}, 16, v{vT[0]}
    v_sub_f32 v{vT[1]}, 1.0, v{vE}
    v_cvt_pk_bf16_f32 v{vT[1]}, v{vT[1]}, v{vT[1]}
    v_lshlrev_b32 v{vE+1}, 16, v{vT[1]}
    s_lshl_b32 s{sT0}, s{sStage}, 3
    s_add_u32 s{sT0}, s{sT0}, {G_OFF}
    v_mov_b32 v{vT[2]}, 0
    s_mov_b64 exec, 1
    buffer_store_dwordx2 {vr(vE,2)}, v{vT[2]}, s[{srdWS}:{srdWS+3}], s{sT0} offen
    s_mov_b64 exec, -1
    s_add_u32 s{sStage}, s{sStage}, 1
    s_cmp_lt_u32 s{sStage}, s{sBase}
    s_cbranch_scc1 {name}_GLOOP
    """)
    if stamps:
        ST.i = 2; ST.stamp(c); ST.stamp(c)
    c.label(f"{name}_FIN")
    c.e("s_waitcnt vmcnt(0)")
    ST.i = 4; ST.stamp(c)
    if stamps:
        c.e(f"s_memrealtime s[{ST.s+14}:{ST.s+15}]"); ST.i = 8
    ST.flush(c, sW, srdWS, vT[2], vT[3], sT0)
    c.e(f"""
    s_waitcnt vmcnt(0)
    {name}_END:
    s_endpgm
    """)
    def S(role, fh=0):
        d = {f"{name}_END": False, f"{name}_GATE": role == "gate", f"{name}_GLU": role == "glu", f"{name}_RA_GLU": role == "glu",
             f"{name}_NOSWAP": not (role != "glu" and fh == 1), f"{name}_ENTER_T5": role == "qk", f"{name}_ENTER_N5": role == "v"}
        return d
    scen = {"glu": S("glu"), "qk0": S("qk"), "qk1": S("qk", 1), "v": S("v"), "gate": S("gate")}
    return c, V.hi, scen, K1_LDS

if __name__ == "__main__":
    c, nv, scen, lds = gen_k1()
    errs = check(c.lines, scen, "k1")
    print("vgprs", nv, "lds", lds, "lines", len(c.lines))
    for e in errs[:40]: print(e)
```

```python
from common import *

CH = 10240
SLOT = 2*CH; RING = 3
DUMMY = SLOT*RING
FLAG = DUMMY + 1024
XCH = 0
K2_LDS = FLAG + 64

def gen_k2(name="k2_kernel", stamps=False, exp=""):
    c = Code()
    V = Alloc(256, 1, "v"); Sg = Alloc(100, 8, "s")
    sWS = 4
    sX = Sg.take(); sJ = Sg.take(); sHead = Sg.take(); sQB = Sg.take(); sW = Sg.take(); sQG = Sg.take(); sKH = Sg.take()
    sT0 = Sg.take(); sT1 = Sg.take(); sT2 = Sg.take(); sT3 = Sg.take()
    srdWS = Sg.take(4, 4)
    sMaskLo = Sg.take(2, 2); sMaskV = Sg.take(2, 2)
    sSrc = Sg.take(); sM = [Sg.take() for _ in range(3)]; sSlotW = Sg.take(); sSlotR = Sg.take(); sC = Sg.take(); sMode = Sg.take()
    sSrc0 = Sg.take(); sTile = Sg.take()
    ST = Stamps(Sg, stamps, 1)
    vL = V.take(); vT = [V.take() for _ in range(8)]
    vOff = V.take(); vOff3 = V.take()
    vK1a = V.take(); vK2a = V.take(); vVa = V.take()
    vK1c = V.take(); vK2c = V.take(); vVc = V.take()
    vG = [V.take(), V.take()]
    Q1 = [V.take(4, 4), V.take(4, 4)]; Q2 = [V.take(2, 2), V.take(2, 2)]
    K1 = V.take(4, 4); K2 = V.take(2, 2); V0 = V.take(4, 4); V1 = V.take(4, 4)
    S_ = [V.take(16, 4), V.take(16, 4)]; O = [V.take(16, 4), V.take(16, 4)]
    P = [V.take(4, 4), V.take(4, 4)]
    vM = [V.take(), V.take()]
    srd4 = f"s[{srdWS}:{srdWS+3}]"

    c.e(f"""
    s_cmp_ge_u32 s2, 256
    s_cbranch_scc1 {name}_END
    s_load_dwordx2 s[4:5], s[0:1], {KA_WS}
    v_and_b32 v{vL}, 63, v0
    v_lshrrev_b32 v{vT[0]}, 6, v0
    s_and_b32 s{sX}, s2, 7
    s_lshr_b32 s{sJ}, s2, 3
    v_readfirstlane_b32 s{sW}, v{vT[0]}
    s_lshr_b32 s{sT0}, s{sJ}, 3
    s_lshl_b32 s{sHead}, s{sX}, 2
    s_add_u32 s{sHead}, s{sHead}, s{sT0}
    s_and_b32 s{sQB}, s{sJ}, 7
    s_mov_b32 s{sMaskLo}, -1
    s_mov_b32 s{sMaskLo+1}, 0
    s_mov_b32 s{sMaskV}, 0xfffff
    s_mov_b32 s{sMaskV+1}, 0xfffff
    """)
    ST.stamp(c, real=True); ST.stamp(c)
    c.e(f"""
    s_and_b32 s{sQG}, s{sW}, 3
    s_lshr_b32 s{sKH}, s{sW}, 2
    v_lshlrev_b32 v{vOff}, 4, v{vL}
    s_cmp_lt_u32 s{sQG}, 2
    s_cselect_b32 s{sT0}, 0, 0x7f000000
    v_add_u32 v{vOff3}, s{sT0}, v{vOff}
    s_mul_i32 s{sSrc0}, s{sHead}, {KV_HS}
    s_mul_i32 s{sT0}, s{sKH}, {32*KV_TS}
    s_add_u32 s{sSrc0}, s{sSrc0}, s{sT0}
    s_lshl_b32 s{sT0}, s{sQG}, 10
    s_add_u32 s{sSrc0}, s{sSrc0}, s{sT0}
    s_add_u32 s{sSrc0}, s{sSrc0}, {KV_OFF}
    s_mul_i32 s{sT1}, s{sKH}, {CH}
    s_add_u32 s{sM[0]}, s{sT1}, s{sT0}
    s_add_u32 s{sM[1]}, s{sM[0]}, 4096
    s_add_u32 s{sM[2]}, s{sM[0]}, 8192
    s_waitcnt lgkmcnt(0)
    """)
    srd(c, srdWS, sWS, WS_BYTES)
    def dma_chunk():
        L = []
        L += [f"s_add_u32 m0, s{sSlotW}, s{sM[0]}", "s_nop 0", f"buffer_load_dwordx4 v{vOff}, {srd4}, s{sSrc} offen lds"]
        L += [f"s_add_u32 m0, s{sSlotW}, s{sM[1]}", f"s_add_u32 s{sT0}, s{sSrc}, 4096", f"buffer_load_dwordx4 v{vOff}, {srd4}, s{sT0} offen lds"]
        L += [f"s_add_u32 s{sT1}, s{sSlotW}, s{sM[2]}", f"s_cmp_lt_u32 s{sQG}, 2", f"s_cselect_b32 m0, s{sT1}, {DUMMY}", f"s_add_u32 s{sT0}, s{sSrc}, 8192",
              f"buffer_load_dwordx4 v{vOff3}, {srd4}, s{sT0} offen lds"]
        L += [f"s_add_u32 s{sSrc}, s{sSrc}, {CH}", f"s_add_u32 s{sSlotW}, s{sSlotW}, {SLOT}", f"s_cmp_eq_u32 s{sSlotW}, {SLOT*RING}", f"s_cselect_b32 s{sSlotW}, 0, s{sSlotW}"]
        return L
    c.e(f"""
    s_lshl_b32 s{sTile}, s{sQB}, 3
    s_lshl_b32 s{sT0}, s{sQG}, 1
    s_add_u32 s{sTile}, s{sTile}, s{sT0}
    s_mul_i32 s{sT0}, s{sHead}, {QF_HS}
    s_mul_i32 s{sT1}, s{sTile}, {QF_TS}
    s_add_u32 s{sT0}, s{sT0}, s{sT1}
    s_add_u32 s{sT1}, s{sT0}, {QF_TS}
    v_and_b32 v{vT[0]}, 31, v{vL}
    v_lshlrev_b32 v{vT[1]}, 3, v{vT[0]}
    v_mov_b32 v{Q2[0]}, 0
    v_mov_b32 v{Q2[0]+1}, 0
    v_mov_b32 v{Q2[1]}, 0
    v_mov_b32 v{Q2[1]+1}, 0
    buffer_load_dwordx4 {vr(Q1[0],4)}, v{vOff}, {srd4}, s{sT0} offen
    buffer_load_dwordx4 {vr(Q1[1],4)}, v{vOff}, {srd4}, s{sT1} offen
    s_mov_b64 exec, s[{sMaskLo}:{sMaskLo+1}]
    buffer_load_dwordx2 {vr(Q2[0],2)}, v{vT[1]}, {srd4}, s{sT0} offen offset:1024
    buffer_load_dwordx2 {vr(Q2[1],2)}, v{vT[1]}, {srd4}, s{sT1} offen offset:1024
    s_mov_b64 exec, -1
    s_lshl_b32 s{sT2}, s{sTile}, 8
    s_add_u32 s{sT2}, s{sT2}, {G_OFF}
    buffer_load_dword v{vG[0]}, v{vT[1]}, {srd4}, s{sT2} offen
    buffer_load_dword v{vG[1]}, v{vT[1]}, {srd4}, s{sT2} offen offset:256
    s_mov_b32 s{sMode}, 0
    """)
    c.e(f"""
    s_mul_i32 s{sT0}, s{sKH}, {CH}
    v_add_u32 v{vK1a}, s{sT0}, v{vOff}
    v_add_u32 v{vK2a}, s{sT0}, v{vT[1]}
    v_lshrrev_b32 v{vT[2]}, 5, v{vL}
    v_mul_u32_u24 v{vT[2]}, 320, v{vT[2]}
    v_lshl_add_u32 v{vT[2]}, v{vT[0]}, 4, v{vT[2]}
    v_add_u32 v{vVa}, s{sT0}, v{vT[2]}
    v_cmp_eq_u32 vcc, 20, v{vT[0]}
    v_mov_b32 v{vT[3]}, 0
    v_mov_b32 v{vT[4]}, 0x3f803f80
    v_cndmask_b32 v{vT[3]}, v{vT[3]}, v{vT[4]}, vcc
    """)
    for r in range(4): c.e(f"v_mov_b32 v{V0+r}, v{vT[3]}\nv_mov_b32 v{V1+r}, v{vT[3]}")
    c.e(f"v_mov_b32 v{K2}, 0x3f803f80\nv_mov_b32 v{K2+1}, 0x3f80")
    c.e(f"v_mov_b32 v{vT[3]}, 0\nv_mov_b32 v{vT[4]}, {FLAG}\nds_write_b32 v{vT[4]}, v{vT[3]}")
    c.label(f"{name}_PASS")
    c.e(f"s_mov_b32 s{sSrc}, s{sSrc0}\ns_mov_b32 s{sSlotW}, 0\ns_mov_b32 s{sSlotR}, 0\ns_mov_b32 s{sC}, 0")
    c.e("\n".join(dma_chunk())); c.e("\n".join(dma_chunk()))
    for b in range(2):
        for r in range(16): c.e(f"v_mov_b32 v{O[b]+r}, 0")
    c.e(f"""
    v_mov_b32 v{vK1c}, v{vK1a}
    v_mov_b32 v{vK2c}, v{vK2a}
    v_mov_b32 v{vVc}, v{vVa}
    s_waitcnt vmcnt(3) lgkmcnt(0)
    s_barrier
    """)
    def rdK(off):
        return [f"s_mov_b64 exec, s[{sMaskLo}:{sMaskLo+1}]", f"ds_read_b64 {vr(K2,2)}, v{vK2c} offset:{off+1024}", "s_mov_b64 exec, -1", f"ds_read_b128 {vr(K1,4)}, v{vK1c} offset:{off}"]
    def rdV(which, off):
        r = V0 if which == 0 else V1
        return [f"s_mov_b64 exec, s[{sMaskV}:{sMaskV+1}]", f"ds_read_b128 {vr(r,4)}, v{vVc} offset:{off + 1280 + 640*which}", "s_mov_b64 exec, -1"]
    def qk(b): return [mfma32(S_[b], K1, Q1[b], cz=0), mfma32x8(S_[b], K2, Q2[b])]
    c.e("\n".join(rdK(0) + rdV(0, 0) + rdV(1, 0)))
    c.e("s_waitcnt lgkmcnt(2)")
    c.e("\n".join(qk(0)))
    c.e("s_nop 7\ns_nop 3")
    ST.stamp(c, wait=True)
    def half(b, tt):
        s = S_[b]; L = []
        e = lambda i: f"v_exp_f32 v{s+i}, v{s+i}"
        cv = lambda p: f"v_cvt_pk_bf16_f32 v{P[p//4] + p%4}, v{s+2*p}, v{s+2*p+1}"
        m = qk(1 - b)
        nxt = ((tt + 1) % 4)*KV_TS
        if b == 1: L.append("s_waitcnt lgkmcnt(0)")
        L.append(m[0])
        L += [e(0), e(1), e(2), e(3)]
        L.append(m[1])
        if b == 0:
            if tt == 3:
                L += ["s_waitcnt vmcnt(0)", "s_barrier",
                      f"s_add_u32 s{sSlotR}, s{sSlotR}, {SLOT}", f"s_cmp_eq_u32 s{sSlotR}, {SLOT*RING}", f"s_cselect_b32 s{sSlotR}, 0, s{sSlotR}",
                      f"v_add_u32 v{vK1c}, s{sSlotR}, v{vK1a}", f"v_add_u32 v{vK2c}, s{sSlotR}, v{vK2a}", f"v_add_u32 v{vVc}, s{sSlotR}, v{vVa}"]
            L += rdK(nxt)
            if tt == 3:
                L += [f"s_cmp_ge_u32 s{sC}, 6", f"s_cbranch_scc1 {name}_NODMA"] + dma_chunk() + [f"{name}_NODMA:"]
        L += [e(4), e(5), cv(0), e(6), e(7), cv(1), e(8), cv(2), e(9), cv(3), e(10), e(11)]
        if b == 0: L.append("s_waitcnt lgkmcnt(3)")
        L.append(mfma32(O[b], V0, P[0]))
        if b == 1: L += rdV(0, nxt)
        L += [e(12), e(13), cv(4), e(14), e(15), cv(5), cv(6), cv(7)]
        if b == 0: L += ["s_waitcnt lgkmcnt(2)", "s_nop 0"]
        else: L += ["s_nop 1"]
        L.append(mfma32(O[b], V1, P[1]))
        if b == 1: L += rdV(1, nxt)
        return L
    c.label(f"{name}_LOOP")
    for tt in range(4):
        c.e("\n".join(half(0, tt))); c.e("\n".join(half(1, tt)))
    c.e(f"""
    s_add_u32 s{sC}, s{sC}, 1
    s_cmp_lt_u32 s{sC}, 8
    s_cbranch_scc1 {name}_LOOP
    """)
    ST.i = 3; ST.stamp(c, wait=True)
    c.e("s_waitcnt lgkmcnt(0)\ns_nop 7\ns_nop 3")
    c.e(f"s_cmp_eq_u32 s{sKH}, 0\ns_cbranch_scc1 {name}_NOSWAP")
    for r in range(12): c.e(f"v_swap_b32 v{O[0]+r}, v{O[1]+r}")
    c.e(f"v_swap_b32 v{vG[0]}, v{vG[1]}")
    c.label(f"{name}_NOSWAP")
    c.e(f"""
    v_add_f32 v{vT[0]}, |v{O[0]}|, |v{O[1]}|
    """)
    for r in range(1, 12): c.e(f"v_add_f32 v{vT[0]}, |v{O[0]+r}|, v{vT[0]}\nv_add_f32 v{vT[0]}, |v{O[1]+r}|, v{vT[0]}")
    sU = Sg.take(2, 2); sU2 = Sg.take(2, 2)
    c.e(f"""
    v_mov_b32 v{vT[1]}, 0x7f800000
    v_mov_b32 v{vT[2]}, {hexf(2.0**63)}
    v_mov_b32 v{vT[3]}, {hexf(2.0**-63)}
    v_cmp_nlt_f32 s[{sU}:{sU+1}], v{vT[0]}, v{vT[1]}
    v_cmp_nle_f32 vcc, v{O[0]+8}, v{vT[2]}
    s_nop 3
    s_mov_b64 s[{sU2}:{sU2+1}], vcc
    v_cmp_nle_f32 vcc, v{O[1]+8}, v{vT[2]}
    s_nop 3
    s_or_b64 s[{sU2}:{sU2+1}], s[{sU2}:{sU2+1}], vcc
    v_cmp_nge_f32 vcc, v{O[0]+8}, v{vT[3]}
    s_nop 3
    s_or_b64 s[{sU2}:{sU2+1}], s[{sU2}:{sU2+1}], vcc
    v_cmp_nge_f32 vcc, v{O[1]+8}, v{vT[3]}
    s_nop 3
    s_or_b64 s[{sU2}:{sU2+1}], s[{sU2}:{sU2+1}], vcc
    s_andn2_b64 s[{sU2}:{sU2+1}], s[{sU2}:{sU2+1}], s[{sMaskLo}:{sMaskLo+1}]
    s_or_b64 s[{sU}:{sU+1}], s[{sU}:{sU+1}], s[{sU2}:{sU2+1}]
    s_barrier
    s_mul_i32 s{sT0}, s{sW}, 3072
    v_add_u32 v{vT[4]}, s{sT0}, v{vOff}
    """)
    for g in range(3): c.e(f"ds_write_b128 v{vT[4]}, {vr(O[1]+4*g,4)} offset:{1024*g}")
    c.e(f"""
    s_cmp_eq_u64 s[{sU}:{sU+1}], 0
    s_cbranch_scc1 {name}_SAFE
    v_mov_b32 v{vT[3]}, 1
    v_mov_b32 v{vT[5]}, {FLAG}
    ds_write_b32 v{vT[5]}, v{vT[3]}
    {name}_SAFE:
    s_xor_b32 s{sT0}, s{sW}, 4
    s_mul_i32 s{sT0}, s{sT0}, 3072
    v_add_u32 v{vT[4]}, s{sT0}, v{vOff}
    v_mov_b32 v{vT[5]}, {FLAG}
    s_waitcnt lgkmcnt(0)
    s_barrier
    ds_read_b32 v{vT[3]}, v{vT[5]}
    """)
    for g in range(3): c.e(f"ds_read_b128 {vr(S_[0]+4*g,4)}, v{vT[4]} offset:{1024*g}")
    c.e(f"""
    s_waitcnt lgkmcnt(0)
    v_readfirstlane_b32 s{sT0}, v{vT[3]}
    s_nop 3
    s_cmp_eq_u32 s{sMode}, 0
    s_cselect_b32 s{sT0}, s{sT0}, 0
    s_cmp_eq_u32 s{sT0}, 0
    s_cbranch_scc0 {name}_FALLBACK
    """)
    for r in range(12): c.e(f"v_add_f32 v{O[0]+r}, v{O[0]+r}, v{S_[0]+r}")
    c.e(f"""
    v_mov_b32 v{vT[0]}, v{O[0]+8}
    v_mov_b32 v{vT[1]}, v{O[0]+8}
    s_nop 1
    v_permlane32_swap_b32 v{vT[0]}, v{vT[1]}
    s_nop 1
    v_rcp_f32 v{vT[1]}, v{vT[1]}
    s_nop 0
    v_mul_f32 v{vT[1]}, v{vT[1]}, v{vG[0]}
    """)
    for r in range(12): c.e(f"v_mul_f32 v{O[0]+r}, v{O[0]+r}, v{vT[1]}")
    for p in range(6): c.e(f"v_cvt_pk_bf16_f32 v{S_[1]+p}, v{O[0]+2*p}, v{O[0]+2*p+1}")
    c.e(f"""
    s_add_u32 s{sT0}, s{sTile}, s{sKH}
    s_mul_i32 s{sT0}, s{sT0}, {40*1024}
    s_add_u32 s{sT0}, s{sT0}, {OF_OFF}
    s_mul_i32 s{sT1}, s{sHead}, 5
    v_lshrrev_b32 v{vT[2]}, 5, v{vL}
    v_add_u32 v{vT[2]}, s{sT1}, v{vT[2]}
    v_and_b32 v{vT[3]}, 31, v{vL}
    v_lshlrev_b32 v{vT[3]}, 4, v{vT[3]}
    """)
    for g in range(3):
        c.e(f"""
        v_add_u32 v{vT[4]}, {2*g}, v{vT[2]}
        v_lshrrev_b32 v{vT[5]}, 2, v{vT[4]}
        v_lshlrev_b32 v{vT[5]}, 10, v{vT[5]}
        v_and_b32 v{vT[6]}, 1, v{vT[4]}
        v_lshl_add_u32 v{vT[5]}, v{vT[6]}, 9, v{vT[5]}
        v_and_b32 v{vT[6]}, 2, v{vT[4]}
        v_lshl_add_u32 v{vT[5]}, v{vT[6]}, 2, v{vT[5]}
        v_add_u32 v{vT[5]}, v{vT[5]}, v{vT[3]}
        """)
        if g == 2: c.e(f"s_mov_b64 exec, s[{sMaskLo}:{sMaskLo+1}]")
        c.e(f"buffer_store_dwordx2 {vr(S_[1]+2*g,2)}, v{vT[5]}, {srd4}, s{sT0} offen")
    c.e("s_mov_b64 exec, -1")
    c.e(f"s_branch {name}_FIN")
    c.label(f"{name}_FALLBACK")
    c.e(f"s_cmp_eq_u32 s{sKH}, 0\ns_cbranch_scc1 {name}_FB_NOSWAP\nv_swap_b32 v{vG[0]}, v{vG[1]}\n{name}_FB_NOSWAP:")
    c.e(f"""
    s_mov_b32 s{sMode}, 1
    v_mov_b32 v{vM[0]}, 0xff800000
    v_mov_b32 v{vM[1]}, 0xff800000
    s_mov_b32 s{sSrc}, s{sSrc0}
    s_mov_b32 s{sC}, 0
    {name}_FB_LOOP:
    s_barrier
    s_mov_b32 s{sSlotW}, 0
    """)
    c.e("\n".join(dma_chunk()))
    c.e(f"s_waitcnt vmcnt(0)\ns_barrier\nv_mov_b32 v{vK1c}, v{vK1a}\nv_mov_b32 v{vK2c}, v{vK2a}")
    for tt in range(4):
        c.e("\n".join(rdK(tt*KV_TS)))
        c.e("s_waitcnt lgkmcnt(0)")
        c.e("\n".join(qk(0) + qk(1)))
        c.e("s_nop 7\ns_nop 7")
        for b in range(2):
            for r in range(0, 16, 2): c.e(f"v_max3_f32 v{vM[b]}, v{S_[b]+r}, v{S_[b]+r+1}, v{vM[b]}")
    c.e(f"""
    s_add_u32 s{sC}, s{sC}, 1
    s_cmp_lt_u32 s{sC}, 8
    s_cbranch_scc1 {name}_FB_LOOP
    """)
    for b in range(2):
        c.e(f"""
        v_mov_b32 v{vT[0]}, v{vM[b]}
        v_mov_b32 v{vT[1]}, v{vM[b]}
        s_nop 1
        v_permlane32_swap_b32 v{vT[0]}, v{vT[1]}
        s_nop 1
        v_max_f32 v{vM[b]}, v{vT[0]}, v{vT[1]}
        """)
    c.e(f"""
    s_barrier
    s_lshl_b32 s{sT0}, s{sW}, 9
    v_lshlrev_b32 v{vT[2]}, 2, v{vL}
    v_add_u32 v{vT[3]}, s{sT0}, v{vT[2]}
    ds_write_b32 v{vT[3]}, v{vM[0]}
    ds_write_b32 v{vT[3]}, v{vM[1]} offset:256
    s_xor_b32 s{sT0}, s{sW}, 4
    s_lshl_b32 s{sT0}, s{sT0}, 9
    v_add_u32 v{vT[3]}, s{sT0}, v{vT[2]}
    s_waitcnt lgkmcnt(0)
    s_barrier
    ds_read_b32 v{vT[4]}, v{vT[3]}
    ds_read_b32 v{vT[5]}, v{vT[3]} offset:256
    s_waitcnt lgkmcnt(0)
    v_max_f32 v{vM[0]}, v{vM[0]}, v{vT[4]}
    v_max_f32 v{vM[1]}, v{vM[1]}, v{vT[5]}
    s_barrier
    """)
    for b in range(2):
        c.e(f"""
        v_sub_f32 v{vT[0]}, 0, v{vM[b]}
        v_and_b32 v{vT[1]}, 0xffff0000, v{vT[0]}
        v_sub_f32 v{vT[2]}, v{vT[0]}, v{vT[1]}
        v_and_b32 v{vT[3]}, 0xffff0000, v{vT[2]}
        v_sub_f32 v{vT[4]}, v{vT[2]}, v{vT[3]}
        v_lshrrev_b32 v{vT[1]}, 16, v{vT[1]}
        v_or_b32 v{vT[1]}, v{vT[1]}, v{vT[3]}
        v_lshrrev_b32 v{vT[4]}, 16, v{vT[4]}
        s_mov_b64 exec, s[{sMaskLo}:{sMaskLo+1}]
        s_not_b64 exec, exec
        v_mov_b32 v{Q2[b]}, v{vT[1]}
        v_mov_b32 v{Q2[b]+1}, v{vT[4]}
        s_mov_b64 exec, -1
        """)
    c.e(f"s_branch {name}_PASS")
    c.label(f"{name}_FIN")
    c.e("s_waitcnt vmcnt(0)")
    ST.i = 4; ST.stamp(c); ST.stamp(c, real=True)
    ST.flush(c, sW, srdWS, vT[2], vT[3], sT0)
    c.e(f"""
    s_waitcnt vmcnt(0)
    {name}_END:
    s_endpgm
    """)
    def S(kh, unsafe=False, fb=False):
        cntfb = {"n": 0}
        d = {f"{name}_END": False, f"{name}_NODMA": (lambda k: k % 3 == 2), f"{name}_NOSWAP": kh == 0, f"{name}_SAFE": not unsafe,
             f"{name}_FALLBACK": (lambda k: k == 0 and fb), f"{name}_FB_NOSWAP": kh == 0}
        return d
    scen = {"kh0": S(0), "kh1": S(1), "fb": S(1, True, True)}
    return c, V.hi, scen, K2_LDS

if __name__ == "__main__":
    c, nv, scen, lds = gen_k2()
    errs = check(c.lines, scen, "k2")
    print("vgprs", nv, "lds", lds, "lines", len(c.lines))
    for e in errs[:40]: print(e)
```

```python
from common import *

SLOT = 6144; RING = 3; WAVE_LDS = SLOT*RING
K3_LDS = 163840

def gen_k3(name="k3_kernel", stamps=False, exp=""):
    c = Code()
    V = Alloc(256, 1, "v"); Sg = Alloc(100, 12, "s")
    sWO, sWD, sOUT, sWS = 4, 6, 8, 10
    sX = Sg.take(); sJ = Sg.take(); sRB = Sg.take(); sCG = Sg.take(); sW = Sg.take()
    sT0 = Sg.take(); sT1 = Sg.take(); sT2 = Sg.take()
    srdWS = Sg.take(4, 4); srdW = Sg.take(4, 4); srdO = Sg.take(4, 4)
    sND = Sg.take(); sNI = Sg.take(); sKs = Sg.take(); sAct = Sg.take(); sSlotW = Sg.take(); sSlotR = Sg.take(); sN = Sg.take(); sLB = Sg.take()
    ST = Stamps(Sg, stamps, 2)
    vL = V.take(); vT = [V.take() for _ in range(8)]
    vOffW = [V.take() for _ in range(5)]; vOffA = V.take()
    vWA = V.take(); vAA = V.take(); vWc = V.take(); vAc = V.take(); vOm = V.take()
    act = V.take(4, 4); wf = V.take(20, 4)
    acc = V.take(80, 4)
    tmp = V.take(32, 4); sm = V.take(8, 4)
    srd4 = f"s[{srdWS}:{srdWS+3}]"
    c.e(f"""
    s_cmp_ge_u32 s2, 256
    s_cbranch_scc1 {name}_END
    s_load_dwordx2 s[4:5], s[0:1], {KA_WO}
    s_load_dwordx2 s[6:7], s[0:1], {KA_WD}
    s_load_dwordx2 s[8:9], s[0:1], {KA_OUT}
    s_load_dwordx2 s[10:11], s[0:1], {KA_WS}
    v_and_b32 v{vL}, 63, v0
    v_lshrrev_b32 v{vT[0]}, 6, v0
    s_and_b32 s{sX}, s2, 7
    s_lshr_b32 s{sJ}, s2, 3
    v_readfirstlane_b32 s{sW}, v{vT[0]}
    s_lshr_b32 s{sT0}, s{sJ}, 2
    s_lshl_b32 s{sRB}, s{sX}, 3
    s_add_u32 s{sRB}, s{sRB}, s{sT0}
    s_and_b32 s{sCG}, s{sJ}, 3
    """)
    ST.stamp(c, real=True); ST.stamp(c)
    c.e(f"s_mul_i32 s{sT0}, s{sCG}, 320")
    for i in range(5):
        c.e(f"""
        v_add_u32 v{vT[1]}, {64*i}, v{vL}
        v_mul_u32_u24 v{vT[2]}, 3277, v{vT[1]}
        v_lshrrev_b32 v{vT[2]}, 16, v{vT[2]}
        v_mul_u32_u24 v{vT[3]}, 20, v{vT[2]}
        v_sub_u32 v{vT[3]}, v{vT[1]}, v{vT[3]}
        v_mul_u32_u24 v{vT[2]}, 1280, v{vT[2]}
        v_lshl_add_u32 v{vT[2]}, v{vT[3]}, 4, v{vT[2]}
        v_add_u32 v{vOffW[i]}, s{sT0}, v{vT[2]}
        """)
    c.e(f"""
    v_lshlrev_b32 v{vOffA}, 4, v{vL}
    s_mul_i32 s{sLB}, s{sW}, {WAVE_LDS}
    s_cmp_lt_u32 s{sW}, 4
    s_cselect_b32 s{sND}, 14, 13
    s_mul_i32 s{sKs}, s{sW}, 20480
    s_mul_i32 s{sAct}, s{sRB}, 108
    s_add_u32 s{sAct}, s{sAct}, s{sW}
    s_lshl_b32 s{sAct}, s{sAct}, 10
    s_add_u32 s{sAct}, s{sAct}, {HF_OFF}
    s_mov_b32 s{sNI}, 0
    s_mov_b32 s{sSlotW}, s{sLB}
    s_waitcnt lgkmcnt(0)
    """)
    srd(c, srdWS, sWS, WS_BYTES); srd(c, srdW, sWD, 1728*1280); srd(c, srdO, sOUT, 2048*1280)
    c.e(f"""
    v_and_b32 v{vT[0]}, 31, v{vL}
    v_lshlrev_b32 v{vT[1]}, 3, v{vT[0]}
    s_lshl_b32 s{sT0}, s{sRB}, 8
    s_add_u32 s{sT0}, s{sT0}, {G_OFF + 4}
    buffer_load_dword v{vOm}, v{vT[1]}, {srd4}, s{sT0} offen
    """)
    lab = [0]
    def dma_step():
        lab[0] += 1; n = lab[0]
        L = []
        for i in range(5):
            L += [f"s_add_u32 m0, s{sSlotW}, {1024*i}", "s_nop 0", f"buffer_load_dwordx4 v{vOffW[i]}, s[{srdW}:{srdW+3}], s{sKs} offen lds"]
        L += [f"s_add_u32 m0, s{sSlotW}, 5120", "s_nop 0", f"buffer_load_dwordx4 v{vOffA}, {srd4}, s{sAct} offen lds"]
        L += [f"s_add_u32 s{sKs}, s{sKs}, {8*20480}", f"s_add_u32 s{sAct}, s{sAct}, 8192", f"s_add_u32 s{sNI}, s{sNI}, 1",
              f"s_add_u32 s{sSlotW}, s{sSlotW}, {SLOT}", f"s_add_u32 s{sT0}, s{sLB}, {WAVE_LDS}", f"s_cmp_eq_u32 s{sSlotW}, s{sT0}", f"s_cselect_b32 s{sSlotW}, s{sLB}, s{sSlotW}",
              f"s_cmp_eq_u32 s{sNI}, s{sND}", f"s_cbranch_scc0 {name}_NS{n}",
              f"s_mov_b32 s{srdW}, s{sWO}", f"s_and_b32 s{srdW+1}, s{sWO+1}, 0xffff", f"s_mov_b32 s{srdW+2}, {640*1280}",
              f"s_mul_i32 s{sKs}, s{sW}, 20480", f"s_mul_i32 s{sAct}, s{sRB}, 40", f"s_add_u32 s{sAct}, s{sAct}, s{sW}", f"s_lshl_b32 s{sAct}, s{sAct}, 10", f"s_add_u32 s{sAct}, s{sAct}, {OF_OFF}",
              f"{name}_NS{n}:",
              f"s_add_u32 s{sT0}, s{sND}, 5", f"s_cmp_lt_u32 s{sNI}, s{sT0}", f"s_cbranch_scc1 {name}_NE{n}",
              f"s_mov_b32 s{sKs}, 0x7f000000", f"s_mov_b32 s{sAct}, 0x7f000000", f"{name}_NE{n}:"]
        return L
    c.e("\n".join(dma_step())); c.e("\n".join(dma_step()))
    c.e(f"""
    v_and_b32 v{vT[3]}, 15, v{vL}
    v_lshrrev_b32 v{vT[4]}, 2, v{vT[3]}
    v_lshrrev_b32 v{vT[2]}, 5, v{vL}
    v_lshl_add_u32 v{vT[4]}, v{vT[2]}, 2, v{vT[4]}
    v_mul_u32_u24 v{vT[4]}, 320, v{vT[4]}
    v_and_b32 v{vT[3]}, 3, v{vT[3]}
    v_lshl_add_u32 v{vT[4]}, v{vT[3]}, 3, v{vT[4]}
    v_lshrrev_b32 v{vT[3]}, 4, v{vL}
    v_and_b32 v{vT[3]}, 1, v{vT[3]}
    v_lshl_add_u32 v{vWA}, v{vT[3]}, 5, v{vT[4]}
    v_add_u32 v{vAA}, 5120, v{vOffA}
    s_mov_b32 s{sSlotR}, s{sLB}
    s_mov_b32 s{sN}, 0
    """)
    for r in range(80): c.e(f"v_mov_b32 v{acc+r}, 0")
    ST.stamp(c, wait=True)
    c.label(f"{name}_LOOP")
    c.e(f"""
    s_waitcnt vmcnt(6)
    v_add_u32 v{vWc}, s{sSlotR}, v{vWA}
    v_add_u32 v{vAc}, s{sSlotR}, v{vAA}
    ds_read_b128 {vr(act,4)}, v{vAc}
    """)
    for jb in range(5):
        c.e(f"ds_read_b64_tr_b16 {vr(wf+4*jb,2)}, v{vWc} offset:{64*jb}\nds_read_b64_tr_b16 {vr(wf+4*jb+2,2)}, v{vWc} offset:{64*jb+2560}")
    c.e("\n".join(dma_step()))
    c.e(f"""
    s_cmp_eq_u32 s{sN}, s{sND}
    s_cbranch_scc0 {name}_NOSC
    s_nop 7
    s_nop 7
    """)
    for r in range(80): c.e(f"v_mul_f32 v{acc+r}, v{acc+r}, v{vOm}")
    c.label(f"{name}_NOSC")
    c.e("s_waitcnt lgkmcnt(0)\ns_nop 1")
    for jb in range(5): c.e(mfma32(acc+16*jb, wf+4*jb, act))
    c.e(f"""
    s_add_u32 s{sSlotR}, s{sSlotR}, {SLOT}
    s_add_u32 s{sT0}, s{sLB}, {WAVE_LDS}
    s_cmp_eq_u32 s{sSlotR}, s{sT0}
    s_cselect_b32 s{sSlotR}, s{sLB}, s{sSlotR}
    s_add_u32 s{sN}, s{sN}, 1
    s_add_u32 s{sT0}, s{sND}, 5
    s_cmp_lt_u32 s{sN}, s{sT0}
    s_cbranch_scc1 {name}_LOOP
    """)
    ST.i = 3; ST.stamp(c, wait=True)
    c.e(f"""
    s_waitcnt vmcnt(0)
    s_nop 7
    s_nop 7
    s_barrier
    s_mul_i32 s{sT0}, s{sW}, 20480
    v_add_u32 v{vT[0]}, s{sT0}, v{vOffA}
    """)
    for it in range(20):
        c.e(f"ds_write_b128 v{vT[0]}, {vr(acc+4*it,4)} offset:{1024*it}")
        if it % 8 == 7: c.e("s_waitcnt lgkmcnt(4)")
    c.e(f"""
    s_waitcnt lgkmcnt(0)
    s_barrier
    v_and_b32 v{vT[1]}, 31, v{vL}
    s_lshl_b32 s{sT0}, s{sRB}, 5
    v_add_u32 v{vT[1]}, s{sT0}, v{vT[1]}
    v_mul_u32_u24 v{vT[1]}, 1280, v{vT[1]}
    v_lshrrev_b32 v{vT[2]}, 5, v{vL}
    v_lshl_add_u32 v{vT[1]}, v{vT[2]}, 4, v{vT[1]}
    s_mul_i32 s{sT0}, s{sCG}, 320
    v_add_u32 v{vT[1]}, s{sT0}, v{vT[1]}
    s_mov_b32 s{sN}, s{sW}
    {name}_RED:
    s_lshl_b32 s{sT0}, s{sN}, 11
    v_add_u32 v{vT[0]}, s{sT0}, v{vOffA}
    """)
    c.e(f"v_add_u32 v{vT[3]}, {3*20480}, v{vT[0]}\nv_add_u32 v{vT[4]}, {6*20480}, v{vT[0]}")
    def addr(w):
        if w < 3: return vT[0], w*20480
        if w < 6: return vT[3], (w-3)*20480
        return vT[4], (w-6)*20480
    for half in range(2):
        for w in range(8):
            a, o = addr(w)
            c.e(f"ds_read_b128 {vr(tmp+4*w,4)}, v{a} offset:{o + 1024*half}")
        for w in range(8):
            c.e(f"s_waitcnt lgkmcnt({7-w})")
            if w == 0:
                continue
            for r in range(4):
                src0 = tmp + r if w == 1 else sm + 4*half + r
                c.e(f"v_add_f32 v{sm+4*half+r}, v{src0}, v{tmp+4*w+r}")
    c.e(f"""
    v_cvt_pk_bf16_f32 v{tmp}, v{sm}, v{sm+1}
    v_cvt_pk_bf16_f32 v{tmp+1}, v{sm+2}, v{sm+3}
    v_cvt_pk_bf16_f32 v{tmp+2}, v{sm+4}, v{sm+5}
    v_cvt_pk_bf16_f32 v{tmp+3}, v{sm+6}, v{sm+7}
    s_nop 1
    v_permlane32_swap_b32 v{tmp}, v{tmp+2}
    v_permlane32_swap_b32 v{tmp+1}, v{tmp+3}
    s_lshl_b32 s{sT0}, s{sN}, 5
    s_nop 0
    buffer_store_dwordx4 {vr(tmp,4)}, v{vT[1]}, s[{srdO}:{srdO+3}], s{sT0} offen
    s_add_u32 s{sN}, s{sN}, 8
    s_cmp_lt_u32 s{sN}, 10
    s_nop 0
    s_cbranch_scc1 {name}_RED
    s_waitcnt vmcnt(0)
    """)
    ST.i = 4; ST.stamp(c); ST.stamp(c, real=True)
    ST.flush(c, sW, srdWS, vT[2], vT[3], sT0)
    c.e(f"""
    s_waitcnt vmcnt(0)
    {name}_END:
    s_endpgm
    """)
    d = {f"{name}_END": False, f"{name}_NOSC": (lambda k: k != 1)}
    for n in range(1, lab[0]+1):
        d[f"{name}_NS{n}"] = (lambda k: k != 1); d[f"{name}_NE{n}"] = (lambda k: k < 2)
    scen = {"main": d}
    return c, V.hi, scen, K3_LDS

if __name__ == "__main__":
    c, nv, scen, lds = gen_k3()
    errs = check(c.lines, scen, "k3")
    print("vgprs", nv, "lds", lds, "lines", len(c.lines))
    for e in errs[:40]: print(e)
```

```python
import sys
from build import *
from k1b import gen_k1
from k2 import gen_k2
from k3 import gen_k3
out = sys.argv[1] if len(sys.argv) > 1 else "dev.s"
exp = sys.argv[2] if len(sys.argv) > 2 else ""
stamps = "nostamp" not in exp
ks = []
c, nv, scen, lds = gen_k1("k1_kernel", stamps=stamps, exp=exp); ks.append(("k1_kernel", c, nv, scen, lds, 256, 768))
c, nv, scen, lds = gen_k2("k2_kernel", stamps=stamps, exp=exp); ks.append(("k2_kernel", c, nv, scen, lds, 256, 768))
if "K3" in exp:
    c, nv, scen, lds = gen_k3("k3_kernel", stamps=stamps, exp=exp); ks.append(("k3_kernel", c, nv, scen, lds, 224, 512))
build(ks, out)
assemble_dev(out)
```

```python
import sys
from build import *
from k1 import gen_k1
from k2 import gen_k2
from k3 import gen_k3
def base(stamps=False):
    ks = []
    c, nv, scen, lds = gen_k1("k1_kernel", stamps=stamps); ks.append(("k1_kernel", c, nv, scen, lds, 256, 512))
    c, nv, scen, lds = gen_k2("k2_kernel", stamps=stamps); ks.append(("k2_kernel", c, nv, scen, lds, 256, 512))
    c, nv, scen, lds = gen_k3("k3_kernel", stamps=stamps); ks.append(("k3_kernel", c, nv, scen, lds, 256, 512))
    return ks
nop = Code(); nop.e("s_endpgm")
N = ("nop_kernel", nop, 8, {"a": {}}, 0, 256, 64)
import os
os.makedirs("var", exist_ok=True)
b = base()
build(b, "A.s"); build(b + [N, N, N], "B.s"); build([N, N, N] + b, "C.s")
for f in "ABC": assemble_dev(f"var/{f}.s")
```

```python
import sys
from build import *
from k1 import gen_k1
from k2 import gen_k2
from k3 import gen_k3
def base(stamps=False):
    ks = []
    c, nv, scen, lds = gen_k1("k1_kernel", stamps=stamps); ks.append(("k1_kernel", c, nv, scen, lds, 256, 512))
    c, nv, scen, lds = gen_k2("k2_kernel", stamps=stamps); ks.append(("k2_kernel", c, nv, scen, lds, 256, 512))
    c, nv, scen, lds = gen_k3("k3_kernel", stamps=stamps); ks.append(("k3_kernel", c, nv, scen, lds, 256, 512))
    return ks
nop = Code(); nop.e("s_endpgm")
N = ("nop_kernel", nop, 8, {"a": {}}, 0, 256, 64)
import os
os.makedirs("var", exist_ok=True)
b = base()

build([b[0], b[0], b[1], b[2]], "D.s"); build([b[0], b[1], b[1], b[2]], "E.s"); build([b[0], b[1], b[2], b[2]], "F.s")
build(b, "A.s")
for f in "ADEF": assemble_dev(f"var/{f}.s")
```

```python
import sys
from build import *
from k1 import gen_k1
from k2 import gen_k2
from k3 import gen_k3
def base(stamps=False):
    ks = []
    c, nv, scen, lds = gen_k1("k1_kernel", stamps=stamps); ks.append(("k1_kernel", c, nv, scen, lds, 256, 512))
    c, nv, scen, lds = gen_k2("k2_kernel", stamps=stamps); ks.append(("k2_kernel", c, nv, scen, lds, 256, 512))
    c, nv, scen, lds = gen_k3("k3_kernel", stamps=stamps); ks.append(("k3_kernel", c, nv, scen, lds, 256, 512))
    return ks
SLOT = 40*1024*1024
def with_start_stamp(k, slot):
    name, c, nv, scen, lds, g, b = k
    c2 = Code()
    c2.e(f"""
    s_cmp_eq_u32 s2, 0
    s_cbranch_scc0 {name}_NOST
    s_memrealtime s[90:91]
    s_load_dwordx2 s[92:93], s[0:1], {KA_WS}
    s_waitcnt lgkmcnt(0)
    s_and_b32 s93, s93, 0xffff
    s_mov_b32 s94, {WS_BYTES}
    s_mov_b32 s95, 0x20000
    v_mov_b32 v200, s90
    v_mov_b32 v201, {SLOT + 8*slot}
    s_nop 4
    buffer_store_dword v200, v201, s[92:95], 0 offen
    {name}_NOST:
    """)
    c2.lines += c.lines
    sc = {k_: dict(v, **{f"{name}_NOST": False}) for k_, v in scen.items()}
    return (name, c2, max(nv, 208), sc, lds, g, b)
def spin(factor, slot, name):
    c = Code()
    c.e(f"""
    s_cmp_eq_u32 s2, 0
    s_cbranch_scc0 {name}_END
    s_load_dwordx2 s[4:5], s[0:1], {KA_WS}
    s_waitcnt lgkmcnt(0)
    s_add_u32 s4, s4, {SLOT + 8*slot}
    s_addc_u32 s5, s5, 0
    s_load_dword s6, s[4:5], 0
    s_memrealtime s[8:9]
    s_waitcnt lgkmcnt(0)
    s_sub_u32 s10, s8, s6
    s_min_u32 s10, s10, 20000
    s_mul_i32 s10, s10, {factor}
    {name}_L:
    s_memrealtime s[12:13]
    s_waitcnt lgkmcnt(0)
    s_sub_u32 s14, s12, s8
    s_cmp_lt_u32 s14, s10
    s_cbranch_scc1 {name}_L
    {name}_END:
    s_endpgm
    """)
    return (name, c, 8, {"a": {f"{name}_END": False}}, 0, 1, 64)
b = base()
b0 = [with_start_stamp(b[0], 0), b[1], b[2]]
build(b0 + [spin(0, 0, "spin0_kernel")], "G.s")
build(b0 + [spin(1, 0, "spin1_kernel")], "H.s")
b1 = [b[0], with_start_stamp(b[1], 0), b[2]]
build(b1 + [spin(1, 0, "spin1_kernel")], "I.s")
b2 = [b[0], b[1], with_start_stamp(b[2], 0)]
build(b2 + [spin(1, 0, "spin1_kernel")], "J.s")
for f in "GHIJ": assemble_dev(f"var/{f}.s")
```

```python
from common import *

CH = 10240
SLOT = 2*CH; RING = 3
DUMMY = SLOT*RING
FLAG = DUMMY + 1024
XCH = FLAG + 64
GRING = XCH + 8*3072
GSLOT = 6144; GWAVE = 3*GSLOT
K2_LDS = GRING + 4*GWAVE
FB_BARRIERS = 16 + 3 + 9 + 1

def gen_k2(name="k2_kernel", stamps=False, exp=""):
    c = Code()
    V = Alloc(168, 1, "v"); Sg = Alloc(100, 8, "s")
    sWS = 4; sWD = 6
    sX = Sg.take(); sJ = Sg.take(); sHead = Sg.take(); sQB = Sg.take(); sW = Sg.take(); sQG = Sg.take(); sKH = Sg.take()
    sT0 = Sg.take(); sT1 = Sg.take(); sT2 = Sg.take(); sT3 = Sg.take()
    srdWS = Sg.take(4, 4)
    sMaskLo = Sg.take(2, 2); sMaskV = Sg.take(2, 2); sU = Sg.take(2, 2); sU2 = Sg.take(2, 2)
    sSrc = Sg.take(); sM = [Sg.take() for _ in range(3)]; sSlotW = Sg.take(); sSlotR = Sg.take(); sC = Sg.take(); sMode = Sg.take()
    sSrc0 = Sg.take(); sTile = Sg.take(); sOb = Sg.take()
    ST = Stamps(Sg, stamps, 1)
    vL = V.take(); vT = [V.take() for _ in range(8)]
    vOff = V.take(); vOff3 = V.take()
    vK1a = V.take(); vK2a = V.take(); vVa = V.take()
    vK1c = V.take(); vK2c = V.take(); vVc = V.take()
    vG = [V.take(), V.take()]; vSt = [V.take() for _ in range(3)]
    Q1 = [V.take(4, 4), V.take(4, 4)]; Q2 = [V.take(2, 2), V.take(2, 2)]
    K1 = V.take(4, 4); K2 = V.take(2, 2); V0 = V.take(4, 4); V1 = V.take(4, 4)
    S_ = [V.take(16, 4), V.take(16, 4)]; O = [V.take(16, 4), V.take(16, 4)]
    P = [V.take(4, 4), V.take(4, 4)]; T4 = V.take(4, 4)
    vM = [V.take(), V.take()]
    NM = [V.take(16, 4), V.take(16, 4)]
    srd4 = f"s[{srdWS}:{srdWS+3}]"

    c.e(f"""
    s_cmp_ge_u32 s2, 256
    s_cbranch_scc1 {name}_END
    s_load_dwordx2 s[4:5], s[0:1], {KA_WS}
    s_load_dwordx2 s[6:7], s[0:1], {KA_WD}
    v_and_b32 v{vL}, 63, v0
    v_lshrrev_b32 v{vT[0]}, 6, v0
    s_and_b32 s{sX}, s2, 7
    s_lshr_b32 s{sJ}, s2, 3
    v_readfirstlane_b32 s{sW}, v{vT[0]}
    s_lshr_b32 s{sT0}, s{sJ}, 3
    s_lshl_b32 s{sHead}, s{sX}, 2
    s_add_u32 s{sHead}, s{sHead}, s{sT0}
    s_and_b32 s{sQB}, s{sJ}, 7
    v_lshlrev_b32 v{vOff}, 4, v{vL}
    s_mul_i32 s{sSrc0}, s{sHead}, {KV_HS}
    s_add_u32 s{sSrc0}, s{sSrc0}, {KV_OFF}
    """)
    ST.stamp(c, real=True); ST.stamp(c)
    c.e(f"s_cmp_ge_u32 s{sW}, 8\ns_cbranch_scc1 {name}_GW")
    c.e(f"""
    s_and_b32 s{sQG}, s{sW}, 3
    s_lshr_b32 s{sKH}, s{sW}, 2
    s_mul_i32 s{sT0}, s{sKH}, {32*KV_TS}
    s_add_u32 s{sSrc0}, s{sSrc0}, s{sT0}
    s_lshl_b32 s{sT0}, s{sQG}, 10
    s_add_u32 s{sSrc0}, s{sSrc0}, s{sT0}
    s_mul_i32 s{sT1}, s{sKH}, {CH}
    s_add_u32 s{sM[0]}, s{sT1}, s{sT0}
    s_add_u32 s{sM[1]}, s{sM[0]}, 4096
    s_add_u32 s{sM[2]}, s{sM[0]}, 8192
    s_cmp_lt_u32 s{sQG}, 2
    s_cselect_b32 s{sT0}, 0, 0x7f000000
    v_add_u32 v{vOff3}, s{sT0}, v{vOff}
    s_mov_b32 s{sSrc}, s{sSrc0}
    s_mov_b32 s{sSlotW}, 0
    s_lshl_b32 s{sTile}, s{sQB}, 3
    s_lshl_b32 s{sT0}, s{sQG}, 1
    s_add_u32 s{sTile}, s{sTile}, s{sT0}
    s_waitcnt lgkmcnt(0)
    """)
    srd(c, srdWS, sWS, WS_BYTES)
    def dma_parts():
        g0 = [f"s_add_u32 m0, s{sSlotW}, s{sM[0]}", f"s_add_u32 s{sT0}, s{sSrc}, 4096", f"buffer_load_dwordx4 v{vOff}, {srd4}, s{sSrc} offen lds"]
        g1 = [f"s_add_u32 m0, s{sSlotW}, s{sM[1]}", f"s_add_u32 s{sT1}, s{sSrc}, 8192", f"buffer_load_dwordx4 v{vOff}, {srd4}, s{sT0} offen lds"]
        g2 = [f"s_add_u32 s{sT0}, s{sSlotW}, s{sM[2]}", f"s_cmp_lt_u32 s{sQG}, 2", f"s_cselect_b32 m0, s{sT0}, {DUMMY}", f"s_add_u32 s{sSrc}, s{sSrc}, {CH}",
              f"buffer_load_dwordx4 v{vOff3}, {srd4}, s{sT1} offen lds",
              f"s_add_u32 s{sSlotW}, s{sSlotW}, {SLOT}", f"s_cmp_eq_u32 s{sSlotW}, {SLOT*RING}", f"s_cselect_b32 s{sSlotW}, 0, s{sSlotW}"]
        return g0, g1, g2
    def dma_chunk():
        g = dma_parts(); return g[0] + g[1] + g[2]
    def first_loads():
        c.e("\n".join(dma_chunk()))
    first_loads()
    c.e(f"""
    s_mul_i32 s{sT2}, s{sHead}, {QF_HS}
    s_mul_i32 s{sT1}, s{sTile}, {QF_TS}
    s_add_u32 s{sT2}, s{sT2}, s{sT1}
    s_add_u32 s{sT3}, s{sT2}, {QF_TS}
    v_and_b32 v{vT[0]}, 31, v{vL}
    v_lshlrev_b32 v{vT[1]}, 3, v{vT[0]}
    s_mov_b32 s{sMaskLo}, -1
    s_mov_b32 s{sMaskLo+1}, 0
    v_mov_b32 v{Q2[0]}, 0
    v_mov_b32 v{Q2[0]+1}, 0
    v_mov_b32 v{Q2[1]}, 0
    v_mov_b32 v{Q2[1]+1}, 0
    buffer_load_dwordx4 {vr(Q1[0],4)}, v{vOff}, {srd4}, s{sT2} offen
    buffer_load_dwordx4 {vr(Q1[1],4)}, v{vOff}, {srd4}, s{sT3} offen
    s_mov_b64 exec, s[{sMaskLo}:{sMaskLo+1}]
    buffer_load_dwordx2 {vr(Q2[0],2)}, v{vT[1]}, {srd4}, s{sT2} offen offset:1024
    buffer_load_dwordx2 {vr(Q2[1],2)}, v{vT[1]}, {srd4}, s{sT3} offen offset:1024
    s_mov_b64 exec, -1
    """)
    c.e("\n".join(dma_chunk()))
    c.e(f"""
    s_lshl_b32 s{sT2}, s{sTile}, 8
    s_add_u32 s{sT2}, s{sT2}, {G_OFF}
    buffer_load_dword v{vG[0]}, v{vT[1]}, {srd4}, s{sT2} offen
    buffer_load_dword v{vG[1]}, v{vT[1]}, {srd4}, s{sT2} offen offset:256
    s_mov_b32 s{sMode}, 0
    s_mov_b32 s{sMaskV}, 0xfffff
    s_mov_b32 s{sMaskV+1}, 0xfffff
    s_mul_i32 s{sT0}, s{sKH}, {CH}
    v_add_u32 v{vK1a}, s{sT0}, v{vOff}
    v_add_u32 v{vK2a}, s{sT0}, v{vT[1]}
    v_lshrrev_b32 v{vT[2]}, 5, v{vL}
    v_mul_u32_u24 v{vT[7]}, 320, v{vT[2]}
    v_lshl_add_u32 v{vT[7]}, v{vT[0]}, 4, v{vT[7]}
    v_add_u32 v{vVa}, s{sT0}, v{vT[7]}
    v_cmp_eq_u32 vcc, 20, v{vT[0]}
    v_mov_b32 v{vT[3]}, 0
    v_mov_b32 v{vT[4]}, 0x3f803f80
    v_cndmask_b32 v{vT[3]}, v{vT[3]}, v{vT[4]}, vcc
    """)
    for r in range(4): c.e(f"v_mov_b32 v{V0+r}, v{vT[3]}\nv_mov_b32 v{V1+r}, v{vT[3]}")
    c.e(f"v_mov_b32 v{vT[3]}, 0\nv_mov_b32 v{vT[4]}, {FLAG}\nds_write_b32 v{vT[4]}, v{vT[3]}")
    c.e(f"""
    s_add_u32 s{sOb}, s{sTile}, s{sKH}
    s_mul_i32 s{sOb}, s{sOb}, {40*1024}
    s_add_u32 s{sOb}, s{sOb}, {OF_OFF}
    s_mul_i32 s{sT1}, s{sHead}, 5
    v_add_u32 v{vT[2]}, s{sT1}, v{vT[2]}
    v_lshlrev_b32 v{vT[3]}, 4, v{vT[0]}
    """)
    for g in range(3):
        c.e(f"""
        v_add_u32 v{vT[4]}, {2*g}, v{vT[2]}
        v_lshrrev_b32 v{vT[5]}, 2, v{vT[4]}
        v_lshlrev_b32 v{vT[5]}, 10, v{vT[5]}
        v_and_b32 v{vT[6]}, 1, v{vT[4]}
        v_lshl_add_u32 v{vT[5]}, v{vT[6]}, 9, v{vT[5]}
        v_and_b32 v{vT[6]}, 2, v{vT[4]}
        v_lshl_add_u32 v{vT[5]}, v{vT[6]}, 2, v{vT[5]}
        v_add_u32 v{vSt[g]}, v{vT[5]}, v{vT[3]}
        """)
    def rdK(off):
        return [f"ds_read_b64 {vr(K2,2)}, v{vK2c} offset:{off+1024}", f"ds_read_b128 {vr(K1,4)}, v{vK1c} offset:{off}"]
    def rdV(which, off):
        r = V0 if which == 0 else V1
        return [f"s_mov_b64 exec, s[{sMaskV}:{sMaskV+1}]", f"ds_read_b128 {vr(r,4)}, v{vVc} offset:{off + 1280 + 640*which}", "s_mov_b64 exec, -1"]
    def emit_pass(tag, fb):
        def qk(b): return [f"v_mfma_f32_32x32x16_bf16 {vr(S_[b],16)}, {vr(K1,4)}, {vr(Q1[b],4)}, " + (vr(NM[b],16) if fb else "0"), mfma32x8(S_[b], K2, Q2[b])]
        for b in range(2):
            for r in range(16): c.e(f"v_mov_b32 v{O[b]+r}, 0")
        for r in range(4): c.e(f"v_mov_b32 v{P[1]+r}, 0\nv_mov_b32 v{T4+r}, 0")
        c.e(f"""
        s_mov_b32 s{sSlotR}, 0
        s_mov_b32 s{sC}, 0
        v_mov_b32 v{vK1c}, v{vK1a}
        v_mov_b32 v{vK2c}, v{vK2a}
        v_mov_b32 v{vVc}, v{vVa}
        """)
        c.e(f"s_waitcnt vmcnt({3 if fb else 5}) lgkmcnt(0)\ns_barrier")
        c.e("\n".join(rdK(0) + rdV(0, 0)))
        c.e(f"s_waitcnt vmcnt({3 if fb else 5}) lgkmcnt(1)") if False else None
        c.e("s_waitcnt lgkmcnt(1)")
        c.e("\n".join(qk(0)))
        c.e("s_nop 7\ns_nop 3")
        if not fb: ST.i = 2; ST.stamp(c, wait=True)
        def half(b, tt):
            s = S_[b]; L = []
            src = lambda i: (s + i) if i < 12 else (T4 + i - 12)
            e = lambda i: f"v_exp_f32 v{src(i)}, v{s+i}"
            cv = lambda p: f"v_cvt_pk_bf16_f32 v{P[p//4] + p%4}, v{src(2*p)}, v{src(2*p+1)}"
            m = qk(1 - b)
            m3 = mfma32(O[b], V0, P[0]); m4p = mfma32(O[1-b], V1, P[1])
            cur = tt*KV_TS; nxt = ((tt + 1) % 4)*KV_TS
            d0 = d1 = d2 = []
            if b == 0 and tt == 0: pass
            if b == 1: L.append("s_waitcnt lgkmcnt(1)")
            L += [m[0], e(0), cv(6), e(1), cv(7), e(2), e(3), m[1]]
            if b == 0:
                if tt == 3:
                    L += ["s_waitcnt vmcnt(0)", "s_barrier",
                          f"s_add_u32 s{sSlotR}, s{sSlotR}, {SLOT}", f"s_cmp_eq_u32 s{sSlotR}, {SLOT*RING}", f"s_cselect_b32 s{sSlotR}, 0, s{sSlotR}",
                          f"v_add_u32 v{vK1c}, s{sSlotR}, v{vK1a}", f"v_add_u32 v{vK2c}, s{sSlotR}, v{vK2a}"]
                L += rdK(nxt)
            L += [e(4), e(5), cv(0), e(6), e(7), cv(1)]
            if b == 1: L.append("s_waitcnt lgkmcnt(0)")
            L.append(m4p)
            if b == 0: L += rdV(1, cur)
            if b == 0 and tt == 3: L += [f"v_add_u32 v{vVc}, s{sSlotR}, v{vVa}"]
            L += [e(8), cv(2), e(9), cv(3), e(10), e(11)]
            if b == 0: L.append("s_waitcnt lgkmcnt(3)")
            L.append(m3)
            if b == 1: L += rdV(0, nxt)
            L += [e(12), e(13), cv(4), e(14), e(15), cv(5)]
            return L
        lp = f"{name}_LOOP{tag}"
        c.label(lp)
        for tt in range(4):
            A = half(0, tt); B = half(1, tt)
            if tt == 3:
                g0, g1, g2 = dma_parts()
                c.e("\n".join(A))
                c.e(f"s_cmp_ge_u32 s{sC}, 6\ns_cbranch_scc1 {lp}_NODMA")
                c.e("\n".join(g0 + g1 + g2))
                c.label(f"{lp}_NODMA")
                c.e("\n".join(B))
            else:
                c.e("\n".join(A)); c.e("\n".join(B))
        c.e(f"""
        s_add_u32 s{sC}, s{sC}, 1
        s_cmp_lt_u32 s{sC}, 8
        s_cbranch_scc1 {lp}
        """)
        c.e(f"v_cvt_pk_bf16_f32 v{P[1]+2}, v{T4}, v{T4+1}\nv_cvt_pk_bf16_f32 v{P[1]+3}, v{T4+2}, v{T4+3}\ns_waitcnt lgkmcnt(0)\ns_nop 0")
        c.e(mfma32(O[1], V1, P[1]))
    emit_pass("", False)
    c.label(f"{name}_EPI")
    ST.i = 3; ST.stamp(c, wait=True)
    c.e(f"""
    s_mul_i32 s{sT0}, s{sW}, 3072
    s_add_u32 s{sT0}, s{sT0}, {XCH}
    v_add_u32 v{vT[4]}, s{sT0}, v{vOff}
    s_xor_b32 s{sT0}, s{sW}, 4
    s_mul_i32 s{sT0}, s{sT0}, 3072
    s_add_u32 s{sT0}, s{sT0}, {XCH}
    v_add_u32 v{vT[6]}, s{sT0}, v{vOff}
    v_mov_b32 v{vT[1]}, 0x7f800000
    v_mov_b32 v{vT[2]}, {hexf(2.0**63)}
    v_mov_b32 v{vT[3]}, {hexf(2.0**-63)}
    v_mov_b32 v{vT[5]}, {FLAG}
    s_nop 3
    s_cmp_eq_u32 s{sKH}, 0
    s_cbranch_scc1 {name}_NOSWAP
    """)
    for r in range(12): c.e(f"v_swap_b32 v{O[0]+r}, v{O[1]+r}")
    c.e(f"v_swap_b32 v{vG[0]}, v{vG[1]}")
    c.label(f"{name}_NOSWAP")
    for g in range(3): c.e(f"ds_write_b128 v{vT[4]}, {vr(O[1]+4*g,4)} offset:{1024*g}")
    c.e(f"v_add_f32 v{vT[0]}, |v{O[0]}|, |v{O[1]}|")
    for r in range(1, 12): c.e(f"v_add_f32 v{vT[0]}, |v{O[0]+r}|, v{vT[0]}\nv_add_f32 v{vT[0]}, |v{O[1]+r}|, v{vT[0]}")
    c.e(f"""
    v_min_f32 v{vT[7]}, v{O[0]+8}, v{O[1]+8}
    v_cmp_nlt_f32 s[{sU}:{sU+1}], v{vT[0]}, v{vT[1]}
    v_max_f32 v{vT[0]}, v{O[0]+8}, v{O[1]+8}
    v_cmp_nge_f32 s[{sU2}:{sU2+1}], v{vT[7]}, v{vT[3]}
    v_cmp_nle_f32 vcc, v{vT[0]}, v{vT[2]}
    s_nop 3
    s_or_b64 s[{sU2}:{sU2+1}], s[{sU2}:{sU2+1}], vcc
    s_andn2_b64 s[{sU2}:{sU2+1}], s[{sU2}:{sU2+1}], s[{sMaskLo}:{sMaskLo+1}]
    s_or_b64 s[{sU}:{sU+1}], s[{sU}:{sU+1}], s[{sU2}:{sU2+1}]
    s_cmp_eq_u64 s[{sU}:{sU+1}], 0
    s_cbranch_scc1 {name}_SAFE
    v_mov_b32 v{vT[3]}, 1
    ds_write_b32 v{vT[5]}, v{vT[3]}
    {name}_SAFE:
    s_waitcnt lgkmcnt(0)
    s_barrier
    ds_read_b32 v{vT[3]}, v{vT[5]}
    """)
    for g in range(3): c.e(f"ds_read_b128 {vr(S_[0]+4*g,4)}, v{vT[6]} offset:{1024*g}")
    c.e(f"""
    s_waitcnt lgkmcnt(3)
    v_readfirstlane_b32 s{sT0}, v{vT[3]}
    s_nop 3
    s_cmp_eq_u32 s{sMode}, 0
    s_cselect_b32 s{sT0}, s{sT0}, 0
    s_cmp_eq_u32 s{sT0}, 0
    s_cbranch_scc0 {name}_FALLBACK
    s_waitcnt vmcnt(0) lgkmcnt(0)
    """)
    for r in range(12): c.e(f"v_add_f32 v{O[0]+r}, v{O[0]+r}, v{S_[0]+r}")
    c.e(f"""
    v_mov_b32 v{vT[0]}, v{O[0]+8}
    v_mov_b32 v{vT[1]}, v{O[0]+8}
    s_nop 1
    v_permlane32_swap_b32 v{vT[0]}, v{vT[1]}
    s_nop 1
    v_rcp_f32 v{vT[1]}, v{vT[1]}
    s_nop 0
    v_mul_f32 v{vT[1]}, v{vT[1]}, v{vG[0]}
    """)
    for r in range(12): c.e(f"v_mul_f32 v{O[0]+r}, v{O[0]+r}, v{vT[1]}")
    for p in range(6): c.e(f"v_cvt_pk_bf16_f32 v{S_[1]+p}, v{O[0]+2*p}, v{O[0]+2*p+1}")
    for g in range(3):
        if g == 2: c.e(f"s_mov_b64 exec, s[{sMaskLo}:{sMaskLo+1}]")
        c.e(f"buffer_store_dwordx2 {vr(S_[1]+2*g,2)}, v{vSt[g]}, {srd4}, s{sOb} offen")
    c.e("s_mov_b64 exec, -1")
    c.e(f"s_branch {name}_FIN")
    c.label(f"{name}_FALLBACK")
    c.e("s_waitcnt vmcnt(0) lgkmcnt(0)")
    c.e(f"s_cmp_eq_u32 s{sKH}, 0\ns_cbranch_scc1 {name}_FB_NOSWAP\nv_swap_b32 v{vG[0]}, v{vG[1]}\n{name}_FB_NOSWAP:")
    c.e(f"""
    s_mov_b32 s{sMode}, 1
    v_mov_b32 v{vM[0]}, 0xff800000
    v_mov_b32 v{vM[1]}, 0xff800000
    s_mov_b32 s{sSrc}, s{sSrc0}
    s_mov_b32 s{sC}, 0
    {name}_FB_LOOP:
    s_barrier
    s_mov_b32 s{sSlotW}, 0
    """)
    c.e("\n".join(dma_chunk()))
    c.e(f"s_waitcnt vmcnt(0)\ns_barrier\nv_mov_b32 v{vK1c}, v{vK1a}\nv_mov_b32 v{vK2c}, v{vK2a}")
    for tt in range(4):
        c.e("\n".join(rdK(tt*KV_TS)))
        c.e("s_waitcnt lgkmcnt(0)")
        for b in range(2): c.e(mfma32(S_[b], K1, Q1[b], cz=0) + "\n" + mfma32x8(S_[b], K2, Q2[b]))
        c.e("s_nop 7\ns_nop 7")
        for b in range(2):
            for r in range(0, 16, 2): c.e(f"v_max3_f32 v{vM[b]}, v{S_[b]+r}, v{S_[b]+r+1}, v{vM[b]}")
    c.e(f"""
    s_add_u32 s{sC}, s{sC}, 1
    s_cmp_lt_u32 s{sC}, 8
    s_cbranch_scc1 {name}_FB_LOOP
    """)
    for b in range(2):
        c.e(f"""
        v_mov_b32 v{vT[0]}, v{vM[b]}
        v_mov_b32 v{vT[1]}, v{vM[b]}
        s_nop 1
        v_permlane32_swap_b32 v{vT[0]}, v{vT[1]}
        s_nop 1
        v_max_f32 v{vM[b]}, v{vT[0]}, v{vT[1]}
        """)
    c.e(f"""
    s_lshl_b32 s{sT0}, s{sW}, 9
    s_add_u32 s{sT0}, s{sT0}, {XCH}
    v_lshlrev_b32 v{vT[2]}, 2, v{vL}
    v_add_u32 v{vT[3]}, s{sT0}, v{vT[2]}
    s_barrier
    ds_write_b32 v{vT[3]}, v{vM[0]}
    ds_write_b32 v{vT[3]}, v{vM[1]} offset:256
    s_xor_b32 s{sT0}, s{sW}, 4
    s_lshl_b32 s{sT0}, s{sT0}, 9
    s_add_u32 s{sT0}, s{sT0}, {XCH}
    v_add_u32 v{vT[3]}, s{sT0}, v{vT[2]}
    s_waitcnt lgkmcnt(0)
    s_barrier
    ds_read_b32 v{vT[4]}, v{vT[3]}
    ds_read_b32 v{vT[5]}, v{vT[3]} offset:256
    s_waitcnt lgkmcnt(0)
    v_max_f32 v{vM[0]}, v{vM[0]}, v{vT[4]}
    v_max_f32 v{vM[1]}, v{vM[1]}, v{vT[5]}
    s_barrier
    """)
    for b in range(2):
        for r in range(16): c.e(f"v_sub_f32 v{NM[b]+r}, 0, v{vM[b]}")
    c.e(f"s_mov_b32 s{sSrc}, s{sSrc0}\ns_mov_b32 s{sSlotW}, 0")
    c.e("\n".join(dma_chunk())); c.e("\n".join(dma_chunk()))
    emit_pass("FB", True)
    c.e(f"s_branch {name}_EPI")
    Vg = Alloc(168, V.names.get("x", (vG[0], 0))[0], "v")
    gOffW = [Vg.take() for _ in range(5)]; gOffA = Vg.take(); gWA = Vg.take(); gAA = Vg.take(); gWc = Vg.take(); gAc = Vg.take(); gOm = Vg.take()
    gT = [Vg.take() for _ in range(6)]
    gact = Vg.take(4, 4); gwf = Vg.take(20, 4); gacc = Vg.take(80, 4); gtmp = Vg.take(12, 4)
    sRB, sCG, sKQ, sLB, sKs, sAct, sGS, sGR, sGN = sQG, sKH, sQB, sSrc, sSrc0, sTile, sSlotW, sSlotR, sC
    srdD = sMaskLo
    srdW = Sg.take(4, 4)
    c.label(f"{name}_GW")
    c.e(f"""
    s_sub_u32 s{sKQ}, s{sW}, 8
    s_lshr_b32 s{sT0}, s{sJ}, 2
    s_lshl_b32 s{sRB}, s{sX}, 3
    s_add_u32 s{sRB}, s{sRB}, s{sT0}
    s_and_b32 s{sCG}, s{sJ}, 3
    s_mul_i32 s{sT0}, s{sCG}, 320
    """)
    for i in range(5):
        c.e(f"""
        v_add_u32 v{gT[1]}, {64*i}, v{vL}
        v_mul_u32_u24 v{gT[2]}, 3277, v{gT[1]}
        v_lshrrev_b32 v{gT[2]}, 16, v{gT[2]}
        v_mul_u32_u24 v{gT[3]}, 20, v{gT[2]}
        v_sub_u32 v{gT[3]}, v{gT[1]}, v{gT[3]}
        v_mul_u32_u24 v{gT[2]}, 1280, v{gT[2]}
        v_lshl_add_u32 v{gT[2]}, v{gT[3]}, 4, v{gT[2]}
        v_add_u32 v{gOffW[i]}, s{sT0}, v{gT[2]}
        """)
    c.e(f"""
    v_lshlrev_b32 v{gOffA}, 4, v{vL}
    s_mul_i32 s{sLB}, s{sKQ}, {GWAVE}
    s_add_u32 s{sLB}, s{sLB}, {GRING}
    s_mul_i32 s{sKs}, s{sKQ}, 20480
    s_mul_i32 s{sAct}, s{sRB}, 108
    s_add_u32 s{sAct}, s{sAct}, s{sKQ}
    s_lshl_b32 s{sAct}, s{sAct}, 10
    s_add_u32 s{sAct}, s{sAct}, {HF_OFF}
    s_waitcnt lgkmcnt(0)
    """)
    srd(c, srdWS, sWS, WS_BYTES); srd(c, srdW, sWD, 1728*1280)
    def gdma(n):
        so = (n % 3)*GSLOT; L = []
        for i in range(5):
            L += [f"s_add_u32 m0, s{sLB}, {so + 1024*i}", "s_nop 0", f"buffer_load_dwordx4 v{gOffW[i]}, s[{srdW}:{srdW+3}], s{sKs} offen lds"]
        L += [f"s_add_u32 m0, s{sLB}, {so + 5120}", f"s_add_u32 s{sKs}, s{sKs}, {4*20480}", f"buffer_load_dwordx4 v{gOffA}, {srd4}, s{sAct} offen lds", f"s_add_u32 s{sAct}, s{sAct}, 4096"]
        return L
    c.e("\n".join(gdma(0) + gdma(1)))
    c.e(f"""
    v_and_b32 v{gT[0]}, 31, v{vL}
    v_lshlrev_b32 v{gT[1]}, 3, v{gT[0]}
    s_lshl_b32 s{sT0}, s{sRB}, 8
    s_add_u32 s{sT0}, s{sT0}, {G_OFF + 4}
    v_and_b32 v{gT[3]}, 15, v{vL}
    v_lshrrev_b32 v{gT[4]}, 2, v{gT[3]}
    v_lshrrev_b32 v{gT[2]}, 5, v{vL}
    v_lshl_add_u32 v{gT[4]}, v{gT[2]}, 2, v{gT[4]}
    v_mul_u32_u24 v{gT[4]}, 320, v{gT[4]}
    v_and_b32 v{gT[3]}, 3, v{gT[3]}
    v_lshl_add_u32 v{gT[4]}, v{gT[3]}, 3, v{gT[4]}
    v_lshrrev_b32 v{gT[3]}, 4, v{vL}
    v_and_b32 v{gT[3]}, 1, v{gT[3]}
    v_lshl_add_u32 v{gT[4]}, v{gT[3]}, 5, v{gT[4]}
    v_add_u32 v{gWA}, s{sLB}, v{gT[4]}
    v_add_u32 v{gAA}, 5120, v{gOffA}
    v_add_u32 v{gAA}, s{sLB}, v{gAA}
    """)
    for r in range(80): c.e(f"v_mov_b32 v{gacc+r}, 0")
    c.e("s_barrier")
    sched = [3, 4, 3, 4, 3, 4, 3, 3]; n = 0
    for k in range(8):
        for _ in range(sched[k]):
            so = (n % 3)*GSLOT
            c.e(f"s_waitcnt vmcnt({6 if n + 1 < 27 else 0})")
            c.e(f"ds_read_b128 {vr(gact,4)}, v{gAA} offset:{so}")
            for jb in range(5):
                c.e(f"ds_read_b64_tr_b16 {vr(gwf+4*jb,2)}, v{gWA} offset:{so + 64*jb}\nds_read_b64_tr_b16 {vr(gwf+4*jb+2,2)}, v{gWA} offset:{so + 64*jb + 2560}")
            if n + 2 < 27: c.e("\n".join(gdma(n + 2)))
            if n == 26:
                c.e(f"buffer_load_dword v{gOm}, v{gT[1]}, {srd4}, s{sT0} offen")
            for jb in range(5):
                c.e(f"s_waitcnt lgkmcnt({8 - 2*jb})")
                c.e(mfma32(gacc+16*jb, gwf+4*jb, gact))
            n += 1
        c.e("s_barrier")
    own = [0,0,0,1,1,1,2,2,3,3]
    c.e("s_nop 7\ns_nop 3")
    for kq in range(4):
        c.e(f"s_cmp_eq_u32 s{sKQ}, {kq}\ns_cbranch_scc0 {name}_GX{kq}")
        c.e(f"v_add_u32 v{gT[5]}, {GRING}, v{gOffA}\nv_add_u32 v{gT[4]}, {GRING + 30720}, v{gOffA}")
        cnt = 0
        for p in range(10):
            if own[p] == kq: continue
            slot = kq if kq < own[p] else kq - 1
            off = p*6144 + slot*2048
            a, o = (gT[5], off) if off < 30720 else (gT[4], off - 30720)
            for h in range(2):
                c.e(f"ds_write_b128 v{a}, {vr(gacc + 8*p + 4*h, 4)} offset:{o + 1024*h}"); cnt += 1
                if cnt % 8 == 0: c.e("s_waitcnt lgkmcnt(4)")
        c.e(f"s_waitcnt lgkmcnt(0)\ns_barrier")
        mine = [p for p in range(10) if own[p] == kq]
        c.e(f"v_mov_b32 v{gT[3]}, {FLAG}\nds_read_b32 v{gT[3]}, v{gT[3]}")
        c.e(f"""
        v_and_b32 v{gT[0]}, 31, v{vL}
        s_lshl_b32 s{sT0}, s{sRB}, 5
        v_add_u32 v{gT[0]}, s{sT0}, v{gT[0]}
        v_mul_u32_u24 v{gT[0]}, 1280, v{gT[0]}
        v_lshrrev_b32 v{gT[2]}, 5, v{vL}
        v_lshl_add_u32 v{gT[0]}, v{gT[2]}, 4, v{gT[0]}
        s_mul_i32 s{sT0}, s{sCG}, 320
        s_add_u32 s{sT0}, s{sT0}, {BF_OFF}
        s_waitcnt vmcnt(0) lgkmcnt(0)
        v_readfirstlane_b32 s{sT1}, v{gT[3]}
        """)
        for p in mine:
            off = p*6144
            a, o = (gT[5], off) if off < 30720 else (gT[4], off - 30720)
            for h in range(2):
                for sl in range(3): c.e(f"ds_read_b128 {vr(gtmp+4*sl,4)}, v{a} offset:{o + 2048*sl + 1024*h}")
                for sl in range(3):
                    c.e(f"s_waitcnt lgkmcnt({2-sl})")
                    for r in range(4): c.e(f"v_add_f32 v{gacc+8*p+4*h+r}, v{gacc+8*p+4*h+r}, v{gtmp+4*sl+r}")
            for r in range(8): c.e(f"v_mul_f32 v{gacc+8*p+r}, v{gacc+8*p+r}, v{gOm}")
            for q in range(4): c.e(f"v_cvt_pk_bf16_f32 v{gtmp+q}, v{gacc+8*p+2*q}, v{gacc+8*p+2*q+1}")
            c.e(f"""
            s_nop 1
            v_permlane32_swap_b32 v{gtmp}, v{gtmp+2}
            v_permlane32_swap_b32 v{gtmp+1}, v{gtmp+3}
            s_add_u32 s{sT2}, s{sT0}, {32*p}
            s_nop 0
            buffer_store_dwordx4 {vr(gtmp,4)}, v{gT[0]}, {srd4}, s{sT2} offen
            s_nop 1
            """)
        c.e(f"s_branch {name}_GEND")
        c.label(f"{name}_GX{kq}")
    c.label(f"{name}_GEND")
    c.e(f"""
    s_cmp_eq_u32 s{sT1}, 0
    s_cbranch_scc1 {name}_END
    s_mov_b32 s{sT0}, {FB_BARRIERS}
    {name}_GFB:
    s_barrier
    s_sub_u32 s{sT0}, s{sT0}, 1
    s_cmp_lg_u32 s{sT0}, 0
    s_cbranch_scc1 {name}_GFB
    s_endpgm
    """)
    c.label(f"{name}_FIN")
    if stamps: c.e("s_waitcnt vmcnt(0)")
    ST.i = 4; ST.stamp(c); ST.stamp(c, real=True)
    ST.flush(c, sW, srdWS, vT[2], vT[3], sT0)
    c.e(f"""
    {name}_END:
    s_endpgm
    """)
    def S(kh, unsafe=False, fb=False):
        d = {f"{name}_END": False, f"{name}_LOOP_NODMA": (lambda k: k % 3 == 2), f"{name}_LOOPFB_NODMA": (lambda k: k % 3 == 2), f"{name}_NOSWAP": kh == 0, f"{name}_SAFE": not unsafe,
             f"{name}_FALLBACK": (lambda k: k == 0 and fb), f"{name}_FB_NOSWAP": kh == 0}
        return d
    scen = {"kh0": S(0), "kh1": S(1), "fb": S(1, True, True)}
    for k_ in scen: scen[k_][f"{name}_GW"] = False
    for kq in range(4):
        d = {f"{name}_END": (lambda k: k == 1), f"{name}_GW": True}
        for q in range(4): d[f"{name}_GX{q}"] = (q != kq)
        scen[f"g{kq}"] = d
    return c, max(V.hi, Vg.hi), scen, K2_LDS
    return c, V.hi, scen, K2_LDS

if __name__ == "__main__":
    c, nv, scen, lds = gen_k2()
    errs = check(c.lines, scen, "k2")
    print("vgprs", nv, "lds", lds, "lines", len(c.lines))
    for e in errs[:40]: print(e)
```

```python
from common import *
STG = 20480; RING = 7; LOOK = 5
WOFF = 12288
K3_LDS = STG*RING
NS_D = 0; NS = 10

def gen_k3(name="k3_kernel", stamps=False, exp=""):
    global LOOK
    LOOK = 3 if "L3" in exp else (2 if "L2" in exp else 5)
    c = Code()
    V = Alloc(256, 1, "v"); Sg = Alloc(100, 12, "s")
    sWO, sWD, sOUT, sWS = 4, 6, 8, 10
    sN_ = Sg.take(); sRT = Sg.take(); sCG = Sg.take(); sW = Sg.take(); sKQ = Sg.take()
    sT0 = Sg.take(); sT1 = Sg.take(); sT2 = Sg.take()
    srdWS = Sg.take(4, 4); srdW = Sg.take(4, 4); srdO = Sg.take(4, 4)
    sA = [Sg.take() for _ in range(3)]; sAo = [Sg.take() for _ in range(3)]; sMA = Sg.take(); sKs = Sg.take(); sMW = Sg.take()
    sN = Sg.take()
    ST = Stamps(Sg, stamps, 2)
    vL = V.take(); vT = [V.take() for _ in range(8)]
    vOffW = [V.take(), V.take()]; vOffA = [V.take() for _ in range(3)]
    vWA = [V.take() for _ in range(3)]; vWB = [V.take() for _ in range(3)]; vAA = [V.take() for _ in range(3)]; vOm = [V.take() for _ in range(3)]
    sets = [(V.take(12, 4), V.take(8, 4)) for _ in range(2)]
    acc = V.take(96, 4)
    tmp = V.take(16, 4); sm = V.take(8, 4); bq = V.take(4, 4)
    srd4 = f"s[{srdWS}:{srdWS+3}]"
    c.e(f"""
    s_and_b32 s{sT0}, s2, 7
    s_mul_i32 s{sT0}, s{sT0}, 28
    s_lshr_b32 s{sT1}, s2, 3
    s_add_u32 s{sN_}, s{sT0}, s{sT1}
    s_cmp_ge_u32 s2, 224
    s_cbranch_scc1 {name}_END
    s_cmp_ge_u32 s{sN_}, 220
    s_cbranch_scc1 {name}_END
    s_load_dwordx2 s[4:5], s[0:1], {KA_WO}
    s_load_dwordx2 s[6:7], s[0:1], {KA_WD}
    s_load_dwordx2 s[8:9], s[0:1], {KA_OUT}
    s_load_dwordx2 s[10:11], s[0:1], {KA_WS}
    v_and_b32 v{vL}, 63, v0
    v_lshrrev_b32 v{vT[0]}, 6, v0
    s_mul_hi_u32 s{sRT}, s{sN_}, {(2**32 + 9)//10}
    s_mul_i32 s{sT0}, s{sRT}, 10
    v_readfirstlane_b32 s{sW}, v{vT[0]}
    s_sub_u32 s{sCG}, s{sN_}, s{sT0}
    """)
    if "S" in exp: c.e(f"s_mov_b32 s{sRT}, 0\ns_mov_b32 s{sCG}, 0")
    ST.stamp(c, real=True); ST.stamp(c)
    c.e(f"""
    s_nop 2
    s_and_b32 s{sKQ}, s{sW}, 3
    s_cmp_lt_u32 s{sW}, 4
    s_cbranch_scc1 {name}_CONS
    """)
    c.e(f"""
    v_lshrrev_b32 v{vT[1]}, 3, v{vL}
    v_lshlrev_b32 v{vT[2]}, 1, v{vT[1]}
    v_and_b32 v{vT[2]}, 4, v{vT[2]}
    v_xor_b32 v{vT[2]}, v{vT[2]}, v{vL}
    v_and_b32 v{vT[2]}, 7, v{vT[2]}
    v_lshlrev_b32 v{vT[2]}, 4, v{vT[2]}
    s_lshl_b32 s{sT0}, s{sKQ}, 4
    v_add_u32 v{vT[1]}, s{sT0}, v{vT[1]}
    v_mul_u32_u24 v{vT[1]}, 1280, v{vT[1]}
    s_lshl_b32 s{sT0}, s{sCG}, 7
    v_add3_u32 v{vOffW[0]}, v{vT[1]}, v{vT[2]}, s{sT0}
    v_add_u32 v{vOffW[1]}, {8*1280}, v{vOffW[0]}
    """)
    if "E2" in exp: c.e(f"s_lshl_b32 s{sT0}, s{sKQ}, 11\ns_mul_i32 s{sT1}, s{sCG}, {37*8192}\ns_add_u32 s{sT0}, s{sT0}, s{sT1}\nv_lshlrev_b32 v{vOffW[0]}, 4, v{vL}\nv_add_u32 v{vOffW[0]}, s{sT0}, v{vOffW[0]}\nv_add_u32 v{vOffW[1]}, 1024, v{vOffW[0]}")
    c.e(f"""
    s_lshl_b32 s{sMW}, s{sKQ}, 11
    s_add_u32 s{sMW}, s{sMW}, {WOFF}
    s_mul_i32 s{sMA}, s{sKQ}, 3072
    """)
    for i in range(3):
        c.e(f"""
        s_mul_i32 s{sT0}, s{sKQ}, 3
        s_add_u32 s{sT0}, s{sT0}, {i}
        s_lshr_b32 s{sT1}, s{sT0}, 2
        s_and_b32 s{sT0}, s{sT0}, 3
        s_mul_i32 s{sT2}, s{sRT}, 3
        s_add_u32 s{sT1}, s{sT1}, s{sT2}
        s_mul_i32 s{sA[i]}, s{sT1}, 108
        s_add_u32 s{sA[i]}, s{sA[i]}, s{sT0}
        s_lshl_b32 s{sA[i]}, s{sA[i]}, 10
        s_add_u32 s{sA[i]}, s{sA[i]}, {HF_OFF}
        s_mul_i32 s{sAo[i]}, s{sT1}, 40
        s_add_u32 s{sAo[i]}, s{sAo[i]}, s{sT0}
        s_lshl_b32 s{sAo[i]}, s{sAo[i]}, 10
        s_add_u32 s{sAo[i]}, s{sAo[i]}, {OF_OFF}
        s_cmp_lt_u32 s{sT1}, 64
        s_cselect_b32 s{sT0}, 0, 0x7f000000
        v_lshlrev_b32 v{vOffA[i]}, 4, v{vL}
        v_add_u32 v{vOffA[i]}, s{sT0}, v{vOffA[i]}
        """)
    c.e(f"s_mov_b32 s{sKs}, 0\ns_waitcnt lgkmcnt(0)")
    srd(c, srdWS, sWS, WS_BYTES); srd(c, srdW, sWO, 640*1280)
    for i in range(3): c.e(f"s_mov_b32 s{sA[i]}, s{sAo[i]}")
    def dma(st):
        so = (st % RING)*STG; L = []
        if "N3" in exp and st >= LOOK: return []
        if False:
            L += [f"s_mov_b32 s{srdW}, s{sWO}", f"s_and_b32 s{srdW+1}, s{sWO+1}, 0xffff", f"s_mov_b32 s{srdW+2}, {640*1280}", f"s_mov_b32 s{sKs}, 0"]
            L += [f"s_mov_b32 s{sA[i]}, s{sAo[i]}" for i in range(3)]
        wo0 = vOffA[0] if "N4" in exp else vOffW[0]; wo1 = vOffA[0] if "N4" in exp else vOffW[1]
        L += [f"s_add_u32 m0, s{sMW}, {so}", "s_nop 0", f"buffer_load_dwordx4 v{wo0}, s[{srdW}:{srdW+3}], s{sKs} offen lds"]
        L += [f"s_add_u32 m0, s{sMA}, {so}", "s_nop 0", f"buffer_load_dwordx4 v{vOffA[0]}, {srd4}, s{sA[0]} offen lds"]
        L += [f"s_add_u32 m0, s{sMW}, {so+1024}", f"s_add_u32 s{sA[0]}, s{sA[0]}, 4096", f"buffer_load_dwordx4 v{wo1}, s[{srdW}:{srdW+3}], s{sKs} offen lds"]
        L += [f"s_add_u32 m0, s{sMA}, {so+1024}", f"s_add_u32 s{sKs}, s{sKs}, {8192 if 'E2' in exp else 64*1280}", f"buffer_load_dwordx4 v{vOffA[1]}, {srd4}, s{sA[1]} offen lds"]
        L += [f"s_add_u32 m0, s{sMA}, {so+2048}", f"s_add_u32 s{sA[1]}, s{sA[1]}, 4096", f"buffer_load_dwordx4 v{vOffA[2]}, {srd4}, s{sA[2]} offen lds"]
        L += [f"s_add_u32 s{sA[2]}, s{sA[2]}, 4096"]
        return L
    for st in range(LOOK): c.e("\n".join(dma(st)))
    for st in range(NS):
        issued = min(st + LOOK, NS)
        c.e(f"s_waitcnt vmcnt({5*(issued - st - 1)})" + ("" if "E1" in exp else "\ns_barrier"))
        if st + LOOK < NS: c.e("\n".join(dma(st + LOOK)))
    if "E1" in exp:
        ST.i = 2; ST.stamp(c); ST.stamp(c); ST.stamp(c); ST.stamp(c, real=True); ST.flush(c, sW, srdWS, vT[2], vT[3], sT0); c.e("s_endpgm")
    c.e(f"s_barrier\ns_barrier\ns_branch {name}_RED0")
    c.label(f"{name}_CONS")
    if "E1" in exp: c.e("s_endpgm")
    c.e("s_waitcnt lgkmcnt(0)")
    srd(c, srdWS, sWS, WS_BYTES)
    c.e(f"""
    v_and_b32 v{vT[0]}, 31, v{vL}
    v_lshlrev_b32 v{vT[1]}, 3, v{vT[0]}
    s_mul_i32 s{sT0}, s{sRT}, {96*8}
    s_add_u32 s{sT0}, s{sT0}, {G_OFF + 4}
    """)
    c.e(f"""
    v_and_b32 v{vT[3]}, 15, v{vL}
    v_lshrrev_b32 v{vT[4]}, 2, v{vT[3]}
    v_lshrrev_b32 v{vT[2]}, 5, v{vL}
    v_lshl_add_u32 v{vT[5]}, v{vT[2]}, 2, v{vT[4]}
    s_lshl_b32 s{sT0}, s{sKQ}, 4
    v_add_u32 v{vT[5]}, s{sT0}, v{vT[5]}
    v_lshlrev_b32 v{vT[5]}, 7, v{vT[5]}
    v_and_b32 v{vT[3]}, 3, v{vT[3]}
    v_lshl_add_u32 v{vT[5]}, v{vT[3]}, 3, v{vT[5]}
    v_lshrrev_b32 v{vT[3]}, 4, v{vL}
    v_and_b32 v{vT[3]}, 1, v{vT[3]}
    v_lshl_add_u32 v{vT[5]}, v{vT[3]}, 5, v{vT[5]}
    v_add_u32 v{vT[5]}, {WOFF}, v{vT[5]}
    v_lshrrev_b32 v{vT[4]}, 1, v{vT[4]}
    v_lshlrev_b32 v{vT[4]}, 6, v{vT[4]}
    v_add_u32 v{vWA[0]}, v{vT[5]}, v{vT[4]}
    v_xor_b32 v{vT[4]}, 64, v{vT[4]}
    v_add_u32 v{vWB[0]}, v{vT[5]}, v{vT[4]}
    s_lshl_b32 s{sT0}, s{sKQ}, 10
    v_lshlrev_b32 v{vAA[0]}, 4, v{vL}
    v_add_u32 v{vAA[0]}, s{sT0}, v{vAA[0]}
    """)
    for k in (1, 2):
        c.e(f"v_add_u32 v{vWA[k]}, {3*STG*k}, v{vWA[0]}\nv_add_u32 v{vWB[k]}, {3*STG*k}, v{vWB[0]}\nv_add_u32 v{vAA[k]}, {3*STG*k}, v{vAA[0]}")
    for r in range(96): c.e(f"v_mov_b32 v{acc+r}, 0")
    ST.stamp(c, wait=True)
    def reads(st):
        sl = st % RING; k = sl // 3; o = (sl % 3)*STG
        a, w = sets[st % 2]
        return [f"ds_read_b64_tr_b16 {vr(w,2)}, v{vWA[k]} offset:{o}", f"ds_read_b64_tr_b16 {vr(w+2,2)}, v{vWA[k]} offset:{o+1024}",
                f"ds_read_b128 {vr(a,4)}, v{vAA[k]} offset:{o}",
                f"ds_read_b64_tr_b16 {vr(w+4,2)}, v{vWB[k]} offset:{o}", f"ds_read_b64_tr_b16 {vr(w+6,2)}, v{vWB[k]} offset:{o+1024}",
                f"ds_read_b128 {vr(a+4,4)}, v{vAA[k]} offset:{o+4096}", f"ds_read_b128 {vr(a+8,4)}, v{vAA[k]} offset:{o+8192}"]
    def mf(st):
        a, w = sets[st % 2]
        return [mfma32(acc + 16*(3*cb + rbi), w + 4*cb, a + 4*rbi) for rbi in range(3) for cb in range(2)]
    for st in range(NS + 1):
        if st < NS:
            c.e("s_barrier")
            rd = reads(st)
        else: rd = []
        if st == 0:
            c.e("\n".join(rd)); continue
        c.e("s_waitcnt lgkmcnt(0)")
        m = mf(st - 1)
        if False:
            c.e("s_waitcnt vmcnt(0)\ns_nop 7\ns_nop 7")
            for cb in range(2):
                for rbi in range(3):
                    for r in range(16): c.e(f"v_mul_f32 v{acc+16*(3*cb+rbi)+r}, v{acc+16*(3*cb+rbi)+r}, v{vOm[rbi]}")
            c.e("s_nop 1")
        if "N1" in exp: m = []; rd = []
        if "N2" in exp: m = ["s_nop 0"]*6
        out = []
        for i, x in enumerate(m):
            out.append(x)
            if i < 4: out += rd[2*i:2*i+2]
        c.e("\n".join(out))
    ST.i = 3; ST.stamp(c, wait=True)
    c.e(f"""
    s_nop 7
    s_nop 7
    s_barrier
    s_mul_i32 s{sT0}, s{sKQ}, 24576
    v_lshlrev_b32 v{vT[5]}, 4, v{vL}
    v_add_u32 v{vT[0]}, s{sT0}, v{vT[5]}
    """)
    for it in range(24):
        c.e(f"ds_write_b128 v{vT[0]}, {vr(acc+4*it,4)} offset:{1024*it}")
        if it % 8 == 7: c.e("s_waitcnt lgkmcnt(4)")
    c.e("s_waitcnt lgkmcnt(0)\ns_barrier")
    c.label(f"{name}_RED0")
    c.e("s_waitcnt lgkmcnt(0)")
    srd(c, srdO, sOUT, 2048*1280)
    srd(c, srdWS, sWS, WS_BYTES)
    c.e(f"""
    v_lshlrev_b32 v{vT[5]}, 4, v{vL}
    v_and_b32 v{vT[1]}, 31, v{vL}
    s_mul_i32 s{sT0}, s{sRT}, 96
    v_add_u32 v{vT[1]}, s{sT0}, v{vT[1]}
    v_mul_u32_u24 v{vT[1]}, 1280, v{vT[1]}
    v_lshrrev_b32 v{vT[2]}, 5, v{vL}
    v_lshl_add_u32 v{vT[1]}, v{vT[2]}, 4, v{vT[1]}
    s_lshl_b32 s{sT0}, s{sCG}, 7
    v_add_u32 v{vT[1]}, s{sT0}, v{vT[1]}
    v_lshlrev_b32 v{vT[6]}, 3, v{vT[2]}
    v_sub_u32 v{vT[6]}, v{vT[1]}, v{vT[6]}
    s_mov_b32 s{sN}, s{sW}
    {name}_RED:
    s_lshl_b32 s{sT0}, s{sN}, 11
    v_add_u32 v{vT[0]}, s{sT0}, v{vT[5]}
    v_add_u32 v{vT[3]}, {2*24576}, v{vT[0]}
    s_cmp_ge_u32 s{sN}, 6
    s_cselect_b32 s{sT1}, 6, 0
    s_cselect_b32 s{sT2}, 64, 0
    s_sub_u32 s{sT1}, s{sN}, s{sT1}
    s_lshr_b32 s{sT0}, s{sT1}, 1
    s_mul_i32 s{sT0}, s{sT0}, {32*1280}
    s_add_u32 s{sT2}, s{sT2}, s{sT0}
    s_and_b32 s{sT1}, s{sT1}, 1
    s_lshl_b32 s{sT1}, s{sT1}, 5
    s_add_u32 s{sT2}, s{sT2}, s{sT1}
    s_add_u32 s{sT0}, s{sT2}, {BF_OFF}
    buffer_load_dwordx2 {vr(bq,2)}, v{vT[6]}, {srd4}, s{sT0} offen
    buffer_load_dwordx2 {vr(bq+2,2)}, v{vT[6]}, {srd4}, s{sT0} offen offset:16
    """)
    for half in range(2):
        for k in range(4):
            a, o = (vT[0], k*24576) if k < 2 else (vT[3], (k-2)*24576)
            c.e(f"ds_read_b128 {vr(tmp+4*k,4)}, v{a} offset:{o + 1024*half}")
        for k in range(4):
            c.e(f"s_waitcnt lgkmcnt({3-k})")
            if k == 0: continue
            for r in range(4):
                src0 = tmp + r if k == 1 else sm + 4*half + r
                c.e(f"v_add_f32 v{sm+4*half+r}, v{src0}, v{tmp+4*k+r}")
    c.e("s_waitcnt vmcnt(0)")
    for half in range(2):
        for q in range(2):
            c.e(f"v_lshlrev_b32 v{tmp}, 16, v{bq+2*half+q}\nv_and_b32 v{tmp+1}, 0xffff0000, v{bq+2*half+q}")
            c.e(f"v_add_f32 v{sm+4*half+2*q}, v{sm+4*half+2*q}, v{tmp}\nv_add_f32 v{sm+4*half+2*q+1}, v{sm+4*half+2*q+1}, v{tmp+1}")
    c.e(f"""
    v_cvt_pk_bf16_f32 v{tmp}, v{sm}, v{sm+1}
    v_cvt_pk_bf16_f32 v{tmp+1}, v{sm+2}, v{sm+3}
    v_cvt_pk_bf16_f32 v{tmp+2}, v{sm+4}, v{sm+5}
    v_cvt_pk_bf16_f32 v{tmp+3}, v{sm+6}, v{sm+7}
    s_nop 1
    v_permlane32_swap_b32 v{tmp}, v{tmp+2}
    v_permlane32_swap_b32 v{tmp+1}, v{tmp+3}
    s_nop 0
    buffer_store_dwordx4 {vr(tmp,4)}, v{vT[1]}, s[{srdO}:{srdO+3}], s{sT2} offen
    s_add_u32 s{sN}, s{sN}, 8
    s_cmp_lt_u32 s{sN}, 12
    s_nop 0
    s_cbranch_scc1 {name}_RED
    """)
    if stamps:
        c.e("s_waitcnt vmcnt(0)")
        c.e("s_waitcnt lgkmcnt(0)")
        srd(c, srdWS, sWS, WS_BYTES)
    ST.i = 4; ST.stamp(c); ST.stamp(c, real=True)
    ST.flush(c, sW, srdWS, vT[2], vT[3], sT0)
    c.e(f"""
    {name}_END:
    s_endpgm
    """)
    scen = {"cons": {f"{name}_END": False, f"{name}_CONS": True}, "prod": {f"{name}_END": False, f"{name}_CONS": False}}
    return c, V.hi, scen, K3_LDS

if __name__ == "__main__":
    c, nv, scen, lds = gen_k3()
    errs = check(c.lines, scen, "k3")
    print("vgprs", nv, "lds", lds, "lines", len(c.lines))
    for e in errs[:40]: print(e)
```

```python
from common import *
NST = 20
WSLOT = 24576; WRING = 4; UOFF = 12288
XSLOT = 16384; XRING = 3
XBASE = WSLOT*WRING
K1_LDS = XBASE + XSLOT*XRING
def mfma16(d, a, b, cz=None):
    return f"v_mfma_f32_16x16x32_bf16 {vr(d,4)}, {vr(a,4)}, {vr(b,4)}, " + (vr(d,4) if cz is None else str(cz))

def gen_k1(name="k1_kernel", stamps=False, exp=""):
    c = Code()
    SM = " sc1" if "SC1" in exp else (" sc0 sc1" if "SC01" in exp else ("" if "PLAIN" in exp else " nt"))
    V = Alloc(168, 1, "v"); Sg = Alloc(100, 18, "s")
    sAX, sWQ, sGW, sWG, sWU, sWS = 4, 6, 10, 12, 14, 16
    sX = Sg.take(); sJ = Sg.take(); sCG = Sg.take(); sRT = Sg.take(); sW = Sg.take(); sTH = Sg.take(); sCQ = Sg.take()
    sT0 = Sg.take(); sT1 = Sg.take(); sT2 = Sg.take(); sT3 = Sg.take()
    srdX = Sg.take(4, 4); srdW = Sg.take(4, 4); srdWS = Sg.take(4, 4)
    sMw = Sg.take(); sMx = Sg.take(); sKx = Sg.take(); sKw = Sg.take(); sKwStep = Sg.take()
    sBase = Sg.take(); sHS = Sg.take(); sTS = Sg.take(); sScale = Sg.take()
    ST = Stamps(Sg, stamps, 0)
    vL = V.take(); vT = [V.take() for _ in range(8)]
    vOffX = V.take(); vOffW = [V.take(), V.take()]
    vXA = [V.take(), V.take()]; vWA = [V.take() for _ in range(4)]; vWH = [V.take() for _ in range(4)]
    sets = [(V.take(16, 4), V.take(16, 4)) for _ in range(2)]
    acc = V.take(64, 4)
    vE = sets[0][0]
    D = lambda fb, tb: acc + 16*fb + 4*tb

    c.e(f"""
    s_cmp_ge_u32 s2, 256
    s_cbranch_scc1 {name}_END
    s_load_dwordx4 s[4:7], s[0:1], {KA_AX}
    s_load_dwordx2 s[10:11], s[0:1], {KA_GW}
    s_load_dwordx4 s[12:15], s[0:1], {KA_WG}
    s_load_dwordx2 s[16:17], s[0:1], {KA_WS}
    v_and_b32 v{vL}, 63, v0
    v_lshrrev_b32 v{vT[0]}, 6, v0
    s_and_b32 s{sX}, s2, 7
    s_lshr_b32 s{sJ}, s2, 3
    v_readfirstlane_b32 s{sW}, v{vT[0]}
    s_and_b32 s{sT0}, s{sJ}, 1
    s_lshr_b32 s{sRT}, s{sJ}, 1
    """)
    if "OLDMAP" in exp:
        c.e(f"s_lshl_b32 s{sCG}, s{sX}, 1\ns_add_u32 s{sCG}, s{sCG}, s{sT0}")
    else:
        c.e(f"""
        s_mul_i32 s{sT1}, s{sT0}, 6
        s_add_u32 s{sT1}, s{sT1}, s{sX}
        s_lshl_b32 s{sCG}, s{sX}, 1
        s_add_u32 s{sCG}, s{sCG}, s{sT0}
        s_cmp_lt_u32 s{sX}, 6
        s_cselect_b32 s{sCG}, s{sT1}, s{sCG}
        """)
    ST.stamp(c, real=True); ST.stamp(c)
    c.e(f"""
    v_lshrrev_b32 v{vT[1]}, 3, v{vL}
    v_lshrrev_b32 v{vT[2]}, 4, v{vL}
    s_lshl_b32 s{sT0}, s{sW}, 2
    v_add_u32 v{vT[2]}, s{sT0}, v{vT[2]}
    v_xor_b32 v{vT[2]}, v{vT[2]}, v{vL}
    v_and_b32 v{vT[2]}, 7, v{vT[2]}
    s_lshl_b32 s{sT0}, s{sRT}, 7
    s_lshl_b32 s{sT1}, s{sW}, 3
    s_add_u32 s{sT0}, s{sT0}, s{sT1}
    v_add_u32 v{vT[1]}, s{sT0}, v{vT[1]}
    v_mul_u32_u24 v{vT[1]}, 1280, v{vT[1]}
    v_lshl_add_u32 v{vOffX}, v{vT[2]}, 4, v{vT[1]}
    s_lshl_b32 s{sMx}, s{sW}, 10
    s_add_u32 s{sMx}, s{sMx}, {XBASE}
    s_and_b32 s{sTH}, s{sW}, 1
    s_lshr_b32 s{sCQ}, s{sW}, 1
    s_cmp_eq_u32 s{sCG}, 15
    s_cbranch_scc1 {name}_GATE
    s_lshl_b32 s{sMw}, s{sW}, 11
    s_cmp_lt_u32 s{sCG}, 6
    s_cbranch_scc0 {name}_GLU
    """)
    def woff(i, nch, magic, rs):
        return f"""
        v_add_u32 v{vT[1]}, s{sT0}, v{vL}
        v_mul_u32_u24 v{vT[2]}, {magic}, v{vT[1]}
        v_lshrrev_b32 v{vT[2]}, 16, v{vT[2]}
        v_mul_u32_u24 v{vT[3]}, {nch}, v{vT[2]}
        v_sub_u32 v{vT[3]}, v{vT[1]}, v{vT[3]}
        v_lshrrev_b32 v{vT[4]}, 1, v{vT[2]}
        v_and_b32 v{vT[4]}, 4, v{vT[4]}
        v_and_or_b32 v{vT[4]}, v{vT[2]}, 2, v{vT[4]}
        v_xor_b32 v{vT[3]}, v{vT[3]}, v{vT[4]}
        v_mul_u32_u24 v{vT[2]}, {rs}, v{vT[2]}
        v_lshl_add_u32 v{vT[2]}, v{vT[3]}, 4, v{vT[2]}
        v_add_u32 v{vOffW[i]}, s{sT3}, v{vT[2]}
        s_add_u32 s{sT0}, s{sT0}, 64
        """
    c.e(f"s_lshl_b32 s{sT0}, s{sW}, 7\ns_mul_i32 s{sT3}, s{sCG}, 640")
    c.e(woff(0, 40, 1639, 3840)); c.e(woff(1, 40, 1639, 3840))
    c.e(f"s_mov_b32 s{sKwStep}, {32*3840}\ns_waitcnt lgkmcnt(0)")
    srd(c, srdW, sWQ, 640*3840)
    c.e(f"s_branch {name}_DEC")
    c.label(f"{name}_GLU")
    c.e(f"""
    s_cmp_lt_u32 s{sW}, 6
    s_cselect_b32 s{sT1}, 0, 6
    s_sub_u32 s{sT0}, s{sW}, s{sT1}
    s_lshl_b32 s{sT0}, s{sT0}, 7
    s_sub_u32 s{sT3}, s{sCG}, 6
    s_mul_i32 s{sT3}, s{sT3}, 384
    """)
    c.e(woff(0, 24, 2731, 3456)); c.e(woff(1, 24, 2731, 3456))
    c.e(f"""
    s_mov_b32 s{sKwStep}, {32*3456}
    s_waitcnt lgkmcnt(0)
    s_cmp_lt_u32 s{sW}, 6
    s_cselect_b32 s{srdW}, s{sWG}, s{sWU}
    s_cselect_b32 s{srdW+1}, s{sWG+1}, s{sWU+1}
    s_and_b32 s{srdW+1}, s{srdW+1}, 0xffff
    s_mov_b32 s{srdW+2}, {640*3456}
    s_mov_b32 s{srdW+3}, 0x20000
    """)
    c.label(f"{name}_DEC")
    srd(c, srdX, sAX, 2048*1280)
    c.e(f"s_mov_b32 s{sKw}, 0")
    def dma_w(i, st):
        return [f"s_add_u32 m0, s{sMw}, {(st % WRING)*WSLOT + 1024*i}", "s_nop 0", f"buffer_load_dwordx4 v{vOffW[i]}, s[{srdW}:{srdW+3}], s{sKw} offen lds"]
    def dma_x(u):
        m, hf = u >> 1, u & 1
        return [f"s_add_u32 m0, s{sMx}, {(m % XRING)*XSLOT + hf*8192}", f"s_mov_b32 s{sKx}, {m*128 + hf*64*1280}", f"buffer_load_dwordx4 v{vOffX}, s[{srdX}:{srdX+3}], s{sKx} offen lds"]
    advw = [f"s_add_u32 s{sKw}, s{sKw}, s{sKwStep}"]
    c.e(f"""
    s_cmp_lt_u32 s{sCG}, 6
    s_cselect_b32 s{sT0}, s{sW}, 0
    s_cmp_ge_u32 s{sT0}, 10
    s_cbranch_scc1 {name}_IDLE
    s_cmp_lt_u32 s{sW}, 8
    s_cbranch_scc0 {name}_PRO_NX
    """)
    c.e("\n".join(dma_x(0) + dma_w(0, 0) + dma_w(1, 0) + advw + dma_x(1)))
    c.e("\n".join(dma_w(0, 1) + dma_w(1, 1) + advw + dma_x(2) + dma_w(0, 2) + dma_w(1, 2) + advw + dma_x(3)))
    c.e(f"s_branch {name}_PRO_D")
    c.label(f"{name}_PRO_NX")
    for st in range(3): c.e("\n".join(dma_w(0, st) + dma_w(1, st) + advw))
    c.label(f"{name}_PRO_D")
    c.e(f"""
    v_and_b32 v{vT[1]}, 15, v{vL}
    v_lshrrev_b32 v{vT[2]}, 4, v{vL}
    v_lshrrev_b32 v{vT[3]}, 1, v{vT[1]}
    v_xor_b32 v{vT[3]}, v{vT[3]}, v{vT[2]}
    v_lshlrev_b32 v{vT[3]}, 4, v{vT[3]}
    v_lshl_add_u32 v{vT[3]}, v{vT[1]}, 7, v{vT[3]}
    s_lshl_b32 s{sT0}, s{sTH}, 13
    s_add_u32 s{sT0}, s{sT0}, {XBASE}
    v_add_u32 v{vXA[0]}, s{sT0}, v{vT[3]}
    v_xor_b32 v{vXA[1]}, 64, v{vXA[0]}
    v_lshrrev_b32 v{vT[3]}, 2, v{vT[1]}
    v_lshl_add_u32 v{vT[4]}, v{vT[2]}, 3, v{vT[3]}
    v_lshrrev_b32 v{vT[3]}, 1, v{vT[3]}
    v_and_b32 v{vT[5]}, 1, v{vT[2]}
    v_lshl_or_b32 v{vT[3]}, v{vT[5]}, 1, v{vT[3]}
    v_and_b32 v{vT[5]}, 3, v{vT[1]}
    v_lshlrev_b32 v{vT[5]}, 3, v{vT[5]}
    s_cmp_lt_u32 s{sCG}, 6
    s_cbranch_scc0 {name}_RA_GLU
    v_mul_u32_u24 v{vT[4]}, 640, v{vT[4]}
    v_add_u32 v{vT[4]}, v{vT[4]}, v{vT[5]}
    s_lshl_b32 s{sT0}, s{sCQ}, 7
    v_add_u32 v{vT[4]}, s{sT0}, v{vT[4]}
    """)
    for fb in range(4):
        c.e(f"v_xor_b32 v{vT[6]}, {fb}, v{vT[3]}\nv_lshl_add_u32 v{vWA[fb]}, v{vT[6]}, 5, v{vT[4]}")
    c.e(f"s_branch {name}_RA")
    c.label(f"{name}_RA_GLU")
    c.e(f"""
    v_mul_u32_u24 v{vT[4]}, 384, v{vT[4]}
    v_add_u32 v{vT[4]}, v{vT[4]}, v{vT[5]}
    """)
    for f in range(2):
        c.e(f"""
        s_lshl_b32 s{sT0}, s{sCQ}, 1
        s_add_u32 s{sT0}, s{sT0}, {f}
        s_and_b32 s{sT1}, s{sT0}, 3
        s_andn2_b32 s{sT0}, s{sT0}, 3
        s_lshl_b32 s{sT0}, s{sT0}, 5
        v_xor_b32 v{vT[6]}, s{sT1}, v{vT[3]}
        v_lshl_add_u32 v{vT[6]}, v{vT[6]}, 5, v{vT[4]}
        v_add_u32 v{vWA[f]}, s{sT0}, v{vT[6]}
        v_add_u32 v{vWA[2+f]}, {UOFF}, v{vWA[f]}
        """)
    c.label(f"{name}_RA")
    for fb in range(4): c.e(f"v_add_u32 v{vWH[fb]}, {2*WSLOT}, v{vWA[fb]}")
    srd(c, srdWS, sWS, WS_BYTES)
    ST.stamp(c)
    c.e(f"""
    s_cmp_lt_u32 s{sW}, 8
    s_cselect_b32 s{sT1}, 0, 1
    s_cmp_lt_u32 s{sCG}, 4
    s_cselect_b32 s{sT0}, 0, 2
    s_cmp_lt_u32 s{sCG}, 6
    s_cselect_b32 s{sT0}, s{sT0}, 4
    s_add_u32 s{sT0}, s{sT0}, s{sT1}
    """)
    variants = [("QK", 1), ("QK", 0), ("V", 1), ("V", 0), ("GLU", 1), ("GLU", 0)]
    for i in range(1, 6): c.e(f"s_cmp_eq_u32 s{sT0}, {i}\ns_cbranch_scc1 {name}_VAR{i}")
    def reads(st, rs):
        xs, ws_ = sets[st % 2]; p = st & 1; xslot = (st >> 1) % XRING; wsl = st % WRING
        base = vWA if wsl < 2 else vWH; so = (wsl & 1)*WSLOT
        L = []
        for i in range(4):
            L.append(f"ds_read_b64_tr_b16 {vr(ws_+4*i,2)}, v{base[i]} offset:{so}")
            L.append(f"ds_read_b64_tr_b16 {vr(ws_+4*i+2,2)}, v{base[i]} offset:{so + 4*rs}")
            L.append(f"ds_read_b128 {vr(xs+4*i,4)}, v{vXA[p]} offset:{xslot*XSLOT + 2048*i}")
        return L
    def mfmas(st, role):
        xs, ws_ = sets[st % 2]; L = []
        for fb in range(4):
            for tb in range(4):
                cz = 0 if st == 0 else None
                L.append(mfma16(D(fb, tb), ws_+4*fb, xs+4*tb, cz) if role != "V" else mfma16(D(fb, tb), xs+4*tb, ws_+4*fb, cz))
        return L
    for vi, (role, nx) in enumerate(variants):
        if vi: c.label(f"{name}_VAR{vi}")
        rs = 384 if role == "GLU" else 640
        def cnt(x): return ((2 if x + 3 < NST else 0) + (nx if x + 4 < NST else 0))
        for st in range(NST + 1):
            rd = reads(st, rs) if st < NST else []
            if st == 0:
                c.e(f"s_waitcnt vmcnt({cnt(-2) + cnt(-1)})\ns_barrier")
                c.e("\n".join(rd))
                d = []
                if True:
                    c.e("\n".join(dma_w(0, 3) + dma_w(1, 3) + advw + (dma_x(4) if nx else [])))
                continue
            m = mfmas(st - 1, role)
            g = {}
            pre = [f"s_waitcnt vmcnt({cnt(st-2) + cnt(st-1)})", "s_barrier"] if st < NST else []
            g[0] = pre + rd[0:2]
            k = 2
            for i in range(1, 11):
                g[i] = rd[k:k+1]; k += 1
            if st < NST:
                if st + 3 < NST:
                    g[11] = dma_w(0, st+3); g[13] = dma_w(1, st+3) + advw
                if nx and st + 4 < NST: g[15] = dma_x(st+4)
            c.e("s_waitcnt lgkmcnt(0)")
            out = []
            for i, x in enumerate(m):
                out.append(x); out += g.get(i, [])
            c.e("\n".join(out))
            if stamps and st in (3, 15):
                r = ST.s + 2*(5 if st == 3 else 6); c.e(f"s_memtime s[{r}:{r+1}]")
        c.e(f"s_branch {name}_EPI_{role}")
    c.label(f"{name}_EPI_GLU")
    ST.i = 3; ST.stamp(c, wait=True)
    c.e(f"""
    s_lshl_b32 s{sT0}, s{sRT}, 2
    s_lshl_b32 s{sT1}, s{sTH}, 1
    s_add_u32 s{sT0}, s{sT0}, s{sT1}
    s_mul_i32 s{sBase}, s{sT0}, 108
    s_sub_u32 s{sT1}, s{sCG}, 6
    s_mul_i32 s{sT1}, s{sT1}, 12
    s_add_u32 s{sBase}, s{sBase}, s{sT1}
    s_lshl_b32 s{sT1}, s{sCQ}, 1
    s_add_u32 s{sBase}, s{sBase}, s{sT1}
    s_lshl_b32 s{sBase}, s{sBase}, 10
    s_add_u32 s{sBase}, s{sBase}, {HF_OFF}
    v_and_b32 v{vT[1]}, 15, v{vL}
    v_lshrrev_b32 v{vT[2]}, 4, v{vL}
    v_and_b32 v{vT[3]}, 1, v{vT[2]}
    v_lshlrev_b32 v{vT[3]}, 9, v{vT[3]}
    v_lshl_add_u32 v{vT[3]}, v{vT[1]}, 4, v{vT[3]}
    v_lshrrev_b32 v{vT[2]}, 1, v{vT[2]}
    v_lshl_add_u32 v{vT[0]}, v{vT[2]}, 3, v{vT[3]}
    s_mov_b32 s{sT1}, {hexf(-LOG2E)}
    s_add_u32 s{sT2}, s{sBase}, {108*1024}
    """)
    for tb in range(4):
        for f in range(2):
            g_, u_ = D(f, tb), D(2+f, tb)
            for r in range(4): c.e(f"v_mul_f32 v{g_+r}, s{sT1}, v{g_+r}")
        for f in range(2):
            for r in range(4): c.e(f"v_exp_f32 v{D(f,tb)+r}, v{D(f,tb)+r}")
        for f in range(2):
            for r in range(4): c.e(f"v_add_f32 v{D(f,tb)+r}, 1.0, v{D(f,tb)+r}")
        for f in range(2):
            for r in range(4): c.e(f"v_rcp_f32 v{D(f,tb)+r}, v{D(f,tb)+r}")
        for f in range(2):
            for r in range(4): c.e(f"v_mul_f32 v{D(f,tb)+r}, v{D(f,tb)+r}, v{D(2+f,tb)+r}")
        e = vE + 4*(tb % 4)
        for f in range(2):
            c.e(f"v_cvt_pk_bf16_f32 v{e+2*f}, v{D(f,tb)}, v{D(f,tb)+1}\nv_cvt_pk_bf16_f32 v{e+2*f+1}, v{D(f,tb)+2}, v{D(f,tb)+3}")
        for f in range(2):
            c.e(f"buffer_store_dwordx2 {vr(e+2*f,2)}, v{vT[0]}, s[{srdWS}:{srdWS+3}], s{sBase if tb < 2 else sT2} offen offset:{1024*f + 256*(tb & 1)}{SM}")
    c.e(f"s_branch {name}_FIN")
    c.label(f"{name}_EPI_QK")
    ST.i = 3; ST.stamp(c, wait=True)
    c.e(f"""
    s_cmp_lt_u32 s{sCG}, 2
    {csel(sHS, QF_HS, KV_HS)}
    {csel(sTS, QF_TS, KV_TS)}
    {csel(sBase, QF_OFF, KV_OFF)}
    {csel(sScale, hexf(LOG2E*20**-0.5), hexf(1.0))}
    v_and_b32 v{vT[0]}, 15, v{vL}
    v_lshrrev_b32 v{vT[1]}, 4, v{vL}
    s_lshl_b32 s{sT0}, s{sCQ}, 4
    v_add_u32 v{vT[1]}, s{sT0}, v{vT[1]}
    s_mul_i32 s{sT1}, s{sTH}, 2560
    """)
    aE = [vE + i for i in range(4)]; aO = [vE + 4 + i for i in range(4)]
    for fb in range(4):
        c.e(f"""
        v_add_u32 v{vT[2]}, {4*fb}, v{vT[1]}
        v_mul_u32_u24 v{vT[3]}, 13108, v{vT[2]}
        v_lshrrev_b32 v{vT[3]}, 16, v{vT[3]}
        v_mul_u32_u24 v{vT[4]}, 5, v{vT[3]}
        v_sub_u32 v{vT[4]}, v{vT[2]}, v{vT[4]}
        v_mul_u32_u24 v{vT[3]}, 5120, v{vT[3]}
        v_add_u32 v{vT[3]}, s{sT1}, v{vT[3]}
        v_lshrrev_b32 v{vT[5]}, 1, v{vT[4]}
        v_lshlrev_b32 v{vT[5]}, 9, v{vT[5]}
        v_and_b32 v{vT[6]}, 1, v{vT[4]}
        v_lshl_add_u32 v{vT[5]}, v{vT[6]}, 3, v{vT[5]}
        v_lshl_add_u32 v{vT[5]}, v{vT[0]}, 4, v{vT[5]}
        v_lshlrev_b32 v{vT[6]}, 3, v{vT[0]}
        v_add_u32 v{vT[6]}, 1024, v{vT[6]}
        v_cmp_eq_u32 vcc, 4, v{vT[4]}
        v_mov_b32 v{vT[7]}, 256
        v_mov_b32 v{vT[2]}, 128
        v_cndmask_b32 v{vT[5]}, v{vT[5]}, v{vT[6]}, vcc
        v_cndmask_b32 v{vT[7]}, v{vT[7]}, v{vT[2]}, vcc
        v_add_u32 v{aE[fb]}, v{vT[3]}, v{vT[5]}
        v_add_u32 v{aO[fb]}, v{aE[fb]}, v{vT[7]}
        """)
    c.e("s_barrier")
    t2 = vE + 8
    for fb in range(4):
        for tb in range(4):
            d = D(fb, tb)
            for r in range(4): c.e(f"v_mul_f32 v{d+r}, s{sScale}, v{d+r}")
            e = t2 + 2*((4*fb + tb) % 8)
            c.e(f"v_cvt_pk_bf16_f32 v{e}, v{d}, v{d+1}\nv_cvt_pk_bf16_f32 v{e+1}, v{d+2}, v{d+3}")
            c.e(f"ds_write_b64 v{aE[fb] if tb % 2 == 0 else aO[fb]}, {vr(e,2)} offset:{1280*(tb >> 1)}")
        c.e("s_waitcnt lgkmcnt(4)")
    c.e(f"s_branch {name}_COPY")
    c.label(f"{name}_EPI_V")
    ST.i = 3; ST.stamp(c, wait=True)
    c.e(f"""
    s_mov_b32 s{sHS}, {KV_HS}
    s_mov_b32 s{sTS}, {KV_TS}
    s_mov_b32 s{sBase}, {KV_OFF + 1280}
    v_and_b32 v{vT[0]}, 15, v{vL}
    v_lshrrev_b32 v{vT[1]}, 4, v{vL}
    s_lshl_b32 s{sT0}, s{sCQ}, 6
    v_add_u32 v{vT[0]}, s{sT0}, v{vT[0]}
    v_and_b32 v{vT[2]}, 1, v{vT[1]}
    v_mul_u32_u24 v{vT[2]}, 320, v{vT[2]}
    v_lshrrev_b32 v{vT[1]}, 1, v{vT[1]}
    v_lshl_add_u32 v{vT[1]}, v{vT[1]}, 3, v{vT[2]}
    s_mul_i32 s{sT1}, s{sTH}, 2560
    v_add_u32 v{vT[1]}, s{sT1}, v{vT[1]}
    """)
    for fb in range(4):
        c.e(f"""
        v_add_u32 v{vT[2]}, {16*fb}, v{vT[0]}
        v_mul_u32_u24 v{vT[3]}, 3277, v{vT[2]}
        v_lshrrev_b32 v{vT[3]}, 16, v{vT[3]}
        v_mul_u32_u24 v{vT[4]}, 20, v{vT[3]}
        v_sub_u32 v{vT[4]}, v{vT[2]}, v{vT[4]}
        v_mul_u32_u24 v{vT[3]}, 5120, v{vT[3]}
        v_lshl_add_u32 v{vT[3]}, v{vT[4]}, 4, v{vT[3]}
        v_add_u32 v{aE[fb]}, v{vT[3]}, v{vT[1]}
        """)
    c.e("s_barrier")
    for fb in range(4):
        for tb in range(4):
            d = D(fb, tb); e = t2 + 2*((4*fb + tb) % 8)
            c.e(f"v_cvt_pk_bf16_f32 v{e}, v{d}, v{d+1}\nv_cvt_pk_bf16_f32 v{e+1}, v{d+2}, v{d+3}")
            c.e(f"ds_write_b64 v{aE[fb]}, {vr(e,2)} offset:{1280*(tb >> 1) + 640*(tb & 1)}")
        c.e("s_waitcnt lgkmcnt(4)")
    c.e(f"s_branch {name}_COPY")
    c.label(f"{name}_IDLE")
    c.e(f"s_mov_b32 s{sT0}, {NST}\n{name}_IDL:\ns_barrier\ns_sub_u32 s{sT0}, s{sT0}, 1\ns_cmp_lg_u32 s{sT0}, 0\ns_cbranch_scc1 {name}_IDL")
    c.e("s_waitcnt lgkmcnt(0)")
    srd(c, srdWS, sWS, WS_BYTES)
    c.e(f"""
    s_cmp_lt_u32 s{sCG}, 2
    {csel(sHS, QF_HS, KV_HS)}
    {csel(sTS, QF_TS, KV_TS)}
    {csel(sBase, QF_OFF, KV_OFF)}
    s_cmp_lt_u32 s{sCG}, 4
    s_cselect_b32 s{sBase}, s{sBase}, {KV_OFF + 1280}
    s_barrier
    """)
    c.label(f"{name}_COPY")
    c.e(f"""
    s_lshl_b32 s{sT0}, s{sRT}, 2
    s_mul_i32 s{sT0}, s{sT0}, s{sTS}
    s_add_u32 s{sBase}, s{sBase}, s{sT0}
    s_and_b32 s{sT0}, s{sCG}, 1
    s_lshl_b32 s{sT0}, s{sT0}, 4
    s_add_u32 s{sT0}, s{sT0}, s{sW}
    s_mul_i32 s{sT0}, s{sT0}, s{sHS}
    s_add_u32 s{sBase}, s{sBase}, s{sT0}
    s_mul_i32 s{sT1}, s{sW}, 5120
    v_lshl_add_u32 v{vT[0]}, v{vL}, 4, s{sT1}
    """)
    aC = [vE + 24 + i for i in range(5)]
    for k in range(5):
        c.e(f"""
        v_add_u32 v{vT[1]}, {64*k}, v{vL}
        v_mul_u32_u24 v{vT[2]}, 820, v{vT[1]}
        v_lshrrev_b32 v{vT[2]}, 16, v{vT[2]}
        v_mul_u32_u24 v{vT[3]}, 80, v{vT[2]}
        v_sub_u32 v{vT[3]}, v{vT[1]}, v{vT[3]}
        v_mul_lo_u32 v{vT[2]}, v{vT[2]}, s{sTS}
        v_lshl_add_u32 v{aC[k]}, v{vT[3]}, 4, v{vT[2]}
        """)
    c.e("s_waitcnt lgkmcnt(0)\ns_barrier")
    c.label(f"{name}_CPL")
    for k in range(5): c.e(f"ds_read_b128 {vr(acc+4*k,4)}, v{vT[0]} offset:{1024*k}")
    for k in range(5):
        c.e(f"s_waitcnt lgkmcnt({4-k})")
        c.e(f"buffer_store_dwordx4 {vr(acc+4*k,4)}, v{aC[k]}, s[{srdWS}:{srdWS+3}], s{sBase} offen{SM}")
    c.e(f"""
    s_add_u32 s{sW}, s{sW}, 12
    s_cmp_lt_u32 s{sW}, 16
    s_cbranch_scc0 {name}_CPD
    s_mul_i32 s{sT0}, s{sHS}, 12
    s_add_u32 s{sBase}, s{sBase}, s{sT0}
    v_add_u32 v{vT[0]}, {12*5120}, v{vT[0]}
    s_branch {name}_CPL
    {name}_CPD:
    s_sub_u32 s{sW}, s{sW}, 12
    s_cmp_ge_u32 s{sW}, 12
    s_cselect_b32 s{sT0}, 12, 0
    s_sub_u32 s{sW}, s{sW}, s{sT0}
    s_branch {name}_FIN
    """)
    c.label(f"{name}_GATE")
    c.e(f"s_cmp_ge_u32 s{sW}, 8\ns_cbranch_scc1 {name}_END\ns_waitcnt lgkmcnt(0)")
    srd(c, srdX, sAX, 2048*1280); srd(c, srdW, sGW, 1280); srd(c, srdWS, sWS, WS_BYTES)
    vGw = sets[0][0]; vGx = sets[0][0] + 8
    c.e(f"""
    v_lshlrev_b32 v{vT[5]}, 2, v{vL}
    s_lshl_b32 s{sT0}, s{sRT}, 7
    s_lshl_b32 s{sT1}, s{sW}, 4
    s_add_u32 s{sBase}, s{sT0}, s{sT1}
    s_mul_i32 s{sT1}, s{sBase}, 1280
    """)
    for i in range(5): c.e(f"buffer_load_dword v{vGw+i}, v{vT[5]}, s[{srdW}:{srdW+3}], 0 offen offset:{256*i}")
    NB_ = 8
    for bt in range(2):
        for rr in range(NB_):
            for i in range(5): c.e(f"buffer_load_dword v{vGx+5*rr+i}, v{vT[5]}, s[{srdX}:{srdX+3}], s{sT1} offen offset:{256*i}")
            c.e(f"s_add_u32 s{sT1}, s{sT1}, 1280")
        for rr in range(NB_):
            c.e(f"s_waitcnt vmcnt({5*(NB_-1-rr) + (rr if True else 0)})")
            for i in range(5):
                c.e(f"""
                v_lshlrev_b32 v{vT[0]}, 16, v{vGx+5*rr+i}
                v_and_b32 v{vT[1]}, 0xffff0000, v{vGx+5*rr+i}
                v_lshlrev_b32 v{vT[2]}, 16, v{vGw+i}
                v_and_b32 v{vT[3]}, 0xffff0000, v{vGw+i}
                v_mul_f32 v{vT[0]}, v{vT[0]}, v{vT[2]}
                v_mul_f32 v{vT[1]}, v{vT[1]}, v{vT[3]}
                v_cvt_pk_bf16_f32 v{vT[0]}, v{vT[0]}, v{vT[1]}
                v_lshlrev_b32 v{vT[2]}, 16, v{vT[0]}
                v_and_b32 v{vT[3]}, 0xffff0000, v{vT[0]}
                """)
                if i == 0: c.e(f"v_add_f32 v{vT[4]}, v{vT[2]}, v{vT[3]}")
                else: c.e(f"v_add_f32 v{vT[2]}, v{vT[2]}, v{vT[3]}\nv_add_f32 v{vT[4]}, v{vT[4]}, v{vT[2]}")
            for sh in ("row_shr:1", "row_shr:2", "row_shr:4", "row_shr:8"):
                c.e(f"s_nop 1\nv_add_f32_dpp v{vT[4]}, v{vT[4]}, v{vT[4]} {sh} row_mask:0xf bank_mask:0xf bound_ctrl:0")
            c.e(f"""
            s_nop 1
            v_readlane_b32 s{sT0}, v{vT[4]}, 15
            v_readlane_b32 s{sT2}, v{vT[4]}, 31
            v_readlane_b32 s{sT3}, v{vT[4]}, 47
            v_readlane_b32 s{sHS}, v{vT[4]}, 63
            s_nop 1
            v_mov_b32 v{vT[0]}, s{sT0}
            v_add_f32 v{vT[0]}, s{sT2}, v{vT[0]}
            v_add_f32 v{vT[0]}, s{sT3}, v{vT[0]}
            v_add_f32 v{vT[0]}, s{sHS}, v{vT[0]}
            v_cvt_pk_bf16_f32 v{vT[0]}, v{vT[0]}, v{vT[0]}
            v_lshlrev_b32 v{vT[0]}, 16, v{vT[0]}
            v_mul_f32 v{vT[0]}, {hexf(-LOG2E)}, v{vT[0]}
            v_exp_f32 v{vT[0]}, v{vT[0]}
            s_nop 0
            v_add_f32 v{vT[0]}, 1.0, v{vT[0]}
            v_rcp_f32 v{vT[0]}, v{vT[0]}
            s_nop 0
            v_cvt_pk_bf16_f32 v{vT[0]}, v{vT[0]}, v{vT[0]}
            v_lshlrev_b32 v{vT[6]}, 16, v{vT[0]}
            v_sub_f32 v{vT[1]}, 1.0, v{vT[6]}
            v_cvt_pk_bf16_f32 v{vT[1]}, v{vT[1]}, v{vT[1]}
            v_lshlrev_b32 v{vT[7]}, 16, v{vT[1]}
            s_lshl_b32 s{sT0}, s{sBase}, 3
            s_add_u32 s{sT0}, s{sT0}, {G_OFF}
            v_mov_b32 v{vT[2]}, 0
            s_mov_b64 exec, 1
            buffer_store_dwordx2 {vr(vT[6],2)}, v{vT[2]}, s[{srdWS}:{srdWS+3}], s{sT0} offen
            s_mov_b64 exec, -1
            s_add_u32 s{sBase}, s{sBase}, 1
            """)
    if stamps:
        ST.i = 2; ST.stamp(c); ST.stamp(c)
    c.label(f"{name}_FIN")
    if stamps: c.e("s_waitcnt vmcnt(0)")
    ST.i = 4; ST.stamp(c)
    if stamps:
        c.e(f"s_memrealtime s[{ST.s+14}:{ST.s+15}]"); ST.i = 8
        c.e(f"s_cmp_ge_u32 s{sW}, 8\ns_cbranch_scc1 {name}_END")
    ST.flush(c, sW, srdWS, vT[2], vT[3], sT0)
    c.e(f"""
    {name}_END:
    s_endpgm
    """)
    def S(role, vi=0, idle=False):
        d = {f"{name}_END": False, f"{name}_GATE": role == "gate", f"{name}_GLU": role == "glu", f"{name}_RA_GLU": role == "glu",
             f"{name}_IDLE": idle, f"{name}_PRO_NX": vi % 2 == 1, f"{name}_CPD": (lambda k: k >= 1)}
        for i in range(1, 6): d[f"{name}_VAR{i}"] = (i == vi)
        return d
    scen = {"qk1": S("qk", 0), "qk0": S("qk", 1), "v1": S("v", 2), "v0": S("v", 3), "glu1": S("glu", 4), "glu0": S("glu", 5), "gate": S("gate"), "idle": S("qk", 1, True)}
    return c, V.hi, scen, K1_LDS

if __name__ == "__main__":
    c, nv, scen, lds = gen_k1()
    errs = check(c.lines, scen, "k1")
    print("vgprs", nv, "lds", lds, "lines", len(c.lines))
    for e in errs[:40]: print(e)
```

```python
from common import *

CH = 10240
SLOT = 2*CH; RING = 3
DUMMY = SLOT*RING
FLAG = DUMMY + 1024
XCH = FLAG + 64
GRING = XCH + 8*3072
GSLOT = 6144; GWAVE = 3*GSLOT
K2_LDS = GRING + 4*GWAVE
FB_BARRIERS = 16 + 3 + 9 + 1

def gen_k2(name="k2_kernel", stamps=False, exp=""):
    c = Code()
    SM = " sc1" if "SC1" in exp else (" sc0 sc1" if "SC01" in exp else ("" if ("PLAIN" in exp or "P2" in exp) else " nt"))
    V = Alloc(168, 1, "v"); Sg = Alloc(100, 8, "s")
    sWS = 4; sWD = 6
    sX = Sg.take(); sJ = Sg.take(); sHead = Sg.take(); sQB = Sg.take(); sW = Sg.take(); sQG = Sg.take(); sKH = Sg.take()
    sT0 = Sg.take(); sT1 = Sg.take(); sT2 = Sg.take(); sT3 = Sg.take()
    srdWS = Sg.take(4, 4)
    sMaskLo = Sg.take(2, 2); sMaskV = Sg.take(2, 2); sU = Sg.take(2, 2); sU2 = Sg.take(2, 2)
    sSrc = Sg.take(); sM = [Sg.take() for _ in range(3)]; sSlotW = Sg.take(); sSlotR = Sg.take(); sC = Sg.take(); sMode = Sg.take()
    sSrc0 = Sg.take(); sTile = Sg.take(); sOb = Sg.take()
    ST = Stamps(Sg, stamps, 1)
    vL = V.take(); vT = [V.take() for _ in range(8)]
    vOff = V.take(); vOff3 = V.take()
    vK1a = V.take(); vK2a = V.take(); vVa = V.take()
    vK1c = V.take(); vK2c = V.take(); vVc = V.take()
    vG = [V.take(), V.take()]; vSt = [V.take() for _ in range(3)]
    Q1 = [V.take(4, 4), V.take(4, 4)]; Q2 = [V.take(2, 2), V.take(2, 2)]
    K1 = V.take(4, 4); K2 = V.take(2, 2); V0 = V.take(4, 4); V1 = V.take(4, 4)
    S_ = [V.take(16, 4), V.take(16, 4)]; O = [V.take(16, 4), V.take(16, 4)]
    P = [V.take(4, 4), V.take(4, 4)]; T4 = V.take(4, 4)
    vM = [V.take(), V.take()]
    NM = [V.take(16, 4), V.take(16, 4)]
    srd4 = f"s[{srdWS}:{srdWS+3}]"

    c.e(f"""
    s_cmp_ge_u32 s2, 256
    s_cbranch_scc1 {name}_END
    s_load_dwordx2 s[4:5], s[0:1], {KA_WS}
    s_load_dwordx2 s[6:7], s[0:1], {KA_WD}
    v_and_b32 v{vL}, 63, v0
    v_lshrrev_b32 v{vT[0]}, 6, v0
    s_and_b32 s{sX}, s2, 7
    s_lshr_b32 s{sJ}, s2, 3
    v_readfirstlane_b32 s{sW}, v{vT[0]}
    s_lshr_b32 s{sT0}, s{sJ}, 3
    s_lshl_b32 s{sHead}, s{sX}, 2
    s_add_u32 s{sHead}, s{sHead}, s{sT0}
    s_and_b32 s{sQB}, s{sJ}, 7
    v_lshlrev_b32 v{vOff}, 4, v{vL}
    s_mul_i32 s{sSrc0}, s{sHead}, {KV_HS}
    s_add_u32 s{sSrc0}, s{sSrc0}, {KV_OFF}
    """)
    ST.stamp(c, real=True); ST.stamp(c)
    c.e(f"s_cmp_ge_u32 s{sW}, 8\ns_cbranch_scc1 {name}_GW")
    c.e(f"""
    s_and_b32 s{sQG}, s{sW}, 3
    s_lshr_b32 s{sKH}, s{sW}, 2
    s_mul_i32 s{sT0}, s{sKH}, {32*KV_TS}
    s_add_u32 s{sSrc0}, s{sSrc0}, s{sT0}
    s_lshl_b32 s{sT0}, s{sQG}, 10
    s_add_u32 s{sSrc0}, s{sSrc0}, s{sT0}
    s_mul_i32 s{sT1}, s{sKH}, {CH}
    s_add_u32 s{sM[0]}, s{sT1}, s{sT0}
    s_add_u32 s{sM[1]}, s{sM[0]}, 4096
    s_add_u32 s{sM[2]}, s{sM[0]}, 8192
    s_cmp_lt_u32 s{sQG}, 2
    s_cselect_b32 s{sT0}, 0, 0x7f000000
    v_add_u32 v{vOff3}, s{sT0}, v{vOff}
    s_mov_b32 s{sSrc}, s{sSrc0}
    s_mov_b32 s{sSlotW}, 0
    s_lshl_b32 s{sTile}, s{sQB}, 3
    s_lshl_b32 s{sT0}, s{sQG}, 1
    s_add_u32 s{sTile}, s{sTile}, s{sT0}
    s_waitcnt lgkmcnt(0)
    """)
    srd(c, srdWS, sWS, WS_BYTES)
    def dma_parts():
        g0 = [f"s_add_u32 m0, s{sSlotW}, s{sM[0]}", f"s_add_u32 s{sT0}, s{sSrc}, 4096", f"buffer_load_dwordx4 v{vOff}, {srd4}, s{sSrc} offen lds"]
        g1 = [f"s_add_u32 m0, s{sSlotW}, s{sM[1]}", f"s_add_u32 s{sT1}, s{sSrc}, 8192", f"buffer_load_dwordx4 v{vOff}, {srd4}, s{sT0} offen lds"]
        g2 = [f"s_add_u32 s{sT0}, s{sSlotW}, s{sM[2]}", f"s_cmp_lt_u32 s{sQG}, 2", f"s_cselect_b32 m0, s{sT0}, {DUMMY}", f"s_add_u32 s{sSrc}, s{sSrc}, {CH}",
              f"buffer_load_dwordx4 v{vOff3}, {srd4}, s{sT1} offen lds",
              f"s_add_u32 s{sSlotW}, s{sSlotW}, {SLOT}", f"s_cmp_eq_u32 s{sSlotW}, {SLOT*RING}", f"s_cselect_b32 s{sSlotW}, 0, s{sSlotW}"]
        return g0, g1, g2
    def dma_chunk():
        g = dma_parts(); return g[0] + g[1] + g[2]
    def first_loads():
        c.e("\n".join(dma_chunk()))
    first_loads()
    c.e(f"""
    s_mul_i32 s{sT2}, s{sHead}, {QF_HS}
    s_mul_i32 s{sT1}, s{sTile}, {QF_TS}
    s_add_u32 s{sT2}, s{sT2}, s{sT1}
    s_add_u32 s{sT3}, s{sT2}, {QF_TS}
    v_and_b32 v{vT[0]}, 31, v{vL}
    v_lshlrev_b32 v{vT[1]}, 3, v{vT[0]}
    s_mov_b32 s{sMaskLo}, -1
    s_mov_b32 s{sMaskLo+1}, 0
    v_mov_b32 v{Q2[0]}, 0
    v_mov_b32 v{Q2[0]+1}, 0
    v_mov_b32 v{Q2[1]}, 0
    v_mov_b32 v{Q2[1]+1}, 0
    buffer_load_dwordx4 {vr(Q1[0],4)}, v{vOff}, {srd4}, s{sT2} offen
    buffer_load_dwordx4 {vr(Q1[1],4)}, v{vOff}, {srd4}, s{sT3} offen
    s_mov_b64 exec, s[{sMaskLo}:{sMaskLo+1}]
    buffer_load_dwordx2 {vr(Q2[0],2)}, v{vT[1]}, {srd4}, s{sT2} offen offset:1024
    buffer_load_dwordx2 {vr(Q2[1],2)}, v{vT[1]}, {srd4}, s{sT3} offen offset:1024
    s_mov_b64 exec, -1
    """)
    c.e("\n".join(dma_chunk()))
    c.e(f"""
    s_lshl_b32 s{sT2}, s{sTile}, 8
    s_add_u32 s{sT2}, s{sT2}, {G_OFF}
    buffer_load_dword v{vG[0]}, v{vT[1]}, {srd4}, s{sT2} offen
    buffer_load_dword v{vG[1]}, v{vT[1]}, {srd4}, s{sT2} offen offset:256
    s_mov_b32 s{sMode}, 0
    s_mov_b32 s{sMaskV}, 0xfffff
    s_mov_b32 s{sMaskV+1}, 0xfffff
    s_mul_i32 s{sT0}, s{sKH}, {CH}
    v_add_u32 v{vK1a}, s{sT0}, v{vOff}
    v_add_u32 v{vK2a}, s{sT0}, v{vT[1]}
    v_lshrrev_b32 v{vT[2]}, 5, v{vL}
    v_mul_u32_u24 v{vT[7]}, 320, v{vT[2]}
    v_lshl_add_u32 v{vT[7]}, v{vT[0]}, 4, v{vT[7]}
    v_add_u32 v{vVa}, s{sT0}, v{vT[7]}
    v_cmp_eq_u32 vcc, 20, v{vT[0]}
    v_mov_b32 v{vT[3]}, 0
    v_mov_b32 v{vT[4]}, 0x3f803f80
    v_cndmask_b32 v{vT[3]}, v{vT[3]}, v{vT[4]}, vcc
    """)
    for r in range(4): c.e(f"v_mov_b32 v{V0+r}, v{vT[3]}\nv_mov_b32 v{V1+r}, v{vT[3]}")
    c.e(f"v_mov_b32 v{vT[3]}, 0\nv_mov_b32 v{vT[4]}, {FLAG}\nds_write_b32 v{vT[4]}, v{vT[3]}")
    c.e(f"""
    s_add_u32 s{sOb}, s{sTile}, s{sKH}
    s_mul_i32 s{sOb}, s{sOb}, {40*1024}
    s_add_u32 s{sOb}, s{sOb}, {OF_OFF}
    s_mul_i32 s{sT1}, s{sHead}, 5
    v_add_u32 v{vT[2]}, s{sT1}, v{vT[2]}
    v_lshlrev_b32 v{vT[3]}, 4, v{vT[0]}
    """)
    for g in range(3):
        c.e(f"""
        v_add_u32 v{vT[4]}, {2*g}, v{vT[2]}
        v_lshrrev_b32 v{vT[5]}, 2, v{vT[4]}
        v_lshlrev_b32 v{vT[5]}, 10, v{vT[5]}
        v_and_b32 v{vT[6]}, 1, v{vT[4]}
        v_lshl_add_u32 v{vT[5]}, v{vT[6]}, 9, v{vT[5]}
        v_and_b32 v{vT[6]}, 2, v{vT[4]}
        v_lshl_add_u32 v{vT[5]}, v{vT[6]}, 2, v{vT[5]}
        v_add_u32 v{vSt[g]}, v{vT[5]}, v{vT[3]}
        """)
    def rdK(off):
        return [f"ds_read_b64 {vr(K2,2)}, v{vK2c} offset:{off+1024}", f"ds_read_b128 {vr(K1,4)}, v{vK1c} offset:{off}"]
    def rdV(which, off):
        r = V0 if which == 0 else V1
        return [f"s_mov_b64 exec, s[{sMaskV}:{sMaskV+1}]", f"ds_read_b128 {vr(r,4)}, v{vVc} offset:{off + 1280 + 640*which}", "s_mov_b64 exec, -1"]
    def emit_pass(tag, fb):
        def qk(b): return [f"v_mfma_f32_32x32x16_bf16 {vr(S_[b],16)}, {vr(K1,4)}, {vr(Q1[b],4)}, " + (vr(NM[b],16) if fb else "0"), mfma32x8(S_[b], K2, Q2[b])]
        for b in range(2):
            for r in range(16): c.e(f"v_mov_b32 v{O[b]+r}, 0")
        for r in range(4): c.e(f"v_mov_b32 v{P[1]+r}, 0\nv_mov_b32 v{T4+r}, 0")
        c.e(f"""
        s_mov_b32 s{sSlotR}, 0
        s_mov_b32 s{sC}, 0
        v_mov_b32 v{vK1c}, v{vK1a}
        v_mov_b32 v{vK2c}, v{vK2a}
        v_mov_b32 v{vVc}, v{vVa}
        """)
        c.e(f"s_waitcnt vmcnt({3 if fb else 5}) lgkmcnt(0)\ns_barrier")
        c.e("\n".join(rdK(0) + rdV(0, 0)))
        c.e(f"s_waitcnt vmcnt({3 if fb else 5}) lgkmcnt(1)") if False else None
        c.e("s_waitcnt lgkmcnt(1)")
        c.e("\n".join(qk(0)))
        c.e("s_nop 7\ns_nop 3")
        if not fb: ST.i = 2; ST.stamp(c, wait=True)
        def half(b, tt):
            s = S_[b]; L = []
            src = lambda i: (s + i) if i < 12 else (T4 + i - 12)
            e = lambda i: f"v_exp_f32 v{src(i)}, v{s+i}"
            cv = lambda p: f"v_cvt_pk_bf16_f32 v{P[p//4] + p%4}, v{src(2*p)}, v{src(2*p+1)}"
            m = qk(1 - b)
            m3 = mfma32(O[b], V0, P[0]); m4p = mfma32(O[1-b], V1, P[1])
            cur = tt*KV_TS; nxt = ((tt + 1) % 4)*KV_TS
            d0 = d1 = d2 = []
            if b == 0 and tt == 0: pass
            if b == 1: L.append("s_waitcnt lgkmcnt(1)")
            L += [m[0], e(0), cv(6), e(1), cv(7), e(2), e(3), m[1]]
            if b == 0:
                if tt == 3:
                    L += ["s_waitcnt vmcnt(0)", "s_barrier",
                          f"s_add_u32 s{sSlotR}, s{sSlotR}, {SLOT}", f"s_cmp_eq_u32 s{sSlotR}, {SLOT*RING}", f"s_cselect_b32 s{sSlotR}, 0, s{sSlotR}",
                          f"v_add_u32 v{vK1c}, s{sSlotR}, v{vK1a}", f"v_add_u32 v{vK2c}, s{sSlotR}, v{vK2a}"]
                L += rdK(nxt)
            L += [e(4), e(5), cv(0), e(6), e(7), cv(1)]
            if b == 1: L.append("s_waitcnt lgkmcnt(0)")
            L.append(m4p)
            if b == 0: L += rdV(1, cur)
            if b == 0 and tt == 3: L += [f"v_add_u32 v{vVc}, s{sSlotR}, v{vVa}"]
            L += [e(8), cv(2), e(9), cv(3), e(10), e(11)]
            if b == 0: L.append("s_waitcnt lgkmcnt(3)")
            L.append(m3)
            if b == 1: L += rdV(0, nxt)
            L += [e(12), e(13), cv(4), e(14), e(15), cv(5)]
            return L
        lp = f"{name}_LOOP{tag}"
        c.label(lp)
        for tt in range(4):
            A = half(0, tt); B = half(1, tt)
            if tt == 3:
                g0, g1, g2 = dma_parts()
                c.e("\n".join(A))
                c.e(f"s_cmp_ge_u32 s{sC}, 6\ns_cbranch_scc1 {lp}_NODMA")
                c.e("\n".join(g0 + g1 + g2))
                c.label(f"{lp}_NODMA")
                c.e("\n".join(B))
            else:
                c.e("\n".join(A)); c.e("\n".join(B))
        c.e(f"""
        s_add_u32 s{sC}, s{sC}, 1
        s_cmp_lt_u32 s{sC}, 8
        s_cbranch_scc1 {lp}
        """)
        c.e(f"v_cvt_pk_bf16_f32 v{P[1]+2}, v{T4}, v{T4+1}\nv_cvt_pk_bf16_f32 v{P[1]+3}, v{T4+2}, v{T4+3}\ns_waitcnt lgkmcnt(0)\ns_nop 0")
        c.e(mfma32(O[1], V1, P[1]))
    emit_pass("", False)
    c.label(f"{name}_EPI")
    ST.i = 3; ST.stamp(c, wait=True)
    c.e(f"""
    s_mul_i32 s{sT0}, s{sW}, 3072
    s_add_u32 s{sT0}, s{sT0}, {XCH}
    v_add_u32 v{vT[4]}, s{sT0}, v{vOff}
    s_xor_b32 s{sT0}, s{sW}, 4
    s_mul_i32 s{sT0}, s{sT0}, 3072
    s_add_u32 s{sT0}, s{sT0}, {XCH}
    v_add_u32 v{vT[6]}, s{sT0}, v{vOff}
    v_mov_b32 v{vT[1]}, 0x7f800000
    v_mov_b32 v{vT[2]}, {hexf(2.0**63)}
    v_mov_b32 v{vT[3]}, {hexf(2.0**-63)}
    v_mov_b32 v{vT[5]}, {FLAG}
    s_nop 3
    s_cmp_eq_u32 s{sKH}, 0
    s_cbranch_scc1 {name}_NOSWAP
    """)
    for r in range(12): c.e(f"v_swap_b32 v{O[0]+r}, v{O[1]+r}")
    c.e(f"v_swap_b32 v{vG[0]}, v{vG[1]}")
    c.label(f"{name}_NOSWAP")
    for g in range(3): c.e(f"ds_write_b128 v{vT[4]}, {vr(O[1]+4*g,4)} offset:{1024*g}")
    c.e(f"v_add_f32 v{vT[0]}, |v{O[0]}|, |v{O[1]}|")
    for r in range(1, 12): c.e(f"v_add_f32 v{vT[0]}, |v{O[0]+r}|, v{vT[0]}\nv_add_f32 v{vT[0]}, |v{O[1]+r}|, v{vT[0]}")
    c.e(f"""
    v_min_f32 v{vT[7]}, v{O[0]+8}, v{O[1]+8}
    v_cmp_nlt_f32 s[{sU}:{sU+1}], v{vT[0]}, v{vT[1]}
    v_max_f32 v{vT[0]}, v{O[0]+8}, v{O[1]+8}
    v_cmp_nge_f32 s[{sU2}:{sU2+1}], v{vT[7]}, v{vT[3]}
    v_cmp_nle_f32 vcc, v{vT[0]}, v{vT[2]}
    s_nop 3
    s_or_b64 s[{sU2}:{sU2+1}], s[{sU2}:{sU2+1}], vcc
    s_andn2_b64 s[{sU2}:{sU2+1}], s[{sU2}:{sU2+1}], s[{sMaskLo}:{sMaskLo+1}]
    s_or_b64 s[{sU}:{sU+1}], s[{sU}:{sU+1}], s[{sU2}:{sU2+1}]
    s_cmp_eq_u64 s[{sU}:{sU+1}], 0
    s_cbranch_scc1 {name}_SAFE
    v_mov_b32 v{vT[3]}, 1
    ds_write_b32 v{vT[5]}, v{vT[3]}
    {name}_SAFE:
    s_waitcnt lgkmcnt(0)
    s_barrier
    ds_read_b32 v{vT[3]}, v{vT[5]}
    """)
    for g in range(3): c.e(f"ds_read_b128 {vr(S_[0]+4*g,4)}, v{vT[6]} offset:{1024*g}")
    c.e(f"""
    s_waitcnt lgkmcnt(3)
    v_readfirstlane_b32 s{sT0}, v{vT[3]}
    s_nop 3
    s_cmp_eq_u32 s{sMode}, 0
    s_cselect_b32 s{sT0}, s{sT0}, 0
    s_cmp_eq_u32 s{sT0}, 0
    s_cbranch_scc0 {name}_FALLBACK
    s_waitcnt vmcnt(0) lgkmcnt(0)
    """)
    for r in range(12): c.e(f"v_add_f32 v{O[0]+r}, v{O[0]+r}, v{S_[0]+r}")
    c.e(f"""
    v_mov_b32 v{vT[0]}, v{O[0]+8}
    v_mov_b32 v{vT[1]}, v{O[0]+8}
    s_nop 1
    v_permlane32_swap_b32 v{vT[0]}, v{vT[1]}
    s_nop 1
    v_rcp_f32 v{vT[1]}, v{vT[1]}
    s_nop 0
    v_mul_f32 v{vT[1]}, v{vT[1]}, v{vG[0]}
    """)
    for r in range(12): c.e(f"v_mul_f32 v{O[0]+r}, v{O[0]+r}, v{vT[1]}")
    for p in range(6): c.e(f"v_cvt_pk_bf16_f32 v{S_[1]+p}, v{O[0]+2*p}, v{O[0]+2*p+1}")
    for g in range(3):
        if g == 2: c.e(f"s_mov_b64 exec, s[{sMaskLo}:{sMaskLo+1}]")
        c.e(f"buffer_store_dwordx2 {vr(S_[1]+2*g,2)}, v{vSt[g]}, {srd4}, s{sOb} offen{SM}")
    c.e("s_mov_b64 exec, -1")
    c.e(f"s_branch {name}_FIN")
    c.label(f"{name}_FALLBACK")
    c.e("s_waitcnt vmcnt(0) lgkmcnt(0)")
    c.e(f"s_cmp_eq_u32 s{sKH}, 0\ns_cbranch_scc1 {name}_FB_NOSWAP\nv_swap_b32 v{vG[0]}, v{vG[1]}\n{name}_FB_NOSWAP:")
    c.e(f"""
    s_mov_b32 s{sMode}, 1
    v_mov_b32 v{vM[0]}, 0xff800000
    v_mov_b32 v{vM[1]}, 0xff800000
    s_mov_b32 s{sSrc}, s{sSrc0}
    s_mov_b32 s{sC}, 0
    {name}_FB_LOOP:
    s_barrier
    s_mov_b32 s{sSlotW}, 0
    """)
    c.e("\n".join(dma_chunk()))
    c.e(f"s_waitcnt vmcnt(0)\ns_barrier\nv_mov_b32 v{vK1c}, v{vK1a}\nv_mov_b32 v{vK2c}, v{vK2a}")
    for tt in range(4):
        c.e("\n".join(rdK(tt*KV_TS)))
        c.e("s_waitcnt lgkmcnt(0)")
        for b in range(2): c.e(mfma32(S_[b], K1, Q1[b], cz=0) + "\n" + mfma32x8(S_[b], K2, Q2[b]))
        c.e("s_nop 7\ns_nop 7")
        for b in range(2):
            for r in range(0, 16, 2): c.e(f"v_max3_f32 v{vM[b]}, v{S_[b]+r}, v{S_[b]+r+1}, v{vM[b]}")
    c.e(f"""
    s_add_u32 s{sC}, s{sC}, 1
    s_cmp_lt_u32 s{sC}, 8
    s_cbranch_scc1 {name}_FB_LOOP
    """)
    for b in range(2):
        c.e(f"""
        v_mov_b32 v{vT[0]}, v{vM[b]}
        v_mov_b32 v{vT[1]}, v{vM[b]}
        s_nop 1
        v_permlane32_swap_b32 v{vT[0]}, v{vT[1]}
        s_nop 1
        v_max_f32 v{vM[b]}, v{vT[0]}, v{vT[1]}
        """)
    c.e(f"""
    s_lshl_b32 s{sT0}, s{sW}, 9
    s_add_u32 s{sT0}, s{sT0}, {XCH}
    v_lshlrev_b32 v{vT[2]}, 2, v{vL}
    v_add_u32 v{vT[3]}, s{sT0}, v{vT[2]}
    s_barrier
    ds_write_b32 v{vT[3]}, v{vM[0]}
    ds_write_b32 v{vT[3]}, v{vM[1]} offset:256
    s_xor_b32 s{sT0}, s{sW}, 4
    s_lshl_b32 s{sT0}, s{sT0}, 9
    s_add_u32 s{sT0}, s{sT0}, {XCH}
    v_add_u32 v{vT[3]}, s{sT0}, v{vT[2]}
    s_waitcnt lgkmcnt(0)
    s_barrier
    ds_read_b32 v{vT[4]}, v{vT[3]}
    ds_read_b32 v{vT[5]}, v{vT[3]} offset:256
    s_waitcnt lgkmcnt(0)
    v_max_f32 v{vM[0]}, v{vM[0]}, v{vT[4]}
    v_max_f32 v{vM[1]}, v{vM[1]}, v{vT[5]}
    s_barrier
    """)
    for b in range(2):
        for r in range(16): c.e(f"v_sub_f32 v{NM[b]+r}, 0, v{vM[b]}")
    c.e(f"s_mov_b32 s{sSrc}, s{sSrc0}\ns_mov_b32 s{sSlotW}, 0")
    c.e("\n".join(dma_chunk())); c.e("\n".join(dma_chunk()))
    emit_pass("FB", True)
    c.e(f"s_branch {name}_EPI")
    Vg = Alloc(168, V.names.get("x", (vG[0], 0))[0], "v")
    gOffW = [Vg.take() for _ in range(5)]; gOffA = Vg.take(); gWA = Vg.take(); gAA = Vg.take(); gWc = Vg.take(); gAc = Vg.take(); gOm = Vg.take()
    gT = [Vg.take() for _ in range(6)]
    gact = Vg.take(4, 4); gwf = Vg.take(20, 4); gacc = Vg.take(80, 4); gtmp = Vg.take(12, 4)
    sRB, sCG, sKQ, sLB, sKs, sAct, sGS, sGR, sGN = sQG, sKH, sQB, sSrc, sSrc0, sTile, sSlotW, sSlotR, sC
    srdD = sMaskLo
    srdW = Sg.take(4, 4)
    c.label(f"{name}_GW")
    c.e(f"""
    s_sub_u32 s{sKQ}, s{sW}, 8
    s_lshr_b32 s{sT0}, s{sJ}, 2
    s_lshl_b32 s{sRB}, s{sX}, 3
    s_add_u32 s{sRB}, s{sRB}, s{sT0}
    s_and_b32 s{sCG}, s{sJ}, 3
    s_mul_i32 s{sT0}, s{sCG}, 320
    """)
    for i in range(5):
        c.e(f"""
        v_add_u32 v{gT[1]}, {64*i}, v{vL}
        v_mul_u32_u24 v{gT[2]}, 3277, v{gT[1]}
        v_lshrrev_b32 v{gT[2]}, 16, v{gT[2]}
        v_mul_u32_u24 v{gT[3]}, 20, v{gT[2]}
        v_sub_u32 v{gT[3]}, v{gT[1]}, v{gT[3]}
        v_mul_u32_u24 v{gT[2]}, 1280, v{gT[2]}
        v_lshl_add_u32 v{gT[2]}, v{gT[3]}, 4, v{gT[2]}
        v_add_u32 v{gOffW[i]}, s{sT0}, v{gT[2]}
        """)
    c.e(f"""
    v_lshlrev_b32 v{gOffA}, 4, v{vL}
    s_mul_i32 s{sLB}, s{sKQ}, {GWAVE}
    s_add_u32 s{sLB}, s{sLB}, {GRING}
    s_mul_i32 s{sKs}, s{sKQ}, 20480
    s_mul_i32 s{sAct}, s{sRB}, 108
    s_add_u32 s{sAct}, s{sAct}, s{sKQ}
    s_lshl_b32 s{sAct}, s{sAct}, 10
    s_add_u32 s{sAct}, s{sAct}, {HF_OFF}
    s_waitcnt lgkmcnt(0)
    """)
    srd(c, srdWS, sWS, WS_BYTES); srd(c, srdW, sWD, 1728*1280)
    def gdma(n):
        so = (n % 3)*GSLOT; L = []
        for i in range(5):
            L += [f"s_add_u32 m0, s{sLB}, {so + 1024*i}", "s_nop 0", f"buffer_load_dwordx4 v{gOffW[i]}, s[{srdW}:{srdW+3}], s{sKs} offen lds"]
        L += [f"s_add_u32 m0, s{sLB}, {so + 5120}", f"s_add_u32 s{sKs}, s{sKs}, {4*20480}", f"buffer_load_dwordx4 v{gOffA}, {srd4}, s{sAct} offen lds", f"s_add_u32 s{sAct}, s{sAct}, 4096"]
        return L
    c.e(f"""
    v_and_b32 v{gT[0]}, 31, v{vL}
    v_lshlrev_b32 v{gT[1]}, 3, v{gT[0]}
    s_lshl_b32 s{sT0}, s{sRB}, 8
    s_add_u32 s{sT0}, s{sT0}, {G_OFF + 4}
    v_and_b32 v{gT[3]}, 15, v{vL}
    v_lshrrev_b32 v{gT[4]}, 2, v{gT[3]}
    v_lshrrev_b32 v{gT[2]}, 5, v{vL}
    v_lshl_add_u32 v{gT[4]}, v{gT[2]}, 2, v{gT[4]}
    v_mul_u32_u24 v{gT[4]}, 320, v{gT[4]}
    v_and_b32 v{gT[3]}, 3, v{gT[3]}
    v_lshl_add_u32 v{gT[4]}, v{gT[3]}, 3, v{gT[4]}
    v_lshrrev_b32 v{gT[3]}, 4, v{vL}
    v_and_b32 v{gT[3]}, 1, v{gT[3]}
    v_lshl_add_u32 v{gT[4]}, v{gT[3]}, 5, v{gT[4]}
    v_add_u32 v{gWA}, s{sLB}, v{gT[4]}
    v_add_u32 v{gAA}, 5120, v{gOffA}
    v_add_u32 v{gAA}, s{sLB}, v{gAA}
    """)
    for r in range(80): c.e(f"v_mov_b32 v{gacc+r}, 0")
    c.e("s_barrier")
    c.e("\n".join(gdma(0) + gdma(1)))
    sched = [2, 4, 4, 4, 4, 3, 3, 3]; n = 0
    for k in range(8):
        for _ in range(sched[k]):
            so = (n % 3)*GSLOT
            c.e(f"s_waitcnt vmcnt({6 if n + 1 < 27 else 0})")
            c.e(f"ds_read_b128 {vr(gact,4)}, v{gAA} offset:{so}")
            for jb in range(5):
                c.e(f"ds_read_b64_tr_b16 {vr(gwf+4*jb,2)}, v{gWA} offset:{so + 64*jb}\nds_read_b64_tr_b16 {vr(gwf+4*jb+2,2)}, v{gWA} offset:{so + 64*jb + 2560}")
            if n + 2 < 27: c.e("\n".join(gdma(n + 2)))
            if n == 26:
                c.e(f"buffer_load_dword v{gOm}, v{gT[1]}, {srd4}, s{sT0} offen")
            for jb in range(5):
                c.e(f"s_waitcnt lgkmcnt({8 - 2*jb})")
                c.e(mfma32(gacc+16*jb, gwf+4*jb, gact))
            n += 1
        c.e("s_barrier")
    own = [0,0,0,1,1,1,2,2,3,3]
    c.e("s_nop 7\ns_nop 3")
    for kq in range(4):
        c.e(f"s_cmp_eq_u32 s{sKQ}, {kq}\ns_cbranch_scc0 {name}_GX{kq}")
        c.e(f"v_add_u32 v{gT[5]}, {GRING}, v{gOffA}\nv_add_u32 v{gT[4]}, {GRING + 30720}, v{gOffA}")
        cnt = 0
        for p in range(10):
            if own[p] == kq: continue
            slot = kq if kq < own[p] else kq - 1
            off = p*6144 + slot*2048
            a, o = (gT[5], off) if off < 30720 else (gT[4], off - 30720)
            for h in range(2):
                c.e(f"ds_write_b128 v{a}, {vr(gacc + 8*p + 4*h, 4)} offset:{o + 1024*h}"); cnt += 1
                if cnt % 8 == 0: c.e("s_waitcnt lgkmcnt(4)")
        c.e(f"s_waitcnt lgkmcnt(0)\ns_barrier")
        mine = [p for p in range(10) if own[p] == kq]
        c.e(f"v_mov_b32 v{gT[3]}, {FLAG}\nds_read_b32 v{gT[3]}, v{gT[3]}")
        c.e(f"""
        v_and_b32 v{gT[0]}, 31, v{vL}
        s_lshl_b32 s{sT0}, s{sRB}, 5
        v_add_u32 v{gT[0]}, s{sT0}, v{gT[0]}
        v_mul_u32_u24 v{gT[0]}, 1280, v{gT[0]}
        v_lshrrev_b32 v{gT[2]}, 5, v{vL}
        v_lshl_add_u32 v{gT[0]}, v{gT[2]}, 4, v{gT[0]}
        s_mul_i32 s{sT0}, s{sCG}, 320
        s_add_u32 s{sT0}, s{sT0}, {BF_OFF}
        s_waitcnt vmcnt(0) lgkmcnt(0)
        v_readfirstlane_b32 s{sT1}, v{gT[3]}
        """)
        for p in mine:
            off = p*6144
            a, o = (gT[5], off) if off < 30720 else (gT[4], off - 30720)
            for h in range(2):
                for sl in range(3): c.e(f"ds_read_b128 {vr(gtmp+4*sl,4)}, v{a} offset:{o + 2048*sl + 1024*h}")
                for sl in range(3):
                    c.e(f"s_waitcnt lgkmcnt({2-sl})")
                    for r in range(4): c.e(f"v_add_f32 v{gacc+8*p+4*h+r}, v{gacc+8*p+4*h+r}, v{gtmp+4*sl+r}")
            for r in range(8): c.e(f"v_mul_f32 v{gacc+8*p+r}, v{gacc+8*p+r}, v{gOm}")
            for q in range(4): c.e(f"v_cvt_pk_bf16_f32 v{gtmp+q}, v{gacc+8*p+2*q}, v{gacc+8*p+2*q+1}")
            c.e(f"""
            s_nop 1
            v_permlane32_swap_b32 v{gtmp}, v{gtmp+2}
            v_permlane32_swap_b32 v{gtmp+1}, v{gtmp+3}
            s_add_u32 s{sT2}, s{sT0}, {32*p}
            s_nop 0
            buffer_store_dwordx4 {vr(gtmp,4)}, v{gT[0]}, {srd4}, s{sT2} offen{SM}
            s_nop 1
            """)
        c.e(f"s_branch {name}_GEND")
        c.label(f"{name}_GX{kq}")
    c.label(f"{name}_GEND")
    c.e(f"""
    s_cmp_eq_u32 s{sT1}, 0
    s_cbranch_scc1 {name}_END
    s_mov_b32 s{sT0}, {FB_BARRIERS}
    {name}_GFB:
    s_barrier
    s_sub_u32 s{sT0}, s{sT0}, 1
    s_cmp_lg_u32 s{sT0}, 0
    s_cbranch_scc1 {name}_GFB
    s_endpgm
    """)
    c.label(f"{name}_FIN")
    if stamps: c.e("s_waitcnt vmcnt(0)")
    ST.i = 4; ST.stamp(c); ST.stamp(c, real=True)
    ST.flush(c, sW, srdWS, vT[2], vT[3], sT0)
    c.e(f"""
    {name}_END:
    s_endpgm
    """)
    def S(kh, unsafe=False, fb=False):
        d = {f"{name}_END": False, f"{name}_LOOP_NODMA": (lambda k: k % 3 == 2), f"{name}_LOOPFB_NODMA": (lambda k: k % 3 == 2), f"{name}_NOSWAP": kh == 0, f"{name}_SAFE": not unsafe,
             f"{name}_FALLBACK": (lambda k: k == 0 and fb), f"{name}_FB_NOSWAP": kh == 0}
        return d
    scen = {"kh0": S(0), "kh1": S(1), "fb": S(1, True, True)}
    for k_ in scen: scen[k_][f"{name}_GW"] = False
    for kq in range(4):
        d = {f"{name}_END": (lambda k: k == 1), f"{name}_GW": True}
        for q in range(4): d[f"{name}_GX{q}"] = (q != kq)
        scen[f"g{kq}"] = d
    return c, max(V.hi, Vg.hi), scen, K2_LDS
    return c, V.hi, scen, K2_LDS

if __name__ == "__main__":
    c, nv, scen, lds = gen_k2()
    errs = check(c.lines, scen, "k2")
    print("vgprs", nv, "lds", lds, "lines", len(c.lines))
    for e in errs[:40]: print(e)
```

```python
from common import *
STG = 20480; RING = 7; LOOK = 5
WOFF = 12288
K3_LDS = STG*RING
NS = 10

def gen_k3(name="k3_kernel", stamps=False, exp=""):
    c = Code()
    V = Alloc(256, 1, "v"); Sg = Alloc(100, 12, "s")
    sWO, sOUT, sWS = 4, 8, 10
    sN_ = Sg.take(); sRT = Sg.take(); sCG = Sg.take(); sW = Sg.take(); sP = Sg.take()
    sT0 = Sg.take(); sT1 = Sg.take(); sT2 = Sg.take()
    srdWS = Sg.take(4, 4); srdW = Sg.take(4, 4); srdO = Sg.take(4, 4)
    sA = [Sg.take() for _ in range(6)]; sKs = Sg.take(); sMW = Sg.take(); sMA = Sg.take()
    ST = Stamps(Sg, stamps, 2)
    vL = V.take(); vT = [V.take() for _ in range(8)]
    vOffW = [V.take() for _ in range(4)]; vOffA = [V.take() for _ in range(2)]
    vWA = [V.take() for _ in range(3)]; vAA = [V.take() for _ in range(3)]; vSt = V.take(); vBq = V.take()
    sets = [(V.take(16, 4), V.take(16, 4)) for _ in range(2)]
    acc = V.take(16, 4); bq = V.take(8, 4); tmp = V.take(8, 4)
    srd4 = f"s[{srdWS}:{srdWS+3}]"
    c.e(f"""
    s_and_b32 s{sT0}, s2, 7
    s_mul_i32 s{sT0}, s{sT0}, 28
    s_lshr_b32 s{sT1}, s2, 3
    s_add_u32 s{sN_}, s{sT0}, s{sT1}
    s_cmp_ge_u32 s2, 224
    s_cbranch_scc1 {name}_END
    s_cmp_ge_u32 s{sN_}, 220
    s_cbranch_scc1 {name}_END
    s_load_dwordx2 s[4:5], s[0:1], {KA_WO}
    s_load_dwordx2 s[8:9], s[0:1], {KA_OUT}
    s_load_dwordx2 s[10:11], s[0:1], {KA_WS}
    v_and_b32 v{vL}, 63, v0
    v_lshrrev_b32 v{vT[0]}, 6, v0
    s_mul_hi_u32 s{sRT}, s{sN_}, {(2**32 + 9)//10}
    s_mul_i32 s{sT0}, s{sRT}, 10
    v_readfirstlane_b32 s{sW}, v{vT[0]}
    s_sub_u32 s{sCG}, s{sN_}, s{sT0}
    """)
    ST.stamp(c, real=True); ST.stamp(c)
    c.e(f"""
    s_nop 2
    s_cmp_lt_u32 s{sW}, 6
    s_cbranch_scc1 {name}_CONS
    """)
    c.e(f"""
    s_sub_u32 s{sP}, s{sW}, 6
    v_lshrrev_b32 v{vT[1]}, 3, v{vL}
    v_lshlrev_b32 v{vT[2]}, 1, v{vT[1]}
    v_and_b32 v{vT[2]}, 4, v{vT[2]}
    v_xor_b32 v{vT[2]}, v{vT[2]}, v{vL}
    v_and_b32 v{vT[2]}, 7, v{vT[2]}
    v_lshlrev_b32 v{vT[2]}, 4, v{vT[2]}
    s_lshl_b32 s{sT0}, s{sP}, 5
    v_add_u32 v{vT[1]}, s{sT0}, v{vT[1]}
    v_mul_u32_u24 v{vT[1]}, 1280, v{vT[1]}
    s_lshl_b32 s{sT0}, s{sCG}, 7
    v_add3_u32 v{vOffW[0]}, v{vT[1]}, v{vT[2]}, s{sT0}
    v_add_u32 v{vOffW[1]}, {8*1280}, v{vOffW[0]}
    v_add_u32 v{vOffW[2]}, {16*1280}, v{vOffW[0]}
    v_add_u32 v{vOffW[3]}, {24*1280}, v{vOffW[0]}
    s_lshl_b32 s{sMW}, s{sP}, 12
    s_add_u32 s{sMW}, s{sMW}, {WOFF}
    s_mul_i32 s{sMA}, s{sP}, 6144
    v_lshlrev_b32 v{vOffA[0]}, 4, v{vL}
    s_mul_i32 s{sT2}, s{sRT}, 3
    """)
    c.e(f"""
    s_add_u32 s{sT0}, s{sT2}, s{sP}
    s_add_u32 s{sT1}, s{sT0}, 1
    s_cmp_lt_u32 s{sT1}, 64
    s_cselect_b32 s{sT2}, 0, 0x7f000000
    v_add_u32 v{vOffA[1]}, s{sT2}, v{vOffA[0]}
    s_cmp_lt_u32 s{sT0}, 64
    s_cselect_b32 s{sT2}, 0, 0x7f000000
    v_add_u32 v{vOffA[0]}, s{sT2}, v{vOffA[0]}
    s_mul_i32 s{sT0}, s{sT0}, {40*1024}
    s_add_u32 s{sT0}, s{sT0}, {OF_OFF}
    s_mul_i32 s{sT1}, s{sT1}, {40*1024}
    s_add_u32 s{sT1}, s{sT1}, {OF_OFF}
    s_cmp_eq_u32 s{sP}, 0
    s_cbranch_scc0 {name}_P1
    """)
    def prod(p):
        nf = 4 if p == 0 else 2
        ks0 = 0 if p == 0 else 2
        for i in range(6):
            if i < nf: c.e(f"s_add_u32 s{sA[i]}, s{sT0}, {1024*(ks0 + i)}")
            else: c.e(f"s_add_u32 s{sA[i]}, s{sT1}, {1024*(i - nf)}")
        c.e(f"s_mov_b32 s{sKs}, 0\ns_waitcnt lgkmcnt(0)")
        srd(c, srdWS, sWS, WS_BYTES); srd(c, srdW, sWO, 640*1280)
        def dma(st):
            so = (st % RING)*STG; L = []
            order = [("a", 0), ("w", 0), ("a", 1), ("w", 1), ("a", 2), ("w", 2), ("a", 3), ("w", 3), ("a", 4), ("a", 5)]
            for k, i in order:
                if k == "w": L += [f"s_add_u32 m0, s{sMW}, {so + 1024*i}", "s_nop 0", f"buffer_load_dwordx4 v{vOffW[i]}, s[{srdW}:{srdW+3}], s{sKs} offen lds"]
                else: L += [f"s_add_u32 m0, s{sMA}, {so + 1024*i}", "s_nop 0", f"buffer_load_dwordx4 v{vOffA[0 if i < nf else 1]}, {srd4}, s{sA[i]} offen lds", f"s_add_u32 s{sA[i]}, s{sA[i]}, 4096"]
            L += [f"s_add_u32 s{sKs}, s{sKs}, {64*1280}"]
            return L
        for st in range(LOOK): c.e("\n".join(dma(st)))
        for st in range(NS):
            issued = min(st + LOOK, NS)
            c.e(f"s_waitcnt vmcnt({10*(issued - st - 1)})\ns_barrier")
            if st + LOOK < NS: c.e("\n".join(dma(st + LOOK)))
        if stamps:
            ST.i = 2; ST.stamp(c); ST.stamp(c); c.e(f"s_branch {name}_FIN")
        else: c.e("s_endpgm")
    prod(0)
    c.label(f"{name}_P1")
    prod(1)
    c.label(f"{name}_CONS")
    sRBI, sCB = sP, sN_
    c.e(f"""
    s_cmp_ge_u32 s{sW}, 3
    s_cselect_b32 s{sCB}, 1, 0
    s_mul_i32 s{sT0}, s{sCB}, 3
    s_sub_u32 s{sRBI}, s{sW}, s{sT0}
    s_waitcnt lgkmcnt(0)
    """)
    srd(c, srdWS, sWS, WS_BYTES); srd(c, srdO, sOUT, 2048*1280)
    c.e(f"""
    v_and_b32 v{vT[0]}, 31, v{vL}
    s_mul_i32 s{sT0}, s{sRT}, 96
    s_lshl_b32 s{sT1}, s{sRBI}, 5
    s_add_u32 s{sT0}, s{sT0}, s{sT1}
    v_add_u32 v{vT[1]}, s{sT0}, v{vT[0]}
    v_mul_u32_u24 v{vT[1]}, 1280, v{vT[1]}
    s_lshl_b32 s{sT0}, s{sCG}, 7
    s_lshl_b32 s{sT1}, s{sCB}, 6
    s_add_u32 s{sT0}, s{sT0}, s{sT1}
    v_add_u32 v{vT[1]}, s{sT0}, v{vT[1]}
    v_lshrrev_b32 v{vT[2]}, 5, v{vL}
    v_lshl_add_u32 v{vSt}, v{vT[2]}, 4, v{vT[1]}
    v_lshl_add_u32 v{vBq}, v{vT[2]}, 3, v{vT[1]}
    s_mov_b32 s{sT0}, {BF_OFF}
    """)
    for g in range(4): c.e(f"buffer_load_dwordx2 {vr(bq+2*g,2)}, v{vBq}, {srd4}, s{sT0} offen offset:{16*g}")
    c.e(f"""
    v_and_b32 v{vT[3]}, 15, v{vL}
    v_lshrrev_b32 v{vT[4]}, 2, v{vT[3]}
    v_lshl_add_u32 v{vT[5]}, v{vT[2]}, 2, v{vT[4]}
    v_lshlrev_b32 v{vT[5]}, 7, v{vT[5]}
    v_and_b32 v{vT[3]}, 3, v{vT[3]}
    v_lshl_add_u32 v{vT[5]}, v{vT[3]}, 3, v{vT[5]}
    v_lshrrev_b32 v{vT[3]}, 4, v{vL}
    v_and_b32 v{vT[3]}, 1, v{vT[3]}
    v_lshl_add_u32 v{vT[5]}, v{vT[3]}, 5, v{vT[5]}
    v_add_u32 v{vT[5]}, {WOFF}, v{vT[5]}
    v_lshrrev_b32 v{vT[4]}, 1, v{vT[4]}
    v_xor_b32 v{vT[4]}, s{sCB}, v{vT[4]}
    v_lshl_add_u32 v{vWA[0]}, v{vT[4]}, 6, v{vT[5]}
    s_lshl_b32 s{sT0}, s{sRBI}, 12
    v_lshlrev_b32 v{vAA[0]}, 4, v{vL}
    v_add_u32 v{vAA[0]}, s{sT0}, v{vAA[0]}
    """)
    for k in (1, 2):
        c.e(f"v_add_u32 v{vWA[k]}, {3*STG*k}, v{vWA[0]}\nv_add_u32 v{vAA[k]}, {3*STG*k}, v{vAA[0]}")
    def reads(st):
        sl = st % RING; k = sl // 3; o = (sl % 3)*STG
        a, w = sets[st % 2]; L = []
        for ks in range(4):
            L += [f"ds_read_b128 {vr(a+4*ks,4)}, v{vAA[k]} offset:{o + 1024*ks}",
                  f"ds_read_b64_tr_b16 {vr(w+4*ks,2)}, v{vWA[k]} offset:{o + 2048*ks}", f"ds_read_b64_tr_b16 {vr(w+4*ks+2,2)}, v{vWA[k]} offset:{o + 2048*ks + 1024}"]
        return L
    def mf(st):
        a, w = sets[st % 2]
        return [f"v_mfma_f32_32x32x16_bf16 {vr(acc,16)}, {vr(w+4*ks,4)}, {vr(a+4*ks,4)}, " + ("0" if (st == 0 and ks == 0) else vr(acc,16)) for ks in range(4)]
    for st in range(NS + 1):
        rd = []
        if st < NS:
            c.e("s_barrier"); rd = reads(st)
            if st == 0: ST.i = 2; ST.stamp(c, wait=True)
        if st == 0:
            c.e("\n".join(rd)); continue
        c.e("s_waitcnt lgkmcnt(0)")
        out = []
        for i, x in enumerate(mf(st - 1)):
            out.append(x); out += rd[3*i:3*i+3]
        c.e("\n".join(out))
    ST.i = 3; ST.stamp(c, wait=True)
    c.e("s_waitcnt vmcnt(0)\ns_nop 7\ns_nop 3")
    for g in range(4):
        for q in range(2):
            c.e(f"v_lshlrev_b32 v{tmp}, 16, v{bq+2*g+q}\nv_and_b32 v{tmp+1}, 0xffff0000, v{bq+2*g+q}")
            c.e(f"v_add_f32 v{acc+4*g+2*q}, v{acc+4*g+2*q}, v{tmp}\nv_add_f32 v{acc+4*g+2*q+1}, v{acc+4*g+2*q+1}, v{tmp+1}")
    for gp in range(2):
        t = tmp + 4*gp
        for q in range(4): c.e(f"v_cvt_pk_bf16_f32 v{t+q}, v{acc+8*gp+2*q}, v{acc+8*gp+2*q+1}")
        c.e(f"""
        s_nop 1
        v_permlane32_swap_b32 v{t}, v{t+2}
        v_permlane32_swap_b32 v{t+1}, v{t+3}
        s_nop 0
        buffer_store_dwordx4 {vr(t,4)}, v{vSt}, s[{srdO}:{srdO+3}], 0 offen offset:{32*gp}
        """)
    c.label(f"{name}_FIN")
    if stamps:
        c.e("s_waitcnt vmcnt(0)")
        c.e("s_waitcnt lgkmcnt(0)")
        srd(c, srdWS, sWS, WS_BYTES)
    ST.i = 4; ST.stamp(c); ST.stamp(c, real=True)
    ST.flush(c, sW, srdWS, vT[2], vT[3], sT0)
    c.e(f"""
    {name}_END:
    s_endpgm
    """)
    scen = {"cons": {f"{name}_END": False, f"{name}_CONS": True},
            "prod0": {f"{name}_END": False, f"{name}_CONS": False, f"{name}_P1": False},
            "prod1": {f"{name}_END": False, f"{name}_CONS": False, f"{name}_P1": True}}
    return c, V.hi, scen, K3_LDS

if __name__ == "__main__":
    c, nv, scen, lds = gen_k3()
    errs = check(c.lines, scen, "k3")
    print("vgprs", nv, "lds", lds, "lines", len(c.lines))
    for e in errs[:40]: print(e)
```

```python
from common import *
NST = 20
WSLOT = 24576; WRING = 4; UOFF = 12288
XSLOT = 16384; XRING = 3
XBASE = WSLOT*WRING
K1_LDS = XBASE + XSLOT*XRING
def mfma16(d, a, b, cz=None):
    return f"v_mfma_f32_16x16x32_bf16 {vr(d,4)}, {vr(a,4)}, {vr(b,4)}, " + (vr(d,4) if cz is None else str(cz))

def gen_k1(name="k1_kernel", stamps=False, exp=""):
    c = Code()
    SM = " sc1" if "SC1" in exp else (" sc0 sc1" if "SC01" in exp else ("" if "PLAIN" in exp else " nt"))
    V = Alloc(168, 1, "v"); Sg = Alloc(100, 18, "s")
    sAX, sWQ, sGW, sWG, sWU, sWS = 4, 6, 10, 12, 14, 16
    sX = Sg.take(); sJ = Sg.take(); sCG = Sg.take(); sRT = Sg.take(); sW = Sg.take(); sTH = Sg.take(); sCQ = Sg.take()
    sT0 = Sg.take(); sT1 = Sg.take(); sT2 = Sg.take(); sT3 = Sg.take()
    srdX = Sg.take(4, 4); srdW = Sg.take(4, 4); srdWS = Sg.take(4, 4)
    sMw = Sg.take(); sMx = Sg.take(); sKx = Sg.take(); sKw = Sg.take(); sKwStep = Sg.take()
    sBase = Sg.take(); sHS = Sg.take(); sTS = Sg.take(); sScale = Sg.take()
    ST = Stamps(Sg, stamps, 0)
    vL = V.take(); vT = [V.take() for _ in range(8)]
    vOffX = V.take(); vOffW = [V.take(), V.take()]
    vXA = [V.take(), V.take()]; vWA = [V.take() for _ in range(4)]; vWH = [V.take() for _ in range(4)]
    sets = [(V.take(16, 4), V.take(16, 4)) for _ in range(2)]
    acc = V.take(64, 4)
    vE = sets[0][0]
    D = lambda fb, tb: acc + 16*fb + 4*tb

    c.e(f"""
    s_cmp_ge_u32 s2, 256
    s_cbranch_scc1 {name}_END
    s_load_dwordx4 s[4:7], s[0:1], {KA_AX}
    s_load_dwordx2 s[10:11], s[0:1], {KA_GW}
    s_load_dwordx4 s[12:15], s[0:1], {KA_WG}
    s_load_dwordx2 s[16:17], s[0:1], {KA_WS}
    v_and_b32 v{vL}, 63, v0
    v_lshrrev_b32 v{vT[0]}, 6, v0
    s_and_b32 s{sX}, s2, 7
    s_lshr_b32 s{sJ}, s2, 3
    v_readfirstlane_b32 s{sW}, v{vT[0]}
    s_and_b32 s{sT0}, s{sJ}, 1
    s_lshr_b32 s{sRT}, s{sJ}, 1
    """)
    if "OLDMAP" in exp:
        c.e(f"s_lshl_b32 s{sCG}, s{sX}, 1\ns_add_u32 s{sCG}, s{sCG}, s{sT0}")
    else:
        c.e(f"""
        s_mul_i32 s{sT1}, s{sT0}, 6
        s_add_u32 s{sT1}, s{sT1}, s{sX}
        s_lshl_b32 s{sCG}, s{sX}, 1
        s_add_u32 s{sCG}, s{sCG}, s{sT0}
        s_cmp_lt_u32 s{sX}, 6
        s_cselect_b32 s{sCG}, s{sT1}, s{sCG}
        """)
    ST.stamp(c, real=True); ST.stamp(c)
    c.e(f"""
    v_lshrrev_b32 v{vT[1]}, 3, v{vL}
    v_lshrrev_b32 v{vT[2]}, 4, v{vL}
    s_lshl_b32 s{sT0}, s{sW}, 2
    v_add_u32 v{vT[2]}, s{sT0}, v{vT[2]}
    v_xor_b32 v{vT[2]}, v{vT[2]}, v{vL}
    v_and_b32 v{vT[2]}, 7, v{vT[2]}
    s_lshl_b32 s{sT0}, s{sRT}, 7
    s_lshl_b32 s{sT1}, s{sW}, 3
    s_add_u32 s{sT0}, s{sT0}, s{sT1}
    v_add_u32 v{vT[1]}, s{sT0}, v{vT[1]}
    v_mul_u32_u24 v{vT[1]}, 1280, v{vT[1]}
    v_lshl_add_u32 v{vOffX}, v{vT[2]}, 4, v{vT[1]}
    s_lshl_b32 s{sMx}, s{sW}, 10
    s_add_u32 s{sMx}, s{sMx}, {XBASE}
    s_and_b32 s{sTH}, s{sW}, 1
    s_lshr_b32 s{sCQ}, s{sW}, 1
    s_cmp_eq_u32 s{sCG}, 15
    s_cbranch_scc1 {name}_GATE
    s_lshl_b32 s{sMw}, s{sW}, 11
    s_cmp_lt_u32 s{sCG}, 6
    s_cbranch_scc0 {name}_GLU
    """)
    def woff(i, nch, magic, rs):
        return f"""
        v_add_u32 v{vT[1]}, s{sT0}, v{vL}
        v_mul_u32_u24 v{vT[2]}, {magic}, v{vT[1]}
        v_lshrrev_b32 v{vT[2]}, 16, v{vT[2]}
        v_mul_u32_u24 v{vT[3]}, {nch}, v{vT[2]}
        v_sub_u32 v{vT[3]}, v{vT[1]}, v{vT[3]}
        v_lshrrev_b32 v{vT[4]}, 1, v{vT[2]}
        v_and_b32 v{vT[4]}, 4, v{vT[4]}
        v_and_or_b32 v{vT[4]}, v{vT[2]}, 2, v{vT[4]}
        v_xor_b32 v{vT[3]}, v{vT[3]}, v{vT[4]}
        v_mul_u32_u24 v{vT[2]}, {rs}, v{vT[2]}
        v_lshl_add_u32 v{vT[2]}, v{vT[3]}, 4, v{vT[2]}
        v_add_u32 v{vOffW[i]}, s{sT3}, v{vT[2]}
        s_add_u32 s{sT0}, s{sT0}, 64
        """
    c.e(f"s_lshl_b32 s{sT0}, s{sW}, 7\ns_mul_i32 s{sT3}, s{sCG}, 640")
    c.e(woff(0, 40, 1639, 3840)); c.e(woff(1, 40, 1639, 3840))
    c.e(f"s_mov_b32 s{sKwStep}, {32*3840}\ns_waitcnt lgkmcnt(0)")
    srd(c, srdW, sWQ, 640*3840)
    c.e(f"s_branch {name}_DEC")
    c.label(f"{name}_GLU")
    c.e(f"""
    s_cmp_lt_u32 s{sW}, 6
    s_cselect_b32 s{sT1}, 0, 6
    s_sub_u32 s{sT0}, s{sW}, s{sT1}
    s_lshl_b32 s{sT0}, s{sT0}, 7
    s_sub_u32 s{sT3}, s{sCG}, 6
    s_mul_i32 s{sT3}, s{sT3}, 384
    """)
    c.e(woff(0, 24, 2731, 3456)); c.e(woff(1, 24, 2731, 3456))
    c.e(f"""
    s_mov_b32 s{sKwStep}, {32*3456}
    s_waitcnt lgkmcnt(0)
    s_cmp_lt_u32 s{sW}, 6
    s_cselect_b32 s{srdW}, s{sWG}, s{sWU}
    s_cselect_b32 s{srdW+1}, s{sWG+1}, s{sWU+1}
    s_and_b32 s{srdW+1}, s{srdW+1}, 0xffff
    s_mov_b32 s{srdW+2}, {640*3456}
    s_mov_b32 s{srdW+3}, 0x20000
    """)
    c.label(f"{name}_DEC")
    srd(c, srdX, sAX, 2048*1280)
    c.e(f"s_mov_b32 s{sKw}, 0")
    def dma_w(i, st):
        return [f"s_add_u32 m0, s{sMw}, {(st % WRING)*WSLOT + 1024*i}", "s_nop 0", f"buffer_load_dwordx4 v{vOffW[i]}, s[{srdW}:{srdW+3}], s{sKw} offen lds"]
    def dma_x(u):
        m, hf = u >> 1, u & 1
        return [f"s_add_u32 m0, s{sMx}, {(m % XRING)*XSLOT + hf*8192}", f"s_mov_b32 s{sKx}, {m*128 + hf*64*1280}", f"buffer_load_dwordx4 v{vOffX}, s[{srdX}:{srdX+3}], s{sKx} offen lds"]
    advw = [f"s_add_u32 s{sKw}, s{sKw}, s{sKwStep}"]
    c.e(f"""
    s_cmp_lt_u32 s{sCG}, 6
    s_cselect_b32 s{sT0}, s{sW}, 0
    s_cmp_ge_u32 s{sT0}, 10
    s_cbranch_scc1 {name}_IDLE
    s_cmp_lt_u32 s{sW}, 8
    s_cbranch_scc0 {name}_PRO_NX
    """)
    c.e("\n".join(dma_x(0) + dma_w(0, 0) + dma_w(1, 0) + advw + dma_x(1)))
    c.e("\n".join(dma_w(0, 1) + dma_w(1, 1) + advw + dma_x(2) + dma_w(0, 2) + dma_w(1, 2) + advw + dma_x(3)))
    c.e(f"s_branch {name}_PRO_D")
    c.label(f"{name}_PRO_NX")
    for st in range(3): c.e("\n".join(dma_w(0, st) + dma_w(1, st) + advw))
    c.label(f"{name}_PRO_D")
    c.e(f"""
    v_and_b32 v{vT[1]}, 15, v{vL}
    v_lshrrev_b32 v{vT[2]}, 4, v{vL}
    v_lshrrev_b32 v{vT[3]}, 1, v{vT[1]}
    v_xor_b32 v{vT[3]}, v{vT[3]}, v{vT[2]}
    v_lshlrev_b32 v{vT[3]}, 4, v{vT[3]}
    v_lshl_add_u32 v{vT[3]}, v{vT[1]}, 7, v{vT[3]}
    s_lshl_b32 s{sT0}, s{sTH}, 13
    s_add_u32 s{sT0}, s{sT0}, {XBASE}
    v_add_u32 v{vXA[0]}, s{sT0}, v{vT[3]}
    v_xor_b32 v{vXA[1]}, 64, v{vXA[0]}
    v_lshrrev_b32 v{vT[3]}, 2, v{vT[1]}
    v_lshl_add_u32 v{vT[4]}, v{vT[2]}, 3, v{vT[3]}
    v_lshrrev_b32 v{vT[3]}, 1, v{vT[3]}
    v_and_b32 v{vT[5]}, 1, v{vT[2]}
    v_lshl_or_b32 v{vT[3]}, v{vT[5]}, 1, v{vT[3]}
    v_and_b32 v{vT[5]}, 3, v{vT[1]}
    v_lshlrev_b32 v{vT[5]}, 3, v{vT[5]}
    s_cmp_lt_u32 s{sCG}, 6
    s_cbranch_scc0 {name}_RA_GLU
    v_mul_u32_u24 v{vT[4]}, 640, v{vT[4]}
    v_add_u32 v{vT[4]}, v{vT[4]}, v{vT[5]}
    s_lshl_b32 s{sT0}, s{sCQ}, 7
    v_add_u32 v{vT[4]}, s{sT0}, v{vT[4]}
    """)
    for fb in range(4):
        c.e(f"v_xor_b32 v{vT[6]}, {fb}, v{vT[3]}\nv_lshl_add_u32 v{vWA[fb]}, v{vT[6]}, 5, v{vT[4]}")
    c.e(f"s_branch {name}_RA")
    c.label(f"{name}_RA_GLU")
    c.e(f"""
    v_mul_u32_u24 v{vT[4]}, 384, v{vT[4]}
    v_add_u32 v{vT[4]}, v{vT[4]}, v{vT[5]}
    """)
    for f in range(2):
        c.e(f"""
        s_lshl_b32 s{sT0}, s{sCQ}, 1
        s_add_u32 s{sT0}, s{sT0}, {f}
        s_and_b32 s{sT1}, s{sT0}, 3
        s_andn2_b32 s{sT0}, s{sT0}, 3
        s_lshl_b32 s{sT0}, s{sT0}, 5
        v_xor_b32 v{vT[6]}, s{sT1}, v{vT[3]}
        v_lshl_add_u32 v{vT[6]}, v{vT[6]}, 5, v{vT[4]}
        v_add_u32 v{vWA[f]}, s{sT0}, v{vT[6]}
        v_add_u32 v{vWA[2+f]}, {UOFF}, v{vWA[f]}
        """)
    c.label(f"{name}_RA")
    for fb in range(4): c.e(f"v_add_u32 v{vWH[fb]}, {2*WSLOT}, v{vWA[fb]}")
    srd(c, srdWS, sWS, WS_BYTES)
    ST.stamp(c)
    c.e(f"""
    s_cmp_lt_u32 s{sW}, 8
    s_cselect_b32 s{sT1}, 0, 1
    s_cmp_lt_u32 s{sCG}, 4
    s_cselect_b32 s{sT0}, 0, 2
    s_cmp_lt_u32 s{sCG}, 6
    s_cselect_b32 s{sT0}, s{sT0}, 4
    s_add_u32 s{sT0}, s{sT0}, s{sT1}
    """)
    variants = [("QK", 1), ("QK", 0), ("V", 1), ("V", 0), ("GLU", 1), ("GLU", 0)]
    for i in range(1, 6): c.e(f"s_cmp_eq_u32 s{sT0}, {i}\ns_cbranch_scc1 {name}_VAR{i}")
    def reads(st, rs):
        xs, ws_ = sets[st % 2]; p = st & 1; xslot = (st >> 1) % XRING; wsl = st % WRING
        base = vWA if wsl < 2 else vWH; so = (wsl & 1)*WSLOT
        L = []
        for i in range(4):
            L.append(f"ds_read_b64_tr_b16 {vr(ws_+4*i,2)}, v{base[i]} offset:{so}")
            L.append(f"ds_read_b64_tr_b16 {vr(ws_+4*i+2,2)}, v{base[i]} offset:{so + 4*rs}")
            L.append(f"ds_read_b128 {vr(xs+4*i,4)}, v{vXA[p]} offset:{xslot*XSLOT + 2048*i}")
        return L
    def mfmas(st, role):
        xs, ws_ = sets[st % 2]; L = []
        for fb in range(4):
            for tb in range(4):
                cz = 0 if st == 0 else None
                L.append(mfma16(D(fb, tb), ws_+4*fb, xs+4*tb, cz) if role != "V" else mfma16(D(fb, tb), xs+4*tb, ws_+4*fb, cz))
        return L
    for vi, (role, nx) in enumerate(variants):
        if vi: c.label(f"{name}_VAR{vi}")
        rs = 384 if role == "GLU" else 640
        def cnt(x): return ((2 if x + 3 < NST else 0) + (nx if x + 4 < NST else 0))
        for st in range(NST + 1):
            rd = reads(st, rs) if st < NST else []
            if st == 0:
                c.e(f"s_waitcnt vmcnt({cnt(-2) + cnt(-1)})\ns_barrier")
                c.e("\n".join(rd))
                d = []
                if True:
                    c.e("\n".join(dma_w(0, 3) + dma_w(1, 3) + advw + (dma_x(4) if nx else [])))
                continue
            m = mfmas(st - 1, role)
            g = {}
            pre = [f"s_waitcnt vmcnt({cnt(st-2) + cnt(st-1)})", "s_barrier"] if st < NST else []
            g[0] = pre + rd[0:2]
            k = 2
            for i in range(1, 11):
                g[i] = rd[k:k+1]; k += 1
            if st < NST:
                if st + 3 < NST:
                    g[11] = dma_w(0, st+3); g[13] = dma_w(1, st+3) + advw
                if nx and st + 4 < NST: g[15] = dma_x(st+4)
            c.e("s_waitcnt lgkmcnt(0)")
            out = []
            for i, x in enumerate(m):
                out.append(x); out += g.get(i, [])
            c.e("\n".join(out))
            if stamps and st in (3, 15):
                r = ST.s + 2*(5 if st == 3 else 6); c.e(f"s_memtime s[{r}:{r+1}]")
        c.e(f"s_branch {name}_EPI_{role}")
    c.label(f"{name}_EPI_GLU")
    ST.i = 3; ST.stamp(c, wait=True)
    c.e(f"""
    s_lshl_b32 s{sT0}, s{sRT}, 2
    s_lshl_b32 s{sT1}, s{sTH}, 1
    s_add_u32 s{sT0}, s{sT0}, s{sT1}
    s_mul_i32 s{sBase}, s{sT0}, 108
    s_sub_u32 s{sT1}, s{sCG}, 6
    s_mul_i32 s{sT1}, s{sT1}, 12
    s_add_u32 s{sBase}, s{sBase}, s{sT1}
    s_lshl_b32 s{sT1}, s{sCQ}, 1
    s_add_u32 s{sBase}, s{sBase}, s{sT1}
    s_lshl_b32 s{sBase}, s{sBase}, 10
    s_add_u32 s{sBase}, s{sBase}, {HF_OFF}
    v_and_b32 v{vT[1]}, 15, v{vL}
    v_lshrrev_b32 v{vT[2]}, 4, v{vL}
    v_and_b32 v{vT[3]}, 1, v{vT[2]}
    v_lshlrev_b32 v{vT[3]}, 9, v{vT[3]}
    v_lshl_add_u32 v{vT[3]}, v{vT[1]}, 4, v{vT[3]}
    v_lshrrev_b32 v{vT[2]}, 1, v{vT[2]}
    v_lshl_add_u32 v{vT[0]}, v{vT[2]}, 3, v{vT[3]}
    s_mov_b32 s{sT1}, {hexf(-LOG2E)}
    s_add_u32 s{sT2}, s{sBase}, {108*1024}
    """)
    for tb in range(4):
        for f in range(2):
            g_, u_ = D(f, tb), D(2+f, tb)
            for r in range(4): c.e(f"v_mul_f32 v{g_+r}, s{sT1}, v{g_+r}")
        for f in range(2):
            for r in range(4): c.e(f"v_exp_f32 v{D(f,tb)+r}, v{D(f,tb)+r}")
        for f in range(2):
            for r in range(4): c.e(f"v_add_f32 v{D(f,tb)+r}, 1.0, v{D(f,tb)+r}")
        for f in range(2):
            for r in range(4): c.e(f"v_rcp_f32 v{D(f,tb)+r}, v{D(f,tb)+r}")
        for f in range(2):
            for r in range(4): c.e(f"v_mul_f32 v{D(f,tb)+r}, v{D(f,tb)+r}, v{D(2+f,tb)+r}")
        e = vE + 4*(tb % 4)
        for f in range(2):
            c.e(f"v_cvt_pk_bf16_f32 v{e+2*f}, v{D(f,tb)}, v{D(f,tb)+1}\nv_cvt_pk_bf16_f32 v{e+2*f+1}, v{D(f,tb)+2}, v{D(f,tb)+3}")
        for f in range(2):
            c.e(f"buffer_store_dwordx2 {vr(e+2*f,2)}, v{vT[0]}, s[{srdWS}:{srdWS+3}], s{sBase if tb < 2 else sT2} offen offset:{1024*f + 256*(tb & 1)}{SM}")
    c.e(f"s_branch {name}_FIN")
    c.label(f"{name}_EPI_QK")
    ST.i = 3; ST.stamp(c, wait=True)
    c.e(f"""
    s_cmp_lt_u32 s{sCG}, 2
    {csel(sHS, QF_HS, KV_HS)}
    {csel(sTS, QF_TS, KV_TS)}
    {csel(sBase, QF_OFF, KV_OFF)}
    {csel(sScale, hexf(LOG2E*20**-0.5), hexf(1.0))}
    v_and_b32 v{vT[0]}, 15, v{vL}
    v_lshrrev_b32 v{vT[1]}, 4, v{vL}
    s_lshl_b32 s{sT0}, s{sCQ}, 4
    v_add_u32 v{vT[1]}, s{sT0}, v{vT[1]}
    s_mul_i32 s{sT1}, s{sTH}, 2560
    """)
    aE = [vE + i for i in range(4)]; aO = [vE + 4 + i for i in range(4)]
    for fb in range(4):
        c.e(f"""
        v_add_u32 v{vT[2]}, {4*fb}, v{vT[1]}
        v_mul_u32_u24 v{vT[3]}, 13108, v{vT[2]}
        v_lshrrev_b32 v{vT[3]}, 16, v{vT[3]}
        v_mul_u32_u24 v{vT[4]}, 5, v{vT[3]}
        v_sub_u32 v{vT[4]}, v{vT[2]}, v{vT[4]}
        v_mul_u32_u24 v{vT[3]}, 5120, v{vT[3]}
        v_add_u32 v{vT[3]}, s{sT1}, v{vT[3]}
        v_lshrrev_b32 v{vT[5]}, 1, v{vT[4]}
        v_lshlrev_b32 v{vT[5]}, 9, v{vT[5]}
        v_and_b32 v{vT[6]}, 1, v{vT[4]}
        v_lshl_add_u32 v{vT[5]}, v{vT[6]}, 3, v{vT[5]}
        v_lshl_add_u32 v{vT[5]}, v{vT[0]}, 4, v{vT[5]}
        v_lshlrev_b32 v{vT[6]}, 3, v{vT[0]}
        v_add_u32 v{vT[6]}, 1024, v{vT[6]}
        v_cmp_eq_u32 vcc, 4, v{vT[4]}
        v_mov_b32 v{vT[7]}, 256
        v_mov_b32 v{vT[2]}, 128
        v_cndmask_b32 v{vT[5]}, v{vT[5]}, v{vT[6]}, vcc
        v_cndmask_b32 v{vT[7]}, v{vT[7]}, v{vT[2]}, vcc
        v_add_u32 v{aE[fb]}, v{vT[3]}, v{vT[5]}
        v_add_u32 v{aO[fb]}, v{aE[fb]}, v{vT[7]}
        """)
    c.e("s_barrier")
    t2 = vE + 8
    for fb in range(4):
        for tb in range(4):
            d = D(fb, tb)
            for r in range(4): c.e(f"v_mul_f32 v{d+r}, s{sScale}, v{d+r}")
            e = t2 + 2*((4*fb + tb) % 8)
            c.e(f"v_cvt_pk_bf16_f32 v{e}, v{d}, v{d+1}\nv_cvt_pk_bf16_f32 v{e+1}, v{d+2}, v{d+3}")
            c.e(f"ds_write_b64 v{aE[fb] if tb % 2 == 0 else aO[fb]}, {vr(e,2)} offset:{1280*(tb >> 1)}")
        c.e("s_waitcnt lgkmcnt(4)")
    c.e(f"s_branch {name}_COPY")
    c.label(f"{name}_EPI_V")
    ST.i = 3; ST.stamp(c, wait=True)
    c.e(f"""
    s_mov_b32 s{sHS}, {KV_HS}
    s_mov_b32 s{sTS}, {KV_TS}
    s_mov_b32 s{sBase}, {KV_OFF + 1280}
    v_and_b32 v{vT[0]}, 15, v{vL}
    v_lshrrev_b32 v{vT[1]}, 4, v{vL}
    s_lshl_b32 s{sT0}, s{sCQ}, 6
    v_add_u32 v{vT[0]}, s{sT0}, v{vT[0]}
    v_and_b32 v{vT[2]}, 1, v{vT[1]}
    v_mul_u32_u24 v{vT[2]}, 320, v{vT[2]}
    v_lshrrev_b32 v{vT[1]}, 1, v{vT[1]}
    v_lshl_add_u32 v{vT[1]}, v{vT[1]}, 3, v{vT[2]}
    s_mul_i32 s{sT1}, s{sTH}, 2560
    v_add_u32 v{vT[1]}, s{sT1}, v{vT[1]}
    """)
    for fb in range(4):
        c.e(f"""
        v_add_u32 v{vT[2]}, {16*fb}, v{vT[0]}
        v_mul_u32_u24 v{vT[3]}, 3277, v{vT[2]}
        v_lshrrev_b32 v{vT[3]}, 16, v{vT[3]}
        v_mul_u32_u24 v{vT[4]}, 20, v{vT[3]}
        v_sub_u32 v{vT[4]}, v{vT[2]}, v{vT[4]}
        v_mul_u32_u24 v{vT[3]}, 5120, v{vT[3]}
        v_lshl_add_u32 v{vT[3]}, v{vT[4]}, 4, v{vT[3]}
        v_add_u32 v{aE[fb]}, v{vT[3]}, v{vT[1]}
        """)
    c.e("s_barrier")
    for fb in range(4):
        for tb in range(4):
            d = D(fb, tb); e = t2 + 2*((4*fb + tb) % 8)
            c.e(f"v_cvt_pk_bf16_f32 v{e}, v{d}, v{d+1}\nv_cvt_pk_bf16_f32 v{e+1}, v{d+2}, v{d+3}")
            c.e(f"ds_write_b64 v{aE[fb]}, {vr(e,2)} offset:{1280*(tb >> 1) + 640*(tb & 1)}")
        c.e("s_waitcnt lgkmcnt(4)")
    c.e(f"s_branch {name}_COPY")
    c.label(f"{name}_IDLE")
    c.e(f"s_mov_b32 s{sT0}, {NST}\n{name}_IDL:\ns_barrier\ns_sub_u32 s{sT0}, s{sT0}, 1\ns_cmp_lg_u32 s{sT0}, 0\ns_cbranch_scc1 {name}_IDL")
    c.e("s_waitcnt lgkmcnt(0)")
    srd(c, srdWS, sWS, WS_BYTES)
    c.e(f"""
    s_cmp_lt_u32 s{sCG}, 2
    {csel(sHS, QF_HS, KV_HS)}
    {csel(sTS, QF_TS, KV_TS)}
    {csel(sBase, QF_OFF, KV_OFF)}
    s_cmp_lt_u32 s{sCG}, 4
    s_cselect_b32 s{sBase}, s{sBase}, {KV_OFF + 1280}
    s_barrier
    """)
    c.label(f"{name}_COPY")
    c.e(f"""
    s_lshl_b32 s{sT0}, s{sRT}, 2
    s_mul_i32 s{sT0}, s{sT0}, s{sTS}
    s_add_u32 s{sBase}, s{sBase}, s{sT0}
    s_and_b32 s{sT0}, s{sCG}, 1
    s_lshl_b32 s{sT0}, s{sT0}, 4
    s_add_u32 s{sT0}, s{sT0}, s{sW}
    s_mul_i32 s{sT0}, s{sT0}, s{sHS}
    s_add_u32 s{sBase}, s{sBase}, s{sT0}
    s_mul_i32 s{sT1}, s{sW}, 5120
    v_lshl_add_u32 v{vT[0]}, v{vL}, 4, s{sT1}
    """)
    aC = [vE + 24 + i for i in range(5)]
    for k in range(5):
        c.e(f"""
        v_add_u32 v{vT[1]}, {64*k}, v{vL}
        v_mul_u32_u24 v{vT[2]}, 820, v{vT[1]}
        v_lshrrev_b32 v{vT[2]}, 16, v{vT[2]}
        v_mul_u32_u24 v{vT[3]}, 80, v{vT[2]}
        v_sub_u32 v{vT[3]}, v{vT[1]}, v{vT[3]}
        v_mul_lo_u32 v{vT[2]}, v{vT[2]}, s{sTS}
        v_lshl_add_u32 v{aC[k]}, v{vT[3]}, 4, v{vT[2]}
        """)
    c.e("s_waitcnt lgkmcnt(0)\ns_barrier")
    c.label(f"{name}_CPL")
    for k in range(5): c.e(f"ds_read_b128 {vr(acc+4*k,4)}, v{vT[0]} offset:{1024*k}")
    for k in range(5):
        c.e(f"s_waitcnt lgkmcnt({4-k})")
        c.e(f"buffer_store_dwordx4 {vr(acc+4*k,4)}, v{aC[k]}, s[{srdWS}:{srdWS+3}], s{sBase} offen{SM}")
    c.e(f"""
    s_add_u32 s{sW}, s{sW}, 12
    s_cmp_lt_u32 s{sW}, 16
    s_cbranch_scc0 {name}_CPD
    s_mul_i32 s{sT0}, s{sHS}, 12
    s_add_u32 s{sBase}, s{sBase}, s{sT0}
    v_add_u32 v{vT[0]}, {12*5120}, v{vT[0]}
    s_branch {name}_CPL
    {name}_CPD:
    s_sub_u32 s{sW}, s{sW}, 12
    s_cmp_ge_u32 s{sW}, 12
    s_cselect_b32 s{sT0}, 12, 0
    s_sub_u32 s{sW}, s{sW}, s{sT0}
    s_branch {name}_FIN
    """)
    c.label(f"{name}_GATE")
    c.e(f"s_cmp_ge_u32 s{sW}, 8\ns_cbranch_scc1 {name}_END\ns_waitcnt lgkmcnt(0)")
    srd(c, srdX, sAX, 2048*1280); srd(c, srdW, sGW, 1280); srd(c, srdWS, sWS, WS_BYTES)
    c.e(f"""
    s_or_b32 s{sT0}, s{sRT}, s{sW}
    s_cmp_eq_u32 s{sT0}, 0
    s_cbranch_scc0 {name}_NOZ
    v_lshlrev_b32 v{vT[5]}, 7, v{vL}
    v_mov_b32 v{vT[4]}, 0
    s_mov_b32 s{sT0}, {CNT_OFF}
    s_mov_b64 exec, 0xff
    buffer_store_dword v{vT[4]}, v{vT[5]}, s[{srdWS}:{srdWS+3}], s{sT0} offen
    s_mov_b64 exec, -1
    {name}_NOZ:
    """)
    vGw = sets[0][0]; vGx = sets[0][0] + 8
    c.e(f"""
    v_lshlrev_b32 v{vT[5]}, 2, v{vL}
    s_lshl_b32 s{sT0}, s{sRT}, 7
    s_lshl_b32 s{sT1}, s{sW}, 4
    s_add_u32 s{sBase}, s{sT0}, s{sT1}
    s_mul_i32 s{sT1}, s{sBase}, 1280
    """)
    for i in range(5): c.e(f"buffer_load_dword v{vGw+i}, v{vT[5]}, s[{srdW}:{srdW+3}], 0 offen offset:{256*i}")
    NB_ = 8
    for bt in range(2):
        for rr in range(NB_):
            for i in range(5): c.e(f"buffer_load_dword v{vGx+5*rr+i}, v{vT[5]}, s[{srdX}:{srdX+3}], s{sT1} offen offset:{256*i}")
            c.e(f"s_add_u32 s{sT1}, s{sT1}, 1280")
        for rr in range(NB_):
            c.e(f"s_waitcnt vmcnt({5*(NB_-1-rr) + (rr if True else 0)})")
            for i in range(5):
                c.e(f"""
                v_lshlrev_b32 v{vT[0]}, 16, v{vGx+5*rr+i}
                v_and_b32 v{vT[1]}, 0xffff0000, v{vGx+5*rr+i}
                v_lshlrev_b32 v{vT[2]}, 16, v{vGw+i}
                v_and_b32 v{vT[3]}, 0xffff0000, v{vGw+i}
                v_mul_f32 v{vT[0]}, v{vT[0]}, v{vT[2]}
                v_mul_f32 v{vT[1]}, v{vT[1]}, v{vT[3]}
                v_cvt_pk_bf16_f32 v{vT[0]}, v{vT[0]}, v{vT[1]}
                v_lshlrev_b32 v{vT[2]}, 16, v{vT[0]}
                v_and_b32 v{vT[3]}, 0xffff0000, v{vT[0]}
                """)
                if i == 0: c.e(f"v_add_f32 v{vT[4]}, v{vT[2]}, v{vT[3]}")
                else: c.e(f"v_add_f32 v{vT[2]}, v{vT[2]}, v{vT[3]}\nv_add_f32 v{vT[4]}, v{vT[4]}, v{vT[2]}")
            for sh in ("row_shr:1", "row_shr:2", "row_shr:4", "row_shr:8"):
                c.e(f"s_nop 1\nv_add_f32_dpp v{vT[4]}, v{vT[4]}, v{vT[4]} {sh} row_mask:0xf bank_mask:0xf bound_ctrl:0")
            c.e(f"""
            s_nop 1
            v_readlane_b32 s{sT0}, v{vT[4]}, 15
            v_readlane_b32 s{sT2}, v{vT[4]}, 31
            v_readlane_b32 s{sT3}, v{vT[4]}, 47
            v_readlane_b32 s{sHS}, v{vT[4]}, 63
            s_nop 1
            v_mov_b32 v{vT[0]}, s{sT0}
            v_add_f32 v{vT[0]}, s{sT2}, v{vT[0]}
            v_add_f32 v{vT[0]}, s{sT3}, v{vT[0]}
            v_add_f32 v{vT[0]}, s{sHS}, v{vT[0]}
            v_cvt_pk_bf16_f32 v{vT[0]}, v{vT[0]}, v{vT[0]}
            v_lshlrev_b32 v{vT[0]}, 16, v{vT[0]}
            v_mul_f32 v{vT[0]}, {hexf(-LOG2E)}, v{vT[0]}
            v_exp_f32 v{vT[0]}, v{vT[0]}
            s_nop 0
            v_add_f32 v{vT[0]}, 1.0, v{vT[0]}
            v_rcp_f32 v{vT[0]}, v{vT[0]}
            s_nop 0
            v_cvt_pk_bf16_f32 v{vT[0]}, v{vT[0]}, v{vT[0]}
            v_lshlrev_b32 v{vT[6]}, 16, v{vT[0]}
            v_sub_f32 v{vT[1]}, 1.0, v{vT[6]}
            v_cvt_pk_bf16_f32 v{vT[1]}, v{vT[1]}, v{vT[1]}
            v_lshlrev_b32 v{vT[7]}, 16, v{vT[1]}
            s_lshl_b32 s{sT0}, s{sBase}, 3
            s_add_u32 s{sT0}, s{sT0}, {G_OFF}
            v_mov_b32 v{vT[2]}, 0
            s_mov_b64 exec, 1
            buffer_store_dwordx2 {vr(vT[6],2)}, v{vT[2]}, s[{srdWS}:{srdWS+3}], s{sT0} offen
            s_mov_b64 exec, -1
            s_add_u32 s{sBase}, s{sBase}, 1
            """)
    if stamps:
        ST.i = 2; ST.stamp(c); ST.stamp(c)
    c.label(f"{name}_FIN")
    if stamps: c.e("s_waitcnt vmcnt(0)")
    ST.i = 4; ST.stamp(c)
    if stamps:
        c.e(f"s_memrealtime s[{ST.s+14}:{ST.s+15}]"); ST.i = 8
        c.e(f"s_cmp_ge_u32 s{sW}, 8\ns_cbranch_scc1 {name}_END")
    ST.flush(c, sW, srdWS, vT[2], vT[3], sT0)
    c.e(f"""
    {name}_END:
    s_endpgm
    """)
    def S(role, vi=0, idle=False):
        d = {f"{name}_END": False, f"{name}_GATE": role == "gate", f"{name}_GLU": role == "glu", f"{name}_RA_GLU": role == "glu",
             f"{name}_IDLE": idle, f"{name}_NOZ": False, f"{name}_PRO_NX": vi % 2 == 1, f"{name}_CPD": (lambda k: k >= 1)}
        for i in range(1, 6): d[f"{name}_VAR{i}"] = (i == vi)
        return d
    scen = {"qk1": S("qk", 0), "qk0": S("qk", 1), "v1": S("v", 2), "v0": S("v", 3), "glu1": S("glu", 4), "glu0": S("glu", 5), "gate": S("gate"), "idle": S("qk", 1, True)}
    return c, V.hi, scen, K1_LDS

if __name__ == "__main__":
    c, nv, scen, lds = gen_k1()
    errs = check(c.lines, scen, "k1")
    print("vgprs", nv, "lds", lds, "lines", len(c.lines))
    for e in errs[:40]: print(e)
```

```python
from common import *

CH = 10240
SLOT = 2*CH; RING = 3
DUMMY = SLOT*RING
FLAG = DUMMY + 1024
XCH = FLAG + 64
GRING = XCH + 8*3072
GSLOT = 6144; GWAVE = 3*GSLOT
K2_LDS = GRING + 4*GWAVE
FB_BARRIERS = 16 + 3 + 9 + 1

def gen_k2(name="k2_kernel", stamps=False, exp=""):
    c = Code()
    SM = " sc1" if "SC1" in exp else (" sc0 sc1" if "SC01" in exp else ("" if ("PLAIN" in exp or "P2" in exp) else " nt"))
    V = Alloc(168, 1, "v"); Sg = Alloc(100, 12, "s")
    sWS = 4; sWD = 6; sWO = 8; sOUT = 10
    sX = Sg.take(); sJ = Sg.take(); sHead = Sg.take(); sQB = Sg.take(); sW = Sg.take(); sQG = Sg.take(); sKH = Sg.take()
    sT0 = Sg.take(); sT1 = Sg.take(); sT2 = Sg.take(); sT3 = Sg.take()
    srdWS = Sg.take(4, 4)
    sMaskLo = Sg.take(2, 2); sMaskV = Sg.take(2, 2); sU = Sg.take(2, 2); sU2 = Sg.take(2, 2)
    sSrc = Sg.take(); sM = [Sg.take() for _ in range(3)]; sSlotW = Sg.take(); sSlotR = Sg.take(); sC = Sg.take(); sMode = Sg.take()
    sSrc0 = Sg.take(); sTile = Sg.take(); sOb = Sg.take()
    ST = Stamps(Sg, stamps, 1)
    vL = V.take(); vT = [V.take() for _ in range(8)]
    vOff = V.take(); vOff3 = V.take()
    vK1a = V.take(); vK2a = V.take(); vVa = V.take()
    vK1c = V.take(); vK2c = V.take(); vVc = V.take()
    vG = [V.take(), V.take()]; vSt = [V.take() for _ in range(3)]
    Q1 = [V.take(4, 4), V.take(4, 4)]; Q2 = [V.take(2, 2), V.take(2, 2)]
    K1 = V.take(4, 4); K2 = V.take(2, 2); V0 = V.take(4, 4); V1 = V.take(4, 4)
    S_ = [V.take(16, 4), V.take(16, 4)]; O = [V.take(16, 4), V.take(16, 4)]
    P = [V.take(4, 4), V.take(4, 4)]; T4 = V.take(4, 4)
    vM = [V.take(), V.take()]
    NM = [V.take(16, 4), V.take(16, 4)]
    srd4 = f"s[{srdWS}:{srdWS+3}]"

    c.e(f"""
    s_cmp_ge_u32 s2, 256
    s_cbranch_scc1 {name}_END
    s_load_dwordx2 s[4:5], s[0:1], {KA_WS}
    s_load_dwordx2 s[6:7], s[0:1], {KA_WD}
    s_load_dwordx2 s[8:9], s[0:1], {KA_WO}
    s_load_dwordx2 s[10:11], s[0:1], {KA_OUT}
    v_and_b32 v{vL}, 63, v0
    v_lshrrev_b32 v{vT[0]}, 6, v0
    s_and_b32 s{sX}, s2, 7
    s_lshr_b32 s{sJ}, s2, 3
    v_readfirstlane_b32 s{sW}, v{vT[0]}
    s_lshr_b32 s{sT0}, s{sJ}, 3
    s_lshl_b32 s{sHead}, s{sX}, 2
    s_add_u32 s{sHead}, s{sHead}, s{sT0}
    s_and_b32 s{sQB}, s{sJ}, 7
    v_lshlrev_b32 v{vOff}, 4, v{vL}
    s_mul_i32 s{sSrc0}, s{sHead}, {KV_HS}
    s_add_u32 s{sSrc0}, s{sSrc0}, {KV_OFF}
    """)
    ST.stamp(c, real=True); ST.stamp(c)
    c.e(f"s_cmp_ge_u32 s{sW}, 8\ns_cbranch_scc1 {name}_GW")
    c.e(f"""
    s_and_b32 s{sQG}, s{sW}, 3
    s_lshr_b32 s{sKH}, s{sW}, 2
    s_mul_i32 s{sT0}, s{sKH}, {32*KV_TS}
    s_add_u32 s{sSrc0}, s{sSrc0}, s{sT0}
    s_lshl_b32 s{sT0}, s{sQG}, 10
    s_add_u32 s{sSrc0}, s{sSrc0}, s{sT0}
    s_mul_i32 s{sT1}, s{sKH}, {CH}
    s_add_u32 s{sM[0]}, s{sT1}, s{sT0}
    s_add_u32 s{sM[1]}, s{sM[0]}, 4096
    s_add_u32 s{sM[2]}, s{sM[0]}, 8192
    s_cmp_lt_u32 s{sQG}, 2
    s_cselect_b32 s{sT0}, 0, 0x7f000000
    v_add_u32 v{vOff3}, s{sT0}, v{vOff}
    s_mov_b32 s{sSrc}, s{sSrc0}
    s_mov_b32 s{sSlotW}, 0
    s_lshl_b32 s{sTile}, s{sQB}, 3
    s_lshl_b32 s{sT0}, s{sQG}, 1
    s_add_u32 s{sTile}, s{sTile}, s{sT0}
    s_waitcnt lgkmcnt(0)
    """)
    srd(c, srdWS, sWS, WS_BYTES)
    def dma_parts():
        g0 = [f"s_add_u32 m0, s{sSlotW}, s{sM[0]}", f"s_add_u32 s{sT0}, s{sSrc}, 4096", f"buffer_load_dwordx4 v{vOff}, {srd4}, s{sSrc} offen lds"]
        g1 = [f"s_add_u32 m0, s{sSlotW}, s{sM[1]}", f"s_add_u32 s{sT1}, s{sSrc}, 8192", f"buffer_load_dwordx4 v{vOff}, {srd4}, s{sT0} offen lds"]
        g2 = [f"s_add_u32 s{sT0}, s{sSlotW}, s{sM[2]}", f"s_cmp_lt_u32 s{sQG}, 2", f"s_cselect_b32 m0, s{sT0}, {DUMMY}", f"s_add_u32 s{sSrc}, s{sSrc}, {CH}",
              f"buffer_load_dwordx4 v{vOff3}, {srd4}, s{sT1} offen lds",
              f"s_add_u32 s{sSlotW}, s{sSlotW}, {SLOT}", f"s_cmp_eq_u32 s{sSlotW}, {SLOT*RING}", f"s_cselect_b32 s{sSlotW}, 0, s{sSlotW}"]
        return g0, g1, g2
    def dma_chunk():
        g = dma_parts(); return g[0] + g[1] + g[2]
    def first_loads():
        c.e("\n".join(dma_chunk()))
    first_loads()
    c.e(f"""
    s_mul_i32 s{sT2}, s{sHead}, {QF_HS}
    s_mul_i32 s{sT1}, s{sTile}, {QF_TS}
    s_add_u32 s{sT2}, s{sT2}, s{sT1}
    s_add_u32 s{sT3}, s{sT2}, {QF_TS}
    v_and_b32 v{vT[0]}, 31, v{vL}
    v_lshlrev_b32 v{vT[1]}, 3, v{vT[0]}
    s_mov_b32 s{sMaskLo}, -1
    s_mov_b32 s{sMaskLo+1}, 0
    v_mov_b32 v{Q2[0]}, 0
    v_mov_b32 v{Q2[0]+1}, 0
    v_mov_b32 v{Q2[1]}, 0
    v_mov_b32 v{Q2[1]+1}, 0
    buffer_load_dwordx4 {vr(Q1[0],4)}, v{vOff}, {srd4}, s{sT2} offen
    buffer_load_dwordx4 {vr(Q1[1],4)}, v{vOff}, {srd4}, s{sT3} offen
    s_mov_b64 exec, s[{sMaskLo}:{sMaskLo+1}]
    buffer_load_dwordx2 {vr(Q2[0],2)}, v{vT[1]}, {srd4}, s{sT2} offen offset:1024
    buffer_load_dwordx2 {vr(Q2[1],2)}, v{vT[1]}, {srd4}, s{sT3} offen offset:1024
    s_mov_b64 exec, -1
    """)
    c.e("\n".join(dma_chunk()))
    c.e(f"""
    s_lshl_b32 s{sT2}, s{sTile}, 8
    s_add_u32 s{sT2}, s{sT2}, {G_OFF}
    buffer_load_dword v{vG[0]}, v{vT[1]}, {srd4}, s{sT2} offen
    buffer_load_dword v{vG[1]}, v{vT[1]}, {srd4}, s{sT2} offen offset:256
    s_mov_b32 s{sMode}, 0
    s_mov_b32 s{sMaskV}, 0xfffff
    s_mov_b32 s{sMaskV+1}, 0xfffff
    s_mul_i32 s{sT0}, s{sKH}, {CH}
    v_add_u32 v{vK1a}, s{sT0}, v{vOff}
    v_add_u32 v{vK2a}, s{sT0}, v{vT[1]}
    v_lshrrev_b32 v{vT[2]}, 5, v{vL}
    v_mul_u32_u24 v{vT[7]}, 320, v{vT[2]}
    v_lshl_add_u32 v{vT[7]}, v{vT[0]}, 4, v{vT[7]}
    v_add_u32 v{vVa}, s{sT0}, v{vT[7]}
    v_cmp_eq_u32 vcc, 20, v{vT[0]}
    v_mov_b32 v{vT[3]}, 0
    v_mov_b32 v{vT[4]}, 0x3f803f80
    v_cndmask_b32 v{vT[3]}, v{vT[3]}, v{vT[4]}, vcc
    """)
    for r in range(4): c.e(f"v_mov_b32 v{V0+r}, v{vT[3]}\nv_mov_b32 v{V1+r}, v{vT[3]}")
    c.e(f"v_mov_b32 v{vT[3]}, 0\nv_mov_b32 v{vT[4]}, {FLAG}\nds_write_b32 v{vT[4]}, v{vT[3]}")
    c.e(f"""
    s_add_u32 s{sOb}, s{sTile}, s{sKH}
    s_mul_i32 s{sOb}, s{sOb}, {40*1024}
    s_add_u32 s{sOb}, s{sOb}, {OF_OFF}
    s_mul_i32 s{sT1}, s{sHead}, 5
    v_add_u32 v{vT[2]}, s{sT1}, v{vT[2]}
    v_lshlrev_b32 v{vT[3]}, 4, v{vT[0]}
    """)
    for g in range(3):
        c.e(f"""
        v_add_u32 v{vT[4]}, {2*g}, v{vT[2]}
        v_lshrrev_b32 v{vT[5]}, 2, v{vT[4]}
        v_lshlrev_b32 v{vT[5]}, 10, v{vT[5]}
        v_and_b32 v{vT[6]}, 1, v{vT[4]}
        v_lshl_add_u32 v{vT[5]}, v{vT[6]}, 9, v{vT[5]}
        v_and_b32 v{vT[6]}, 2, v{vT[4]}
        v_lshl_add_u32 v{vT[5]}, v{vT[6]}, 2, v{vT[5]}
        v_add_u32 v{vSt[g]}, v{vT[5]}, v{vT[3]}
        """)
    def rdK(off):
        return [f"ds_read_b64 {vr(K2,2)}, v{vK2c} offset:{off+1024}", f"ds_read_b128 {vr(K1,4)}, v{vK1c} offset:{off}"]
    def rdV(which, off):
        r = V0 if which == 0 else V1
        return [f"s_mov_b64 exec, s[{sMaskV}:{sMaskV+1}]", f"ds_read_b128 {vr(r,4)}, v{vVc} offset:{off + 1280 + 640*which}", "s_mov_b64 exec, -1"]
    def emit_pass(tag, fb):
        def qk(b): return [f"v_mfma_f32_32x32x16_bf16 {vr(S_[b],16)}, {vr(K1,4)}, {vr(Q1[b],4)}, " + (vr(NM[b],16) if fb else "0"), mfma32x8(S_[b], K2, Q2[b])]
        for b in range(2):
            for r in range(16): c.e(f"v_mov_b32 v{O[b]+r}, 0")
        for r in range(4): c.e(f"v_mov_b32 v{P[1]+r}, 0\nv_mov_b32 v{T4+r}, 0")
        c.e(f"""
        s_mov_b32 s{sSlotR}, 0
        s_mov_b32 s{sC}, 0
        v_mov_b32 v{vK1c}, v{vK1a}
        v_mov_b32 v{vK2c}, v{vK2a}
        v_mov_b32 v{vVc}, v{vVa}
        """)
        c.e(f"s_waitcnt vmcnt({3 if fb else 5}) lgkmcnt(0)\ns_barrier")
        c.e("\n".join(rdK(0) + rdV(0, 0)))
        c.e(f"s_waitcnt vmcnt({3 if fb else 5}) lgkmcnt(1)") if False else None
        c.e("s_waitcnt lgkmcnt(1)")
        c.e("\n".join(qk(0)))
        c.e("s_nop 7\ns_nop 3")
        if not fb: ST.i = 2; ST.stamp(c, wait=True)
        def half(b, tt):
            s = S_[b]; L = []
            src = lambda i: (s + i) if i < 12 else (T4 + i - 12)
            e = lambda i: f"v_exp_f32 v{src(i)}, v{s+i}"
            cv = lambda p: f"v_cvt_pk_bf16_f32 v{P[p//4] + p%4}, v{src(2*p)}, v{src(2*p+1)}"
            m = qk(1 - b)
            m3 = mfma32(O[b], V0, P[0]); m4p = mfma32(O[1-b], V1, P[1])
            cur = tt*KV_TS; nxt = ((tt + 1) % 4)*KV_TS
            d0 = d1 = d2 = []
            if b == 0 and tt == 0: pass
            if b == 1: L.append("s_waitcnt lgkmcnt(1)")
            L += [m[0], e(0), cv(6), e(1), cv(7), e(2), e(3), m[1]]
            if b == 0:
                if tt == 3:
                    L += ["s_waitcnt vmcnt(0)", "s_barrier",
                          f"s_add_u32 s{sSlotR}, s{sSlotR}, {SLOT}", f"s_cmp_eq_u32 s{sSlotR}, {SLOT*RING}", f"s_cselect_b32 s{sSlotR}, 0, s{sSlotR}",
                          f"v_add_u32 v{vK1c}, s{sSlotR}, v{vK1a}", f"v_add_u32 v{vK2c}, s{sSlotR}, v{vK2a}"]
                L += rdK(nxt)
            L += [e(4), e(5), cv(0), e(6), e(7), cv(1)]
            if b == 1: L.append("s_waitcnt lgkmcnt(0)")
            L.append(m4p)
            if b == 0: L += rdV(1, cur)
            if b == 0 and tt == 3: L += [f"v_add_u32 v{vVc}, s{sSlotR}, v{vVa}"]
            L += [e(8), cv(2), e(9), cv(3), e(10), e(11)]
            if b == 0: L.append("s_waitcnt lgkmcnt(3)")
            L.append(m3)
            if b == 1: L += rdV(0, nxt)
            L += [e(12), e(13), cv(4), e(14), e(15), cv(5)]
            return L
        lp = f"{name}_LOOP{tag}"
        c.label(lp)
        for tt in range(4):
            A = half(0, tt); B = half(1, tt)
            if tt == 3:
                g0, g1, g2 = dma_parts()
                c.e("\n".join(A))
                c.e(f"s_cmp_ge_u32 s{sC}, 6\ns_cbranch_scc1 {lp}_NODMA")
                c.e("\n".join(g0 + g1 + g2))
                c.label(f"{lp}_NODMA")
                c.e("\n".join(B))
            else:
                c.e("\n".join(A)); c.e("\n".join(B))
        c.e(f"""
        s_add_u32 s{sC}, s{sC}, 1
        s_cmp_lt_u32 s{sC}, 8
        s_cbranch_scc1 {lp}
        """)
        c.e(f"v_cvt_pk_bf16_f32 v{P[1]+2}, v{T4}, v{T4+1}\nv_cvt_pk_bf16_f32 v{P[1]+3}, v{T4+2}, v{T4+3}\ns_waitcnt lgkmcnt(0)\ns_nop 0")
        c.e(mfma32(O[1], V1, P[1]))
    emit_pass("", False)
    c.label(f"{name}_EPI")
    ST.i = 3; ST.stamp(c, wait=True)
    c.e(f"""
    s_mul_i32 s{sT0}, s{sW}, 3072
    s_add_u32 s{sT0}, s{sT0}, {XCH}
    v_add_u32 v{vT[4]}, s{sT0}, v{vOff}
    s_xor_b32 s{sT0}, s{sW}, 4
    s_mul_i32 s{sT0}, s{sT0}, 3072
    s_add_u32 s{sT0}, s{sT0}, {XCH}
    v_add_u32 v{vT[6]}, s{sT0}, v{vOff}
    v_mov_b32 v{vT[1]}, 0x7f800000
    v_mov_b32 v{vT[2]}, {hexf(2.0**63)}
    v_mov_b32 v{vT[3]}, {hexf(2.0**-63)}
    v_mov_b32 v{vT[5]}, {FLAG}
    s_nop 3
    s_cmp_eq_u32 s{sKH}, 0
    s_cbranch_scc1 {name}_NOSWAP
    """)
    for r in range(12): c.e(f"v_swap_b32 v{O[0]+r}, v{O[1]+r}")
    c.e(f"v_swap_b32 v{vG[0]}, v{vG[1]}")
    c.label(f"{name}_NOSWAP")
    for g in range(3): c.e(f"ds_write_b128 v{vT[4]}, {vr(O[1]+4*g,4)} offset:{1024*g}")
    c.e(f"v_add_f32 v{vT[0]}, |v{O[0]}|, |v{O[1]}|")
    for r in range(1, 12): c.e(f"v_add_f32 v{vT[0]}, |v{O[0]+r}|, v{vT[0]}\nv_add_f32 v{vT[0]}, |v{O[1]+r}|, v{vT[0]}")
    c.e(f"""
    v_min_f32 v{vT[7]}, v{O[0]+8}, v{O[1]+8}
    v_cmp_nlt_f32 s[{sU}:{sU+1}], v{vT[0]}, v{vT[1]}
    v_max_f32 v{vT[0]}, v{O[0]+8}, v{O[1]+8}
    v_cmp_nge_f32 s[{sU2}:{sU2+1}], v{vT[7]}, v{vT[3]}
    v_cmp_nle_f32 vcc, v{vT[0]}, v{vT[2]}
    s_nop 3
    s_or_b64 s[{sU2}:{sU2+1}], s[{sU2}:{sU2+1}], vcc
    s_andn2_b64 s[{sU2}:{sU2+1}], s[{sU2}:{sU2+1}], s[{sMaskLo}:{sMaskLo+1}]
    s_or_b64 s[{sU}:{sU+1}], s[{sU}:{sU+1}], s[{sU2}:{sU2+1}]
    s_cmp_eq_u64 s[{sU}:{sU+1}], 0
    s_cbranch_scc1 {name}_SAFE
    v_mov_b32 v{vT[3]}, 1
    ds_write_b32 v{vT[5]}, v{vT[3]}
    {name}_SAFE:
    s_waitcnt lgkmcnt(0)
    s_barrier
    ds_read_b32 v{vT[3]}, v{vT[5]}
    """)
    for g in range(3): c.e(f"ds_read_b128 {vr(S_[0]+4*g,4)}, v{vT[6]} offset:{1024*g}")
    c.e(f"""
    s_waitcnt lgkmcnt(3)
    v_readfirstlane_b32 s{sT0}, v{vT[3]}
    s_nop 3
    s_cmp_eq_u32 s{sMode}, 0
    s_cselect_b32 s{sT0}, s{sT0}, 0
    s_cmp_eq_u32 s{sT0}, 0
    s_cbranch_scc0 {name}_FALLBACK
    s_waitcnt vmcnt(0) lgkmcnt(0)
    """)
    for r in range(12): c.e(f"v_add_f32 v{O[0]+r}, v{O[0]+r}, v{S_[0]+r}")
    c.e(f"""
    v_mov_b32 v{vT[0]}, v{O[0]+8}
    v_mov_b32 v{vT[1]}, v{O[0]+8}
    s_nop 1
    v_permlane32_swap_b32 v{vT[0]}, v{vT[1]}
    s_nop 1
    v_rcp_f32 v{vT[1]}, v{vT[1]}
    s_nop 0
    v_mul_f32 v{vT[1]}, v{vT[1]}, v{vG[0]}
    """)
    for r in range(12): c.e(f"v_mul_f32 v{O[0]+r}, v{O[0]+r}, v{vT[1]}")
    for p in range(6): c.e(f"v_cvt_pk_bf16_f32 v{S_[1]+p}, v{O[0]+2*p}, v{O[0]+2*p+1}")
    for g in range(3):
        if g == 2: c.e(f"s_mov_b64 exec, s[{sMaskLo}:{sMaskLo+1}]")
        c.e(f"buffer_store_dwordx2 {vr(S_[1]+2*g,2)}, v{vSt[g]}, {srd4}, s{sOb} offen sc1")
    c.e(f"""
    s_mov_b64 exec, -1
    s_waitcnt vmcnt(0)
    s_barrier
    s_cmp_eq_u32 s{sW}, 0
    s_cbranch_scc0 {name}_FIN
    s_lshl_b32 s{sT0}, s{sQB}, 7
    s_add_u32 s{sT0}, s{sT0}, {CNT_OFF}
    v_mov_b32 v{vT[2]}, 0
    v_mov_b32 v{vT[3]}, 1
    s_mov_b64 exec, 1
    buffer_atomic_add v{vT[3]}, v{vT[2]}, {srd4}, s{sT0} offen
    s_mov_b64 exec, -1
    s_branch {name}_FIN
    """)
    c.label(f"{name}_FALLBACK")
    c.e("s_waitcnt vmcnt(0) lgkmcnt(0)")
    c.e(f"s_cmp_eq_u32 s{sKH}, 0\ns_cbranch_scc1 {name}_FB_NOSWAP\nv_swap_b32 v{vG[0]}, v{vG[1]}\n{name}_FB_NOSWAP:")
    c.e(f"""
    s_mov_b32 s{sMode}, 1
    v_mov_b32 v{vM[0]}, 0xff800000
    v_mov_b32 v{vM[1]}, 0xff800000
    s_mov_b32 s{sSrc}, s{sSrc0}
    s_mov_b32 s{sC}, 0
    {name}_FB_LOOP:
    s_barrier
    s_mov_b32 s{sSlotW}, 0
    """)
    c.e("\n".join(dma_chunk()))
    c.e(f"s_waitcnt vmcnt(0)\ns_barrier\nv_mov_b32 v{vK1c}, v{vK1a}\nv_mov_b32 v{vK2c}, v{vK2a}")
    for tt in range(4):
        c.e("\n".join(rdK(tt*KV_TS)))
        c.e("s_waitcnt lgkmcnt(0)")
        for b in range(2): c.e(mfma32(S_[b], K1, Q1[b], cz=0) + "\n" + mfma32x8(S_[b], K2, Q2[b]))
        c.e("s_nop 7\ns_nop 7")
        for b in range(2):
            for r in range(0, 16, 2): c.e(f"v_max3_f32 v{vM[b]}, v{S_[b]+r}, v{S_[b]+r+1}, v{vM[b]}")
    c.e(f"""
    s_add_u32 s{sC}, s{sC}, 1
    s_cmp_lt_u32 s{sC}, 8
    s_cbranch_scc1 {name}_FB_LOOP
    """)
    for b in range(2):
        c.e(f"""
        v_mov_b32 v{vT[0]}, v{vM[b]}
        v_mov_b32 v{vT[1]}, v{vM[b]}
        s_nop 1
        v_permlane32_swap_b32 v{vT[0]}, v{vT[1]}
        s_nop 1
        v_max_f32 v{vM[b]}, v{vT[0]}, v{vT[1]}
        """)
    c.e(f"""
    s_lshl_b32 s{sT0}, s{sW}, 9
    s_add_u32 s{sT0}, s{sT0}, {XCH}
    v_lshlrev_b32 v{vT[2]}, 2, v{vL}
    v_add_u32 v{vT[3]}, s{sT0}, v{vT[2]}
    s_barrier
    ds_write_b32 v{vT[3]}, v{vM[0]}
    ds_write_b32 v{vT[3]}, v{vM[1]} offset:256
    s_xor_b32 s{sT0}, s{sW}, 4
    s_lshl_b32 s{sT0}, s{sT0}, 9
    s_add_u32 s{sT0}, s{sT0}, {XCH}
    v_add_u32 v{vT[3]}, s{sT0}, v{vT[2]}
    s_waitcnt lgkmcnt(0)
    s_barrier
    ds_read_b32 v{vT[4]}, v{vT[3]}
    ds_read_b32 v{vT[5]}, v{vT[3]} offset:256
    s_waitcnt lgkmcnt(0)
    v_max_f32 v{vM[0]}, v{vM[0]}, v{vT[4]}
    v_max_f32 v{vM[1]}, v{vM[1]}, v{vT[5]}
    s_barrier
    """)
    for b in range(2):
        for r in range(16): c.e(f"v_sub_f32 v{NM[b]+r}, 0, v{vM[b]}")
    c.e(f"s_mov_b32 s{sSrc}, s{sSrc0}\ns_mov_b32 s{sSlotW}, 0")
    c.e("\n".join(dma_chunk())); c.e("\n".join(dma_chunk()))
    emit_pass("FB", True)
    c.e(f"s_branch {name}_EPI")
    Vg = Alloc(168, 2, "v")
    gOffW = [Vg.take() for _ in range(5)]; gOffA = Vg.take(); gWA = Vg.take(); gAA = Vg.take(); gOm = Vg.take()
    gT = [Vg.take() for _ in range(6)]
    gact = Vg.take(4, 4); gwf = Vg.take(20, 4); gacc = Vg.take(80, 4); goq = Vg.take(40, 4); gtmp = goq
    sRB, sCG, sKQ, sLB, sKs, sAct = sQG, sKH, sQB, sSrc, sSrc0, sTile
    srdW = Sg.take(4, 4); srdO = Sg.take(4, 4)
    NDOWN = 27; NSTEP = 37; DEFER = 0
    gs = Sg.take(16, 2) if stamps else 0
    gi = [0]
    def gstamp():
        if stamps:
            c.e(f"s_memrealtime s[{gs+2*gi[0]}:{gs+2*gi[0]+1}]\ns_waitcnt lgkmcnt(0)"); gi[0] += 1
    c.label(f"{name}_GW")
    c.e(f"""
    s_sub_u32 s{sKQ}, s{sW}, 8
    s_lshr_b32 s{sT0}, s{sJ}, 2
    s_lshl_b32 s{sRB}, s{sX}, 3
    s_add_u32 s{sRB}, s{sRB}, s{sT0}
    s_and_b32 s{sCG}, s{sJ}, 3
    s_mul_i32 s{sT0}, s{sCG}, 320
    """)
    for i in range(5):
        c.e(f"""
        v_add_u32 v{gT[1]}, {64*i}, v{vL}
        v_mul_u32_u24 v{gT[2]}, 3277, v{gT[1]}
        v_lshrrev_b32 v{gT[2]}, 16, v{gT[2]}
        v_mul_u32_u24 v{gT[3]}, 20, v{gT[2]}
        v_sub_u32 v{gT[3]}, v{gT[1]}, v{gT[3]}
        v_mul_u32_u24 v{gT[2]}, 1280, v{gT[2]}
        v_lshl_add_u32 v{gT[2]}, v{gT[3]}, 4, v{gT[2]}
        v_add_u32 v{gOffW[i]}, s{sT0}, v{gT[2]}
        """)
    c.e(f"""
    v_lshlrev_b32 v{gOffA}, 4, v{vL}
    s_mul_i32 s{sLB}, s{sKQ}, {GWAVE}
    s_add_u32 s{sLB}, s{sLB}, {GRING}
    s_mul_i32 s{sKs}, s{sKQ}, 20480
    s_mul_i32 s{sAct}, s{sRB}, 108
    s_add_u32 s{sAct}, s{sAct}, s{sKQ}
    s_lshl_b32 s{sAct}, s{sAct}, 10
    s_add_u32 s{sAct}, s{sAct}, {HF_OFF}
    s_waitcnt lgkmcnt(0)
    """)
    srd(c, srdWS, sWS, WS_BYTES); srd(c, srdW, sWD, 1728*1280); srd(c, srdO, sOUT, 2048*1280)
    def gdma(n):
        so = (n % 3)*GSLOT; L = []
        for i in range(5):
            L += [f"s_add_u32 m0, s{sLB}, {so + 1024*i}", "s_nop 0", f"buffer_load_dwordx4 v{gOffW[i]}, s[{srdW}:{srdW+3}], s{sKs} offen lds"]
        L += [f"s_add_u32 s{sKs}, s{sKs}, {4*20480}"]
        if n < NDOWN:
            L += [f"s_add_u32 m0, s{sLB}, {so + 5120}", "s_nop 0", f"buffer_load_dwordx4 v{gOffA}, {srd4}, s{sAct} offen lds", f"s_add_u32 s{sAct}, s{sAct}, 4096"]
        return L
    ndma = lambda n: 0 if n >= NDOWN else 6
    c.e(f"""
    v_and_b32 v{gT[0]}, 31, v{vL}
    v_lshlrev_b32 v{gT[1]}, 3, v{gT[0]}
    s_lshl_b32 s{sT0}, s{sRB}, 8
    s_add_u32 s{sT0}, s{sT0}, {G_OFF + 4}
    buffer_load_dword v{gOm}, v{gT[1]}, {srd4}, s{sT0} offen
    v_and_b32 v{gT[3]}, 15, v{vL}
    v_lshrrev_b32 v{gT[4]}, 2, v{gT[3]}
    v_lshrrev_b32 v{gT[2]}, 5, v{vL}
    v_lshl_add_u32 v{gT[4]}, v{gT[2]}, 2, v{gT[4]}
    v_mul_u32_u24 v{gT[4]}, 320, v{gT[4]}
    v_and_b32 v{gT[3]}, 3, v{gT[3]}
    v_lshl_add_u32 v{gT[4]}, v{gT[3]}, 3, v{gT[4]}
    v_lshrrev_b32 v{gT[3]}, 4, v{vL}
    v_and_b32 v{gT[3]}, 1, v{gT[3]}
    v_lshl_add_u32 v{gT[4]}, v{gT[3]}, 5, v{gT[4]}
    v_add_u32 v{gWA}, s{sLB}, v{gT[4]}
    v_add_u32 v{gAA}, 5120, v{gOffA}
    v_add_u32 v{gAA}, s{sLB}, v{gAA}
    """)
    for r in range(80): c.e(f"v_mov_b32 v{gacc+r}, 0")
    c.e("s_barrier")
    c.e("\n".join(gdma(0) + gdma(1)))
    def step(n, wait, post=None, loc=None):
        so = (n % 3)*GSLOT; areg = gWA
        if loc is not None: areg, so = loc
        c.e(wait)
        act = gact
        nrd = 10
        if n < NDOWN:
            c.e(f"ds_read_b128 {vr(gact,4)}, v{gAA} offset:{so}")
        else: act = goq + 4*(n - NDOWN)
        for jb in range(5):
            c.e(f"ds_read_b64_tr_b16 {vr(gwf+4*jb,2)}, v{areg} offset:{so + 64*jb}\nds_read_b64_tr_b16 {vr(gwf+4*jb+2,2)}, v{areg} offset:{so + 64*jb + 2560}")
        if n + 2 < NDOWN: c.e("\n".join(gdma(n + 2)))
        for jb in range(5):
            c.e(f"s_waitcnt lgkmcnt({8 - 2*jb})")
            c.e(mfma32(gacc+16*jb, gwf+4*jb, act))
        if post: c.e("\n".join(post))
    sched = [3, 4, 3, 4, 3, 4, 3, 3]; n = 0
    assert sum(sched) == NDOWN - DEFER
    gWB = gT[5]; sAB = sOb
    def wloc(i):
        if i < 3: return (gWA, GSLOT*i)
        if i < 7: return (gWB, 5120*(i - 3))
        return (gWA, GSLOT*(i - 7))
    def wdma(i):
        L = []
        base, off = (sLB, GSLOT*i) if i < 3 else ((sAB, 5120*(i - 3)) if i < 7 else (sLB, GSLOT*(i - 7)))
        for k in range(5):
            L += [f"s_add_u32 m0, s{base}, {off + 1024*k}", "s_nop 0", f"buffer_load_dwordx4 v{gOffW[k]}, s[{srdW}:{srdW+3}], s{sKs} offen lds"]
        L += [f"s_add_u32 s{sKs}, s{sKs}, {4*20480}"]
        return L
    for k in range(8):
        for _ in range(sched[k]):
            step(n, f"s_waitcnt vmcnt({ndma(n+1)})"); n += 1
        if k == 7:
            c.e(f"""
            s_mov_b32 s{srdW}, s{sWO}
            s_and_b32 s{srdW+1}, s{sWO+1}, 0xffff
            s_mov_b32 s{srdW+2}, {640*1280}
            s_mul_i32 s{sKs}, s{sKQ}, 20480
            s_mul_i32 s{sAB}, s{sKQ}, 20480
            v_subrev_u32 v{gWB}, s{sLB}, v{gWA}
            v_add_u32 v{gWB}, s{sAB}, v{gWB}
            """)
            for i in range(3): c.e("\n".join(wdma(i)))
        c.e("s_barrier")
    c.e("s_nop 7")
    for r in range(80): c.e(f"v_mul_f32 v{gacc+r}, v{gacc+r}, v{gOm}")
    c.e(f"""
    s_barrier
    v_mov_b32 v{gT[3]}, {FLAG}
    ds_read_b32 v{gT[3]}, v{gT[3]}
    s_waitcnt lgkmcnt(0)
    v_readfirstlane_b32 s{sT1}, v{gT[3]}
    s_nop 3
    s_cmp_eq_u32 s{sT1}, 0
    s_cbranch_scc1 {name}_GNOFB
    s_mov_b32 s{sT0}, {FB_BARRIERS}
    {name}_GFB:
    s_barrier
    s_sub_u32 s{sT0}, s{sT0}, 1
    s_cmp_lg_u32 s{sT0}, 0
    s_cbranch_scc1 {name}_GFB
    {name}_GNOFB:
    s_barrier
    """)
    gstamp()
    for i in range(3, 7): c.e("\n".join(wdma(i)))
    gstamp()
    c.e(f"""
    s_lshr_b32 s{sT0}, s{sRB}, 3
    s_lshl_b32 s{sT0}, s{sT0}, 7
    s_add_u32 s{sT0}, s{sT0}, {CNT_OFF}
    v_mov_b32 v{gT[2]}, 0
    s_mov_b32 s{sT2}, 0
    {name}_POLL:
    buffer_load_dword v{gT[3]}, v{gT[2]}, {srd4}, s{sT0} offen sc1
    s_waitcnt vmcnt(0)
    v_readfirstlane_b32 s{sT1}, v{gT[3]}
    s_add_u32 s{sT2}, s{sT2}, 1
    s_nop 2
    s_cmp_ge_u32 s{sT1}, 32
    s_cbranch_scc1 {name}_GO
    s_sleep 1
    s_cmp_lt_u32 s{sT2}, 0x40000
    s_cbranch_scc1 {name}_POLL
    {name}_GO:
    s_mul_i32 s{sT0}, s{sRB}, 40
    s_add_u32 s{sT0}, s{sT0}, s{sKQ}
    s_lshl_b32 s{sT0}, s{sT0}, 10
    s_add_u32 s{sT0}, s{sT0}, {OF_OFF}
    """)
    gstamp()
    for i in range(10):
        c.e(f"buffer_load_dwordx4 {vr(goq+4*i,4)}, v{gOffA}, {srd4}, s{sT0} offen sc1\ns_add_u32 s{sT0}, s{sT0}, 4096")
    waits = [9, 13, 17, 21, 20, 19, 18, 10, 5, 0]
    for i in range(10):
        step(NDOWN + i, f"s_waitcnt vmcnt({waits[i]})", post=(wdma(7 + i) if i < 3 else None), loc=wloc(i))
        if i == 0: gstamp()
    gstamp()
    own = [0,0,0,1,1,1,2,2,3,3]
    c.e("s_nop 7\ns_nop 3\ns_barrier")
    for kq in range(4):
        c.e(f"s_cmp_eq_u32 s{sKQ}, {kq}\ns_cbranch_scc0 {name}_GX{kq}")
        c.e(f"v_add_u32 v{gT[5]}, {GRING}, v{gOffA}\nv_add_u32 v{gT[4]}, {GRING + 30720}, v{gOffA}")
        cnt = 0
        for p in range(10):
            if own[p] == kq: continue
            slot = kq if kq < own[p] else kq - 1
            off = p*6144 + slot*2048
            a_, o = (gT[5], off) if off < 30720 else (gT[4], off - 30720)
            for h in range(2):
                c.e(f"ds_write_b128 v{a_}, {vr(gacc + 8*p + 4*h, 4)} offset:{o + 1024*h}"); cnt += 1
                if cnt % 8 == 0: c.e("s_waitcnt lgkmcnt(4)")
        c.e(f"""
        v_and_b32 v{gT[0]}, 31, v{vL}
        s_lshl_b32 s{sT0}, s{sRB}, 5
        v_add_u32 v{gT[0]}, s{sT0}, v{gT[0]}
        v_mul_u32_u24 v{gT[0]}, 1280, v{gT[0]}
        v_lshrrev_b32 v{gT[2]}, 5, v{vL}
        v_lshl_add_u32 v{gT[0]}, v{gT[2]}, 4, v{gT[0]}
        s_mul_i32 s{sT0}, s{sCG}, 320
        s_waitcnt lgkmcnt(0)
        s_barrier
        """)
        mine = [p for p in range(10) if own[p] == kq]
        for ip, p in enumerate(mine):
            off = p*6144
            a_, o = (gT[5], off) if off < 30720 else (gT[4], off - 30720)
            t = gtmp + 24 + 4*(ip % 2)
            for h in range(2):
                for sl in range(3): c.e(f"ds_read_b128 {vr(gtmp+12*h+4*sl,4)}, v{a_} offset:{o + 2048*sl + 1024*h}")
            for h in range(2):
                for sl in range(3):
                    c.e(f"s_waitcnt lgkmcnt({5 - 3*h - sl})")
                    for r in range(4): c.e(f"v_add_f32 v{gacc+8*p+4*h+r}, v{gacc+8*p+4*h+r}, v{gtmp+12*h+4*sl+r}")
            for q in range(4): c.e(f"v_cvt_pk_bf16_f32 v{t+q}, v{gacc+8*p+2*q}, v{gacc+8*p+2*q+1}")
            c.e(f"""
            s_nop 1
            v_permlane32_swap_b32 v{t}, v{t+2}
            v_permlane32_swap_b32 v{t+1}, v{t+3}
            s_add_u32 s{sT2}, s{sT0}, {32*p}
            s_nop 0
            buffer_store_dwordx4 {vr(t,4)}, v{gT[0]}, s[{srdO}:{srdO+3}], s{sT2} offen
            """)
        c.e(f"s_branch {name}_GEND")
        c.label(f"{name}_GX{kq}")
    c.label(f"{name}_GEND")
    if stamps:
        c.e("s_waitcnt vmcnt(0)")
        gstamp()
        c.e(f"""
        s_lshl_b32 s{sT0}, s2, 2
        s_add_u32 s{sT0}, s{sT0}, s{sKQ}
        s_lshl_b32 s{sT0}, s{sT0}, 5
        s_add_u32 s{sT0}, s{sT0}, {STAMP_OFF + 2*65536}
        v_mov_b32 v{gT[2]}, 0
        """)
        for i in range(gi[0]):
            c.e(f"v_mov_b32 v{gT[3]}, s{gs+2*i}\nbuffer_store_dword v{gT[3]}, v{gT[2]}, {srd4}, s{sT0} offen offset:{4*i}\ns_nop 1")
    c.e("s_endpgm")
    c.label(f"{name}_FIN")
    if stamps: c.e("s_waitcnt vmcnt(0)")
    ST.i = 4; ST.stamp(c); ST.stamp(c, real=True)
    ST.flush(c, sW, srdWS, vT[2], vT[3], sT0)
    c.e(f"""
    {name}_END:
    s_endpgm
    """)
    def S(kh, unsafe=False, fb=False):
        d = {f"{name}_END": False, f"{name}_LOOP_NODMA": (lambda k: k % 3 == 2), f"{name}_LOOPFB_NODMA": (lambda k: k % 3 == 2), f"{name}_NOSWAP": kh == 0, f"{name}_SAFE": not unsafe,
             f"{name}_FALLBACK": (lambda k: k == 0 and fb), f"{name}_FB_NOSWAP": kh == 0}
        return d
    scen = {"kh0": S(0), "kh1": S(1), "fb": S(1, True, True)}
    for k_ in scen: scen[k_][f"{name}_GW"] = False; scen[k_][f"{name}_FIN"] = (k_ == "kh1")
    for kq in range(4):
        d = {f"{name}_END": False, f"{name}_GW": True, f"{name}_GNOFB": kq % 2 == 0, f"{name}_GO": (lambda k: k >= 1), f"{name}_POLL": True}
        for q in range(4): d[f"{name}_GX{q}"] = (q != kq)
        scen[f"g{kq}"] = d
    return c, max(V.hi, Vg.hi), scen, K2_LDS
    return c, V.hi, scen, K2_LDS

if __name__ == "__main__":
    c, nv, scen, lds = gen_k2()
    errs = check(c.lines, scen, "k2")
    print("vgprs", nv, "lds", lds, "lines", len(c.lines))
    for e in errs[:40]: print(e)
```

```python
from common import *
NST = 20
WSLOT = 24576; WRING = 4; UOFF = 12288
XSLOT = 16384; XRING = 3
XBASE = WSLOT*WRING
K1_LDS = XBASE + XSLOT*XRING
def mfma16(d, a, b, cz=None):
    return f"v_mfma_f32_16x16x32_bf16 {vr(d,4)}, {vr(a,4)}, {vr(b,4)}, " + (vr(d,4) if cz is None else str(cz))

def gen_k1(name="k1_kernel", stamps=False, exp=""):
    c = Code()
    SM = " sc1" if "SC1" in exp else (" sc0 sc1" if "SC01" in exp else ("" if "PLAIN" in exp else " nt"))
    V = Alloc(168, 1, "v"); Sg = Alloc(100, 18, "s")
    sAX, sWQ, sGW, sWG, sWU, sWS = 4, 6, 10, 12, 14, 16
    sX = Sg.take(); sJ = Sg.take(); sCG = Sg.take(); sRT = Sg.take(); sW = Sg.take(); sTH = Sg.take(); sCQ = Sg.take()
    sT0 = Sg.take(); sT1 = Sg.take(); sT2 = Sg.take(); sT3 = Sg.take()
    srdX = Sg.take(4, 4); srdW = Sg.take(4, 4); srdWS = Sg.take(4, 4)
    sMw = Sg.take(); sMx = Sg.take(); sKx = Sg.take(); sKw = Sg.take(); sKwStep = Sg.take()
    sBase = Sg.take(); sHS = Sg.take(); sTS = Sg.take(); sScale = Sg.take()
    ST = Stamps(Sg, stamps, 0)
    vL = V.take(); vT = [V.take() for _ in range(8)]
    vOffX = V.take(); vOffW = [V.take(), V.take()]
    vXA = [V.take(), V.take()]; vWA = [V.take() for _ in range(4)]; vWH = [V.take() for _ in range(4)]
    sets = [(V.take(16, 4), V.take(16, 4)) for _ in range(2)]
    acc = V.take(64, 4)
    vE = sets[0][0]
    aE = [V.take() for _ in range(4)]; aO = [V.take() for _ in range(4)]; aC = [V.take() for _ in range(5)]
    D = lambda fb, tb: acc + 16*fb + 4*tb

    c.e(f"""
    s_cmp_ge_u32 s2, 256
    s_cbranch_scc1 {name}_END
    s_load_dwordx4 s[4:7], s[0:1], {KA_AX}
    s_load_dwordx2 s[10:11], s[0:1], {KA_GW}
    s_load_dwordx4 s[12:15], s[0:1], {KA_WG}
    s_load_dwordx2 s[16:17], s[0:1], {KA_WS}
    v_and_b32 v{vL}, 63, v0
    v_lshrrev_b32 v{vT[0]}, 6, v0
    s_and_b32 s{sX}, s2, 7
    s_lshr_b32 s{sJ}, s2, 3
    v_readfirstlane_b32 s{sW}, v{vT[0]}
    s_and_b32 s{sT0}, s{sJ}, 1
    s_lshr_b32 s{sRT}, s{sJ}, 1
    """)
    if "OLDMAP" in exp:
        c.e(f"s_lshl_b32 s{sCG}, s{sX}, 1\ns_add_u32 s{sCG}, s{sCG}, s{sT0}")
    else:
        c.e(f"""
        s_mul_i32 s{sT1}, s{sT0}, 6
        s_add_u32 s{sT1}, s{sT1}, s{sX}
        s_lshl_b32 s{sCG}, s{sX}, 1
        s_add_u32 s{sCG}, s{sCG}, s{sT0}
        s_cmp_lt_u32 s{sX}, 6
        s_cselect_b32 s{sCG}, s{sT1}, s{sCG}
        """)
    ST.stamp(c, real=True); ST.stamp(c)
    c.e(f"""
    v_lshrrev_b32 v{vT[1]}, 3, v{vL}
    v_lshrrev_b32 v{vT[2]}, 4, v{vL}
    s_lshl_b32 s{sT0}, s{sW}, 2
    v_add_u32 v{vT[2]}, s{sT0}, v{vT[2]}
    v_xor_b32 v{vT[2]}, v{vT[2]}, v{vL}
    v_and_b32 v{vT[2]}, 7, v{vT[2]}
    s_lshl_b32 s{sT0}, s{sRT}, 7
    s_lshl_b32 s{sT1}, s{sW}, 3
    s_add_u32 s{sT0}, s{sT0}, s{sT1}
    v_add_u32 v{vT[1]}, s{sT0}, v{vT[1]}
    v_mul_u32_u24 v{vT[1]}, 1280, v{vT[1]}
    v_lshl_add_u32 v{vOffX}, v{vT[2]}, 4, v{vT[1]}
    s_lshl_b32 s{sMx}, s{sW}, 10
    s_add_u32 s{sMx}, s{sMx}, {XBASE}
    s_and_b32 s{sTH}, s{sW}, 1
    s_lshr_b32 s{sCQ}, s{sW}, 1
    s_cmp_eq_u32 s{sCG}, 15
    s_cbranch_scc1 {name}_GATE
    s_lshl_b32 s{sMw}, s{sW}, 11
    s_cmp_lt_u32 s{sCG}, 6
    s_cbranch_scc0 {name}_GLU
    """)
    def woff(i, nch, magic, rs):
        return f"""
        v_add_u32 v{vT[1]}, s{sT0}, v{vL}
        v_mul_u32_u24 v{vT[2]}, {magic}, v{vT[1]}
        v_lshrrev_b32 v{vT[2]}, 16, v{vT[2]}
        v_mul_u32_u24 v{vT[3]}, {nch}, v{vT[2]}
        v_sub_u32 v{vT[3]}, v{vT[1]}, v{vT[3]}
        v_lshrrev_b32 v{vT[4]}, 1, v{vT[2]}
        v_and_b32 v{vT[4]}, 4, v{vT[4]}
        v_and_or_b32 v{vT[4]}, v{vT[2]}, 2, v{vT[4]}
        v_xor_b32 v{vT[3]}, v{vT[3]}, v{vT[4]}
        v_mul_u32_u24 v{vT[2]}, {rs}, v{vT[2]}
        v_lshl_add_u32 v{vT[2]}, v{vT[3]}, 4, v{vT[2]}
        v_add_u32 v{vOffW[i]}, s{sT3}, v{vT[2]}
        s_add_u32 s{sT0}, s{sT0}, 64
        """
    c.e(f"s_lshl_b32 s{sT0}, s{sW}, 7\ns_mul_i32 s{sT3}, s{sCG}, 640")
    c.e(woff(0, 40, 1639, 3840)); c.e(woff(1, 40, 1639, 3840))
    c.e(f"s_mov_b32 s{sKwStep}, {32*3840}\ns_waitcnt lgkmcnt(0)")
    srd(c, srdW, sWQ, 640*3840)
    c.e(f"s_branch {name}_DEC")
    c.label(f"{name}_GLU")
    c.e(f"""
    s_cmp_lt_u32 s{sW}, 6
    s_cselect_b32 s{sT1}, 0, 6
    s_sub_u32 s{sT0}, s{sW}, s{sT1}
    s_lshl_b32 s{sT0}, s{sT0}, 7
    s_sub_u32 s{sT3}, s{sCG}, 6
    s_mul_i32 s{sT3}, s{sT3}, 384
    """)
    c.e(woff(0, 24, 2731, 3456)); c.e(woff(1, 24, 2731, 3456))
    c.e(f"""
    s_mov_b32 s{sKwStep}, {32*3456}
    s_waitcnt lgkmcnt(0)
    s_cmp_lt_u32 s{sW}, 6
    s_cselect_b32 s{srdW}, s{sWG}, s{sWU}
    s_cselect_b32 s{srdW+1}, s{sWG+1}, s{sWU+1}
    s_and_b32 s{srdW+1}, s{srdW+1}, 0xffff
    s_mov_b32 s{srdW+2}, {640*3456}
    s_mov_b32 s{srdW+3}, 0x20000
    """)
    c.label(f"{name}_DEC")
    srd(c, srdX, sAX, 2048*1280)
    c.e(f"s_mov_b32 s{sKw}, 0")
    def qkv_params():
        c.e(f"""
        s_cmp_lt_u32 s{sCG}, 2
        {csel(sHS, QF_HS, KV_HS)}
        {csel(sTS, QF_TS, KV_TS)}
        {csel(sBase, QF_OFF, KV_OFF)}
        {csel(sScale, hexf(LOG2E*20**-0.5), hexf(1.0))}
        s_cmp_lt_u32 s{sCG}, 4
        s_cselect_b32 s{sBase}, s{sBase}, {KV_OFF + 1280}
        """)
    def qk_addr():
        c.e(f"""
        v_and_b32 v{vT[0]}, 15, v{vL}
        v_lshrrev_b32 v{vT[1]}, 4, v{vL}
        s_lshl_b32 s{sT0}, s{sCQ}, 4
        v_add_u32 v{vT[1]}, s{sT0}, v{vT[1]}
        s_mul_i32 s{sT1}, s{sTH}, 2560
        """)
        for fb in range(4):
            c.e(f"""
            v_add_u32 v{vT[2]}, {4*fb}, v{vT[1]}
            v_mul_u32_u24 v{vT[3]}, 13108, v{vT[2]}
            v_lshrrev_b32 v{vT[3]}, 16, v{vT[3]}
            v_mul_u32_u24 v{vT[4]}, 5, v{vT[3]}
            v_sub_u32 v{vT[4]}, v{vT[2]}, v{vT[4]}
            v_mul_u32_u24 v{vT[3]}, 5120, v{vT[3]}
            v_add_u32 v{vT[3]}, s{sT1}, v{vT[3]}
            v_lshrrev_b32 v{vT[5]}, 1, v{vT[4]}
            v_lshlrev_b32 v{vT[5]}, 9, v{vT[5]}
            v_and_b32 v{vT[6]}, 1, v{vT[4]}
            v_lshl_add_u32 v{vT[5]}, v{vT[6]}, 3, v{vT[5]}
            v_lshl_add_u32 v{vT[5]}, v{vT[0]}, 4, v{vT[5]}
            v_lshlrev_b32 v{vT[6]}, 3, v{vT[0]}
            v_add_u32 v{vT[6]}, 1024, v{vT[6]}
            v_cmp_eq_u32 vcc, 4, v{vT[4]}
            v_mov_b32 v{vT[7]}, 256
            v_mov_b32 v{vT[2]}, 128
            v_cndmask_b32 v{vT[5]}, v{vT[5]}, v{vT[6]}, vcc
            v_cndmask_b32 v{vT[7]}, v{vT[7]}, v{vT[2]}, vcc
            v_add_u32 v{aE[fb]}, v{vT[3]}, v{vT[5]}
            v_add_u32 v{aO[fb]}, v{aE[fb]}, v{vT[7]}
            """)

    def v_addr():
        c.e(f"""
        v_and_b32 v{vT[0]}, 15, v{vL}
        v_lshrrev_b32 v{vT[1]}, 4, v{vL}
        s_lshl_b32 s{sT0}, s{sCQ}, 6
        v_add_u32 v{vT[0]}, s{sT0}, v{vT[0]}
        v_and_b32 v{vT[2]}, 1, v{vT[1]}
        v_mul_u32_u24 v{vT[2]}, 320, v{vT[2]}
        v_lshrrev_b32 v{vT[1]}, 1, v{vT[1]}
        v_lshl_add_u32 v{vT[1]}, v{vT[1]}, 3, v{vT[2]}
        s_mul_i32 s{sT1}, s{sTH}, 2560
        v_add_u32 v{vT[1]}, s{sT1}, v{vT[1]}
        """)
        for fb in range(4):
            c.e(f"""
            v_add_u32 v{vT[2]}, {16*fb}, v{vT[0]}
            v_mul_u32_u24 v{vT[3]}, 3277, v{vT[2]}
            v_lshrrev_b32 v{vT[3]}, 16, v{vT[3]}
            v_mul_u32_u24 v{vT[4]}, 20, v{vT[3]}
            v_sub_u32 v{vT[4]}, v{vT[2]}, v{vT[4]}
            v_mul_u32_u24 v{vT[3]}, 5120, v{vT[3]}
            v_lshl_add_u32 v{vT[3]}, v{vT[4]}, 4, v{vT[3]}
            v_add_u32 v{aE[fb]}, v{vT[3]}, v{vT[1]}
            """)

    def c_addr():
        for k in range(5):
            c.e(f"""
            v_add_u32 v{vT[1]}, {64*k}, v{vL}
            v_mul_u32_u24 v{vT[2]}, 820, v{vT[1]}
            v_lshrrev_b32 v{vT[2]}, 16, v{vT[2]}
            v_mul_u32_u24 v{vT[3]}, 80, v{vT[2]}
            v_sub_u32 v{vT[3]}, v{vT[1]}, v{vT[3]}
            v_mul_lo_u32 v{vT[2]}, v{vT[2]}, s{sTS}
            v_lshl_add_u32 v{aC[k]}, v{vT[3]}, 4, v{vT[2]}
            """)

    def dma_w(i, st):
        return [f"s_add_u32 m0, s{sMw}, {(st % WRING)*WSLOT + 1024*i}", "s_nop 0", f"buffer_load_dwordx4 v{vOffW[i]}, s[{srdW}:{srdW+3}], s{sKw} offen lds"]
    def dma_x(u):
        m, hf = u >> 1, u & 1
        return [f"s_add_u32 m0, s{sMx}, {(m % XRING)*XSLOT + hf*8192}", f"s_mov_b32 s{sKx}, {m*128 + hf*64*1280}", f"buffer_load_dwordx4 v{vOffX}, s[{srdX}:{srdX+3}], s{sKx} offen lds"]
    advw = [f"s_add_u32 s{sKw}, s{sKw}, s{sKwStep}"]
    c.e(f"""
    s_cmp_lt_u32 s{sCG}, 6
    s_cselect_b32 s{sT0}, s{sW}, 0
    s_cmp_ge_u32 s{sT0}, 10
    s_cbranch_scc1 {name}_IDLE
    s_cmp_lt_u32 s{sW}, 8
    s_cbranch_scc0 {name}_PRO_NX
    """)
    c.e("\n".join(dma_x(0) + dma_w(0, 0) + dma_w(1, 0) + advw + dma_x(1)))
    c.e("\n".join(dma_w(0, 1) + dma_w(1, 1) + advw + dma_x(2) + dma_w(0, 2) + dma_w(1, 2) + advw + dma_x(3)))
    c.e(f"s_branch {name}_PRO_D")
    c.label(f"{name}_PRO_NX")
    for st in range(3): c.e("\n".join(dma_w(0, st) + dma_w(1, st) + advw))
    c.label(f"{name}_PRO_D")
    c.e(f"""
    v_and_b32 v{vT[1]}, 15, v{vL}
    v_lshrrev_b32 v{vT[2]}, 4, v{vL}
    v_lshrrev_b32 v{vT[3]}, 1, v{vT[1]}
    v_xor_b32 v{vT[3]}, v{vT[3]}, v{vT[2]}
    v_lshlrev_b32 v{vT[3]}, 4, v{vT[3]}
    v_lshl_add_u32 v{vT[3]}, v{vT[1]}, 7, v{vT[3]}
    s_lshl_b32 s{sT0}, s{sTH}, 13
    s_add_u32 s{sT0}, s{sT0}, {XBASE}
    v_add_u32 v{vXA[0]}, s{sT0}, v{vT[3]}
    v_xor_b32 v{vXA[1]}, 64, v{vXA[0]}
    v_lshrrev_b32 v{vT[3]}, 2, v{vT[1]}
    v_lshl_add_u32 v{vT[4]}, v{vT[2]}, 3, v{vT[3]}
    v_lshrrev_b32 v{vT[3]}, 1, v{vT[3]}
    v_and_b32 v{vT[5]}, 1, v{vT[2]}
    v_lshl_or_b32 v{vT[3]}, v{vT[5]}, 1, v{vT[3]}
    v_and_b32 v{vT[5]}, 3, v{vT[1]}
    v_lshlrev_b32 v{vT[5]}, 3, v{vT[5]}
    s_cmp_lt_u32 s{sCG}, 6
    s_cbranch_scc0 {name}_RA_GLU
    v_mul_u32_u24 v{vT[4]}, 640, v{vT[4]}
    v_add_u32 v{vT[4]}, v{vT[4]}, v{vT[5]}
    s_lshl_b32 s{sT0}, s{sCQ}, 7
    v_add_u32 v{vT[4]}, s{sT0}, v{vT[4]}
    """)
    for fb in range(4):
        c.e(f"v_xor_b32 v{vT[6]}, {fb}, v{vT[3]}\nv_lshl_add_u32 v{vWA[fb]}, v{vT[6]}, 5, v{vT[4]}")
    c.e(f"s_branch {name}_RA")
    c.label(f"{name}_RA_GLU")
    c.e(f"""
    v_mul_u32_u24 v{vT[4]}, 384, v{vT[4]}
    v_add_u32 v{vT[4]}, v{vT[4]}, v{vT[5]}
    """)
    for f in range(2):
        c.e(f"""
        s_lshl_b32 s{sT0}, s{sCQ}, 1
        s_add_u32 s{sT0}, s{sT0}, {f}
        s_and_b32 s{sT1}, s{sT0}, 3
        s_andn2_b32 s{sT0}, s{sT0}, 3
        s_lshl_b32 s{sT0}, s{sT0}, 5
        v_xor_b32 v{vT[6]}, s{sT1}, v{vT[3]}
        v_lshl_add_u32 v{vT[6]}, v{vT[6]}, 5, v{vT[4]}
        v_add_u32 v{vWA[f]}, s{sT0}, v{vT[6]}
        v_add_u32 v{vWA[2+f]}, {UOFF}, v{vWA[f]}
        """)
    c.label(f"{name}_RA")
    for fb in range(4): c.e(f"v_add_u32 v{vWH[fb]}, {2*WSLOT}, v{vWA[fb]}")
    srd(c, srdWS, sWS, WS_BYTES)
    for r_ in aE + aO + aC: c.e(f"v_mov_b32 v{r_}, 0")
    c.e(f"s_cmp_lt_u32 s{sCG}, 6\ns_cbranch_scc0 {name}_NOEA")
    qkv_params(); c_addr()
    c.e(f"s_cmp_lt_u32 s{sCG}, 4\ns_cbranch_scc0 {name}_EAV")
    qk_addr()
    c.e(f"s_branch {name}_NOEA")
    c.label(f"{name}_EAV")
    v_addr()
    c.label(f"{name}_NOEA")
    ST.stamp(c)
    c.e(f"""
    s_cmp_lt_u32 s{sW}, 8
    s_cselect_b32 s{sT1}, 0, 1
    s_cmp_lt_u32 s{sCG}, 4
    s_cselect_b32 s{sT0}, 0, 2
    s_cmp_lt_u32 s{sCG}, 6
    s_cselect_b32 s{sT0}, s{sT0}, 4
    s_add_u32 s{sT0}, s{sT0}, s{sT1}
    """)
    variants = [("QK", 1), ("QK", 0), ("V", 1), ("V", 0), ("GLU", 1), ("GLU", 0)]
    for i in range(1, 6): c.e(f"s_cmp_eq_u32 s{sT0}, {i}\ns_cbranch_scc1 {name}_VAR{i}")
    def reads(st, rs):
        xs, ws_ = sets[st % 2]; p = st & 1; xslot = (st >> 1) % XRING; wsl = st % WRING
        base = vWA if wsl < 2 else vWH; so = (wsl & 1)*WSLOT
        L = []
        for i in range(4):
            L.append(f"ds_read_b64_tr_b16 {vr(ws_+4*i,2)}, v{base[i]} offset:{so}")
            L.append(f"ds_read_b64_tr_b16 {vr(ws_+4*i+2,2)}, v{base[i]} offset:{so + 4*rs}")
            L.append(f"ds_read_b128 {vr(xs+4*i,4)}, v{vXA[p]} offset:{xslot*XSLOT + 2048*i}")
        return L
    def mfmas(st, role):
        xs, ws_ = sets[st % 2]; L = []
        for fb in range(4):
            for tb in range(4):
                cz = 0 if st == 0 else None
                L.append(mfma16(D(fb, tb), ws_+4*fb, xs+4*tb, cz) if role != "V" else mfma16(D(fb, tb), xs+4*tb, ws_+4*fb, cz))
        return L
    for vi, (role, nx) in enumerate(variants):
        if vi: c.label(f"{name}_VAR{vi}")
        rs = 384 if role == "GLU" else 640
        def cnt(x): return ((2 if x + 3 < NST else 0) + (nx if x + 4 < NST else 0))
        for st in range(NST + 1):
            rd = reads(st, rs) if st < NST else []
            if st == 0:
                c.e(f"s_waitcnt vmcnt({cnt(-2) + cnt(-1)})\ns_barrier")
                c.e("\n".join(rd))
                d = []
                if True:
                    c.e("\n".join(dma_w(0, 3) + dma_w(1, 3) + advw + (dma_x(4) if nx else [])))
                continue
            m = mfmas(st - 1, role)
            g = {}
            pre = [f"s_waitcnt vmcnt({cnt(st-2) + cnt(st-1)})", "s_barrier"] if st < NST else []
            g[0] = pre + rd[0:2]
            k = 2
            for i in range(1, 11):
                g[i] = rd[k:k+1]; k += 1
            if st < NST:
                if st + 3 < NST:
                    g[11] = dma_w(0, st+3); g[13] = dma_w(1, st+3) + advw
                if nx and st + 4 < NST: g[15] = dma_x(st+4)
            c.e("s_waitcnt lgkmcnt(0)")
            out = []
            for i, x in enumerate(m):
                out.append(x); out += g.get(i, [])
            c.e("\n".join(out))
            if stamps and st in (3, 15):
                r = ST.s + 2*(5 if st == 3 else 6); c.e(f"s_memtime s[{r}:{r+1}]")
        c.e(f"s_branch {name}_EPI_{role}")
    c.label(f"{name}_EPI_GLU")
    ST.i = 3; ST.stamp(c, wait=True)
    c.e(f"""
    s_lshl_b32 s{sT0}, s{sRT}, 2
    s_lshl_b32 s{sT1}, s{sTH}, 1
    s_add_u32 s{sT0}, s{sT0}, s{sT1}
    s_mul_i32 s{sBase}, s{sT0}, 108
    s_sub_u32 s{sT1}, s{sCG}, 6
    s_mul_i32 s{sT1}, s{sT1}, 12
    s_add_u32 s{sBase}, s{sBase}, s{sT1}
    s_lshl_b32 s{sT1}, s{sCQ}, 1
    s_add_u32 s{sBase}, s{sBase}, s{sT1}
    s_lshl_b32 s{sBase}, s{sBase}, 10
    s_add_u32 s{sBase}, s{sBase}, {HF_OFF}
    v_and_b32 v{vT[1]}, 15, v{vL}
    v_lshrrev_b32 v{vT[2]}, 4, v{vL}
    v_and_b32 v{vT[3]}, 1, v{vT[2]}
    v_lshlrev_b32 v{vT[3]}, 9, v{vT[3]}
    v_lshl_add_u32 v{vT[3]}, v{vT[1]}, 4, v{vT[3]}
    v_lshrrev_b32 v{vT[2]}, 1, v{vT[2]}
    v_lshl_add_u32 v{vT[0]}, v{vT[2]}, 3, v{vT[3]}
    s_mov_b32 s{sT1}, {hexf(-LOG2E)}
    s_add_u32 s{sT2}, s{sBase}, {108*1024}
    """)
    for tb in range(4):
        for f in range(2):
            g_, u_ = D(f, tb), D(2+f, tb)
            for r in range(4): c.e(f"v_mul_f32 v{g_+r}, s{sT1}, v{g_+r}")
        for f in range(2):
            for r in range(4): c.e(f"v_exp_f32 v{D(f,tb)+r}, v{D(f,tb)+r}")
        for f in range(2):
            for r in range(4): c.e(f"v_add_f32 v{D(f,tb)+r}, 1.0, v{D(f,tb)+r}")
        for f in range(2):
            for r in range(4): c.e(f"v_rcp_f32 v{D(f,tb)+r}, v{D(f,tb)+r}")
        for f in range(2):
            for r in range(4): c.e(f"v_mul_f32 v{D(f,tb)+r}, v{D(f,tb)+r}, v{D(2+f,tb)+r}")
        e = vE + 4*(tb % 4)
        for f in range(2):
            c.e(f"v_cvt_pk_bf16_f32 v{e+2*f}, v{D(f,tb)}, v{D(f,tb)+1}\nv_cvt_pk_bf16_f32 v{e+2*f+1}, v{D(f,tb)+2}, v{D(f,tb)+3}")
        for f in range(2):
            c.e(f"buffer_store_dwordx2 {vr(e+2*f,2)}, v{vT[0]}, s[{srdWS}:{srdWS+3}], s{sBase if tb < 2 else sT2} offen offset:{1024*f + 256*(tb & 1)}{SM}")
    c.e(f"s_branch {name}_FIN")
    c.label(f"{name}_EPI_QK")
    ST.i = 3; ST.stamp(c, wait=True)

    c.e("s_barrier")
    t2 = vE + 8
    c.e(f"s_cmp_lt_u32 s{sCG}, 2\ns_cbranch_scc0 {name}_NOSCL")
    for r in range(64): c.e(f"v_mul_f32 v{acc+r}, s{sScale}, v{acc+r}")
    c.label(f"{name}_NOSCL")
    for fb in range(4):
        for tb in range(4):
            d = D(fb, tb)
            e = t2 + 2*((4*fb + tb) % 8)
            c.e(f"v_cvt_pk_bf16_f32 v{e}, v{d}, v{d+1}\nv_cvt_pk_bf16_f32 v{e+1}, v{d+2}, v{d+3}")
            c.e(f"ds_write_b64 v{aE[fb] if tb % 2 == 0 else aO[fb]}, {vr(e,2)} offset:{1280*(tb >> 1)}")
        c.e("s_waitcnt lgkmcnt(4)")
    c.e(f"s_branch {name}_COPY")
    c.label(f"{name}_EPI_V")
    ST.i = 3; ST.stamp(c, wait=True)

    c.e("s_barrier")
    for fb in range(4):
        for tb in range(4):
            d = D(fb, tb); e = t2 + 2*((4*fb + tb) % 8)
            c.e(f"v_cvt_pk_bf16_f32 v{e}, v{d}, v{d+1}\nv_cvt_pk_bf16_f32 v{e+1}, v{d+2}, v{d+3}")
            c.e(f"ds_write_b64 v{aE[fb]}, {vr(e,2)} offset:{1280*(tb >> 1) + 640*(tb & 1)}")
        c.e("s_waitcnt lgkmcnt(4)")
    c.e(f"s_branch {name}_COPY")
    c.label(f"{name}_IDLE")
    qkv_params(); c_addr()
    c.e(f"s_mov_b32 s{sT0}, {NST}\n{name}_IDL:\ns_barrier\ns_sub_u32 s{sT0}, s{sT0}, 1\ns_cmp_lg_u32 s{sT0}, 0\ns_cbranch_scc1 {name}_IDL")
    c.e("s_waitcnt lgkmcnt(0)")
    srd(c, srdWS, sWS, WS_BYTES)
    c.e("s_barrier")
    c.label(f"{name}_COPY")
    c.e(f"""
    s_lshl_b32 s{sT0}, s{sRT}, 2
    s_mul_i32 s{sT0}, s{sT0}, s{sTS}
    s_add_u32 s{sBase}, s{sBase}, s{sT0}
    s_and_b32 s{sT0}, s{sCG}, 1
    s_lshl_b32 s{sT0}, s{sT0}, 4
    s_add_u32 s{sT0}, s{sT0}, s{sW}
    s_mul_i32 s{sT0}, s{sT0}, s{sHS}
    s_add_u32 s{sBase}, s{sBase}, s{sT0}
    s_mul_i32 s{sT1}, s{sW}, 5120
    v_lshl_add_u32 v{vT[0]}, v{vL}, 4, s{sT1}
    """)
    c.e("s_waitcnt lgkmcnt(0)\ns_barrier")
    c.label(f"{name}_CPL")
    for k in range(5): c.e(f"ds_read_b128 {vr(acc+4*k,4)}, v{vT[0]} offset:{1024*k}")
    for k in range(5):
        c.e(f"s_waitcnt lgkmcnt({4-k})")
        c.e(f"buffer_store_dwordx4 {vr(acc+4*k,4)}, v{aC[k]}, s[{srdWS}:{srdWS+3}], s{sBase} offen{SM}")
    c.e(f"""
    s_add_u32 s{sW}, s{sW}, 12
    s_cmp_lt_u32 s{sW}, 16
    s_cbranch_scc0 {name}_CPD
    s_mul_i32 s{sT0}, s{sHS}, 12
    s_add_u32 s{sBase}, s{sBase}, s{sT0}
    v_add_u32 v{vT[0]}, {12*5120}, v{vT[0]}
    s_branch {name}_CPL
    {name}_CPD:
    s_sub_u32 s{sW}, s{sW}, 12
    s_cmp_ge_u32 s{sW}, 12
    s_cselect_b32 s{sT0}, 12, 0
    s_sub_u32 s{sW}, s{sW}, s{sT0}
    s_branch {name}_FIN
    """)
    c.label(f"{name}_GATE")
    c.e(f"s_cmp_ge_u32 s{sW}, 8\ns_cbranch_scc1 {name}_END\ns_waitcnt lgkmcnt(0)")
    srd(c, srdX, sAX, 2048*1280); srd(c, srdW, sGW, 1280); srd(c, srdWS, sWS, WS_BYTES)
    c.e(f"""
    s_or_b32 s{sT0}, s{sRT}, s{sW}
    s_cmp_eq_u32 s{sT0}, 0
    s_cbranch_scc0 {name}_NOZ
    v_lshlrev_b32 v{vT[5]}, 7, v{vL}
    v_mov_b32 v{vT[4]}, 0
    s_mov_b32 s{sT0}, {CNT_OFF}
    s_mov_b64 exec, 0xff
    buffer_store_dword v{vT[4]}, v{vT[5]}, s[{srdWS}:{srdWS+3}], s{sT0} offen
    s_mov_b64 exec, -1
    {name}_NOZ:
    """)
    vGw = sets[0][0]; vGx = sets[0][0] + 8
    c.e(f"""
    v_lshlrev_b32 v{vT[5]}, 2, v{vL}
    s_lshl_b32 s{sT0}, s{sRT}, 7
    s_lshl_b32 s{sT1}, s{sW}, 4
    s_add_u32 s{sBase}, s{sT0}, s{sT1}
    s_mul_i32 s{sT1}, s{sBase}, 1280
    """)
    for i in range(5): c.e(f"buffer_load_dword v{vGw+i}, v{vT[5]}, s[{srdW}:{srdW+3}], 0 offen offset:{256*i}")
    NB_ = 8
    for bt in range(2):
        for rr in range(NB_):
            for i in range(5): c.e(f"buffer_load_dword v{vGx+5*rr+i}, v{vT[5]}, s[{srdX}:{srdX+3}], s{sT1} offen offset:{256*i}")
            c.e(f"s_add_u32 s{sT1}, s{sT1}, 1280")
        for rr in range(NB_):
            c.e(f"s_waitcnt vmcnt({5*(NB_-1-rr) + (rr if True else 0)})")
            for i in range(5):
                c.e(f"""
                v_lshlrev_b32 v{vT[0]}, 16, v{vGx+5*rr+i}
                v_and_b32 v{vT[1]}, 0xffff0000, v{vGx+5*rr+i}
                v_lshlrev_b32 v{vT[2]}, 16, v{vGw+i}
                v_and_b32 v{vT[3]}, 0xffff0000, v{vGw+i}
                v_mul_f32 v{vT[0]}, v{vT[0]}, v{vT[2]}
                v_mul_f32 v{vT[1]}, v{vT[1]}, v{vT[3]}
                v_cvt_pk_bf16_f32 v{vT[0]}, v{vT[0]}, v{vT[1]}
                v_lshlrev_b32 v{vT[2]}, 16, v{vT[0]}
                v_and_b32 v{vT[3]}, 0xffff0000, v{vT[0]}
                """)
                if i == 0: c.e(f"v_add_f32 v{vT[4]}, v{vT[2]}, v{vT[3]}")
                else: c.e(f"v_add_f32 v{vT[2]}, v{vT[2]}, v{vT[3]}\nv_add_f32 v{vT[4]}, v{vT[4]}, v{vT[2]}")
            for sh in ("row_shr:1", "row_shr:2", "row_shr:4", "row_shr:8"):
                c.e(f"s_nop 1\nv_add_f32_dpp v{vT[4]}, v{vT[4]}, v{vT[4]} {sh} row_mask:0xf bank_mask:0xf bound_ctrl:0")
            c.e(f"""
            s_nop 1
            v_readlane_b32 s{sT0}, v{vT[4]}, 15
            v_readlane_b32 s{sT2}, v{vT[4]}, 31
            v_readlane_b32 s{sT3}, v{vT[4]}, 47
            v_readlane_b32 s{sHS}, v{vT[4]}, 63
            s_nop 1
            v_mov_b32 v{vT[0]}, s{sT0}
            v_add_f32 v{vT[0]}, s{sT2}, v{vT[0]}
            v_add_f32 v{vT[0]}, s{sT3}, v{vT[0]}
            v_add_f32 v{vT[0]}, s{sHS}, v{vT[0]}
            v_cvt_pk_bf16_f32 v{vT[0]}, v{vT[0]}, v{vT[0]}
            v_lshlrev_b32 v{vT[0]}, 16, v{vT[0]}
            v_mul_f32 v{vT[0]}, {hexf(-LOG2E)}, v{vT[0]}
            v_exp_f32 v{vT[0]}, v{vT[0]}
            s_nop 0
            v_add_f32 v{vT[0]}, 1.0, v{vT[0]}
            v_rcp_f32 v{vT[0]}, v{vT[0]}
            s_nop 0
            v_cvt_pk_bf16_f32 v{vT[0]}, v{vT[0]}, v{vT[0]}
            v_lshlrev_b32 v{vT[6]}, 16, v{vT[0]}
            v_sub_f32 v{vT[1]}, 1.0, v{vT[6]}
            v_cvt_pk_bf16_f32 v{vT[1]}, v{vT[1]}, v{vT[1]}
            v_lshlrev_b32 v{vT[7]}, 16, v{vT[1]}
            s_lshl_b32 s{sT0}, s{sBase}, 3
            s_add_u32 s{sT0}, s{sT0}, {G_OFF}
            v_mov_b32 v{vT[2]}, 0
            s_mov_b64 exec, 1
            buffer_store_dwordx2 {vr(vT[6],2)}, v{vT[2]}, s[{srdWS}:{srdWS+3}], s{sT0} offen
            s_mov_b64 exec, -1
            s_add_u32 s{sBase}, s{sBase}, 1
            """)
    if stamps:
        ST.i = 2; ST.stamp(c); ST.stamp(c)
    c.label(f"{name}_FIN")
    if stamps: c.e("s_waitcnt vmcnt(0)")
    ST.i = 4; ST.stamp(c)
    if stamps:
        c.e(f"s_memrealtime s[{ST.s+14}:{ST.s+15}]"); ST.i = 8
        c.e(f"s_cmp_ge_u32 s{sW}, 8\ns_cbranch_scc1 {name}_END")
    ST.flush(c, sW, srdWS, vT[2], vT[3], sT0)
    c.e(f"""
    {name}_END:
    s_endpgm
    """)
    def S(role, vi=0, idle=False):
        d = {f"{name}_END": False, f"{name}_GATE": role == "gate", f"{name}_GLU": role == "glu", f"{name}_RA_GLU": role == "glu",
             f"{name}_IDLE": idle, f"{name}_NOEA": role == "glu", f"{name}_EAV": role == "v", f"{name}_NOSCL": vi == 1, f"{name}_NOZ": False, f"{name}_PRO_NX": vi % 2 == 1, f"{name}_CPD": (lambda k: k >= 1)}
        for i in range(1, 6): d[f"{name}_VAR{i}"] = (i == vi)
        return d
    scen = {"qk1": S("qk", 0), "qk0": S("qk", 1), "v1": S("v", 2), "v0": S("v", 3), "glu1": S("glu", 4), "glu0": S("glu", 5), "gate": S("gate"), "idle": S("qk", 1, True)}
    return c, V.hi, scen, K1_LDS

if __name__ == "__main__":
    c, nv, scen, lds = gen_k1()
    errs = check(c.lines, scen, "k1")
    print("vgprs", nv, "lds", lds, "lines", len(c.lines))
    for e in errs[:40]: print(e)
```

```python
import sys
from build import *
from k1b import gen_k1
from k2 import gen_k2
SLOT = 40*1024*1024
def base():
    ks = []
    c, nv, scen, lds = gen_k1("k1_kernel"); ks.append(("k1_kernel", c, nv, scen, lds, 256, 768))
    c, nv, scen, lds = gen_k2("k2_kernel"); ks.append(("k2_kernel", c, nv, scen, lds, 256, 768))
    return ks
def with_start_stamp(k, nwg):
    name, c, nv, scen, lds, g, b = k
    c2 = Code()
    c2.e(f"""
    s_cmp_lt_u32 s2, {nwg}
    s_cbranch_scc0 {name}_NOST
    s_memrealtime s[90:91]
    s_load_dwordx2 s[92:93], s[0:1], {KA_WS}
    s_waitcnt lgkmcnt(0)
    s_and_b32 s93, s93, 0xffff
    s_mov_b32 s94, {WS_BYTES}
    s_mov_b32 s95, 0x20000
    s_lshl_b32 s96, s2, 2
    s_add_u32 s96, s96, {SLOT}
    v_mov_b32 v166, s90
    v_mov_b32 v167, 0
    s_nop 4
    buffer_store_dword v166, v167, s[92:95], s96 offen
    {name}_NOST:
    """)
    c2.lines += c.lines
    sc = {k_: dict(v, **{f"{name}_NOST": False}) for k_, v in scen.items()}
    return (name, c2, 168, sc, lds, g, b)
def spin(factor, name):
    c = Code()
    c.e(f"""
    s_cmp_eq_u32 s2, 0
    s_cbranch_scc0 {name}_END
    s_load_dwordx2 s[4:5], s[0:1], {KA_WS}
    s_waitcnt lgkmcnt(0)
    s_and_b32 s5, s5, 0xffff
    s_mov_b32 s6, {WS_BYTES}
    s_mov_b32 s7, 0x20000
    s_mov_b32 s16, {SLOT}
    v_lshlrev_b32 v1, 4, v0
    buffer_load_dwordx4 v[4:7], v1, s[4:7], s16 offen
    s_waitcnt vmcnt(0)
    v_min_u32 v2, v4, v5
    v_min_u32 v2, v2, v6
    v_min_u32 v2, v2, v7
    v_max_u32 v3, v4, v5
    v_max_u32 v3, v3, v6
    v_max_u32 v3, v3, v7
    """)
    c.e("s_nop 1\nv_readlane_b32 s10, v2, 0\nv_readlane_b32 s11, v3, 0")
    for l in range(1, 64):
        c.e(f"v_readlane_b32 s12, v2, {l}\nv_readlane_b32 s13, v3, {l}\ns_nop 3\ns_min_u32 s10, s10, s12\ns_max_u32 s11, s11, s13")
    c.e(f"""
    s_sub_u32 s10, s11, s10
    s_min_u32 s10, s10, 3000
    s_mul_i32 s10, s10, {factor}
    s_memrealtime s[8:9]
    s_waitcnt lgkmcnt(0)
    {name}_L:
    s_memrealtime s[12:13]
    s_waitcnt lgkmcnt(0)
    s_sub_u32 s14, s12, s8
    s_cmp_lt_u32 s14, s10
    s_cbranch_scc1 {name}_L
    {name}_END:
    s_endpgm
    """)
    return (name, c, 16, {"a": {f"{name}_END": False}}, 0, 1, 64)
b = base()
b0 = [with_start_stamp(b[0], 256), b[1]]
build(b0 + [spin(0, "spin0_kernel")], "G.s")
build(b0 + [spin(10, "spin1_kernel")], "H.s")
b1 = [b[0], with_start_stamp(b[1], 256)]
build(b1 + [spin(10, "spin1_kernel")], "I.s")
for f in "GHI": assemble_dev(f"var/{f}.s")
```

```python
from common import *
NST = 20
WSLOT = 24576; WRING = 4; UOFF = 12288
XSLOT = 16384; XRING = 3
XBASE = WSLOT*WRING
K1_LDS = XBASE + XSLOT*XRING
def mfma16(d, a, b, cz=None):
    return f"v_mfma_f32_16x16x32_bf16 {vr(d,4)}, {vr(a,4)}, {vr(b,4)}, " + (vr(d,4) if cz is None else str(cz))

def gen_k1(name="k1_kernel", stamps=False, exp=""):
    c = Code()
    SM = " sc1" if "SC1" in exp else (" sc0 sc1" if "SC01" in exp else ("" if "PLAIN" in exp else (" nt" if "NT" in exp else " sc1")))
    SMQ = SM; SMH = SM
    if "QP" in exp: SMQ = ""
    if "HP" in exp: SMH = ""
    if "QS" in exp: SMQ = " sc1"
    if "HS" in exp: SMH = " sc1"
    V = Alloc(168, 1, "v"); Sg = Alloc(100, 18, "s")
    sAX, sWQ, sGW, sWG, sWU, sWS = 4, 6, 10, 12, 14, 16
    sX = Sg.take(); sJ = Sg.take(); sCG = Sg.take(); sRT = Sg.take(); sW = Sg.take(); sTH = Sg.take(); sCQ = Sg.take(); sSub = Sg.take()
    sT0 = Sg.take(); sT1 = Sg.take(); sT2 = Sg.take(); sT3 = Sg.take()
    srdX = Sg.take(4, 4); srdW = Sg.take(4, 4); srdWS = Sg.take(4, 4)
    sMw = Sg.take(); sMx = Sg.take(); sKx = Sg.take(); sKw = Sg.take(); sKwStep = Sg.take()
    sBase = Sg.take(); sHS = Sg.take(); sTS = Sg.take(); sScale = Sg.take()
    ST = Stamps(Sg, stamps, 0)
    vL = V.take(); vT = [V.take() for _ in range(8)]
    vOffX = V.take(); vOffW = [V.take(), V.take()]
    vXA = [V.take(), V.take()]; vWA = [V.take() for _ in range(4)]; vWH = [V.take() for _ in range(4)]
    sets = [(V.take(16, 4), V.take(16, 4)) for _ in range(2)]
    acc = V.take(64, 4)
    vE = sets[0][0]
    aE = [V.take() for _ in range(4)]; aO = [V.take() for _ in range(4)]; aC = [V.take() for _ in range(5)]
    D = lambda fb, tb: acc + 16*fb + 4*tb

    c.e(f"""
    s_cmp_ge_u32 s2, 256
    s_cbranch_scc1 {name}_END
    s_load_dwordx4 s[4:7], s[0:1], {KA_AX}
    s_load_dwordx2 s[10:11], s[0:1], {KA_GW}
    s_load_dwordx4 s[12:15], s[0:1], {KA_WG}
    s_load_dwordx2 s[16:17], s[0:1], {KA_WS}
    v_and_b32 v{vL}, 63, v0
    v_lshrrev_b32 v{vT[0]}, 6, v0
    s_and_b32 s{sX}, s2, 7
    s_lshr_b32 s{sJ}, s2, 3
    v_readfirstlane_b32 s{sW}, v{vT[0]}
    s_and_b32 s{sT0}, s{sJ}, 1
    s_lshr_b32 s{sRT}, s{sJ}, 1
    """)
    if "OLDMAP" in exp:
        c.e(f"s_lshl_b32 s{sCG}, s{sX}, 1\ns_add_u32 s{sCG}, s{sCG}, s{sT0}")
    else:
        c.e(f"""
        s_mul_i32 s{sT1}, s{sT0}, 6
        s_add_u32 s{sT1}, s{sT1}, s{sX}
        s_lshl_b32 s{sCG}, s{sX}, 1
        s_add_u32 s{sCG}, s{sCG}, s{sT0}
        s_cmp_lt_u32 s{sX}, 6
        s_cselect_b32 s{sCG}, s{sT1}, s{sCG}
        """)
    ST.stamp(c, real=True); ST.stamp(c)
    c.e(f"""
    v_lshrrev_b32 v{vT[1]}, 3, v{vL}
    v_lshrrev_b32 v{vT[2]}, 4, v{vL}
    s_lshl_b32 s{sT0}, s{sW}, 2
    v_add_u32 v{vT[2]}, s{sT0}, v{vT[2]}
    v_xor_b32 v{vT[2]}, v{vT[2]}, v{vL}
    v_and_b32 v{vT[2]}, 7, v{vT[2]}
    s_lshl_b32 s{sT0}, s{sRT}, 7
    s_lshl_b32 s{sT1}, s{sW}, 3
    s_add_u32 s{sT0}, s{sT0}, s{sT1}
    v_add_u32 v{vT[1]}, s{sT0}, v{vT[1]}
    v_mul_u32_u24 v{vT[1]}, 1280, v{vT[1]}
    v_lshl_add_u32 v{vOffX}, v{vT[2]}, 4, v{vT[1]}
    s_lshl_b32 s{sMx}, s{sW}, 10
    s_add_u32 s{sMx}, s{sMx}, {XBASE}
    s_and_b32 s{sTH}, s{sW}, 1
    s_lshr_b32 s{sCQ}, s{sW}, 1
    s_mov_b32 s{sSub}, 0
    s_cmp_eq_u32 s{sCG}, 15
    s_cbranch_scc1 {name}_GATE
    s_lshl_b32 s{sMw}, s{sW}, 11
    s_cmp_lt_u32 s{sCG}, 6
    s_cbranch_scc0 {name}_GLU
    """)
    def woff(i, nch, magic, rs):
        return f"""
        v_add_u32 v{vT[1]}, s{sT0}, v{vL}
        v_mul_u32_u24 v{vT[2]}, {magic}, v{vT[1]}
        v_lshrrev_b32 v{vT[2]}, 16, v{vT[2]}
        v_mul_u32_u24 v{vT[3]}, {nch}, v{vT[2]}
        v_sub_u32 v{vT[3]}, v{vT[1]}, v{vT[3]}
        v_lshrrev_b32 v{vT[4]}, 1, v{vT[2]}
        v_and_b32 v{vT[4]}, 4, v{vT[4]}
        v_and_or_b32 v{vT[4]}, v{vT[2]}, 2, v{vT[4]}
        v_xor_b32 v{vT[3]}, v{vT[3]}, v{vT[4]}
        v_mul_u32_u24 v{vT[2]}, {rs}, v{vT[2]}
        v_lshl_add_u32 v{vT[2]}, v{vT[3]}, 4, v{vT[2]}
        v_add_u32 v{vOffW[i]}, s{sT3}, v{vT[2]}
        s_add_u32 s{sT0}, s{sT0}, 64
        """
    c.e(f"""
    s_lshl_b32 s{sT0}, s{sW}, 7
    s_cmp_lt_u32 s{sW}, 8
    s_cbranch_scc1 {name}_QW
    s_add_u32 s{sT0}, s{sW}, 8
    s_lshl_b32 s{sMw}, s{sT0}, 10
    s_lshl_b32 s{sT0}, s{sT0}, 6
    s_and_b32 s{sSub}, s{sCQ}, 1
    s_mov_b32 s{sCQ}, 4
    {name}_QW:
    s_mul_i32 s{sT3}, s{sCG}, 640
    """)
    c.e(woff(0, 40, 1639, 3840)); c.e(woff(1, 40, 1639, 3840))
    c.e(f"s_mov_b32 s{sKwStep}, {32*3840}\ns_waitcnt lgkmcnt(0)")
    srd(c, srdW, sWQ, 640*3840)
    c.e(f"s_branch {name}_DEC")
    c.label(f"{name}_GLU")
    c.e(f"""
    s_cmp_lt_u32 s{sW}, 6
    s_cselect_b32 s{sT1}, 0, 6
    s_sub_u32 s{sT0}, s{sW}, s{sT1}
    s_lshl_b32 s{sT0}, s{sT0}, 7
    s_sub_u32 s{sT3}, s{sCG}, 6
    s_mul_i32 s{sT3}, s{sT3}, 384
    """)
    c.e(woff(0, 24, 2731, 3456)); c.e(woff(1, 24, 2731, 3456))
    c.e(f"""
    s_mov_b32 s{sKwStep}, {32*3456}
    s_waitcnt lgkmcnt(0)
    s_cmp_lt_u32 s{sW}, 6
    s_cselect_b32 s{srdW}, s{sWG}, s{sWU}
    s_cselect_b32 s{srdW+1}, s{sWG+1}, s{sWU+1}
    s_and_b32 s{srdW+1}, s{srdW+1}, 0xffff
    s_mov_b32 s{srdW+2}, {640*3456}
    s_mov_b32 s{srdW+3}, 0x20000
    """)
    c.label(f"{name}_DEC")
    srd(c, srdX, sAX, 2048*1280)
    c.e(f"s_mov_b32 s{sKw}, 0")
    def qkv_params():
        c.e(f"""
        s_cmp_lt_u32 s{sCG}, 2
        {csel(sHS, QF_HS, KV_HS)}
        {csel(sTS, QF_TS, KV_TS)}
        {csel(sBase, QF_OFF, KV_OFF)}
        {csel(sScale, hexf(LOG2E*20**-0.5), hexf(1.0))}
        s_cmp_lt_u32 s{sCG}, 4
        s_cselect_b32 s{sBase}, s{sBase}, {KV_OFF + 1280}
        """)
    def qk_addr():
        c.e(f"""
        v_and_b32 v{vT[0]}, 15, v{vL}
        v_lshrrev_b32 v{vT[1]}, 4, v{vL}
        s_lshl_b32 s{sT0}, s{sCQ}, 4
        v_add_u32 v{vT[1]}, s{sT0}, v{vT[1]}
        s_mul_i32 s{sT1}, s{sTH}, 2560
        s_mul_i32 s{sT2}, s{sSub}, 1280
        s_add_u32 s{sT1}, s{sT1}, s{sT2}
        """)
        for fb in range(4):
            c.e(f"""
            v_add_u32 v{vT[2]}, {4*fb}, v{vT[1]}
            v_mul_u32_u24 v{vT[3]}, 13108, v{vT[2]}
            v_lshrrev_b32 v{vT[3]}, 16, v{vT[3]}
            v_mul_u32_u24 v{vT[4]}, 5, v{vT[3]}
            v_sub_u32 v{vT[4]}, v{vT[2]}, v{vT[4]}
            v_mul_u32_u24 v{vT[3]}, 5120, v{vT[3]}
            v_add_u32 v{vT[3]}, s{sT1}, v{vT[3]}
            v_lshrrev_b32 v{vT[5]}, 1, v{vT[4]}
            v_lshlrev_b32 v{vT[5]}, 9, v{vT[5]}
            v_and_b32 v{vT[6]}, 1, v{vT[4]}
            v_lshl_add_u32 v{vT[5]}, v{vT[6]}, 3, v{vT[5]}
            v_lshl_add_u32 v{vT[5]}, v{vT[0]}, 4, v{vT[5]}
            v_lshlrev_b32 v{vT[6]}, 3, v{vT[0]}
            v_add_u32 v{vT[6]}, 1024, v{vT[6]}
            v_cmp_eq_u32 vcc, 4, v{vT[4]}
            v_mov_b32 v{vT[7]}, 256
            v_mov_b32 v{vT[2]}, 128
            v_cndmask_b32 v{vT[5]}, v{vT[5]}, v{vT[6]}, vcc
            v_cndmask_b32 v{vT[7]}, v{vT[7]}, v{vT[2]}, vcc
            v_add_u32 v{aE[fb]}, v{vT[3]}, v{vT[5]}
            v_add_u32 v{aO[fb]}, v{aE[fb]}, v{vT[7]}
            """)

    def v_addr():
        c.e(f"""
        v_and_b32 v{vT[0]}, 15, v{vL}
        v_lshrrev_b32 v{vT[1]}, 4, v{vL}
        s_lshl_b32 s{sT0}, s{sCQ}, 6
        v_add_u32 v{vT[0]}, s{sT0}, v{vT[0]}
        v_and_b32 v{vT[2]}, 1, v{vT[1]}
        v_mul_u32_u24 v{vT[2]}, 320, v{vT[2]}
        v_lshrrev_b32 v{vT[1]}, 1, v{vT[1]}
        v_lshl_add_u32 v{vT[1]}, v{vT[1]}, 3, v{vT[2]}
        s_mul_i32 s{sT1}, s{sTH}, 2560
        s_mul_i32 s{sT2}, s{sSub}, 1280
        s_add_u32 s{sT1}, s{sT1}, s{sT2}
        v_add_u32 v{vT[1]}, s{sT1}, v{vT[1]}
        """)
        for fb in range(4):
            c.e(f"""
            v_add_u32 v{vT[2]}, {16*fb}, v{vT[0]}
            v_mul_u32_u24 v{vT[3]}, 3277, v{vT[2]}
            v_lshrrev_b32 v{vT[3]}, 16, v{vT[3]}
            v_mul_u32_u24 v{vT[4]}, 20, v{vT[3]}
            v_sub_u32 v{vT[4]}, v{vT[2]}, v{vT[4]}
            v_mul_u32_u24 v{vT[3]}, 5120, v{vT[3]}
            v_lshl_add_u32 v{vT[3]}, v{vT[4]}, 4, v{vT[3]}
            v_add_u32 v{aE[fb]}, v{vT[3]}, v{vT[1]}
            """)

    def c_addr():
        for k in range(5):
            c.e(f"""
            v_add_u32 v{vT[1]}, {64*k}, v{vL}
            v_mul_u32_u24 v{vT[2]}, 820, v{vT[1]}
            v_lshrrev_b32 v{vT[2]}, 16, v{vT[2]}
            v_mul_u32_u24 v{vT[3]}, 80, v{vT[2]}
            v_sub_u32 v{vT[3]}, v{vT[1]}, v{vT[3]}
            v_mul_lo_u32 v{vT[2]}, v{vT[2]}, s{sTS}
            v_lshl_add_u32 v{aC[k]}, v{vT[3]}, 4, v{vT[2]}
            """)

    def dma_w(i, st):
        return [f"s_add_u32 m0, s{sMw}, {(st % WRING)*WSLOT + 1024*i}", "s_nop 0", f"buffer_load_dwordx4 v{vOffW[i]}, s[{srdW}:{srdW+3}], s{sKw} offen lds"]
    def dma_x(u):
        m, hf = u >> 1, u & 1
        return [f"s_add_u32 m0, s{sMx}, {(m % XRING)*XSLOT + hf*8192}", f"s_mov_b32 s{sKx}, {m*128 + hf*64*1280}", f"buffer_load_dwordx4 v{vOffX}, s[{srdX}:{srdX+3}], s{sKx} offen lds"]
    advw = [f"s_add_u32 s{sKw}, s{sKw}, s{sKwStep}"]
    c.e(f"""
    s_cmp_lt_u32 s{sW}, 8
    s_cbranch_scc0 {name}_PRO_NX
    """)
    c.e("\n".join(dma_x(0) + dma_w(0, 0) + dma_w(1, 0) + advw + dma_x(1)))
    c.e("\n".join(dma_w(0, 1) + dma_w(1, 1) + advw + dma_x(2) + dma_w(0, 2) + dma_w(1, 2) + advw + dma_x(3)))
    c.e(f"s_branch {name}_PRO_D")
    c.label(f"{name}_PRO_NX")
    c.e(f"s_cmp_lt_u32 s{sCG}, 6\ns_cbranch_scc1 {name}_PRO_H")
    for st in range(3): c.e("\n".join(dma_w(0, st) + dma_w(1, st) + advw))
    c.e(f"s_branch {name}_PRO_D")
    c.label(f"{name}_PRO_H")
    for st in range(3): c.e("\n".join(dma_w(0, st) + advw))
    c.label(f"{name}_PRO_D")
    c.e(f"""
    v_and_b32 v{vT[1]}, 15, v{vL}
    v_lshrrev_b32 v{vT[2]}, 4, v{vL}
    v_lshrrev_b32 v{vT[3]}, 1, v{vT[1]}
    v_xor_b32 v{vT[3]}, v{vT[3]}, v{vT[2]}
    v_lshlrev_b32 v{vT[3]}, 4, v{vT[3]}
    v_lshl_add_u32 v{vT[3]}, v{vT[1]}, 7, v{vT[3]}
    s_lshl_b32 s{sT0}, s{sTH}, 13
    s_lshl_b32 s{sT1}, s{sSub}, 12
    s_add_u32 s{sT0}, s{sT0}, s{sT1}
    s_add_u32 s{sT0}, s{sT0}, {XBASE}
    v_add_u32 v{vXA[0]}, s{sT0}, v{vT[3]}
    v_xor_b32 v{vXA[1]}, 64, v{vXA[0]}
    v_lshrrev_b32 v{vT[3]}, 2, v{vT[1]}
    v_lshl_add_u32 v{vT[4]}, v{vT[2]}, 3, v{vT[3]}
    v_lshrrev_b32 v{vT[3]}, 1, v{vT[3]}
    v_and_b32 v{vT[5]}, 1, v{vT[2]}
    v_lshl_or_b32 v{vT[3]}, v{vT[5]}, 1, v{vT[3]}
    v_and_b32 v{vT[5]}, 3, v{vT[1]}
    v_lshlrev_b32 v{vT[5]}, 3, v{vT[5]}
    s_cmp_lt_u32 s{sCG}, 6
    s_cbranch_scc0 {name}_RA_GLU
    v_mul_u32_u24 v{vT[4]}, 640, v{vT[4]}
    v_add_u32 v{vT[4]}, v{vT[4]}, v{vT[5]}
    s_lshl_b32 s{sT0}, s{sCQ}, 7
    v_add_u32 v{vT[4]}, s{sT0}, v{vT[4]}
    """)
    for fb in range(4):
        c.e(f"v_xor_b32 v{vT[6]}, {fb}, v{vT[3]}\nv_lshl_add_u32 v{vWA[fb]}, v{vT[6]}, 5, v{vT[4]}")
    c.e(f"s_branch {name}_RA")
    c.label(f"{name}_RA_GLU")
    c.e(f"""
    v_mul_u32_u24 v{vT[4]}, 384, v{vT[4]}
    v_add_u32 v{vT[4]}, v{vT[4]}, v{vT[5]}
    """)
    for f in range(2):
        c.e(f"""
        s_lshl_b32 s{sT0}, s{sCQ}, 1
        s_add_u32 s{sT0}, s{sT0}, {f}
        s_and_b32 s{sT1}, s{sT0}, 3
        s_andn2_b32 s{sT0}, s{sT0}, 3
        s_lshl_b32 s{sT0}, s{sT0}, 5
        v_xor_b32 v{vT[6]}, s{sT1}, v{vT[3]}
        v_lshl_add_u32 v{vT[6]}, v{vT[6]}, 5, v{vT[4]}
        v_add_u32 v{vWA[f]}, s{sT0}, v{vT[6]}
        v_add_u32 v{vWA[2+f]}, {UOFF}, v{vWA[f]}
        """)
    c.label(f"{name}_RA")
    for fb in range(4): c.e(f"v_add_u32 v{vWH[fb]}, {2*WSLOT}, v{vWA[fb]}")
    srd(c, srdWS, sWS, WS_BYTES)
    for r_ in aE + aO + aC: c.e(f"v_mov_b32 v{r_}, 0")
    c.e(f"s_cmp_lt_u32 s{sCG}, 6\ns_cbranch_scc0 {name}_NOEA")
    qkv_params(); c_addr()
    c.e(f"s_cmp_lt_u32 s{sCG}, 4\ns_cbranch_scc0 {name}_EAV")
    qk_addr()
    c.e(f"s_branch {name}_NOEA")
    c.label(f"{name}_EAV")
    v_addr()
    c.label(f"{name}_NOEA")
    ST.stamp(c)
    c.e(f"""
    s_cmp_lt_u32 s{sW}, 8
    s_cselect_b32 s{sT1}, 0, 1
    s_cmp_lt_u32 s{sCG}, 4
    s_cselect_b32 s{sT0}, 0, 2
    s_cmp_lt_u32 s{sCG}, 6
    s_cselect_b32 s{sT0}, s{sT0}, 4
    s_add_u32 s{sT0}, s{sT0}, s{sT1}
    """)
    variants = [("QK", 1, 4, 2), ("QK", 0, 2, 1), ("V", 1, 4, 2), ("V", 0, 2, 1), ("GLU", 1, 4, 2), ("GLU", 0, 4, 2)]
    for i in range(1, 6): c.e(f"s_cmp_eq_u32 s{sT0}, {i}\ns_cbranch_scc1 {name}_VAR{i}")
    def reads(st, rs, ntb=4):
        xs, ws_ = sets[st % 2]; p = st & 1; xslot = (st >> 1) % XRING; wsl = st % WRING
        base = vWA if wsl < 2 else vWH; so = (wsl & 1)*WSLOT
        L = []
        for i in range(4):
            L.append(f"ds_read_b64_tr_b16 {vr(ws_+4*i,2)}, v{base[i]} offset:{so}")
            L.append(f"ds_read_b64_tr_b16 {vr(ws_+4*i+2,2)}, v{base[i]} offset:{so + 4*rs}")
            if i < ntb: L.append(f"ds_read_b128 {vr(xs+4*i,4)}, v{vXA[p]} offset:{xslot*XSLOT + 2048*i}")
        return L
    def mfmas(st, role, ntb=4):
        xs, ws_ = sets[st % 2]; L = []
        for fb in range(4):
            for tb in range(ntb):
                cz = 0 if st == 0 else None
                L.append(mfma16(D(fb, tb), ws_+4*fb, xs+4*tb, cz) if role != "V" else mfma16(D(fb, tb), xs+4*tb, ws_+4*fb, cz))
        return L
    for vi, (role, nx, ntb, nw) in enumerate(variants):
        if vi: c.label(f"{name}_VAR{vi}")
        rs = 384 if role == "GLU" else 640
        def cnt(x): return ((nw if x + 3 < NST else 0) + (nx if x + 4 < NST else 0))
        def wd(st): return sum([dma_w(i, st) for i in range(nw)], [])
        for st in range(NST + 1):
            rd = reads(st, rs, ntb) if st < NST else []
            if st == 0:
                c.e(f"s_waitcnt vmcnt({cnt(-2) + cnt(-1)})\ns_barrier")
                c.e("\n".join(rd))
                c.e("\n".join(wd(3) + advw + (dma_x(4) if nx else [])))
                continue
            m = mfmas(st - 1, role, ntb)
            nm = len(m)
            g = {}
            pre = [f"s_waitcnt vmcnt({cnt(st-2) + cnt(st-1)})", "s_barrier"] if st < NST else []
            if ntb == 4:
                g[0] = pre + rd[0:2]
                k = 2
                for i in range(1, 11):
                    g[i] = rd[k:k+1]; k += 1
                if st < NST:
                    if st + 3 < NST:
                        g[11] = dma_w(0, st+3); g[13] = dma_w(1, st+3) + advw
                    if nx and st + 4 < NST: g[15] = dma_x(st+4)
            else:
                g[0] = pre + rd[0:2]
                for i in range(1, 5): g[i] = rd[2*i:2*i+2]
                if st < NST and st + 3 < NST: g[6] = dma_w(0, st+3) + advw
            c.e("s_waitcnt lgkmcnt(0)")
            out = []
            for i, x in enumerate(m):
                out.append(x); out += g.get(i, [])
            c.e("\n".join(out))
            if stamps and st in (3, 15):
                r = ST.s + 2*(5 if st == 3 else 6); c.e(f"s_memtime s[{r}:{r+1}]")
        c.e(f"s_branch {name}_EPI_{role}" + ("H" if ntb == 2 else ""))
    c.label(f"{name}_EPI_GLU")
    ST.i = 3; ST.stamp(c, wait=True)
    c.e(f"""
    s_lshl_b32 s{sT0}, s{sRT}, 2
    s_lshl_b32 s{sT1}, s{sTH}, 1
    s_add_u32 s{sT0}, s{sT0}, s{sT1}
    s_mul_i32 s{sBase}, s{sT0}, 108
    s_sub_u32 s{sT1}, s{sCG}, 6
    s_mul_i32 s{sT1}, s{sT1}, 12
    s_add_u32 s{sBase}, s{sBase}, s{sT1}
    s_lshl_b32 s{sT1}, s{sCQ}, 1
    s_add_u32 s{sBase}, s{sBase}, s{sT1}
    s_lshl_b32 s{sBase}, s{sBase}, 10
    s_add_u32 s{sBase}, s{sBase}, {HF_OFF}
    v_and_b32 v{vT[1]}, 15, v{vL}
    v_lshrrev_b32 v{vT[2]}, 4, v{vL}
    v_and_b32 v{vT[3]}, 1, v{vT[2]}
    v_lshlrev_b32 v{vT[3]}, 9, v{vT[3]}
    v_lshl_add_u32 v{vT[3]}, v{vT[1]}, 4, v{vT[3]}
    v_lshrrev_b32 v{vT[2]}, 1, v{vT[2]}
    v_lshl_add_u32 v{vT[0]}, v{vT[2]}, 3, v{vT[3]}
    s_mov_b32 s{sT1}, {hexf(-LOG2E)}
    s_add_u32 s{sT2}, s{sBase}, {108*1024}
    """)
    for tb in range(4):
        for f in range(2):
            g_, u_ = D(f, tb), D(2+f, tb)
            for r in range(4): c.e(f"v_mul_f32 v{g_+r}, s{sT1}, v{g_+r}")
        for f in range(2):
            for r in range(4): c.e(f"v_exp_f32 v{D(f,tb)+r}, v{D(f,tb)+r}")
        for f in range(2):
            for r in range(4): c.e(f"v_add_f32 v{D(f,tb)+r}, 1.0, v{D(f,tb)+r}")
        for f in range(2):
            for r in range(4): c.e(f"v_rcp_f32 v{D(f,tb)+r}, v{D(f,tb)+r}")
        for f in range(2):
            for r in range(4): c.e(f"v_mul_f32 v{D(f,tb)+r}, v{D(f,tb)+r}, v{D(2+f,tb)+r}")
        e = vE + 4*(tb % 4)
        for f in range(2):
            c.e(f"v_cvt_pk_bf16_f32 v{e+2*f}, v{D(f,tb)}, v{D(f,tb)+1}\nv_cvt_pk_bf16_f32 v{e+2*f+1}, v{D(f,tb)+2}, v{D(f,tb)+3}")
        for f in range(2):
            c.e(f"buffer_store_dwordx2 {vr(e+2*f,2)}, v{vT[0]}, s[{srdWS}:{srdWS+3}], s{sBase if tb < 2 else sT2} offen offset:{1024*f + 256*(tb & 1)}{SMH}")
    c.e(f"s_branch {name}_FIN")
    t2 = vE + 8
    for ntb in (4, 2):
        sfx = "" if ntb == 4 else "H"
        c.label(f"{name}_EPI_QK{sfx}")
        ST.i = 3; ST.stamp(c, wait=True)
        c.e("s_barrier")
        c.e(f"s_cmp_lt_u32 s{sCG}, 2\ns_cbranch_scc0 {name}_NOSCL{sfx}")
        if ntb == 2: c.e("s_nop 3")
        for fb in range(4):
            for tb in range(ntb):
                for r in range(4): c.e(f"v_mul_f32 v{D(fb,tb)+r}, s{sScale}, v{D(fb,tb)+r}")
        c.label(f"{name}_NOSCL{sfx}")
        if ntb == 2: c.e("s_nop 3")
        for fb in range(4):
            for tb in range(ntb):
                d = D(fb, tb)
                e = t2 + 2*((4*fb + tb) % 8)
                c.e(f"v_cvt_pk_bf16_f32 v{e}, v{d}, v{d+1}\nv_cvt_pk_bf16_f32 v{e+1}, v{d+2}, v{d+3}")
                c.e(f"ds_write_b64 v{aE[fb] if tb % 2 == 0 else aO[fb]}, {vr(e,2)} offset:{1280*(tb >> 1)}")
            c.e("s_waitcnt lgkmcnt(4)")
        c.e(f"s_branch {name}_COPY")
        c.label(f"{name}_EPI_V{sfx}")
        ST.i = 3; ST.stamp(c, wait=True)
        c.e("s_barrier")
        if ntb == 2: c.e("s_nop 5")
        for fb in range(4):
            for tb in range(ntb):
                d = D(fb, tb); e = t2 + 2*((4*fb + tb) % 8)
                c.e(f"v_cvt_pk_bf16_f32 v{e}, v{d}, v{d+1}\nv_cvt_pk_bf16_f32 v{e+1}, v{d+2}, v{d+3}")
                c.e(f"ds_write_b64 v{aE[fb]}, {vr(e,2)} offset:{1280*(tb >> 1) + 640*(tb & 1)}")
            c.e("s_waitcnt lgkmcnt(4)")
        c.e(f"s_branch {name}_COPY")
    c.label(f"{name}_COPY")
    c.e(f"""
    s_lshl_b32 s{sT0}, s{sRT}, 2
    s_mul_i32 s{sT0}, s{sT0}, s{sTS}
    s_add_u32 s{sBase}, s{sBase}, s{sT0}
    s_and_b32 s{sT0}, s{sCG}, 1
    s_lshl_b32 s{sT0}, s{sT0}, 4
    s_add_u32 s{sT0}, s{sT0}, s{sW}
    s_mul_i32 s{sT0}, s{sT0}, s{sHS}
    s_add_u32 s{sBase}, s{sBase}, s{sT0}
    s_mul_i32 s{sT1}, s{sW}, 5120
    v_lshl_add_u32 v{vT[0]}, v{vL}, 4, s{sT1}
    """)
    c.e("s_waitcnt lgkmcnt(0)\ns_barrier")
    c.label(f"{name}_CPL")
    for k in range(5): c.e(f"ds_read_b128 {vr(acc+4*k,4)}, v{vT[0]} offset:{1024*k}")
    for k in range(5):
        c.e(f"s_waitcnt lgkmcnt({4-k})")
        c.e(f"buffer_store_dwordx4 {vr(acc+4*k,4)}, v{aC[k]}, s[{srdWS}:{srdWS+3}], s{sBase} offen{SMQ}")
    c.e(f"""
    s_add_u32 s{sW}, s{sW}, 12
    s_cmp_lt_u32 s{sW}, 16
    s_cbranch_scc0 {name}_CPD
    s_mul_i32 s{sT0}, s{sHS}, 12
    s_add_u32 s{sBase}, s{sBase}, s{sT0}
    v_add_u32 v{vT[0]}, {12*5120}, v{vT[0]}
    s_branch {name}_CPL
    {name}_CPD:
    s_sub_u32 s{sW}, s{sW}, 12
    s_cmp_ge_u32 s{sW}, 12
    s_cselect_b32 s{sT0}, 12, 0
    s_sub_u32 s{sW}, s{sW}, s{sT0}
    s_branch {name}_FIN
    """)
    c.label(f"{name}_GATE")
    c.e(f"s_cmp_ge_u32 s{sW}, 8\ns_cbranch_scc1 {name}_END\ns_waitcnt lgkmcnt(0)")
    srd(c, srdX, sAX, 2048*1280); srd(c, srdW, sGW, 1280); srd(c, srdWS, sWS, WS_BYTES)
    c.e(f"""
    s_or_b32 s{sT0}, s{sRT}, s{sW}
    s_cmp_eq_u32 s{sT0}, 0
    s_cbranch_scc0 {name}_NOZ
    v_lshlrev_b32 v{vT[5]}, 7, v{vL}
    v_mov_b32 v{vT[4]}, 0
    s_mov_b32 s{sT0}, {CNT_OFF}
    s_mov_b64 exec, 0xff
    buffer_store_dword v{vT[4]}, v{vT[5]}, s[{srdWS}:{srdWS+3}], s{sT0} offen
    s_mov_b64 exec, -1
    {name}_NOZ:
    """)
    vGw = sets[0][0]; vGx = sets[0][0] + 8
    c.e(f"""
    v_lshlrev_b32 v{vT[5]}, 2, v{vL}
    s_lshl_b32 s{sT0}, s{sRT}, 7
    s_lshl_b32 s{sT1}, s{sW}, 4
    s_add_u32 s{sBase}, s{sT0}, s{sT1}
    s_mul_i32 s{sT1}, s{sBase}, 1280
    """)
    for i in range(5): c.e(f"buffer_load_dword v{vGw+i}, v{vT[5]}, s[{srdW}:{srdW+3}], 0 offen offset:{256*i}")
    NB_ = 8
    for bt in range(2):
        for rr in range(NB_):
            for i in range(5): c.e(f"buffer_load_dword v{vGx+5*rr+i}, v{vT[5]}, s[{srdX}:{srdX+3}], s{sT1} offen offset:{256*i}")
            c.e(f"s_add_u32 s{sT1}, s{sT1}, 1280")
        for rr in range(NB_):
            c.e(f"s_waitcnt vmcnt({5*(NB_-1-rr) + (rr if True else 0)})")
            for i in range(5):
                c.e(f"""
                v_lshlrev_b32 v{vT[0]}, 16, v{vGx+5*rr+i}
                v_and_b32 v{vT[1]}, 0xffff0000, v{vGx+5*rr+i}
                v_lshlrev_b32 v{vT[2]}, 16, v{vGw+i}
                v_and_b32 v{vT[3]}, 0xffff0000, v{vGw+i}
                v_mul_f32 v{vT[0]}, v{vT[0]}, v{vT[2]}
                v_mul_f32 v{vT[1]}, v{vT[1]}, v{vT[3]}
                v_cvt_pk_bf16_f32 v{vT[0]}, v{vT[0]}, v{vT[1]}
                v_lshlrev_b32 v{vT[2]}, 16, v{vT[0]}
                v_and_b32 v{vT[3]}, 0xffff0000, v{vT[0]}
                """)
                if i == 0: c.e(f"v_add_f32 v{vT[4]}, v{vT[2]}, v{vT[3]}")
                else: c.e(f"v_add_f32 v{vT[2]}, v{vT[2]}, v{vT[3]}\nv_add_f32 v{vT[4]}, v{vT[4]}, v{vT[2]}")
            for sh in ("row_shr:1", "row_shr:2", "row_shr:4", "row_shr:8"):
                c.e(f"s_nop 1\nv_add_f32_dpp v{vT[4]}, v{vT[4]}, v{vT[4]} {sh} row_mask:0xf bank_mask:0xf bound_ctrl:0")
            c.e(f"""
            s_nop 1
            v_readlane_b32 s{sT0}, v{vT[4]}, 15
            v_readlane_b32 s{sT2}, v{vT[4]}, 31
            v_readlane_b32 s{sT3}, v{vT[4]}, 47
            v_readlane_b32 s{sHS}, v{vT[4]}, 63
            s_nop 1
            v_mov_b32 v{vT[0]}, s{sT0}
            v_add_f32 v{vT[0]}, s{sT2}, v{vT[0]}
            v_add_f32 v{vT[0]}, s{sT3}, v{vT[0]}
            v_add_f32 v{vT[0]}, s{sHS}, v{vT[0]}
            v_cvt_pk_bf16_f32 v{vT[0]}, v{vT[0]}, v{vT[0]}
            v_lshlrev_b32 v{vT[0]}, 16, v{vT[0]}
            v_mul_f32 v{vT[0]}, {hexf(-LOG2E)}, v{vT[0]}
            v_exp_f32 v{vT[0]}, v{vT[0]}
            s_nop 0
            v_add_f32 v{vT[0]}, 1.0, v{vT[0]}
            v_rcp_f32 v{vT[0]}, v{vT[0]}
            s_nop 0
            v_cvt_pk_bf16_f32 v{vT[0]}, v{vT[0]}, v{vT[0]}
            v_lshlrev_b32 v{vT[6]}, 16, v{vT[0]}
            v_sub_f32 v{vT[1]}, 1.0, v{vT[6]}
            v_cvt_pk_bf16_f32 v{vT[1]}, v{vT[1]}, v{vT[1]}
            v_lshlrev_b32 v{vT[7]}, 16, v{vT[1]}
            s_lshl_b32 s{sT0}, s{sBase}, 3
            s_add_u32 s{sT0}, s{sT0}, {G_OFF}
            v_mov_b32 v{vT[2]}, 0
            s_mov_b64 exec, 1
            buffer_store_dwordx2 {vr(vT[6],2)}, v{vT[2]}, s[{srdWS}:{srdWS+3}], s{sT0} offen
            s_mov_b64 exec, -1
            s_add_u32 s{sBase}, s{sBase}, 1
            """)
    if stamps:
        ST.i = 2; ST.stamp(c); ST.stamp(c)
    c.label(f"{name}_FIN")
    if stamps: c.e("s_waitcnt vmcnt(0)")
    ST.i = 4; ST.stamp(c)
    if stamps:
        c.e(f"s_memrealtime s[{ST.s+14}:{ST.s+15}]"); ST.i = 8
        c.e(f"s_cmp_ge_u32 s{sW}, 8\ns_cbranch_scc1 {name}_END")
    ST.flush(c, sW, srdWS, vT[2], vT[3], sT0)
    c.e(f"""
    {name}_END:
    s_endpgm
    """)
    def S(role, vi=0, idle=False):
        d = {f"{name}_END": False, f"{name}_GATE": role == "gate", f"{name}_GLU": role == "glu", f"{name}_RA_GLU": role == "glu",
             f"{name}_NOEA": role == "glu", f"{name}_EAV": role == "v", f"{name}_NOSCL": False, f"{name}_NOSCLH": False, f"{name}_NOZ": False, f"{name}_PRO_NX": vi % 2 == 1,
             f"{name}_PRO_H": role != "glu", f"{name}_QW": vi % 2 == 0, f"{name}_CPD": (lambda k: k >= 1)}
        for i in range(1, 6): d[f"{name}_VAR{i}"] = (i == vi)
        return d
    scen = {"qk1": S("qk", 0), "qk0": S("qk", 1), "v1": S("v", 2), "v0": S("v", 3), "glu1": S("glu", 4), "glu0": S("glu", 5), "gate": S("gate")}
    return c, V.hi, scen, K1_LDS

if __name__ == "__main__":
    c, nv, scen, lds = gen_k1()
    errs = check(c.lines, scen, "k1")
    print("vgprs", nv, "lds", lds, "lines", len(c.lines))
    for e in errs[:40]: print(e)
```

```python
from common import *

CH = 10240
SLOT = 2*CH; RING = 3
DUMMY = SLOT*RING
FLAG = DUMMY + 1024
XCH = FLAG + 64
GRING = XCH + 8*3072
GSLOT = 6144; GWAVE = 3*GSLOT
K2_LDS = GRING + 4*GWAVE
FB_BARRIERS = 16 + 3 + 9 + 1

def gen_k2(name="k2_kernel", stamps=False, exp=""):
    c = Code()
    OM = " sc1" if "OS" in exp else (" nt" if "ON" in exp else (" sc0 sc1" if "OX" in exp else ""))
    SM = " sc1" if "SC1" in exp else (" sc0 sc1" if "SC01" in exp else ("" if ("PLAIN" in exp or "P2" in exp) else " nt"))
    V = Alloc(168, 1, "v"); Sg = Alloc(100, 12, "s")
    sWS = 4; sWD = 6; sWO = 8; sOUT = 10
    sX = Sg.take(); sJ = Sg.take(); sHead = Sg.take(); sQB = Sg.take(); sW = Sg.take(); sQG = Sg.take(); sKH = Sg.take()
    sT0 = Sg.take(); sT1 = Sg.take(); sT2 = Sg.take(); sT3 = Sg.take()
    srdWS = Sg.take(4, 4)
    sMaskLo = Sg.take(2, 2); sMaskV = Sg.take(2, 2); sU = Sg.take(2, 2); sU2 = Sg.take(2, 2)
    sSrc = Sg.take(); sM = [Sg.take() for _ in range(3)]; sSlotW = Sg.take(); sSlotR = Sg.take(); sC = Sg.take(); sMode = Sg.take()
    sSrc0 = Sg.take(); sTile = Sg.take(); sOb = Sg.take()
    ST = Stamps(Sg, stamps, 1)
    vL = V.take(); vT = [V.take() for _ in range(8)]
    vOff = V.take(); vOff3 = V.take()
    vK1a = V.take(); vK2a = V.take(); vVa = V.take()
    vK1c = V.take(); vK2c = V.take(); vVc = V.take()
    vG = [V.take(), V.take()]; vSt = [V.take() for _ in range(3)]; vGo = V.take()
    Q1 = [V.take(4, 4), V.take(4, 4)]; Q2 = [V.take(2, 2), V.take(2, 2)]
    K1 = V.take(4, 4); K2 = V.take(2, 2); V0 = V.take(4, 4); V1 = V.take(4, 4)
    S_ = [V.take(16, 4), V.take(16, 4)]; O = [V.take(16, 4), V.take(16, 4)]
    P = [V.take(4, 4), V.take(4, 4)]; T4 = V.take(4, 4)
    vM = [V.take(), V.take()]
    NM = [V.take(16, 4), V.take(16, 4)]
    srd4 = f"s[{srdWS}:{srdWS+3}]"

    c.e(f"""
    s_cmp_ge_u32 s2, 256
    s_cbranch_scc1 {name}_END
    s_load_dwordx2 s[4:5], s[0:1], {KA_WS}
    s_load_dwordx2 s[6:7], s[0:1], {KA_WD}
    s_load_dwordx2 s[8:9], s[0:1], {KA_WO}
    s_load_dwordx2 s[10:11], s[0:1], {KA_OUT}
    v_and_b32 v{vL}, 63, v0
    v_lshrrev_b32 v{vT[0]}, 6, v0
    s_and_b32 s{sX}, s2, 7
    s_lshr_b32 s{sJ}, s2, 3
    v_readfirstlane_b32 s{sW}, v{vT[0]}
    s_lshr_b32 s{sT0}, s{sJ}, 3
    s_lshl_b32 s{sHead}, s{sX}, 2
    s_add_u32 s{sHead}, s{sHead}, s{sT0}
    s_and_b32 s{sQB}, s{sJ}, 7
    v_lshlrev_b32 v{vOff}, 4, v{vL}
    s_mul_i32 s{sSrc0}, s{sHead}, {KV_HS}
    s_add_u32 s{sSrc0}, s{sSrc0}, {KV_OFF}
    """)
    ST.stamp(c, real=True); ST.stamp(c)
    c.e(f"s_cmp_ge_u32 s{sW}, 8\ns_cbranch_scc1 {name}_GW")
    c.e(f"""
    s_and_b32 s{sQG}, s{sW}, 3
    s_lshr_b32 s{sKH}, s{sW}, 2
    s_mul_i32 s{sT0}, s{sKH}, {32*KV_TS}
    s_add_u32 s{sSrc0}, s{sSrc0}, s{sT0}
    s_lshl_b32 s{sT0}, s{sQG}, 10
    s_add_u32 s{sSrc0}, s{sSrc0}, s{sT0}
    s_mul_i32 s{sT1}, s{sKH}, {CH}
    s_add_u32 s{sM[0]}, s{sT1}, s{sT0}
    s_add_u32 s{sM[1]}, s{sM[0]}, 4096
    s_add_u32 s{sM[2]}, s{sM[0]}, 8192
    s_cmp_lt_u32 s{sQG}, 2
    s_cselect_b32 s{sT0}, 0, 0x7f000000
    v_add_u32 v{vOff3}, s{sT0}, v{vOff}
    s_mov_b32 s{sSrc}, s{sSrc0}
    s_mov_b32 s{sSlotW}, 0
    s_lshl_b32 s{sTile}, s{sQB}, 3
    s_lshl_b32 s{sT0}, s{sQG}, 1
    s_add_u32 s{sTile}, s{sTile}, s{sT0}
    s_waitcnt lgkmcnt(0)
    """)
    if stamps: c.e(f"s_memtime s[{ST.s+12}:{ST.s+13}]")
    srd(c, srdWS, sWS, WS_BYTES)
    def dma_parts():
        g0 = [f"s_add_u32 m0, s{sSlotW}, s{sM[0]}", f"s_add_u32 s{sT0}, s{sSrc}, 4096", f"buffer_load_dwordx4 v{vOff}, {srd4}, s{sSrc} offen lds"]
        g1 = [f"s_add_u32 m0, s{sSlotW}, s{sM[1]}", f"s_add_u32 s{sT1}, s{sSrc}, 8192", f"buffer_load_dwordx4 v{vOff}, {srd4}, s{sT0} offen lds"]
        g2 = [f"s_add_u32 s{sT0}, s{sSlotW}, s{sM[2]}", f"s_cmp_lt_u32 s{sQG}, 2", f"s_cselect_b32 m0, s{sT0}, {DUMMY}", f"s_add_u32 s{sSrc}, s{sSrc}, {CH}",
              f"buffer_load_dwordx4 v{vOff3}, {srd4}, s{sT1} offen lds",
              f"s_add_u32 s{sSlotW}, s{sSlotW}, {SLOT}", f"s_cmp_eq_u32 s{sSlotW}, {SLOT*RING}", f"s_cselect_b32 s{sSlotW}, 0, s{sSlotW}"]
        return g0, g1, g2
    def dma_chunk():
        g = dma_parts(); return g[0] + g[1] + g[2]
    def first_loads():
        c.e("\n".join(dma_chunk()))
    first_loads()
    c.e(f"""
    s_mul_i32 s{sT2}, s{sHead}, {QF_HS}
    s_mul_i32 s{sT1}, s{sTile}, {QF_TS}
    s_add_u32 s{sT2}, s{sT2}, s{sT1}
    s_add_u32 s{sT3}, s{sT2}, {QF_TS}
    v_and_b32 v{vT[0]}, 31, v{vL}
    v_lshlrev_b32 v{vT[1]}, 3, v{vT[0]}
    s_mov_b32 s{sMaskLo}, -1
    s_mov_b32 s{sMaskLo+1}, 0
    v_mov_b32 v{Q2[0]}, 0
    v_mov_b32 v{Q2[0]+1}, 0
    v_mov_b32 v{Q2[1]}, 0
    v_mov_b32 v{Q2[1]+1}, 0
    buffer_load_dwordx4 {vr(Q1[0],4)}, v{vOff}, {srd4}, s{sT2} offen
    buffer_load_dwordx4 {vr(Q1[1],4)}, v{vOff}, {srd4}, s{sT3} offen
    s_mov_b64 exec, s[{sMaskLo}:{sMaskLo+1}]
    buffer_load_dwordx2 {vr(Q2[0],2)}, v{vT[1]}, {srd4}, s{sT2} offen offset:1024
    buffer_load_dwordx2 {vr(Q2[1],2)}, v{vT[1]}, {srd4}, s{sT3} offen offset:1024
    s_mov_b64 exec, -1
    """)
    c.e(f"""
    v_mov_b32 v{vGo}, v{vT[1]}
    s_mov_b32 s{sMode}, 0
    s_mov_b32 s{sMaskV}, 0xfffff
    s_mov_b32 s{sMaskV+1}, 0xfffff
    s_mul_i32 s{sT0}, s{sKH}, {CH}
    v_add_u32 v{vK1a}, s{sT0}, v{vOff}
    v_add_u32 v{vK2a}, s{sT0}, v{vT[1]}
    v_lshrrev_b32 v{vT[2]}, 5, v{vL}
    v_mul_u32_u24 v{vT[7]}, 320, v{vT[2]}
    v_lshl_add_u32 v{vT[7]}, v{vT[0]}, 4, v{vT[7]}
    v_add_u32 v{vVa}, s{sT0}, v{vT[7]}
    v_cmp_eq_u32 vcc, 20, v{vT[0]}
    v_mov_b32 v{vT[3]}, 0
    v_mov_b32 v{vT[4]}, 0x3f803f80
    v_cndmask_b32 v{vT[3]}, v{vT[3]}, v{vT[4]}, vcc
    """)
    for r in range(4): c.e(f"v_mov_b32 v{V0+r}, v{vT[3]}\nv_mov_b32 v{V1+r}, v{vT[3]}")
    c.e(f"v_mov_b32 v{vT[3]}, 0\nv_mov_b32 v{vT[4]}, {FLAG}\nds_write_b32 v{vT[4]}, v{vT[3]}")
    c.e(f"""
    s_add_u32 s{sOb}, s{sTile}, s{sKH}
    s_mul_i32 s{sOb}, s{sOb}, {40*1024}
    s_add_u32 s{sOb}, s{sOb}, {OF_OFF}
    s_mul_i32 s{sT1}, s{sHead}, 5
    v_add_u32 v{vT[2]}, s{sT1}, v{vT[2]}
    v_lshlrev_b32 v{vT[3]}, 4, v{vT[0]}
    """)
    c.e(f"v_lshlrev_b32 v{vT[3]}, 3, v{vT[0]}")
    for g in range(3):
        c.e(f"""
        v_add_u32 v{vT[4]}, {2*g}, v{vT[2]}
        v_lshl_add_u32 v{vSt[g]}, v{vT[4]}, 8, v{vT[3]}
        """)
    def rdK(off):
        return [f"ds_read_b64 {vr(K2,2)}, v{vK2c} offset:{off+1024}", f"ds_read_b128 {vr(K1,4)}, v{vK1c} offset:{off}"]
    def rdV(which, off):
        r = V0 if which == 0 else V1
        return [f"s_mov_b64 exec, s[{sMaskV}:{sMaskV+1}]", f"ds_read_b128 {vr(r,4)}, v{vVc} offset:{off + 1280 + 640*which}", "s_mov_b64 exec, -1"]
    def emit_pass(tag, fb):
        def qk(b): return [f"v_mfma_f32_32x32x16_bf16 {vr(S_[b],16)}, {vr(K1,4)}, {vr(Q1[b],4)}, " + (vr(NM[b],16) if fb else "0"), mfma32x8(S_[b], K2, Q2[b])]
        for b in range(2):
            for r in range(16): c.e(f"v_mov_b32 v{O[b]+r}, 0")
        for r in range(4): c.e(f"v_mov_b32 v{P[1]+r}, 0\nv_mov_b32 v{T4+r}, 0")
        c.e(f"""
        s_mov_b32 s{sSlotR}, 0
        s_mov_b32 s{sC}, 0
        v_mov_b32 v{vK1c}, v{vK1a}
        v_mov_b32 v{vK2c}, v{vK2a}
        v_mov_b32 v{vVc}, v{vVa}
        """)
        if stamps and not fb: c.e(f"s_memtime s[{ST.s+14}:{ST.s+15}]")
        c.e(f"s_waitcnt vmcnt({3 if fb else 0}) lgkmcnt(0)\ns_barrier")
        c.e("\n".join(rdK(0) + rdV(0, 0)))
        if not fb:
            c.e("\n".join(dma_chunk()))
            c.e(f"""
            s_lshl_b32 s{sT2}, s{sTile}, 8
            s_add_u32 s{sT2}, s{sT2}, {G_OFF}
            buffer_load_dword v{vG[0]}, v{vGo}, {srd4}, s{sT2} offen
            buffer_load_dword v{vG[1]}, v{vGo}, {srd4}, s{sT2} offen offset:256
            """)
        c.e(f"s_waitcnt vmcnt({3 if fb else 5}) lgkmcnt(1)") if False else None
        c.e("s_waitcnt lgkmcnt(1)")
        c.e("\n".join(qk(0)))
        c.e("s_nop 7\ns_nop 3")
        if not fb: ST.i = 2; ST.stamp(c, wait=True)
        def half(b, tt):
            s = S_[b]; L = []
            src = lambda i: (s + i) if i < 12 else (T4 + i - 12)
            e = lambda i: f"v_exp_f32 v{src(i)}, v{s+i}"
            cv = lambda p: f"v_cvt_pk_bf16_f32 v{P[p//4] + p%4}, v{src(2*p)}, v{src(2*p+1)}"
            m = qk(1 - b)
            m3 = mfma32(O[b], V0, P[0]); m4p = mfma32(O[1-b], V1, P[1])
            cur = tt*KV_TS; nxt = ((tt + 1) % 4)*KV_TS
            d0 = d1 = d2 = []
            if b == 0 and tt == 0: pass
            if b == 1: L.append("s_waitcnt lgkmcnt(1)")
            L += [m[0], e(0), cv(6), e(1), cv(7), e(2), e(3), m[1]]
            if b == 0:
                if tt == 3:
                    L += ["s_waitcnt vmcnt(0)", "s_barrier",
                          f"s_add_u32 s{sSlotR}, s{sSlotR}, {SLOT}", f"s_cmp_eq_u32 s{sSlotR}, {SLOT*RING}", f"s_cselect_b32 s{sSlotR}, 0, s{sSlotR}",
                          f"v_add_u32 v{vK1c}, s{sSlotR}, v{vK1a}", f"v_add_u32 v{vK2c}, s{sSlotR}, v{vK2a}"]
                L += rdK(nxt)
            L += [e(4), e(5), cv(0), e(6), e(7), cv(1)]
            if b == 1: L.append("s_waitcnt lgkmcnt(0)")
            L.append(m4p)
            if b == 0: L += rdV(1, cur)
            if b == 0 and tt == 3: L += [f"v_add_u32 v{vVc}, s{sSlotR}, v{vVa}"]
            L += [e(8), cv(2), e(9), cv(3), e(10), e(11)]
            if b == 0: L.append("s_waitcnt lgkmcnt(3)")
            L.append(m3)
            if b == 1: L += rdV(0, nxt)
            L += [e(12), e(13), cv(4), e(14), e(15), cv(5)]
            return L
        lp = f"{name}_LOOP{tag}"
        c.label(lp)
        for tt in range(4):
            A = half(0, tt); B = half(1, tt)
            if tt == 3:
                g0, g1, g2 = dma_parts()
                c.e("\n".join(A))
                c.e(f"s_cmp_ge_u32 s{sC}, 6\ns_cbranch_scc1 {lp}_NODMA")
                c.e("\n".join(g0 + g1 + g2))
                c.label(f"{lp}_NODMA")
                c.e("\n".join(B))
            else:
                c.e("\n".join(A)); c.e("\n".join(B))
        c.e(f"""
        s_add_u32 s{sC}, s{sC}, 1
        s_cmp_lt_u32 s{sC}, 8
        s_cbranch_scc1 {lp}
        """)
        c.e(f"v_cvt_pk_bf16_f32 v{P[1]+2}, v{T4}, v{T4+1}\nv_cvt_pk_bf16_f32 v{P[1]+3}, v{T4+2}, v{T4+3}\ns_waitcnt lgkmcnt(0)\ns_nop 0")
        c.e(mfma32(O[1], V1, P[1]))
    emit_pass("", False)
    c.label(f"{name}_EPI")
    ST.i = 3; ST.stamp(c, wait=True)
    c.e(f"""
    s_mul_i32 s{sT0}, s{sW}, 3072
    s_add_u32 s{sT0}, s{sT0}, {XCH}
    v_add_u32 v{vT[4]}, s{sT0}, v{vOff}
    s_xor_b32 s{sT0}, s{sW}, 4
    s_mul_i32 s{sT0}, s{sT0}, 3072
    s_add_u32 s{sT0}, s{sT0}, {XCH}
    v_add_u32 v{vT[6]}, s{sT0}, v{vOff}
    v_mov_b32 v{vT[1]}, 0x7f800000
    v_mov_b32 v{vT[2]}, {hexf(2.0**63)}
    v_mov_b32 v{vT[3]}, {hexf(2.0**-63)}
    v_mov_b32 v{vT[5]}, {FLAG}
    s_nop 3
    s_cmp_eq_u32 s{sKH}, 0
    s_cbranch_scc1 {name}_NOSWAP
    """)
    for r in range(12): c.e(f"v_swap_b32 v{O[0]+r}, v{O[1]+r}")
    c.e(f"v_swap_b32 v{vG[0]}, v{vG[1]}")
    c.label(f"{name}_NOSWAP")
    for g in range(3): c.e(f"ds_write_b128 v{vT[4]}, {vr(O[1]+4*g,4)} offset:{1024*g}")
    c.e(f"v_add_f32 v{vT[0]}, |v{O[0]}|, |v{O[1]}|")
    for r in range(1, 12): c.e(f"v_add_f32 v{vT[0]}, |v{O[0]+r}|, v{vT[0]}\nv_add_f32 v{vT[0]}, |v{O[1]+r}|, v{vT[0]}")
    c.e(f"""
    v_min_f32 v{vT[7]}, v{O[0]+8}, v{O[1]+8}
    v_cmp_nlt_f32 s[{sU}:{sU+1}], v{vT[0]}, v{vT[1]}
    v_max_f32 v{vT[0]}, v{O[0]+8}, v{O[1]+8}
    v_cmp_nge_f32 s[{sU2}:{sU2+1}], v{vT[7]}, v{vT[3]}
    v_cmp_nle_f32 vcc, v{vT[0]}, v{vT[2]}
    s_nop 3
    s_or_b64 s[{sU2}:{sU2+1}], s[{sU2}:{sU2+1}], vcc
    s_andn2_b64 s[{sU2}:{sU2+1}], s[{sU2}:{sU2+1}], s[{sMaskLo}:{sMaskLo+1}]
    s_or_b64 s[{sU}:{sU+1}], s[{sU}:{sU+1}], s[{sU2}:{sU2+1}]
    s_cmp_eq_u64 s[{sU}:{sU+1}], 0
    s_cbranch_scc1 {name}_SAFE
    v_mov_b32 v{vT[3]}, 1
    ds_write_b32 v{vT[5]}, v{vT[3]}
    {name}_SAFE:
    s_waitcnt lgkmcnt(0)
    s_barrier
    ds_read_b32 v{vT[3]}, v{vT[5]}
    """)
    for g in range(3): c.e(f"ds_read_b128 {vr(S_[0]+4*g,4)}, v{vT[6]} offset:{1024*g}")
    c.e(f"""
    s_waitcnt lgkmcnt(3)
    v_readfirstlane_b32 s{sT0}, v{vT[3]}
    s_nop 3
    s_cmp_eq_u32 s{sMode}, 0
    s_cselect_b32 s{sT0}, s{sT0}, 0
    s_cmp_eq_u32 s{sT0}, 0
    s_cbranch_scc0 {name}_FALLBACK
    s_waitcnt vmcnt(0) lgkmcnt(0)
    """)
    for r in range(12): c.e(f"v_add_f32 v{O[0]+r}, v{O[0]+r}, v{S_[0]+r}")
    c.e(f"""
    v_mov_b32 v{vT[0]}, v{O[0]+8}
    v_mov_b32 v{vT[1]}, v{O[0]+8}
    s_nop 1
    v_permlane32_swap_b32 v{vT[0]}, v{vT[1]}
    s_nop 1
    v_rcp_f32 v{vT[1]}, v{vT[1]}
    s_nop 0
    v_mul_f32 v{vT[1]}, v{vT[1]}, v{vG[0]}
    """)
    for r in range(12): c.e(f"v_mul_f32 v{O[0]+r}, v{O[0]+r}, v{vT[1]}")
    for p in range(6): c.e(f"v_cvt_pk_bf16_f32 v{S_[1]+p}, v{O[0]+2*p}, v{O[0]+2*p+1}")
    for g in range(3):
        if g == 2: c.e(f"s_mov_b64 exec, s[{sMaskLo}:{sMaskLo+1}]")
        c.e(f"buffer_store_dwordx2 {vr(S_[1]+2*g,2)}, v{vSt[g]}, {srd4}, s{sOb} offen sc1")
    c.e(f"""
    s_mov_b64 exec, -1
    s_waitcnt vmcnt(0)
    s_barrier
    s_cmp_eq_u32 s{sW}, 0
    s_cbranch_scc0 {name}_FIN
    s_lshl_b32 s{sT0}, s{sQB}, 7
    s_add_u32 s{sT0}, s{sT0}, {CNT_OFF}
    v_mov_b32 v{vT[2]}, 0
    v_mov_b32 v{vT[3]}, 1
    s_mov_b64 exec, 1
    buffer_atomic_add v{vT[3]}, v{vT[2]}, {srd4}, s{sT0} offen
    s_mov_b64 exec, -1
    s_branch {name}_FIN
    """)
    c.label(f"{name}_FALLBACK")
    c.e("s_waitcnt vmcnt(0) lgkmcnt(0)")
    c.e(f"s_cmp_eq_u32 s{sKH}, 0\ns_cbranch_scc1 {name}_FB_NOSWAP\nv_swap_b32 v{vG[0]}, v{vG[1]}\n{name}_FB_NOSWAP:")
    c.e(f"""
    s_mov_b32 s{sMode}, 1
    v_mov_b32 v{vM[0]}, 0xff800000
    v_mov_b32 v{vM[1]}, 0xff800000
    s_mov_b32 s{sSrc}, s{sSrc0}
    s_mov_b32 s{sC}, 0
    {name}_FB_LOOP:
    s_barrier
    s_mov_b32 s{sSlotW}, 0
    """)
    c.e("\n".join(dma_chunk()))
    c.e(f"s_waitcnt vmcnt(0)\ns_barrier\nv_mov_b32 v{vK1c}, v{vK1a}\nv_mov_b32 v{vK2c}, v{vK2a}")
    for tt in range(4):
        c.e("\n".join(rdK(tt*KV_TS)))
        c.e("s_waitcnt lgkmcnt(0)")
        for b in range(2): c.e(mfma32(S_[b], K1, Q1[b], cz=0) + "\n" + mfma32x8(S_[b], K2, Q2[b]))
        c.e("s_nop 7\ns_nop 7")
        for b in range(2):
            for r in range(0, 16, 2): c.e(f"v_max3_f32 v{vM[b]}, v{S_[b]+r}, v{S_[b]+r+1}, v{vM[b]}")
    c.e(f"""
    s_add_u32 s{sC}, s{sC}, 1
    s_cmp_lt_u32 s{sC}, 8
    s_cbranch_scc1 {name}_FB_LOOP
    """)
    for b in range(2):
        c.e(f"""
        v_mov_b32 v{vT[0]}, v{vM[b]}
        v_mov_b32 v{vT[1]}, v{vM[b]}
        s_nop 1
        v_permlane32_swap_b32 v{vT[0]}, v{vT[1]}
        s_nop 1
        v_max_f32 v{vM[b]}, v{vT[0]}, v{vT[1]}
        """)
    c.e(f"""
    s_lshl_b32 s{sT0}, s{sW}, 9
    s_add_u32 s{sT0}, s{sT0}, {XCH}
    v_lshlrev_b32 v{vT[2]}, 2, v{vL}
    v_add_u32 v{vT[3]}, s{sT0}, v{vT[2]}
    s_barrier
    ds_write_b32 v{vT[3]}, v{vM[0]}
    ds_write_b32 v{vT[3]}, v{vM[1]} offset:256
    s_xor_b32 s{sT0}, s{sW}, 4
    s_lshl_b32 s{sT0}, s{sT0}, 9
    s_add_u32 s{sT0}, s{sT0}, {XCH}
    v_add_u32 v{vT[3]}, s{sT0}, v{vT[2]}
    s_waitcnt lgkmcnt(0)
    s_barrier
    ds_read_b32 v{vT[4]}, v{vT[3]}
    ds_read_b32 v{vT[5]}, v{vT[3]} offset:256
    s_waitcnt lgkmcnt(0)
    v_max_f32 v{vM[0]}, v{vM[0]}, v{vT[4]}
    v_max_f32 v{vM[1]}, v{vM[1]}, v{vT[5]}
    s_barrier
    """)
    for b in range(2):
        for r in range(16): c.e(f"v_sub_f32 v{NM[b]+r}, 0, v{vM[b]}")
    c.e(f"s_mov_b32 s{sSrc}, s{sSrc0}\ns_mov_b32 s{sSlotW}, 0")
    c.e("\n".join(dma_chunk())); c.e("\n".join(dma_chunk()))
    emit_pass("FB", True)
    c.e(f"s_branch {name}_EPI")
    Vg = Alloc(168, 2, "v")
    gOffW = [Vg.take() for _ in range(5)]; gOffA = Vg.take(); gWA = Vg.take(); gAA = Vg.take(); gOm = Vg.take()
    gT = [Vg.take() for _ in range(6)]
    gact = Vg.take(4, 4); gwf = Vg.take(20, 4); gacc = Vg.take(80, 4); goq = Vg.take(40, 4); gtmp = goq
    sRB, sCG, sKQ, sLB, sKs, sAct = sQG, sKH, sQB, sSrc, sSrc0, sTile
    srdW = Sg.take(4, 4); srdO = Sg.take(4, 4)
    NDOWN = 27; NSTEP = 37; DEFER = 0
    gs = Sg.take(16, 2) if stamps else 0
    gi = [0]
    def gstamp():
        if stamps:
            c.e(f"s_memrealtime s[{gs+2*gi[0]}:{gs+2*gi[0]+1}]\ns_waitcnt lgkmcnt(0)"); gi[0] += 1
    c.label(f"{name}_GW")
    c.e(f"""
    s_sub_u32 s{sKQ}, s{sW}, 8
    s_lshr_b32 s{sT0}, s{sJ}, 2
    s_lshl_b32 s{sRB}, s{sX}, 3
    s_add_u32 s{sRB}, s{sRB}, s{sT0}
    s_and_b32 s{sCG}, s{sJ}, 3
    s_mul_i32 s{sT0}, s{sCG}, 320
    """)
    for i in range(5):
        c.e(f"""
        v_add_u32 v{gT[1]}, {64*i}, v{vL}
        v_mul_u32_u24 v{gT[2]}, 3277, v{gT[1]}
        v_lshrrev_b32 v{gT[2]}, 16, v{gT[2]}
        v_mul_u32_u24 v{gT[3]}, 20, v{gT[2]}
        v_sub_u32 v{gT[3]}, v{gT[1]}, v{gT[3]}
        v_mul_u32_u24 v{gT[2]}, 1280, v{gT[2]}
        v_lshl_add_u32 v{gT[2]}, v{gT[3]}, 4, v{gT[2]}
        v_add_u32 v{gOffW[i]}, s{sT0}, v{gT[2]}
        """)
    c.e(f"""
    v_lshlrev_b32 v{gOffA}, 4, v{vL}
    s_mul_i32 s{sLB}, s{sKQ}, {GWAVE}
    s_add_u32 s{sLB}, s{sLB}, {GRING}
    s_mul_i32 s{sKs}, s{sKQ}, 20480
    s_mul_i32 s{sAct}, s{sRB}, 108
    s_add_u32 s{sAct}, s{sAct}, s{sKQ}
    s_lshl_b32 s{sAct}, s{sAct}, 10
    s_add_u32 s{sAct}, s{sAct}, {HF_OFF}
    s_waitcnt lgkmcnt(0)
    """)
    srd(c, srdWS, sWS, WS_BYTES); srd(c, srdW, sWD, 1728*1280); srd(c, srdO, sOUT, 2048*1280)
    def gdma(n):
        so = (n % 3)*GSLOT; L = []
        for i in range(5):
            L += [f"s_add_u32 m0, s{sLB}, {so + 1024*i}", "s_nop 0", f"buffer_load_dwordx4 v{gOffW[i]}, s[{srdW}:{srdW+3}], s{sKs} offen lds"]
        L += [f"s_add_u32 s{sKs}, s{sKs}, {4*20480}"]
        if n < NDOWN:
            L += [f"s_add_u32 m0, s{sLB}, {so + 5120}", "s_nop 0", f"buffer_load_dwordx4 v{gOffA}, {srd4}, s{sAct} offen lds", f"s_add_u32 s{sAct}, s{sAct}, 4096"]
        return L
    ndma = lambda n: 0 if n >= NDOWN else 6
    c.e(f"""
    v_and_b32 v{gT[0]}, 31, v{vL}
    v_lshlrev_b32 v{gT[1]}, 3, v{gT[0]}
    s_lshl_b32 s{sT0}, s{sRB}, 8
    s_add_u32 s{sT0}, s{sT0}, {G_OFF + 4}
    buffer_load_dword v{gOm}, v{gT[1]}, {srd4}, s{sT0} offen
    v_and_b32 v{gT[3]}, 15, v{vL}
    v_lshrrev_b32 v{gT[4]}, 2, v{gT[3]}
    v_lshrrev_b32 v{gT[2]}, 5, v{vL}
    v_lshl_add_u32 v{gT[4]}, v{gT[2]}, 2, v{gT[4]}
    v_mul_u32_u24 v{gT[4]}, 320, v{gT[4]}
    v_and_b32 v{gT[3]}, 3, v{gT[3]}
    v_lshl_add_u32 v{gT[4]}, v{gT[3]}, 3, v{gT[4]}
    v_lshrrev_b32 v{gT[3]}, 4, v{vL}
    v_and_b32 v{gT[3]}, 1, v{gT[3]}
    v_lshl_add_u32 v{gT[4]}, v{gT[3]}, 5, v{gT[4]}
    v_add_u32 v{gWA}, s{sLB}, v{gT[4]}
    v_add_u32 v{gAA}, 5120, v{gOffA}
    v_add_u32 v{gAA}, s{sLB}, v{gAA}
    """)
    for r in range(80): c.e(f"v_mov_b32 v{gacc+r}, 0")
    c.e("s_barrier")
    c.e("\n".join(gdma(0) + gdma(1)))
    def sloc(n, loc=None):
        return loc if loc is not None else (gWA, (n % 3)*GSLOT)
    def rdW(jb, areg, so):
        return [f"ds_read_b64_tr_b16 {vr(gwf+4*jb,2)}, v{areg} offset:{so + 64*jb}", f"ds_read_b64_tr_b16 {vr(gwf+4*jb+2,2)}, v{areg} offset:{so + 64*jb + 2560}"]
    def step(n, wait, post=None, loc=None):
        areg, so = sloc(n, loc)
        c.e(wait)
        act = gact
        if n < NDOWN: c.e(f"ds_read_b128 {vr(gact,4)}, v{gAA} offset:{so}")
        else: act = goq + 4*(n - NDOWN)
        for jb in range(5): c.e("\n".join(rdW(jb, areg, so)))
        if n + 2 < NDOWN: c.e("\n".join(gdma(n + 2)))
        for jb in range(5):
            c.e(f"s_waitcnt lgkmcnt({8 - 2*jb})")
            c.e(mfma32(gacc+16*jb, gwf+4*jb, act))
        if post: c.e("\n".join(post))
    def wo_steps(waits):
        areg, so = wloc(0)
        for jb in range(5): c.e("\n".join(rdW(jb, areg, so)))
        for i in range(10):
            c.e(f"s_waitcnt vmcnt({waits[i][0]})")
            nxt = wloc(i + 1) if i + 1 < 10 else None
            if nxt is not None and waits[i][1] is not None: pass
            for jb in range(5):
                c.e(f"s_waitcnt lgkmcnt({8 if nxt is not None else 8 - 2*jb})")
                c.e(mfma32(gacc+16*jb, gwf+4*jb, goq + 4*i))
                if nxt is not None:
                    if jb == 0 and waits[i][1] is not None: c.e(f"s_waitcnt vmcnt({waits[i][1]})")
                    c.e("\n".join(rdW(jb, nxt[0], nxt[1])))
            if i < 3: c.e("\n".join(wdma(7 + i)))
            if i == 0: gstamp()
    sched = [3, 4, 3, 4, 3, 4, 3, 3]; n = 0
    assert sum(sched) == NDOWN - DEFER
    gWB = gT[5]; sAB = sOb
    def wloc(i):
        if i < 3: return (gWA, GSLOT*i)
        if i < 7: return (gWB, 5120*(i - 3))
        return (gWA, GSLOT*(i - 7))
    def wdma(i):
        L = []
        base, off = (sLB, GSLOT*i) if i < 3 else ((sAB, 5120*(i - 3)) if i < 7 else (sLB, GSLOT*(i - 7)))
        for k in range(5):
            L += [f"s_add_u32 m0, s{base}, {off + 1024*k}", "s_nop 0", f"buffer_load_dwordx4 v{gOffW[k]}, s[{srdW}:{srdW+3}], s{sKs} offen lds"]
        L += [f"s_add_u32 s{sKs}, s{sKs}, {4*20480}"]
        return L
    for k in range(8):
        for _ in range(sched[k]):
            step(n, f"s_waitcnt vmcnt({ndma(n+1)})"); n += 1
        if k == 7:
            c.e(f"""
            s_mov_b32 s{srdW}, s{sWO}
            s_and_b32 s{srdW+1}, s{sWO+1}, 0xffff
            s_mov_b32 s{srdW+2}, {640*1280}
            s_mul_i32 s{sKs}, s{sKQ}, 20480
            s_mul_i32 s{sAB}, s{sKQ}, 20480
            v_subrev_u32 v{gWB}, s{sLB}, v{gWA}
            v_add_u32 v{gWB}, s{sAB}, v{gWB}
            """)
            for i in range(3): c.e("\n".join(wdma(i)))
        c.e("s_barrier")
    c.e("s_nop 7")
    for r in range(80): c.e(f"v_mul_f32 v{gacc+r}, v{gacc+r}, v{gOm}")
    c.e(f"""
    s_barrier
    v_mov_b32 v{gT[3]}, {FLAG}
    ds_read_b32 v{gT[3]}, v{gT[3]}
    s_waitcnt lgkmcnt(0)
    v_readfirstlane_b32 s{sT1}, v{gT[3]}
    s_nop 3
    s_cmp_eq_u32 s{sT1}, 0
    s_cbranch_scc1 {name}_GNOFB
    s_mov_b32 s{sT0}, {FB_BARRIERS}
    {name}_GFB:
    s_barrier
    s_sub_u32 s{sT0}, s{sT0}, 1
    s_cmp_lg_u32 s{sT0}, 0
    s_cbranch_scc1 {name}_GFB
    {name}_GNOFB:
    s_barrier
    """)
    gstamp()
    for i in range(3, 7): c.e("\n".join(wdma(i)))
    gstamp()
    c.e(f"""
    s_lshr_b32 s{sT0}, s{sRB}, 3
    s_lshl_b32 s{sT0}, s{sT0}, 7
    s_add_u32 s{sT0}, s{sT0}, {CNT_OFF}
    v_mov_b32 v{gT[2]}, 0
    s_mov_b32 s{sT2}, 0
    {name}_POLL:
    buffer_load_dword v{gT[3]}, v{gT[2]}, {srd4}, s{sT0} offen sc1
    s_waitcnt vmcnt(0)
    v_readfirstlane_b32 s{sT1}, v{gT[3]}
    s_add_u32 s{sT2}, s{sT2}, 1
    s_nop 2
    s_cmp_ge_u32 s{sT1}, 32
    s_cbranch_scc1 {name}_GO
    s_sleep 1
    s_cmp_lt_u32 s{sT2}, 0x40000
    s_cbranch_scc1 {name}_POLL
    {name}_GO:
    s_mul_i32 s{sT0}, s{sRB}, 40
    s_add_u32 s{sT0}, s{sT0}, s{sKQ}
    s_lshl_b32 s{sT0}, s{sT0}, 10
    s_add_u32 s{sT0}, s{sT0}, {OF_OFF}
    """)
    gstamp()
    c.e(f"v_lshlrev_b32 v{gT[2]}, 3, v{vL}")
    for i in range(10):
        c.e(f"buffer_load_dwordx2 {vr(goq+4*i,2)}, v{gT[2]}, {srd4}, s{sT0} offen sc1\nbuffer_load_dwordx2 {vr(goq+4*i+2,2)}, v{gT[2]}, {srd4}, s{sT0} offen offset:512 sc1\ns_add_u32 s{sT0}, s{sT0}, 4096")
    waits = [(18, None), (21, None), (24, None), (27, None), (25, None), (23, None), (21, 10), (10, 5), (5, 0), (0, None)]
    wo_steps(waits)
    gstamp()
    own = [0,0,0,1,1,1,2,2,3,3]
    c.e("s_nop 7\ns_nop 3\ns_barrier")
    for kq in range(4):
        c.e(f"s_cmp_eq_u32 s{sKQ}, {kq}\ns_cbranch_scc0 {name}_GX{kq}")
        c.e(f"v_add_u32 v{gT[5]}, {GRING}, v{gOffA}\nv_add_u32 v{gT[4]}, {GRING + 30720}, v{gOffA}")
        cnt = 0
        for p in range(10):
            if own[p] == kq: continue
            slot = kq if kq < own[p] else kq - 1
            off = p*6144 + slot*2048
            a_, o = (gT[5], off) if off < 30720 else (gT[4], off - 30720)
            for h in range(2):
                c.e(f"ds_write_b128 v{a_}, {vr(gacc + 8*p + 4*h, 4)} offset:{o + 1024*h}"); cnt += 1
                if cnt % 8 == 0: c.e("s_waitcnt lgkmcnt(4)")
        c.e(f"""
        v_and_b32 v{gT[0]}, 31, v{vL}
        s_lshl_b32 s{sT0}, s{sRB}, 5
        v_add_u32 v{gT[0]}, s{sT0}, v{gT[0]}
        v_mul_u32_u24 v{gT[0]}, 1280, v{gT[0]}
        v_lshrrev_b32 v{gT[2]}, 5, v{vL}
        v_lshl_add_u32 v{gT[0]}, v{gT[2]}, 4, v{gT[0]}
        s_mul_i32 s{sT0}, s{sCG}, 320
        s_waitcnt lgkmcnt(0)
        s_barrier
        """)
        mine = [p for p in range(10) if own[p] == kq]
        for ip, p in enumerate(mine):
            off = p*6144
            a_, o = (gT[5], off) if off < 30720 else (gT[4], off - 30720)
            t = gtmp + 24 + 4*(ip % 2)
            for h in range(2):
                for sl in range(3): c.e(f"ds_read_b128 {vr(gtmp+12*h+4*sl,4)}, v{a_} offset:{o + 2048*sl + 1024*h}")
            for h in range(2):
                for sl in range(3):
                    c.e(f"s_waitcnt lgkmcnt({5 - 3*h - sl})")
                    for r in range(4): c.e(f"v_add_f32 v{gacc+8*p+4*h+r}, v{gacc+8*p+4*h+r}, v{gtmp+12*h+4*sl+r}")
            for q in range(4): c.e(f"v_cvt_pk_bf16_f32 v{t+q}, v{gacc+8*p+2*q}, v{gacc+8*p+2*q+1}")
            c.e(f"""
            s_nop 1
            v_permlane32_swap_b32 v{t}, v{t+2}
            v_permlane32_swap_b32 v{t+1}, v{t+3}
            s_add_u32 s{sT2}, s{sT0}, {32*p}
            s_nop 0
            buffer_store_dwordx4 {vr(t,4)}, v{gT[0]}, s[{srdO}:{srdO+3}], s{sT2} offen{OM}
            """)
        c.e(f"s_branch {name}_GEND")
        c.label(f"{name}_GX{kq}")
    c.label(f"{name}_GEND")
    if stamps:
        c.e("s_waitcnt vmcnt(0)")
        gstamp()
        c.e(f"""
        s_lshl_b32 s{sT0}, s2, 2
        s_add_u32 s{sT0}, s{sT0}, s{sKQ}
        s_lshl_b32 s{sT0}, s{sT0}, 5
        s_add_u32 s{sT0}, s{sT0}, {STAMP_OFF + 2*65536}
        v_mov_b32 v{gT[2]}, 0
        """)
        for i in range(gi[0]):
            c.e(f"v_mov_b32 v{gT[3]}, s{gs+2*i}\nbuffer_store_dword v{gT[3]}, v{gT[2]}, {srd4}, s{sT0} offen offset:{4*i}\ns_nop 1")
    c.e("s_endpgm")
    c.label(f"{name}_FIN")
    if stamps: c.e("s_waitcnt vmcnt(0)")
    ST.i = 4; ST.stamp(c); ST.stamp(c, real=True)
    if stamps: ST.i = 8
    ST.flush(c, sW, srdWS, vT[2], vT[3], sT0)
    c.e(f"""
    {name}_END:
    s_endpgm
    """)
    def S(kh, unsafe=False, fb=False):
        d = {f"{name}_END": False, f"{name}_LOOP_NODMA": (lambda k: k % 3 == 2), f"{name}_LOOPFB_NODMA": (lambda k: k % 3 == 2), f"{name}_NOSWAP": kh == 0, f"{name}_SAFE": not unsafe,
             f"{name}_FALLBACK": (lambda k: k == 0 and fb), f"{name}_FB_NOSWAP": kh == 0}
        return d
    scen = {"kh0": S(0), "kh1": S(1), "fb": S(1, True, True)}
    for k_ in scen: scen[k_][f"{name}_GW"] = False; scen[k_][f"{name}_FIN"] = (k_ == "kh1")
    for kq in range(4):
        d = {f"{name}_END": False, f"{name}_GW": True, f"{name}_GNOFB": kq % 2 == 0, f"{name}_GO": (lambda k: k >= 1), f"{name}_POLL": True}
        for q in range(4): d[f"{name}_GX{q}"] = (q != kq)
        scen[f"g{kq}"] = d
    return c, max(V.hi, Vg.hi), scen, K2_LDS
    return c, V.hi, scen, K2_LDS

if __name__ == "__main__":
    c, nv, scen, lds = gen_k2()
    errs = check(c.lines, scen, "k2")
    print("vgprs", nv, "lds", lds, "lines", len(c.lines))
    for e in errs[:40]: print(e)
```

```python
import sys
from build import *
from k1b import gen_k1
from k2 import gen_k2
SLOT = 40*1024*1024
def base():
    ks = []
    c, nv, scen, lds = gen_k1("k1_kernel"); ks.append(("k1_kernel", c, nv, scen, lds, 256, 768))
    c, nv, scen, lds = gen_k2("k2_kernel"); ks.append(("k2_kernel", c, nv, scen, lds, 256, 768))
    return ks
def with_start_stamp(k, nwg):
    name, c, nv, scen, lds, g, b = k
    c2 = Code()
    c2.e(f"""
    s_cmp_lt_u32 s2, {nwg}
    s_cbranch_scc0 {name}_NOST
    s_memrealtime s[90:91]
    s_load_dwordx2 s[92:93], s[0:1], {KA_WS}
    s_waitcnt lgkmcnt(0)
    s_and_b32 s93, s93, 0xffff
    s_mov_b32 s94, {WS_BYTES}
    s_mov_b32 s95, 0x20000
    s_lshl_b32 s96, s2, 2
    s_add_u32 s96, s96, {SLOT}
    v_mov_b32 v166, s90
    v_mov_b32 v167, 0
    s_nop 4
    buffer_store_dword v166, v167, s[92:95], s96 offen
    {name}_NOST:
    """)
    c2.lines += c.lines
    sc = {k_: dict(v, **{f"{name}_NOST": False}) for k_, v in scen.items()}
    return (name, c2, 168, sc, lds, g, b)
def spin(factor, name):
    c = Code()
    c.e(f"""
    s_cmp_eq_u32 s2, 0
    s_cbranch_scc0 {name}_END
    s_load_dwordx2 s[4:5], s[0:1], {KA_WS}
    s_waitcnt lgkmcnt(0)
    s_and_b32 s5, s5, 0xffff
    s_mov_b32 s6, {WS_BYTES}
    s_mov_b32 s7, 0x20000
    s_mov_b32 s16, {SLOT}
    v_lshlrev_b32 v1, 4, v0
    buffer_load_dwordx4 v[4:7], v1, s[4:7], s16 offen
    s_waitcnt vmcnt(0)
    v_min_u32 v2, v4, v5
    v_min_u32 v2, v2, v6
    v_min_u32 v2, v2, v7
    v_max_u32 v3, v4, v5
    v_max_u32 v3, v3, v6
    v_max_u32 v3, v3, v7
    """)
    c.e("s_nop 1\nv_readlane_b32 s10, v2, 0\nv_readlane_b32 s11, v3, 0")
    for l in range(1, 64):
        c.e(f"v_readlane_b32 s12, v2, {l}\nv_readlane_b32 s13, v3, {l}\ns_nop 3\ns_min_u32 s10, s10, s12\ns_max_u32 s11, s11, s13")
    c.e(f"""
    s_memrealtime s[8:9]
    s_waitcnt lgkmcnt(0)
    v_readlane_b32 s11, v4, 0
    s_nop 3
    s_sub_u32 s10, s8, s11
    s_min_u32 s10, s10, 9000
    s_mul_i32 s10, s10, {factor}
    s_memrealtime s[8:9]
    s_waitcnt lgkmcnt(0)
    {name}_L:
    s_memrealtime s[12:13]
    s_waitcnt lgkmcnt(0)
    s_sub_u32 s14, s12, s8
    s_cmp_lt_u32 s14, s10
    s_cbranch_scc1 {name}_L
    {name}_END:
    s_endpgm
    """)
    return (name, c, 16, {"a": {f"{name}_END": False}}, 0, 1, 64)
b = base()
b0 = [with_start_stamp(b[0], 256), b[1]]
build(b0 + [spin(0, "spin0_kernel")], "G.s")
build(b0 + [spin(1, "spin1_kernel")], "H.s")
b1 = [b[0], with_start_stamp(b[1], 256)]
build(b1 + [spin(1, "spin1_kernel")], "I.s")
for f in "GHI": assemble_dev(f"var/{f}.s")
```

```python
import sys
from build import *
from k1b import gen_k1
from k2 import gen_k2
def K1(n="k1_kernel"):
    c, nv, scen, lds = gen_k1(n); return (n, c, nv, scen, lds, 256, 768)
def K2(n="k2_kernel"):
    c, nv, scen, lds = gen_k2(n); return (n, c, nv, scen, lds, 256, 768)
a, b = K1(), K2()
build([a, b], "P.s")
build([a, a, b], "Q.s")
build([K1("k1c_kernel"), a, b], "R.s")
build([a, b, a, b], "S.s")
build([K1("k1c_kernel"), K2("k2c_kernel"), a, b], "T.s")
for f in "PQRST": assemble_dev(f"var/{f}.s")
```

```python
from common import *
NST = 20
WSLOT = 24576; WRING = 4; UOFF = 12288
XSLOT = 16384; XRING = 3
XBASE = WSLOT*WRING
K1_LDS = XBASE + XSLOT*XRING
def mfma16(d, a, b, cz=None):
    return f"v_mfma_f32_16x16x32_bf16 {vr(d,4)}, {vr(a,4)}, {vr(b,4)}, " + (vr(d,4) if cz is None else str(cz))

def gen_k1(name="k1_kernel", stamps=False, exp=""):
    c = Code()
    SM = " sc1" if "SC1" in exp else (" sc0 sc1" if "SC01" in exp else ("" if "PLAIN" in exp else (" nt" if "NT" in exp else " sc1")))
    SMQ = SM; SMH = SM
    if "QP" in exp: SMQ = ""
    if "HP" in exp: SMH = ""
    if "QS" in exp: SMQ = " sc1"
    if "HS" in exp: SMH = " sc1"
    V = Alloc(168, 1, "v"); Sg = Alloc(100, 18, "s")
    sAX, sWQ, sGW, sWG, sWU, sWS = 4, 6, 10, 12, 14, 16
    PF = 0 if 'NOPF' in exp else 5
    sX = Sg.take(); sJ = Sg.take(); sCG = Sg.take(); sRT = Sg.take(); sW = Sg.take(); sTH = Sg.take(); sCQ = Sg.take(); sSub = Sg.take()
    sT0 = Sg.take(); sT1 = Sg.take(); sT2 = Sg.take(); sT3 = Sg.take()
    srdX = Sg.take(4, 4); srdW = Sg.take(4, 4); srdWS = Sg.take(4, 4)
    sMw = Sg.take(); sMx = Sg.take(); sKx = Sg.take(); sKw = Sg.take(); sKwStep = Sg.take()
    sBase = Sg.take(); sHS = Sg.take(); sTS = Sg.take(); sScale = Sg.take()
    sWD = Sg.take(2, 2)
    ST = Stamps(Sg, stamps, 0)
    vL = V.take(); vT = [V.take() for _ in range(8)]
    vOffX = V.take(); vOffW = [V.take(), V.take()]
    vXA = [V.take(), V.take()]; vWA = [V.take() for _ in range(4)]; vWH = [V.take() for _ in range(4)]
    sets = [(V.take(16, 4), V.take(16, 4)) for _ in range(2)]
    acc = V.take(64, 4)
    vPF = V.take()
    vE = sets[0][0]
    aE = [V.take() for _ in range(4)]; aO = [V.take() for _ in range(4)]; aC = [V.take() for _ in range(5)]
    D = lambda fb, tb: acc + 16*fb + 4*tb

    c.e(f"""
    s_cmp_ge_u32 s2, 256
    s_cbranch_scc1 {name}_END
    s_load_dwordx4 s[4:7], s[0:1], {KA_AX}
    s_load_dwordx2 s[10:11], s[0:1], {KA_GW}
    s_load_dwordx4 s[12:15], s[0:1], {KA_WG}
    s_load_dwordx2 s[16:17], s[0:1], {KA_WS}
    s_load_dwordx2 s[8:9], s[0:1], {KA_WO}
    s_load_dwordx2 s[{sWD}:{sWD+1}], s[0:1], {KA_WD}
    v_and_b32 v{vL}, 63, v0
    v_lshrrev_b32 v{vT[0]}, 6, v0
    s_and_b32 s{sX}, s2, 7
    s_lshr_b32 s{sJ}, s2, 3
    v_readfirstlane_b32 s{sW}, v{vT[0]}
    s_and_b32 s{sT0}, s{sJ}, 1
    s_lshr_b32 s{sRT}, s{sJ}, 1
    """)
    if "OLDMAP" in exp:
        c.e(f"s_lshl_b32 s{sCG}, s{sX}, 1\ns_add_u32 s{sCG}, s{sCG}, s{sT0}")
    else:
        c.e(f"""
        s_mul_i32 s{sT1}, s{sT0}, 6
        s_add_u32 s{sT1}, s{sT1}, s{sX}
        s_lshl_b32 s{sCG}, s{sX}, 1
        s_add_u32 s{sCG}, s{sCG}, s{sT0}
        s_cmp_lt_u32 s{sX}, 6
        s_cselect_b32 s{sCG}, s{sT1}, s{sCG}
        """)
    ST.stamp(c, real=True); ST.stamp(c)
    c.e(f"""
    v_lshrrev_b32 v{vT[1]}, 3, v{vL}
    v_lshrrev_b32 v{vT[2]}, 4, v{vL}
    s_lshl_b32 s{sT0}, s{sW}, 2
    v_add_u32 v{vT[2]}, s{sT0}, v{vT[2]}
    v_xor_b32 v{vT[2]}, v{vT[2]}, v{vL}
    v_and_b32 v{vT[2]}, 7, v{vT[2]}
    s_lshl_b32 s{sT0}, s{sRT}, 7
    s_lshl_b32 s{sT1}, s{sW}, 3
    s_add_u32 s{sT0}, s{sT0}, s{sT1}
    v_add_u32 v{vT[1]}, s{sT0}, v{vT[1]}
    v_mul_u32_u24 v{vT[1]}, 1280, v{vT[1]}
    v_lshl_add_u32 v{vOffX}, v{vT[2]}, 4, v{vT[1]}
    s_lshl_b32 s{sMx}, s{sW}, 10
    s_add_u32 s{sMx}, s{sMx}, {XBASE}
    s_and_b32 s{sTH}, s{sW}, 1
    s_lshr_b32 s{sCQ}, s{sW}, 1
    s_mov_b32 s{sSub}, 0
    s_cmp_eq_u32 s{sCG}, 15
    s_cbranch_scc1 {name}_GATE
    s_lshl_b32 s{sMw}, s{sW}, 11
    s_cmp_lt_u32 s{sCG}, 6
    s_cbranch_scc0 {name}_GLU
    """)
    def woff(i, nch, magic, rs):
        return f"""
        v_add_u32 v{vT[1]}, s{sT0}, v{vL}
        v_mul_u32_u24 v{vT[2]}, {magic}, v{vT[1]}
        v_lshrrev_b32 v{vT[2]}, 16, v{vT[2]}
        v_mul_u32_u24 v{vT[3]}, {nch}, v{vT[2]}
        v_sub_u32 v{vT[3]}, v{vT[1]}, v{vT[3]}
        v_lshrrev_b32 v{vT[4]}, 1, v{vT[2]}
        v_and_b32 v{vT[4]}, 4, v{vT[4]}
        v_and_or_b32 v{vT[4]}, v{vT[2]}, 2, v{vT[4]}
        v_xor_b32 v{vT[3]}, v{vT[3]}, v{vT[4]}
        v_mul_u32_u24 v{vT[2]}, {rs}, v{vT[2]}
        v_lshl_add_u32 v{vT[2]}, v{vT[3]}, 4, v{vT[2]}
        v_add_u32 v{vOffW[i]}, s{sT3}, v{vT[2]}
        s_add_u32 s{sT0}, s{sT0}, 64
        """
    c.e(f"""
    s_lshl_b32 s{sT0}, s{sW}, 7
    s_cmp_lt_u32 s{sW}, 8
    s_cbranch_scc1 {name}_QW
    s_add_u32 s{sT0}, s{sW}, 8
    s_lshl_b32 s{sMw}, s{sT0}, 10
    s_lshl_b32 s{sT0}, s{sT0}, 6
    s_and_b32 s{sSub}, s{sCQ}, 1
    s_mov_b32 s{sCQ}, 4
    {name}_QW:
    s_mul_i32 s{sT3}, s{sCG}, 640
    """)
    c.e(woff(0, 40, 1639, 3840)); c.e(woff(1, 40, 1639, 3840))
    c.e(f"s_mov_b32 s{sKwStep}, {32*3840}\ns_waitcnt lgkmcnt(0)")
    srd(c, srdW, sWQ, 640*3840)
    c.e(f"s_branch {name}_DEC")
    c.label(f"{name}_GLU")
    c.e(f"""
    s_cmp_lt_u32 s{sW}, 6
    s_cselect_b32 s{sT1}, 0, 6
    s_sub_u32 s{sT0}, s{sW}, s{sT1}
    s_lshl_b32 s{sT0}, s{sT0}, 7
    s_sub_u32 s{sT3}, s{sCG}, 6
    s_mul_i32 s{sT3}, s{sT3}, 384
    """)
    c.e(woff(0, 24, 2731, 3456)); c.e(woff(1, 24, 2731, 3456))
    c.e(f"""
    s_mov_b32 s{sKwStep}, {32*3456}
    s_waitcnt lgkmcnt(0)
    s_cmp_lt_u32 s{sW}, 6
    s_cselect_b32 s{srdW}, s{sWG}, s{sWU}
    s_cselect_b32 s{srdW+1}, s{sWG+1}, s{sWU+1}
    s_and_b32 s{srdW+1}, s{srdW+1}, 0xffff
    s_mov_b32 s{srdW+2}, {640*3456}
    s_mov_b32 s{srdW+3}, 0x20000
    """)
    c.label(f"{name}_DEC")
    srd(c, srdX, sAX, 2048*1280)
    c.e(f"s_mov_b32 s{sKw}, 0")
    def qkv_params():
        c.e(f"""
        s_cmp_lt_u32 s{sCG}, 2
        {csel(sHS, QF_HS, KV_HS)}
        {csel(sTS, QF_TS, KV_TS)}
        {csel(sBase, QF_OFF, KV_OFF)}
        {csel(sScale, hexf(LOG2E*20**-0.5), hexf(1.0))}
        s_cmp_lt_u32 s{sCG}, 4
        s_cselect_b32 s{sBase}, s{sBase}, {KV_OFF + 1280}
        """)
    def qk_addr():
        c.e(f"""
        v_and_b32 v{vT[0]}, 15, v{vL}
        v_lshrrev_b32 v{vT[1]}, 4, v{vL}
        s_lshl_b32 s{sT0}, s{sCQ}, 4
        v_add_u32 v{vT[1]}, s{sT0}, v{vT[1]}
        s_mul_i32 s{sT1}, s{sTH}, 2560
        s_mul_i32 s{sT2}, s{sSub}, 1280
        s_add_u32 s{sT1}, s{sT1}, s{sT2}
        """)
        for fb in range(4):
            c.e(f"""
            v_add_u32 v{vT[2]}, {4*fb}, v{vT[1]}
            v_mul_u32_u24 v{vT[3]}, 13108, v{vT[2]}
            v_lshrrev_b32 v{vT[3]}, 16, v{vT[3]}
            v_mul_u32_u24 v{vT[4]}, 5, v{vT[3]}
            v_sub_u32 v{vT[4]}, v{vT[2]}, v{vT[4]}
            v_mul_u32_u24 v{vT[3]}, 5120, v{vT[3]}
            v_add_u32 v{vT[3]}, s{sT1}, v{vT[3]}
            v_lshrrev_b32 v{vT[5]}, 1, v{vT[4]}
            v_lshlrev_b32 v{vT[5]}, 9, v{vT[5]}
            v_and_b32 v{vT[6]}, 1, v{vT[4]}
            v_lshl_add_u32 v{vT[5]}, v{vT[6]}, 3, v{vT[5]}
            v_lshl_add_u32 v{vT[5]}, v{vT[0]}, 4, v{vT[5]}
            v_lshlrev_b32 v{vT[6]}, 3, v{vT[0]}
            v_add_u32 v{vT[6]}, 1024, v{vT[6]}
            v_cmp_eq_u32 vcc, 4, v{vT[4]}
            v_mov_b32 v{vT[7]}, 256
            v_mov_b32 v{vT[2]}, 128
            v_cndmask_b32 v{vT[5]}, v{vT[5]}, v{vT[6]}, vcc
            v_cndmask_b32 v{vT[7]}, v{vT[7]}, v{vT[2]}, vcc
            v_add_u32 v{aE[fb]}, v{vT[3]}, v{vT[5]}
            v_add_u32 v{aO[fb]}, v{aE[fb]}, v{vT[7]}
            """)

    def v_addr():
        c.e(f"""
        v_and_b32 v{vT[0]}, 15, v{vL}
        v_lshrrev_b32 v{vT[1]}, 4, v{vL}
        s_lshl_b32 s{sT0}, s{sCQ}, 6
        v_add_u32 v{vT[0]}, s{sT0}, v{vT[0]}
        v_and_b32 v{vT[2]}, 1, v{vT[1]}
        v_mul_u32_u24 v{vT[2]}, 320, v{vT[2]}
        v_lshrrev_b32 v{vT[1]}, 1, v{vT[1]}
        v_lshl_add_u32 v{vT[1]}, v{vT[1]}, 3, v{vT[2]}
        s_mul_i32 s{sT1}, s{sTH}, 2560
        s_mul_i32 s{sT2}, s{sSub}, 1280
        s_add_u32 s{sT1}, s{sT1}, s{sT2}
        v_add_u32 v{vT[1]}, s{sT1}, v{vT[1]}
        """)
        for fb in range(4):
            c.e(f"""
            v_add_u32 v{vT[2]}, {16*fb}, v{vT[0]}
            v_mul_u32_u24 v{vT[3]}, 3277, v{vT[2]}
            v_lshrrev_b32 v{vT[3]}, 16, v{vT[3]}
            v_mul_u32_u24 v{vT[4]}, 20, v{vT[3]}
            v_sub_u32 v{vT[4]}, v{vT[2]}, v{vT[4]}
            v_mul_u32_u24 v{vT[3]}, 5120, v{vT[3]}
            v_lshl_add_u32 v{vT[3]}, v{vT[4]}, 4, v{vT[3]}
            v_add_u32 v{aE[fb]}, v{vT[3]}, v{vT[1]}
            """)

    def c_addr():
        for k in range(5):
            c.e(f"""
            v_add_u32 v{vT[1]}, {64*k}, v{vL}
            v_mul_u32_u24 v{vT[2]}, 820, v{vT[1]}
            v_lshrrev_b32 v{vT[2]}, 16, v{vT[2]}
            v_mul_u32_u24 v{vT[3]}, 80, v{vT[2]}
            v_sub_u32 v{vT[3]}, v{vT[1]}, v{vT[3]}
            v_mul_lo_u32 v{vT[2]}, v{vT[2]}, s{sTS}
            v_lshl_add_u32 v{aC[k]}, v{vT[3]}, 4, v{vT[2]}
            """)

    def prefetch(glu):
        if not PF: return
        srdP = srdX
        c.e(f"""
        s_sub_u32 s{sT0}, s{sW}, 8
        s_lshl_b32 s{sT1}, s{sJ}, 6
        v_add_u32 v{vT[1]}, s{sT1}, v{vL}
        v_mul_u32_u24 v{vT[1]}, 1280, v{vT[1]}
        s_lshl_b32 s{sT1}, s{sT0}, 7
        s_add_u32 s{sT1}, s{sT1}, 256
        buffer_load_dword v{vPF}, v{vT[1]}, s[{srdX}:{srdX+3}], s{sT1} offen
        s_add_u32 s{sT1}, s{sT1}, 512
        buffer_load_dword v{vPF}, v{vT[1]}, s[{srdX}:{srdX+3}], s{sT1} offen
        """)
        if glu:
            c.e(f"""
            s_cmp_lt_u32 s{sT0}, 2
            s_cselect_b32 s{srdWS}, s{sWG}, s{sWU}
            s_cselect_b32 s{srdWS+1}, s{sWG+1}, s{sWU+1}
            s_and_b32 s{srdWS+1}, s{srdWS+1}, 0xffff
            s_mov_b32 s{srdWS+2}, {640*3456}
            s_mov_b32 s{srdWS+3}, 0x20000
            s_and_b32 s{sT1}, s{sT0}, 1
            s_mul_i32 s{sT1}, s{sT1}, 60
            v_min_u32 v{vT[1]}, 59, v{vL}
            v_add_u32 v{vT[1]}, s{sT1}, v{vT[1]}
            v_mul_u32_u24 v{vT[2]}, 21846, v{vT[1]}
            v_lshrrev_b32 v{vT[2]}, 16, v{vT[2]}
            v_mul_u32_u24 v{vT[3]}, 3, v{vT[2]}
            v_sub_u32 v{vT[3]}, v{vT[1]}, v{vT[3]}
            s_mul_i32 s{sT1}, s{sRT}, 40
            v_add_u32 v{vT[2]}, s{sT1}, v{vT[2]}
            v_mul_u32_u24 v{vT[2]}, 3456, v{vT[2]}
            v_lshl_add_u32 v{vT[2]}, v{vT[3]}, 7, v{vT[2]}
            s_sub_u32 s{sT1}, s{sCG}, 6
            s_mul_i32 s{sT1}, s{sT1}, 384
            buffer_load_dword v{vPF}, v{vT[2]}, s[{srdWS}:{srdWS+3}], s{sT1} offen
            """)
        else:
            c.e(f"""
            s_mul_i32 s{sT1}, s{sT0}, 50
            v_min_u32 v{vT[1]}, 49, v{vL}
            v_add_u32 v{vT[1]}, s{sT1}, v{vT[1]}
            v_mul_u32_u24 v{vT[2]}, 13108, v{vT[1]}
            v_lshrrev_b32 v{vT[2]}, 16, v{vT[2]}
            v_mul_u32_u24 v{vT[3]}, 5, v{vT[2]}
            v_sub_u32 v{vT[3]}, v{vT[1]}, v{vT[3]}
            s_mul_i32 s{sT1}, s{sRT}, 40
            v_add_u32 v{vT[2]}, s{sT1}, v{vT[2]}
            v_mul_u32_u24 v{vT[2]}, 3840, v{vT[2]}
            v_lshl_add_u32 v{vT[2]}, v{vT[3]}, 7, v{vT[2]}
            s_mul_i32 s{sT1}, s{sCG}, 640
            buffer_load_dword v{vPF}, v{vT[2]}, s[{srdW}:{srdW+3}], s{sT1} offen
            """)
        c.e(f"""
        s_lshl_b32 s{sT1}, s2, 2
        s_add_u32 s{sT1}, s{sT1}, s{sT0}
        s_mov_b32 s{srdWS}, s{sWD}
        s_and_b32 s{srdWS+1}, s{sWD+1}, 0xffff
        s_mov_b32 s{srdWS+2}, {1728*1280}
        s_mov_b32 s{srdWS+3}, 0x20000
        s_mul_i32 s{sT2}, s{sT1}, {17*128}
        v_min_u32 v{vT[1]}, 16, v{vL}
        v_lshlrev_b32 v{vT[1]}, 7, v{vT[1]}
        buffer_load_dword v{vPF}, v{vT[1]}, s[{srdWS}:{srdWS+3}], s{sT2} offen
        s_mov_b32 s{srdWS}, s8
        s_and_b32 s{srdWS+1}, s9, 0xffff
        s_mov_b32 s{srdWS+2}, {640*1280}
        s_mul_i32 s{sT2}, s{sT1}, {7*128}
        v_min_u32 v{vT[1]}, 6, v{vL}
        v_lshlrev_b32 v{vT[1]}, 7, v{vT[1]}
        buffer_load_dword v{vPF}, v{vT[1]}, s[{srdWS}:{srdWS+3}], s{sT2} offen
        """)
    def dma_w(i, st):
        return [f"s_add_u32 m0, s{sMw}, {(st % WRING)*WSLOT + 1024*i}", "s_nop 0", f"buffer_load_dwordx4 v{vOffW[i]}, s[{srdW}:{srdW+3}], s{sKw} offen lds"]
    def dma_x(u):
        m, hf = u >> 1, u & 1
        return [f"s_add_u32 m0, s{sMx}, {(m % XRING)*XSLOT + hf*8192}", f"s_mov_b32 s{sKx}, {m*128 + hf*64*1280}", f"buffer_load_dwordx4 v{vOffX}, s[{srdX}:{srdX+3}], s{sKx} offen lds"]
    advw = [f"s_add_u32 s{sKw}, s{sKw}, s{sKwStep}"]
    c.e(f"""
    s_cmp_lt_u32 s{sW}, 8
    s_cbranch_scc0 {name}_PRO_NX
    """)
    c.e("\n".join(dma_x(0) + dma_w(0, 0) + dma_w(1, 0) + advw + dma_x(1)))
    c.e("\n".join(dma_w(0, 1) + dma_w(1, 1) + advw + dma_x(2) + dma_w(0, 2) + dma_w(1, 2) + advw + dma_x(3)))
    c.e(f"s_branch {name}_PRO_D")
    c.label(f"{name}_PRO_NX")
    c.e(f"s_cmp_lt_u32 s{sCG}, 6\ns_cbranch_scc1 {name}_PRO_H")
    for st in range(3): c.e("\n".join(dma_w(0, st) + dma_w(1, st) + advw))
    prefetch(True)
    c.e(f"s_branch {name}_PRO_D")
    c.label(f"{name}_PRO_H")
    for st in range(3): c.e("\n".join(dma_w(0, st) + advw))
    prefetch(False)
    c.label(f"{name}_PRO_D")
    c.e(f"""
    v_and_b32 v{vT[1]}, 15, v{vL}
    v_lshrrev_b32 v{vT[2]}, 4, v{vL}
    v_lshrrev_b32 v{vT[3]}, 1, v{vT[1]}
    v_xor_b32 v{vT[3]}, v{vT[3]}, v{vT[2]}
    v_lshlrev_b32 v{vT[3]}, 4, v{vT[3]}
    v_lshl_add_u32 v{vT[3]}, v{vT[1]}, 7, v{vT[3]}
    s_lshl_b32 s{sT0}, s{sTH}, 13
    s_lshl_b32 s{sT1}, s{sSub}, 12
    s_add_u32 s{sT0}, s{sT0}, s{sT1}
    s_add_u32 s{sT0}, s{sT0}, {XBASE}
    v_add_u32 v{vXA[0]}, s{sT0}, v{vT[3]}
    v_xor_b32 v{vXA[1]}, 64, v{vXA[0]}
    v_lshrrev_b32 v{vT[3]}, 2, v{vT[1]}
    v_lshl_add_u32 v{vT[4]}, v{vT[2]}, 3, v{vT[3]}
    v_lshrrev_b32 v{vT[3]}, 1, v{vT[3]}
    v_and_b32 v{vT[5]}, 1, v{vT[2]}
    v_lshl_or_b32 v{vT[3]}, v{vT[5]}, 1, v{vT[3]}
    v_and_b32 v{vT[5]}, 3, v{vT[1]}
    v_lshlrev_b32 v{vT[5]}, 3, v{vT[5]}
    s_cmp_lt_u32 s{sCG}, 6
    s_cbranch_scc0 {name}_RA_GLU
    v_mul_u32_u24 v{vT[4]}, 640, v{vT[4]}
    v_add_u32 v{vT[4]}, v{vT[4]}, v{vT[5]}
    s_lshl_b32 s{sT0}, s{sCQ}, 7
    v_add_u32 v{vT[4]}, s{sT0}, v{vT[4]}
    """)
    for fb in range(4):
        c.e(f"v_xor_b32 v{vT[6]}, {fb}, v{vT[3]}\nv_lshl_add_u32 v{vWA[fb]}, v{vT[6]}, 5, v{vT[4]}")
    c.e(f"s_branch {name}_RA")
    c.label(f"{name}_RA_GLU")
    c.e(f"""
    v_mul_u32_u24 v{vT[4]}, 384, v{vT[4]}
    v_add_u32 v{vT[4]}, v{vT[4]}, v{vT[5]}
    """)
    for f in range(2):
        c.e(f"""
        s_lshl_b32 s{sT0}, s{sCQ}, 1
        s_add_u32 s{sT0}, s{sT0}, {f}
        s_and_b32 s{sT1}, s{sT0}, 3
        s_andn2_b32 s{sT0}, s{sT0}, 3
        s_lshl_b32 s{sT0}, s{sT0}, 5
        v_xor_b32 v{vT[6]}, s{sT1}, v{vT[3]}
        v_lshl_add_u32 v{vT[6]}, v{vT[6]}, 5, v{vT[4]}
        v_add_u32 v{vWA[f]}, s{sT0}, v{vT[6]}
        v_add_u32 v{vWA[2+f]}, {UOFF}, v{vWA[f]}
        """)
    c.label(f"{name}_RA")
    for fb in range(4): c.e(f"v_add_u32 v{vWH[fb]}, {2*WSLOT}, v{vWA[fb]}")
    srd(c, srdWS, sWS, WS_BYTES)
    for r_ in aE + aO + aC: c.e(f"v_mov_b32 v{r_}, 0")
    c.e(f"s_cmp_lt_u32 s{sCG}, 6\ns_cbranch_scc0 {name}_NOEA")
    qkv_params(); c_addr()
    c.e(f"s_cmp_lt_u32 s{sCG}, 4\ns_cbranch_scc0 {name}_EAV")
    qk_addr()
    c.e(f"s_branch {name}_NOEA")
    c.label(f"{name}_EAV")
    v_addr()
    c.label(f"{name}_NOEA")
    ST.stamp(c)
    c.e(f"""
    s_cmp_lt_u32 s{sW}, 8
    s_cselect_b32 s{sT1}, 0, 1
    s_cmp_lt_u32 s{sCG}, 4
    s_cselect_b32 s{sT0}, 0, 2
    s_cmp_lt_u32 s{sCG}, 6
    s_cselect_b32 s{sT0}, s{sT0}, 4
    s_add_u32 s{sT0}, s{sT0}, s{sT1}
    """)
    variants = [("QK", 1, 4, 2), ("QK", 0, 2, 1), ("V", 1, 4, 2), ("V", 0, 2, 1), ("GLU", 1, 4, 2), ("GLU", 0, 4, 2)]
    for i in range(1, 6): c.e(f"s_cmp_eq_u32 s{sT0}, {i}\ns_cbranch_scc1 {name}_VAR{i}")
    def reads(st, rs, ntb=4):
        xs, ws_ = sets[st % 2]; p = st & 1; xslot = (st >> 1) % XRING; wsl = st % WRING
        base = vWA if wsl < 2 else vWH; so = (wsl & 1)*WSLOT
        L = []
        for i in range(4):
            L.append(f"ds_read_b64_tr_b16 {vr(ws_+4*i,2)}, v{base[i]} offset:{so}")
            L.append(f"ds_read_b64_tr_b16 {vr(ws_+4*i+2,2)}, v{base[i]} offset:{so + 4*rs}")
            if i < ntb: L.append(f"ds_read_b128 {vr(xs+4*i,4)}, v{vXA[p]} offset:{xslot*XSLOT + 2048*i}")
        return L
    def mfmas(st, role, ntb=4):
        xs, ws_ = sets[st % 2]; L = []
        for fb in range(4):
            for tb in range(ntb):
                cz = 0 if st == 0 else None
                L.append(mfma16(D(fb, tb), ws_+4*fb, xs+4*tb, cz) if role != "V" else mfma16(D(fb, tb), xs+4*tb, ws_+4*fb, cz))
        return L
    for vi, (role, nx, ntb, nw) in enumerate(variants):
        if vi: c.label(f"{name}_VAR{vi}")
        rs = 384 if role == "GLU" else 640
        def cnt(x): return ((nw if x + 3 < NST else 0) + (nx if x + 4 < NST else 0))
        def wd(st): return sum([dma_w(i, st) for i in range(nw)], [])
        for st in range(NST + 1):
            rd = reads(st, rs, ntb) if st < NST else []
            if st == 0:
                c.e(f"s_waitcnt vmcnt({cnt(-2) + cnt(-1) + (PF if nx == 0 else 0)})\ns_barrier")
                c.e("\n".join(rd))
                c.e("\n".join(wd(3) + advw + (dma_x(4) if nx else [])))
                continue
            m = mfmas(st - 1, role, ntb)
            nm = len(m)
            g = {}
            pre = [f"s_waitcnt vmcnt({cnt(st-2) + cnt(st-1) + (PF if (nx == 0 and st <= 2) else 0)})", "s_barrier"] if st < NST else []
            if ntb == 4:
                g[0] = pre + rd[0:2]
                k = 2
                for i in range(1, 11):
                    g[i] = rd[k:k+1]; k += 1
                if st < NST:
                    if st + 3 < NST:
                        g[11] = dma_w(0, st+3); g[13] = dma_w(1, st+3) + advw
                    if nx and st + 4 < NST: g[15] = dma_x(st+4)
            else:
                g[0] = pre + rd[0:2]
                for i in range(1, 5): g[i] = rd[2*i:2*i+2]
                if st < NST and st + 3 < NST: g[6] = dma_w(0, st+3) + advw
            c.e("s_waitcnt lgkmcnt(0)")
            out = []
            for i, x in enumerate(m):
                out.append(x); out += g.get(i, [])
            c.e("\n".join(out))
            if stamps and st in (3, 15):
                r = ST.s + 2*(5 if st == 3 else 6); c.e(f"s_memtime s[{r}:{r+1}]")
        c.e(f"s_branch {name}_EPI_{role}" + ("H" if ntb == 2 else ""))
    c.label(f"{name}_EPI_GLU")
    ST.i = 3; ST.stamp(c, wait=True)
    c.e(f"""
    s_lshl_b32 s{sT0}, s{sRT}, 2
    s_lshl_b32 s{sT1}, s{sTH}, 1
    s_add_u32 s{sT0}, s{sT0}, s{sT1}
    s_mul_i32 s{sBase}, s{sT0}, 108
    s_sub_u32 s{sT1}, s{sCG}, 6
    s_mul_i32 s{sT1}, s{sT1}, 12
    s_add_u32 s{sBase}, s{sBase}, s{sT1}
    s_lshl_b32 s{sT1}, s{sCQ}, 1
    s_add_u32 s{sBase}, s{sBase}, s{sT1}
    s_lshl_b32 s{sBase}, s{sBase}, 10
    s_add_u32 s{sBase}, s{sBase}, {HF_OFF}
    v_and_b32 v{vT[1]}, 15, v{vL}
    v_lshrrev_b32 v{vT[2]}, 4, v{vL}
    v_and_b32 v{vT[3]}, 1, v{vT[2]}
    v_lshlrev_b32 v{vT[3]}, 9, v{vT[3]}
    v_lshl_add_u32 v{vT[3]}, v{vT[1]}, 4, v{vT[3]}
    v_lshrrev_b32 v{vT[2]}, 1, v{vT[2]}
    v_lshl_add_u32 v{vT[0]}, v{vT[2]}, 3, v{vT[3]}
    s_mov_b32 s{sT1}, {hexf(-LOG2E)}
    s_add_u32 s{sT2}, s{sBase}, {108*1024}
    """)
    for tb in range(4):
        for f in range(2):
            g_, u_ = D(f, tb), D(2+f, tb)
            for r in range(4): c.e(f"v_mul_f32 v{g_+r}, s{sT1}, v{g_+r}")
        for f in range(2):
            for r in range(4): c.e(f"v_exp_f32 v{D(f,tb)+r}, v{D(f,tb)+r}")
        for f in range(2):
            for r in range(4): c.e(f"v_add_f32 v{D(f,tb)+r}, 1.0, v{D(f,tb)+r}")
        for f in range(2):
            for r in range(4): c.e(f"v_rcp_f32 v{D(f,tb)+r}, v{D(f,tb)+r}")
        for f in range(2):
            for r in range(4): c.e(f"v_mul_f32 v{D(f,tb)+r}, v{D(f,tb)+r}, v{D(2+f,tb)+r}")
        e = vE + 4*(tb % 4)
        for f in range(2):
            c.e(f"v_cvt_pk_bf16_f32 v{e+2*f}, v{D(f,tb)}, v{D(f,tb)+1}\nv_cvt_pk_bf16_f32 v{e+2*f+1}, v{D(f,tb)+2}, v{D(f,tb)+3}")
        for f in range(2):
            c.e(f"buffer_store_dwordx2 {vr(e+2*f,2)}, v{vT[0]}, s[{srdWS}:{srdWS+3}], s{sBase if tb < 2 else sT2} offen offset:{1024*f + 256*(tb & 1)}{SMH}")
    c.e(f"s_branch {name}_FIN")
    t2 = vE + 8
    for ntb in (4, 2):
        sfx = "" if ntb == 4 else "H"
        c.label(f"{name}_EPI_QK{sfx}")
        ST.i = 3; ST.stamp(c, wait=True)
        c.e("s_barrier")
        c.e(f"s_cmp_lt_u32 s{sCG}, 2\ns_cbranch_scc0 {name}_NOSCL{sfx}")
        if ntb == 2: c.e("s_nop 3")
        for fb in range(4):
            for tb in range(ntb):
                for r in range(4): c.e(f"v_mul_f32 v{D(fb,tb)+r}, s{sScale}, v{D(fb,tb)+r}")
        c.label(f"{name}_NOSCL{sfx}")
        if ntb == 2: c.e("s_nop 3")
        for fb in range(4):
            for tb in range(ntb):
                d = D(fb, tb)
                e = t2 + 2*((4*fb + tb) % 8)
                c.e(f"v_cvt_pk_bf16_f32 v{e}, v{d}, v{d+1}\nv_cvt_pk_bf16_f32 v{e+1}, v{d+2}, v{d+3}")
                c.e(f"ds_write_b64 v{aE[fb] if tb % 2 == 0 else aO[fb]}, {vr(e,2)} offset:{1280*(tb >> 1)}")
            c.e("s_waitcnt lgkmcnt(4)")
        c.e(f"s_branch {name}_COPY")
        c.label(f"{name}_EPI_V{sfx}")
        ST.i = 3; ST.stamp(c, wait=True)
        c.e("s_barrier")
        if ntb == 2: c.e("s_nop 5")
        for fb in range(4):
            for tb in range(ntb):
                d = D(fb, tb); e = t2 + 2*((4*fb + tb) % 8)
                c.e(f"v_cvt_pk_bf16_f32 v{e}, v{d}, v{d+1}\nv_cvt_pk_bf16_f32 v{e+1}, v{d+2}, v{d+3}")
                c.e(f"ds_write_b64 v{aE[fb]}, {vr(e,2)} offset:{1280*(tb >> 1) + 640*(tb & 1)}")
            c.e("s_waitcnt lgkmcnt(4)")
        c.e(f"s_branch {name}_COPY")
    c.label(f"{name}_COPY")
    c.e(f"""
    s_lshl_b32 s{sT0}, s{sRT}, 2
    s_mul_i32 s{sT0}, s{sT0}, s{sTS}
    s_add_u32 s{sBase}, s{sBase}, s{sT0}
    s_and_b32 s{sT0}, s{sCG}, 1
    s_lshl_b32 s{sT0}, s{sT0}, 4
    s_add_u32 s{sT0}, s{sT0}, s{sW}
    s_mul_i32 s{sT0}, s{sT0}, s{sHS}
    s_add_u32 s{sBase}, s{sBase}, s{sT0}
    s_mul_i32 s{sT1}, s{sW}, 5120
    v_lshl_add_u32 v{vT[0]}, v{vL}, 4, s{sT1}
    """)
    c.e("s_waitcnt lgkmcnt(0)\ns_barrier")
    c.label(f"{name}_CPL")
    for k in range(5): c.e(f"ds_read_b128 {vr(acc+4*k,4)}, v{vT[0]} offset:{1024*k}")
    for k in range(5):
        c.e(f"s_waitcnt lgkmcnt({4-k})")
        c.e(f"buffer_store_dwordx4 {vr(acc+4*k,4)}, v{aC[k]}, s[{srdWS}:{srdWS+3}], s{sBase} offen{SMQ}")
    c.e(f"""
    s_add_u32 s{sW}, s{sW}, 12
    s_cmp_lt_u32 s{sW}, 16
    s_cbranch_scc0 {name}_CPD
    s_mul_i32 s{sT0}, s{sHS}, 12
    s_add_u32 s{sBase}, s{sBase}, s{sT0}
    v_add_u32 v{vT[0]}, {12*5120}, v{vT[0]}
    s_branch {name}_CPL
    {name}_CPD:
    s_sub_u32 s{sW}, s{sW}, 12
    s_cmp_ge_u32 s{sW}, 12
    s_cselect_b32 s{sT0}, 12, 0
    s_sub_u32 s{sW}, s{sW}, s{sT0}
    s_branch {name}_FIN
    """)
    c.label(f"{name}_GATE")
    c.e(f"s_cmp_ge_u32 s{sW}, 8\ns_cbranch_scc1 {name}_END\ns_waitcnt lgkmcnt(0)")
    srd(c, srdX, sAX, 2048*1280); srd(c, srdW, sGW, 1280); srd(c, srdWS, sWS, WS_BYTES)
    c.e(f"""
    s_or_b32 s{sT0}, s{sRT}, s{sW}
    s_cmp_eq_u32 s{sT0}, 0
    s_cbranch_scc0 {name}_NOZ
    v_lshlrev_b32 v{vT[5]}, 7, v{vL}
    v_mov_b32 v{vT[4]}, 0
    s_mov_b32 s{sT0}, {CNT_OFF}
    s_mov_b64 exec, 0xff
    buffer_store_dword v{vT[4]}, v{vT[5]}, s[{srdWS}:{srdWS+3}], s{sT0} offen
    s_mov_b64 exec, -1
    {name}_NOZ:
    """)
    vGw = sets[0][0]; vGx = sets[0][0] + 8
    c.e(f"""
    v_lshlrev_b32 v{vT[5]}, 2, v{vL}
    s_lshl_b32 s{sT0}, s{sRT}, 7
    s_lshl_b32 s{sT1}, s{sW}, 4
    s_add_u32 s{sBase}, s{sT0}, s{sT1}
    s_mul_i32 s{sT1}, s{sBase}, 1280
    """)
    for i in range(5): c.e(f"buffer_load_dword v{vGw+i}, v{vT[5]}, s[{srdW}:{srdW+3}], 0 offen offset:{256*i}")
    NB_ = 8
    for bt in range(2):
        for rr in range(NB_):
            for i in range(5): c.e(f"buffer_load_dword v{vGx+5*rr+i}, v{vT[5]}, s[{srdX}:{srdX+3}], s{sT1} offen offset:{256*i}")
            c.e(f"s_add_u32 s{sT1}, s{sT1}, 1280")
        for rr in range(NB_):
            c.e(f"s_waitcnt vmcnt({5*(NB_-1-rr) + (rr if True else 0)})")
            for i in range(5):
                c.e(f"""
                v_lshlrev_b32 v{vT[0]}, 16, v{vGx+5*rr+i}
                v_and_b32 v{vT[1]}, 0xffff0000, v{vGx+5*rr+i}
                v_lshlrev_b32 v{vT[2]}, 16, v{vGw+i}
                v_and_b32 v{vT[3]}, 0xffff0000, v{vGw+i}
                v_mul_f32 v{vT[0]}, v{vT[0]}, v{vT[2]}
                v_mul_f32 v{vT[1]}, v{vT[1]}, v{vT[3]}
                v_cvt_pk_bf16_f32 v{vT[0]}, v{vT[0]}, v{vT[1]}
                v_lshlrev_b32 v{vT[2]}, 16, v{vT[0]}
                v_and_b32 v{vT[3]}, 0xffff0000, v{vT[0]}
                """)
                if i == 0: c.e(f"v_add_f32 v{vT[4]}, v{vT[2]}, v{vT[3]}")
                else: c.e(f"v_add_f32 v{vT[2]}, v{vT[2]}, v{vT[3]}\nv_add_f32 v{vT[4]}, v{vT[4]}, v{vT[2]}")
            for sh in ("row_shr:1", "row_shr:2", "row_shr:4", "row_shr:8"):
                c.e(f"s_nop 1\nv_add_f32_dpp v{vT[4]}, v{vT[4]}, v{vT[4]} {sh} row_mask:0xf bank_mask:0xf bound_ctrl:0")
            c.e(f"""
            s_nop 1
            v_readlane_b32 s{sT0}, v{vT[4]}, 15
            v_readlane_b32 s{sT2}, v{vT[4]}, 31
            v_readlane_b32 s{sT3}, v{vT[4]}, 47
            v_readlane_b32 s{sHS}, v{vT[4]}, 63
            s_nop 1
            v_mov_b32 v{vT[0]}, s{sT0}
            v_add_f32 v{vT[0]}, s{sT2}, v{vT[0]}
            v_add_f32 v{vT[0]}, s{sT3}, v{vT[0]}
            v_add_f32 v{vT[0]}, s{sHS}, v{vT[0]}
            v_cvt_pk_bf16_f32 v{vT[0]}, v{vT[0]}, v{vT[0]}
            v_lshlrev_b32 v{vT[0]}, 16, v{vT[0]}
            v_mul_f32 v{vT[0]}, {hexf(-LOG2E)}, v{vT[0]}
            v_exp_f32 v{vT[0]}, v{vT[0]}
            s_nop 0
            v_add_f32 v{vT[0]}, 1.0, v{vT[0]}
            v_rcp_f32 v{vT[0]}, v{vT[0]}
            s_nop 0
            v_cvt_pk_bf16_f32 v{vT[0]}, v{vT[0]}, v{vT[0]}
            v_lshlrev_b32 v{vT[6]}, 16, v{vT[0]}
            v_sub_f32 v{vT[1]}, 1.0, v{vT[6]}
            v_cvt_pk_bf16_f32 v{vT[1]}, v{vT[1]}, v{vT[1]}
            v_lshlrev_b32 v{vT[7]}, 16, v{vT[1]}
            s_lshl_b32 s{sT0}, s{sBase}, 3
            s_add_u32 s{sT0}, s{sT0}, {G_OFF}
            v_mov_b32 v{vT[2]}, 0
            s_mov_b64 exec, 1
            buffer_store_dwordx2 {vr(vT[6],2)}, v{vT[2]}, s[{srdWS}:{srdWS+3}], s{sT0} offen
            s_mov_b64 exec, -1
            s_add_u32 s{sBase}, s{sBase}, 1
            """)
    if stamps:
        ST.i = 2; ST.stamp(c); ST.stamp(c)
    c.label(f"{name}_FIN")
    if stamps: c.e("s_waitcnt vmcnt(0)")
    ST.i = 4; ST.stamp(c)
    if stamps:
        c.e(f"s_memrealtime s[{ST.s+14}:{ST.s+15}]"); ST.i = 8
        c.e(f"s_cmp_ge_u32 s{sW}, 8\ns_cbranch_scc1 {name}_END")
    ST.flush(c, sW, srdWS, vT[2], vT[3], sT0)
    c.e(f"""
    {name}_END:
    s_endpgm
    """)
    def S(role, vi=0, idle=False):
        d = {f"{name}_END": False, f"{name}_GATE": role == "gate", f"{name}_GLU": role == "glu", f"{name}_RA_GLU": role == "glu",
             f"{name}_NOEA": role == "glu", f"{name}_EAV": role == "v", f"{name}_NOSCL": False, f"{name}_NOSCLH": False, f"{name}_NOZ": False, f"{name}_PRO_NX": vi % 2 == 1,
             f"{name}_PRO_H": role != "glu", f"{name}_QW": vi % 2 == 0, f"{name}_CPD": (lambda k: k >= 1)}
        for i in range(1, 6): d[f"{name}_VAR{i}"] = (i == vi)
        return d
    scen = {"qk1": S("qk", 0), "qk0": S("qk", 1), "v1": S("v", 2), "v0": S("v", 3), "glu1": S("glu", 4), "glu0": S("glu", 5), "gate": S("gate")}
    return c, V.hi, scen, K1_LDS

if __name__ == "__main__":
    c, nv, scen, lds = gen_k1()
    errs = check(c.lines, scen, "k1")
    print("vgprs", nv, "lds", lds, "lines", len(c.lines))
    for e in errs[:40]: print(e)
```

```python
from common import *
NST = 20
WSLOT = 24576; WRING = 4; UOFF = 12288
XSLOT = 16384; XRING = 3
XBASE = WSLOT*WRING
K1_LDS = XBASE + XSLOT*XRING
def mfma16(d, a, b, cz=None):
    return f"v_mfma_f32_16x16x32_bf16 {vr(d,4)}, {vr(a,4)}, {vr(b,4)}, " + (vr(d,4) if cz is None else str(cz))

def gen_k1(name="k1_kernel", stamps=False, exp=""):
    c = Code()
    SM = " sc1" if "SC1" in exp else (" sc0 sc1" if "SC01" in exp else ("" if "PLAIN" in exp else (" nt" if "NT" in exp else " sc1")))
    SMQ = SM; SMH = SM
    if "QP" in exp: SMQ = ""
    if "HP" in exp: SMH = ""
    if "QS" in exp: SMQ = " sc1"
    if "HS" in exp: SMH = " sc1"
    V = Alloc(168, 1, "v"); Sg = Alloc(100, 18, "s")
    sAX, sWQ, sGW, sWG, sWU, sWS = 4, 6, 10, 12, 14, 16
    PF = 0 if 'NOPF' in exp else 3
    sX = Sg.take(); sJ = Sg.take(); sCG = Sg.take(); sRT = Sg.take(); sW = Sg.take(); sTH = Sg.take(); sCQ = Sg.take(); sSub = Sg.take()
    sT0 = Sg.take(); sT1 = Sg.take(); sT2 = Sg.take(); sT3 = Sg.take()
    srdX = Sg.take(4, 4); srdW = Sg.take(4, 4); srdWS = Sg.take(4, 4)
    sMw = Sg.take(); sMx = Sg.take(); sKx = Sg.take(); sKw = Sg.take(); sKwStep = Sg.take()
    sBase = Sg.take(); sHS = Sg.take(); sTS = Sg.take(); sScale = Sg.take()
    sWD = Sg.take(2, 2); srdP = Sg.take(4, 4)
    ST = Stamps(Sg, stamps, 0)
    vL = V.take(); vT = [V.take() for _ in range(8)]
    vOffX = V.take(); vOffW = [V.take(), V.take()]
    vXA = [V.take(), V.take()]; vWA = [V.take() for _ in range(4)]; vWH = [V.take() for _ in range(4)]
    sets = [(V.take(16, 4), V.take(16, 4)) for _ in range(2)]
    acc = V.take(64, 4)
    vPF = V.take(); vPx = V.take(); vPw = V.take()
    vE = sets[0][0]
    aE = [V.take() for _ in range(4)]; aO = [V.take() for _ in range(4)]; aC = [V.take() for _ in range(5)]
    D = lambda fb, tb: acc + 16*fb + 4*tb

    c.e(f"""
    s_cmp_ge_u32 s2, 256
    s_cbranch_scc1 {name}_END
    s_load_dwordx4 s[4:7], s[0:1], {KA_AX}
    s_load_dwordx2 s[10:11], s[0:1], {KA_GW}
    s_load_dwordx4 s[12:15], s[0:1], {KA_WG}
    s_load_dwordx2 s[16:17], s[0:1], {KA_WS}
    s_load_dwordx2 s[8:9], s[0:1], {KA_WO}
    s_load_dwordx2 s[{sWD}:{sWD+1}], s[0:1], {KA_WD}
    v_and_b32 v{vL}, 63, v0
    v_lshrrev_b32 v{vT[0]}, 6, v0
    s_and_b32 s{sX}, s2, 7
    s_lshr_b32 s{sJ}, s2, 3
    v_readfirstlane_b32 s{sW}, v{vT[0]}
    s_and_b32 s{sT0}, s{sJ}, 1
    s_lshr_b32 s{sRT}, s{sJ}, 1
    """)
    if "OLDMAP" in exp:
        c.e(f"s_lshl_b32 s{sCG}, s{sX}, 1\ns_add_u32 s{sCG}, s{sCG}, s{sT0}")
    else:
        c.e(f"""
        s_mul_i32 s{sT1}, s{sT0}, 6
        s_add_u32 s{sT1}, s{sT1}, s{sX}
        s_lshl_b32 s{sCG}, s{sX}, 1
        s_add_u32 s{sCG}, s{sCG}, s{sT0}
        s_cmp_lt_u32 s{sX}, 6
        s_cselect_b32 s{sCG}, s{sT1}, s{sCG}
        """)
    if stamps: c.e('s_memrealtime s[%d:%d]' % (ST.s, ST.s+1)); ST.i = 1; c.e('s_waitcnt lgkmcnt(0)')
    ST.stamp(c)
    if "TOUCH" in exp:
        c.e("s_waitcnt lgkmcnt(0)\ns_nop 2")
        tbl = [(sAX, 0, 2048*1280), (sAX, 1310720, 2048*1280), (sWQ, 0, 640*3840), (sWQ, 1228800, 640*3840), (sWG, 0, 640*3456), (sWG, 1105920, 640*3456),
               (sWU, 0, 640*3456), (sWU, 1105920, 640*3456), (sWS, QF_OFF, WS_BYTES), (sWS, KV_OFF + 2097152, WS_BYTES), (sWS, HF_OFF + 1048576, WS_BYTES), (sWS, HF_OFF + 4194304, WS_BYTES)]
        for i, (p, off, sz) in enumerate(tbl):
            c.e(f"""
            s_cmp_eq_u32 s{sW}, {i}
            s_cbranch_scc0 {name}_TCH{i}
            s_mov_b32 s{srdWS}, s{p}
            s_and_b32 s{srdWS+1}, s{p+1}, 0xffff
            s_mov_b32 s{srdWS+2}, {sz}
            s_mov_b32 s{srdWS+3}, 0x20000
            v_mov_b32 v{vT[1]}, {off}
            buffer_load_dword v{vPF}, v{vT[1]}, s[{srdWS}:{srdWS+3}], 0 offen
            {name}_TCH{i}:
            """)
    c.e(f"""
    v_lshrrev_b32 v{vT[1]}, 3, v{vL}
    v_lshrrev_b32 v{vT[2]}, 4, v{vL}
    s_lshl_b32 s{sT0}, s{sW}, 2
    v_add_u32 v{vT[2]}, s{sT0}, v{vT[2]}
    v_xor_b32 v{vT[2]}, v{vT[2]}, v{vL}
    v_and_b32 v{vT[2]}, 7, v{vT[2]}
    s_lshl_b32 s{sT0}, s{sRT}, 7
    s_lshl_b32 s{sT1}, s{sW}, 3
    s_add_u32 s{sT0}, s{sT0}, s{sT1}
    v_add_u32 v{vT[1]}, s{sT0}, v{vT[1]}
    v_mul_u32_u24 v{vT[1]}, 1280, v{vT[1]}
    v_lshl_add_u32 v{vOffX}, v{vT[2]}, 4, v{vT[1]}
    s_lshl_b32 s{sMx}, s{sW}, 10
    s_add_u32 s{sMx}, s{sMx}, {XBASE}
    s_and_b32 s{sTH}, s{sW}, 1
    s_lshr_b32 s{sCQ}, s{sW}, 1
    s_mov_b32 s{sSub}, 0
    s_cmp_eq_u32 s{sCG}, 15
    s_cbranch_scc1 {name}_GATE
    s_lshl_b32 s{sMw}, s{sW}, 11
    s_cmp_lt_u32 s{sCG}, 6
    s_cbranch_scc0 {name}_GLU
    """)
    def woff(i, nch, magic, rs):
        return f"""
        v_add_u32 v{vT[1]}, s{sT0}, v{vL}
        v_mul_u32_u24 v{vT[2]}, {magic}, v{vT[1]}
        v_lshrrev_b32 v{vT[2]}, 16, v{vT[2]}
        v_mul_u32_u24 v{vT[3]}, {nch}, v{vT[2]}
        v_sub_u32 v{vT[3]}, v{vT[1]}, v{vT[3]}
        v_lshrrev_b32 v{vT[4]}, 1, v{vT[2]}
        v_and_b32 v{vT[4]}, 4, v{vT[4]}
        v_and_or_b32 v{vT[4]}, v{vT[2]}, 2, v{vT[4]}
        v_xor_b32 v{vT[3]}, v{vT[3]}, v{vT[4]}
        v_mul_u32_u24 v{vT[2]}, {rs}, v{vT[2]}
        v_lshl_add_u32 v{vT[2]}, v{vT[3]}, 4, v{vT[2]}
        v_add_u32 v{vOffW[i]}, s{sT3}, v{vT[2]}
        s_add_u32 s{sT0}, s{sT0}, 64
        """
    c.e(f"""
    s_lshl_b32 s{sT0}, s{sW}, 7
    s_cmp_lt_u32 s{sW}, 8
    s_cbranch_scc1 {name}_QW
    s_add_u32 s{sT0}, s{sW}, 8
    s_lshl_b32 s{sMw}, s{sT0}, 10
    s_lshl_b32 s{sT0}, s{sT0}, 6
    s_and_b32 s{sSub}, s{sCQ}, 1
    s_mov_b32 s{sCQ}, 4
    {name}_QW:
    s_mul_i32 s{sT3}, s{sCG}, 640
    """)
    c.e(woff(0, 40, 1639, 3840)); c.e(woff(1, 40, 1639, 3840))
    c.e(f"s_mov_b32 s{sKwStep}, {32*3840}\ns_waitcnt lgkmcnt(0)")
    srd(c, srdW, sWQ, 640*3840)
    c.e(f"s_branch {name}_DEC")
    c.label(f"{name}_GLU")
    c.e(f"""
    s_cmp_lt_u32 s{sW}, 6
    s_cselect_b32 s{sT1}, 0, 6
    s_sub_u32 s{sT0}, s{sW}, s{sT1}
    s_lshl_b32 s{sT0}, s{sT0}, 7
    s_sub_u32 s{sT3}, s{sCG}, 6
    s_mul_i32 s{sT3}, s{sT3}, 384
    """)
    c.e(woff(0, 24, 2731, 3456)); c.e(woff(1, 24, 2731, 3456))
    c.e(f"""
    s_mov_b32 s{sKwStep}, {32*3456}
    s_waitcnt lgkmcnt(0)
    s_cmp_lt_u32 s{sW}, 6
    s_cselect_b32 s{srdW}, s{sWG}, s{sWU}
    s_cselect_b32 s{srdW+1}, s{sWG+1}, s{sWU+1}
    s_and_b32 s{srdW+1}, s{srdW+1}, 0xffff
    s_mov_b32 s{srdW+2}, {640*3456}
    s_mov_b32 s{srdW+3}, 0x20000
    """)
    c.label(f"{name}_DEC")
    srd(c, srdX, sAX, 2048*1280)
    if PF:
        srd(c, srdP, sAX, 2048*1280)
        c.e(f"v_mov_b32 v{vPx}, 0\nv_mov_b32 v{vPw}, 0")
    c.e(f"s_mov_b32 s{sKw}, 0")
    def qkv_params():
        c.e(f"""
        s_cmp_lt_u32 s{sCG}, 2
        {csel(sHS, QF_HS, KV_HS)}
        {csel(sTS, QF_TS, KV_TS)}
        {csel(sBase, QF_OFF, KV_OFF)}
        {csel(sScale, hexf(LOG2E*20**-0.5), hexf(1.0))}
        s_cmp_lt_u32 s{sCG}, 4
        s_cselect_b32 s{sBase}, s{sBase}, {KV_OFF + 1280}
        """)
    def qk_addr():
        c.e(f"""
        v_and_b32 v{vT[0]}, 15, v{vL}
        v_lshrrev_b32 v{vT[1]}, 4, v{vL}
        s_lshl_b32 s{sT0}, s{sCQ}, 4
        v_add_u32 v{vT[1]}, s{sT0}, v{vT[1]}
        s_mul_i32 s{sT1}, s{sTH}, 2560
        s_mul_i32 s{sT2}, s{sSub}, 1280
        s_add_u32 s{sT1}, s{sT1}, s{sT2}
        """)
        for fb in range(4):
            c.e(f"""
            v_add_u32 v{vT[2]}, {4*fb}, v{vT[1]}
            v_mul_u32_u24 v{vT[3]}, 13108, v{vT[2]}
            v_lshrrev_b32 v{vT[3]}, 16, v{vT[3]}
            v_mul_u32_u24 v{vT[4]}, 5, v{vT[3]}
            v_sub_u32 v{vT[4]}, v{vT[2]}, v{vT[4]}
            v_mul_u32_u24 v{vT[3]}, 5120, v{vT[3]}
            v_add_u32 v{vT[3]}, s{sT1}, v{vT[3]}
            v_lshrrev_b32 v{vT[5]}, 1, v{vT[4]}
            v_lshlrev_b32 v{vT[5]}, 9, v{vT[5]}
            v_and_b32 v{vT[6]}, 1, v{vT[4]}
            v_lshl_add_u32 v{vT[5]}, v{vT[6]}, 3, v{vT[5]}
            v_lshl_add_u32 v{vT[5]}, v{vT[0]}, 4, v{vT[5]}
            v_lshlrev_b32 v{vT[6]}, 3, v{vT[0]}
            v_add_u32 v{vT[6]}, 1024, v{vT[6]}
            v_cmp_eq_u32 vcc, 4, v{vT[4]}
            v_mov_b32 v{vT[7]}, 256
            v_mov_b32 v{vT[2]}, 128
            v_cndmask_b32 v{vT[5]}, v{vT[5]}, v{vT[6]}, vcc
            v_cndmask_b32 v{vT[7]}, v{vT[7]}, v{vT[2]}, vcc
            v_add_u32 v{aE[fb]}, v{vT[3]}, v{vT[5]}
            v_add_u32 v{aO[fb]}, v{aE[fb]}, v{vT[7]}
            """)

    def v_addr():
        c.e(f"""
        v_and_b32 v{vT[0]}, 15, v{vL}
        v_lshrrev_b32 v{vT[1]}, 4, v{vL}
        s_lshl_b32 s{sT0}, s{sCQ}, 6
        v_add_u32 v{vT[0]}, s{sT0}, v{vT[0]}
        v_and_b32 v{vT[2]}, 1, v{vT[1]}
        v_mul_u32_u24 v{vT[2]}, 320, v{vT[2]}
        v_lshrrev_b32 v{vT[1]}, 1, v{vT[1]}
        v_lshl_add_u32 v{vT[1]}, v{vT[1]}, 3, v{vT[2]}
        s_mul_i32 s{sT1}, s{sTH}, 2560
        s_mul_i32 s{sT2}, s{sSub}, 1280
        s_add_u32 s{sT1}, s{sT1}, s{sT2}
        v_add_u32 v{vT[1]}, s{sT1}, v{vT[1]}
        """)
        for fb in range(4):
            c.e(f"""
            v_add_u32 v{vT[2]}, {16*fb}, v{vT[0]}
            v_mul_u32_u24 v{vT[3]}, 3277, v{vT[2]}
            v_lshrrev_b32 v{vT[3]}, 16, v{vT[3]}
            v_mul_u32_u24 v{vT[4]}, 20, v{vT[3]}
            v_sub_u32 v{vT[4]}, v{vT[2]}, v{vT[4]}
            v_mul_u32_u24 v{vT[3]}, 5120, v{vT[3]}
            v_lshl_add_u32 v{vT[3]}, v{vT[4]}, 4, v{vT[3]}
            v_add_u32 v{aE[fb]}, v{vT[3]}, v{vT[1]}
            """)

    def c_addr():
        for k in range(5):
            c.e(f"""
            v_add_u32 v{vT[1]}, {64*k}, v{vL}
            v_mul_u32_u24 v{vT[2]}, 820, v{vT[1]}
            v_lshrrev_b32 v{vT[2]}, 16, v{vT[2]}
            v_mul_u32_u24 v{vT[3]}, 80, v{vT[2]}
            v_sub_u32 v{vT[3]}, v{vT[1]}, v{vT[3]}
            v_mul_lo_u32 v{vT[2]}, v{vT[2]}, s{sTS}
            v_lshl_add_u32 v{aC[k]}, v{vT[3]}, 4, v{vT[2]}
            """)

    def pf_setup(glu):
        if not PF: return
        c.e(f"""
        s_sub_u32 s{sT0}, s{sW}, 8
        s_lshl_b32 s{sT1}, s{sJ}, 6
        s_lshl_b32 s{sT2}, s{sT0}, 4
        s_add_u32 s{sT1}, s{sT1}, s{sT2}
        v_and_b32 v{vT[1]}, 15, v{vL}
        v_add_u32 v{vT[1]}, s{sT1}, v{vT[1]}
        v_mul_u32_u24 v{vPx}, 1280, v{vT[1]}
        """)
        if glu:
            c.e(f"""
            s_cmp_lt_u32 s{sT0}, 2
            s_cselect_b32 s{srdP}, s{sWG}, s{sWU}
            s_cselect_b32 s{srdP+1}, s{sWG+1}, s{sWU+1}
            s_and_b32 s{srdP+1}, s{srdP+1}, 0xffff
            s_mov_b32 s{srdP+2}, {640*3456}
            s_mov_b32 s{srdP+3}, 0x20000
            v_mul_u32_u24 v{vT[2]}, 21846, v{vL}
            v_lshrrev_b32 v{vT[2]}, 16, v{vT[2]}
            v_mul_u32_u24 v{vT[3]}, 3, v{vT[2]}
            v_sub_u32 v{vT[3]}, v{vL}, v{vT[3]}
            s_sub_u32 s{sT1}, s{sCG}, 6
            s_mul_i32 s{sT1}, s{sT1}, 384
            v_lshl_add_u32 v{vT[3]}, v{vT[3]}, 7, s{sT1}
            s_and_b32 s{sT1}, s{sT0}, 1
            """)
            c.e(f"""
            s_mul_i32 s{sT2}, s{sT1}, 5
            s_mul_i32 s{sT3}, s{sRT}, 10
            s_add_u32 s{sT2}, s{sT2}, s{sT3}
            s_add_u32 s{sT2}, s{sT2}, 96
            v_min_u32 v{vT[4]}, 4, v{vT[2]}
            v_add_u32 v{vT[4]}, s{sT2}, v{vT[4]}
            v_mul_u32_u24 v{vT[4]}, 3456, v{vT[4]}
            v_add_u32 v{vT[4]}, v{vT[4]}, v{vT[3]}
            s_lshl_b32 s{sT2}, s{sT1}, 1
            s_lshl_b32 s{sT3}, s{sRT}, 2
            s_add_u32 s{sT2}, s{sT2}, s{sT3}
            v_min_u32 v{vT[5]}, 1, v{vT[2]}
            v_add_u32 v{vT[5]}, s{sT2}, v{vT[5]}
            v_mul_u32_u24 v{vT[5]}, 3456, v{vT[5]}
            v_add_u32 v{vPw}, v{vT[5]}, v{vT[3]}
            """)
        else:
            c.e(f"""
            s_mov_b32 s{srdP}, s{sWQ}
            s_and_b32 s{srdP+1}, s{sWQ+1}, 0xffff
            s_mov_b32 s{srdP+2}, {640*3840}
            s_mov_b32 s{srdP+3}, 0x20000
            v_mul_u32_u24 v{vT[2]}, 13108, v{vL}
            v_lshrrev_b32 v{vT[2]}, 16, v{vT[2]}
            v_mul_u32_u24 v{vT[3]}, 5, v{vT[2]}
            v_sub_u32 v{vT[3]}, v{vL}, v{vT[3]}
            s_mul_i32 s{sT1}, s{sCG}, 640
            v_lshl_add_u32 v{vT[3]}, v{vT[3]}, 7, s{sT1}
            s_mul_i32 s{sT2}, s{sT0}, 3
            s_mul_i32 s{sT3}, s{sRT}, 10
            s_add_u32 s{sT2}, s{sT2}, s{sT3}
            s_add_u32 s{sT2}, s{sT2}, 96
            v_min_u32 v{vT[4]}, 2, v{vT[2]}
            v_add_u32 v{vT[4]}, s{sT2}, v{vT[4]}
            v_mul_u32_u24 v{vT[4]}, 3840, v{vT[4]}
            v_add_u32 v{vT[4]}, v{vT[4]}, v{vT[3]}
            s_lshl_b32 s{sT2}, s{sRT}, 2
            s_add_u32 s{sT2}, s{sT2}, s{sT0}
            s_mul_i32 s{sT2}, s{sT2}, 3840
            v_mul_u32_u24 v{vT[5]}, 13108, v{vL}
            v_lshrrev_b32 v{vT[5]}, 16, v{vT[5]}
            v_mul_u32_u24 v{vT[5]}, 5, v{vT[5]}
            v_sub_u32 v{vT[5]}, v{vL}, v{vT[5]}
            v_lshl_add_u32 v{vT[5]}, v{vT[5]}, 7, s{sT2}
            s_mul_i32 s{sT1}, s{sCG}, 640
            v_add_u32 v{vPw}, s{sT1}, v{vT[5]}
            """)
        c.e(f"""
        s_movk_i32 s{sT1}, 256
        buffer_load_dword v{vPF}, v{vPx}, s[{srdX}:{srdX+3}], s{sT1} offen
        buffer_load_dword v{vPF}, v{vPx}, s[{srdX}:{srdX+3}], s{sT1} offen offset:128
        buffer_load_dword v{vPF}, v{vT[4]}, s[{srdP}:{srdP+3}], 0 offen
        """)
    def pf_n(st):
        if not PF: return 0
        return 1 if ((st % 2 == 0 and 0 <= st <= 10) or (st % 2 == 1 and st <= 11) or st in (13, 15)) else 0
    def pf_ops(st, rs):
        if not pf_n(st): return []
        if st in (13, 15):
            p, nl, sz = (sWD, 17, 1728*1280) if st == 13 else (8, 7, 640*1280)
            return [f"s_mov_b32 s{srdP}, s{p}", f"s_and_b32 s{srdP+1}, s{p+1}, 0xffff", f"s_mov_b32 s{srdP+2}, {sz}",
                    f"s_lshl_b32 s{sT2}, s2, 2", f"s_add_u32 s{sT2}, s{sT2}, s{sW}", f"s_sub_u32 s{sT2}, s{sT2}, 8", f"s_mul_i32 s{sT2}, s{sT2}, {nl*128}",
                    f"v_min_u32 v{vPw}, {nl-1}, v{vL}", f"v_lshlrev_b32 v{vPw}, 7, v{vPw}",
                    f"buffer_load_dword v{vPF}, v{vPw}, s[{srdP}:{srdP+3}], s{sT2} offen"]
        if st % 2 == 0:
            return [f"s_movk_i32 s{sT2}, {128*(st//2 + 4)}", f"buffer_load_dword v{vPF}, v{vPx}, s[{srdX}:{srdX+3}], s{sT2} offen"]
        rsz = 3456 if rs == 384 else 3840
        return [f"s_mov_b32 s{sT2}, {32*(st + 7)*rsz}", f"buffer_load_dword v{vPF}, v{vPw}, s[{srdP}:{srdP+3}], s{sT2} offen"]
    def dma_w(i, st):
        return [f"s_add_u32 m0, s{sMw}, {(st % WRING)*WSLOT + 1024*i}", "s_nop 0", f"buffer_load_dwordx4 v{vOffW[i]}, s[{srdW}:{srdW+3}], s{sKw} offen lds"]
    def dma_x(u):
        m, hf = u >> 1, u & 1
        return [f"s_add_u32 m0, s{sMx}, {(m % XRING)*XSLOT + hf*8192}", f"s_mov_b32 s{sKx}, {m*128 + hf*64*1280}", f"buffer_load_dwordx4 v{vOffX}, s[{srdX}:{srdX+3}], s{sKx} offen lds"]
    advw = [f"s_add_u32 s{sKw}, s{sKw}, s{sKwStep}"]
    c.e(f"""
    s_cmp_lt_u32 s{sW}, 8
    s_cbranch_scc0 {name}_PRO_NX
    """)
    if "SWAP" in exp:
        c.e(f"s_and_b32 s{sT0}, s{sRT}, 1\ns_cmp_eq_u32 s{sT0}, 1\ns_cbranch_scc1 {name}_SWP")
        c.e("\n".join(dma_x(0) + dma_w(0, 0) + dma_w(1, 0) + advw + dma_x(1)))
        c.e(f"s_branch {name}_SWD\n{name}_SWP:")
        c.e("\n".join(dma_w(0, 0) + dma_w(1, 0) + advw + dma_x(0) + dma_x(1)))
        c.label(f"{name}_SWD")
    else:
        c.e("\n".join(dma_x(0) + dma_w(0, 0) + dma_w(1, 0) + advw + dma_x(1)))
    c.e("\n".join(dma_w(0, 1) + dma_w(1, 1) + advw + dma_x(2) + dma_w(0, 2) + dma_w(1, 2) + advw + dma_x(3)))
    c.e(f"s_branch {name}_PRO_D")
    c.label(f"{name}_PRO_NX")
    c.e(f"s_cmp_lt_u32 s{sCG}, 6\ns_cbranch_scc1 {name}_PRO_H")
    for st in range(3): c.e("\n".join(dma_w(0, st) + dma_w(1, st) + advw))
    pf_setup(True)
    c.e(f"s_branch {name}_PRO_D")
    c.label(f"{name}_PRO_H")
    for st in range(3): c.e("\n".join(dma_w(0, st) + advw))
    pf_setup(False)
    c.label(f"{name}_PRO_D")
    c.e(f"""
    v_and_b32 v{vT[1]}, 15, v{vL}
    v_lshrrev_b32 v{vT[2]}, 4, v{vL}
    v_lshrrev_b32 v{vT[3]}, 1, v{vT[1]}
    v_xor_b32 v{vT[3]}, v{vT[3]}, v{vT[2]}
    v_lshlrev_b32 v{vT[3]}, 4, v{vT[3]}
    v_lshl_add_u32 v{vT[3]}, v{vT[1]}, 7, v{vT[3]}
    s_lshl_b32 s{sT0}, s{sTH}, 13
    s_lshl_b32 s{sT1}, s{sSub}, 12
    s_add_u32 s{sT0}, s{sT0}, s{sT1}
    s_add_u32 s{sT0}, s{sT0}, {XBASE}
    v_add_u32 v{vXA[0]}, s{sT0}, v{vT[3]}
    v_xor_b32 v{vXA[1]}, 64, v{vXA[0]}
    v_lshrrev_b32 v{vT[3]}, 2, v{vT[1]}
    v_lshl_add_u32 v{vT[4]}, v{vT[2]}, 3, v{vT[3]}
    v_lshrrev_b32 v{vT[3]}, 1, v{vT[3]}
    v_and_b32 v{vT[5]}, 1, v{vT[2]}
    v_lshl_or_b32 v{vT[3]}, v{vT[5]}, 1, v{vT[3]}
    v_and_b32 v{vT[5]}, 3, v{vT[1]}
    v_lshlrev_b32 v{vT[5]}, 3, v{vT[5]}
    s_cmp_lt_u32 s{sCG}, 6
    s_cbranch_scc0 {name}_RA_GLU
    v_mul_u32_u24 v{vT[4]}, 640, v{vT[4]}
    v_add_u32 v{vT[4]}, v{vT[4]}, v{vT[5]}
    s_lshl_b32 s{sT0}, s{sCQ}, 7
    v_add_u32 v{vT[4]}, s{sT0}, v{vT[4]}
    """)
    for fb in range(4):
        c.e(f"v_xor_b32 v{vT[6]}, {fb}, v{vT[3]}\nv_lshl_add_u32 v{vWA[fb]}, v{vT[6]}, 5, v{vT[4]}")
    c.e(f"s_branch {name}_RA")
    c.label(f"{name}_RA_GLU")
    c.e(f"""
    v_mul_u32_u24 v{vT[4]}, 384, v{vT[4]}
    v_add_u32 v{vT[4]}, v{vT[4]}, v{vT[5]}
    """)
    for f in range(2):
        c.e(f"""
        s_lshl_b32 s{sT0}, s{sCQ}, 1
        s_add_u32 s{sT0}, s{sT0}, {f}
        s_and_b32 s{sT1}, s{sT0}, 3
        s_andn2_b32 s{sT0}, s{sT0}, 3
        s_lshl_b32 s{sT0}, s{sT0}, 5
        v_xor_b32 v{vT[6]}, s{sT1}, v{vT[3]}
        v_lshl_add_u32 v{vT[6]}, v{vT[6]}, 5, v{vT[4]}
        v_add_u32 v{vWA[f]}, s{sT0}, v{vT[6]}
        v_add_u32 v{vWA[2+f]}, {UOFF}, v{vWA[f]}
        """)
    c.label(f"{name}_RA")
    for fb in range(4): c.e(f"v_add_u32 v{vWH[fb]}, {2*WSLOT}, v{vWA[fb]}")
    srd(c, srdWS, sWS, WS_BYTES)
    for r_ in aE + aO + aC: c.e(f"v_mov_b32 v{r_}, 0")
    c.e(f"s_cmp_lt_u32 s{sCG}, 6\ns_cbranch_scc0 {name}_NOEA")
    qkv_params(); c_addr()
    c.e(f"s_cmp_lt_u32 s{sCG}, 4\ns_cbranch_scc0 {name}_EAV")
    qk_addr()
    c.e(f"s_branch {name}_NOEA")
    c.label(f"{name}_EAV")
    v_addr()
    c.label(f"{name}_NOEA")
    ST.stamp(c)
    c.e(f"""
    s_cmp_lt_u32 s{sW}, 8
    s_cselect_b32 s{sT1}, 0, 1
    s_cmp_lt_u32 s{sCG}, 4
    s_cselect_b32 s{sT0}, 0, 2
    s_cmp_lt_u32 s{sCG}, 6
    s_cselect_b32 s{sT0}, s{sT0}, 4
    s_add_u32 s{sT0}, s{sT0}, s{sT1}
    """)
    variants = [("QK", 1, 4, 2), ("QK", 0, 2, 1), ("V", 1, 4, 2), ("V", 0, 2, 1), ("GLU", 1, 4, 2), ("GLU", 0, 4, 2)]
    for i in range(1, 6): c.e(f"s_cmp_eq_u32 s{sT0}, {i}\ns_cbranch_scc1 {name}_VAR{i}")
    def reads(st, rs, ntb=4):
        xs, ws_ = sets[st % 2]; p = st & 1; xslot = (st >> 1) % XRING; wsl = st % WRING
        base = vWA if wsl < 2 else vWH; so = (wsl & 1)*WSLOT
        L = []
        for i in range(4):
            L.append(f"ds_read_b64_tr_b16 {vr(ws_+4*i,2)}, v{base[i]} offset:{so}")
            L.append(f"ds_read_b64_tr_b16 {vr(ws_+4*i+2,2)}, v{base[i]} offset:{so + 4*rs}")
            if i < ntb: L.append(f"ds_read_b128 {vr(xs+4*i,4)}, v{vXA[p]} offset:{xslot*XSLOT + 2048*i}")
        return L
    def mfmas(st, role, ntb=4):
        xs, ws_ = sets[st % 2]; L = []
        for fb in range(4):
            for tb in range(ntb):
                cz = 0 if st == 0 else None
                L.append(mfma16(D(fb, tb), ws_+4*fb, xs+4*tb, cz) if role != "V" else mfma16(D(fb, tb), xs+4*tb, ws_+4*fb, cz))
        return L
    for vi, (role, nx, ntb, nw) in enumerate(variants):
        if vi: c.label(f"{name}_VAR{vi}")
        rs = 384 if role == "GLU" else 640
        def cnt(x): return ((nw if x + 3 < NST else 0) + (nx if x + 4 < NST else 0))
        def wd(st): return sum([dma_w(i, st) for i in range(nw)], [])
        def allowed(st):
            n = cnt(st-2) + cnt(st-1)
            if nx == 0: n += sum(pf_n(x) for x in range(max(st-3, 0), st)) + (PF if st <= 2 else 0)
            return n
        pfo = (lambda st: pf_ops(st, rs)) if nx == 0 else (lambda st: [])
        for st in range(NST + 1):
            rd = reads(st, rs, ntb) if st < NST else []
            if st == 0:
                c.e(f"s_waitcnt vmcnt({allowed(0)})\ns_barrier")
                c.e("\n".join(rd))
                c.e("\n".join(wd(3) + advw + (dma_x(4) if nx else []) + pfo(0)))
                continue
            m = mfmas(st - 1, role, ntb)
            nm = len(m)
            g = {}
            pre = [f"s_waitcnt vmcnt({allowed(st)})", "s_barrier"] if st < NST else []
            if ntb == 4:
                g[0] = pre + rd[0:2]
                k = 2
                for i in range(1, 11):
                    g[i] = rd[k:k+1]; k += 1
                if st < NST:
                    if st + 3 < NST:
                        g[11] = dma_w(0, st+3); g[13] = dma_w(1, st+3) + advw
                    if nx and st + 4 < NST: g[15] = dma_x(st+4)
                    g[15] = g.get(15, []) + pfo(st)
            else:
                g[0] = pre + rd[0:2]
                for i in range(1, 5): g[i] = rd[2*i:2*i+2]
                if st < NST and st + 3 < NST: g[6] = dma_w(0, st+3) + advw
                if st < NST: g[7] = pfo(st)
            c.e("s_waitcnt lgkmcnt(0)")
            out = []
            for i, x in enumerate(m):
                out.append(x); out += g.get(i, [])
            c.e("\n".join(out))
            if stamps and st in (3, 15):
                r = ST.s + 2*(5 if st == 3 else 6); c.e(f"{'s_memrealtime' if Stamps.RT else 's_memtime'} s[{r}:{r+1}]")
        c.e(f"s_branch {name}_EPI_{role}" + ("H" if ntb == 2 else ""))
    c.label(f"{name}_EPI_GLU")
    ST.i = 3; ST.stamp(c, wait=True)
    c.e(f"""
    s_lshl_b32 s{sT0}, s{sRT}, 2
    s_lshl_b32 s{sT1}, s{sTH}, 1
    s_add_u32 s{sT0}, s{sT0}, s{sT1}
    s_mul_i32 s{sBase}, s{sT0}, 108
    s_sub_u32 s{sT1}, s{sCG}, 6
    s_mul_i32 s{sT1}, s{sT1}, 12
    s_add_u32 s{sBase}, s{sBase}, s{sT1}
    s_lshl_b32 s{sT1}, s{sCQ}, 1
    s_add_u32 s{sBase}, s{sBase}, s{sT1}
    s_lshl_b32 s{sBase}, s{sBase}, 10
    s_add_u32 s{sBase}, s{sBase}, {HF_OFF}
    v_and_b32 v{vT[1]}, 15, v{vL}
    v_lshrrev_b32 v{vT[2]}, 4, v{vL}
    v_and_b32 v{vT[3]}, 1, v{vT[2]}
    v_lshlrev_b32 v{vT[3]}, 9, v{vT[3]}
    v_lshl_add_u32 v{vT[3]}, v{vT[1]}, 4, v{vT[3]}
    v_lshrrev_b32 v{vT[2]}, 1, v{vT[2]}
    v_lshl_add_u32 v{vT[0]}, v{vT[2]}, 3, v{vT[3]}
    s_mov_b32 s{sT1}, {hexf(-LOG2E)}
    s_add_u32 s{sT2}, s{sBase}, {108*1024}
    """)
    for tb in range(4):
        for f in range(2):
            g_, u_ = D(f, tb), D(2+f, tb)
            for r in range(4): c.e(f"v_mul_f32 v{g_+r}, s{sT1}, v{g_+r}")
        for f in range(2):
            for r in range(4): c.e(f"v_exp_f32 v{D(f,tb)+r}, v{D(f,tb)+r}")
        for f in range(2):
            for r in range(4): c.e(f"v_add_f32 v{D(f,tb)+r}, 1.0, v{D(f,tb)+r}")
        for f in range(2):
            for r in range(4): c.e(f"v_rcp_f32 v{D(f,tb)+r}, v{D(f,tb)+r}")
        for f in range(2):
            for r in range(4): c.e(f"v_mul_f32 v{D(f,tb)+r}, v{D(f,tb)+r}, v{D(2+f,tb)+r}")
        e = vE + 4*(tb % 4)
        for f in range(2):
            c.e(f"v_cvt_pk_bf16_f32 v{e+2*f}, v{D(f,tb)}, v{D(f,tb)+1}\nv_cvt_pk_bf16_f32 v{e+2*f+1}, v{D(f,tb)+2}, v{D(f,tb)+3}")
        for f in range(2):
            c.e(f"buffer_store_dwordx2 {vr(e+2*f,2)}, v{vT[0]}, s[{srdWS}:{srdWS+3}], s{sBase if tb < 2 else sT2} offen offset:{1024*f + 256*(tb & 1)}{SMH}")
    c.e(f"s_branch {name}_FIN")
    t2 = vE + 8
    for ntb in (4, 2):
        sfx = "" if ntb == 4 else "H"
        c.label(f"{name}_EPI_QK{sfx}")
        ST.i = 3; ST.stamp(c, wait=True)
        c.e("s_barrier")
        c.e(f"s_cmp_lt_u32 s{sCG}, 2\ns_cbranch_scc0 {name}_NOSCL{sfx}")
        if ntb == 2: c.e("s_nop 3")
        for fb in range(4):
            for tb in range(ntb):
                for r in range(4): c.e(f"v_mul_f32 v{D(fb,tb)+r}, s{sScale}, v{D(fb,tb)+r}")
        c.label(f"{name}_NOSCL{sfx}")
        if ntb == 2: c.e("s_nop 3")
        for fb in range(4):
            for tb in range(ntb):
                d = D(fb, tb)
                e = t2 + 2*((4*fb + tb) % 8)
                c.e(f"v_cvt_pk_bf16_f32 v{e}, v{d}, v{d+1}\nv_cvt_pk_bf16_f32 v{e+1}, v{d+2}, v{d+3}")
                c.e(f"ds_write_b64 v{aE[fb] if tb % 2 == 0 else aO[fb]}, {vr(e,2)} offset:{1280*(tb >> 1)}")
            c.e("s_waitcnt lgkmcnt(4)")
        c.e(f"s_branch {name}_COPY")
        c.label(f"{name}_EPI_V{sfx}")
        ST.i = 3; ST.stamp(c, wait=True)
        c.e("s_barrier")
        if ntb == 2: c.e("s_nop 5")
        for fb in range(4):
            for tb in range(ntb):
                d = D(fb, tb); e = t2 + 2*((4*fb + tb) % 8)
                c.e(f"v_cvt_pk_bf16_f32 v{e}, v{d}, v{d+1}\nv_cvt_pk_bf16_f32 v{e+1}, v{d+2}, v{d+3}")
                c.e(f"ds_write_b64 v{aE[fb]}, {vr(e,2)} offset:{1280*(tb >> 1) + 640*(tb & 1)}")
            c.e("s_waitcnt lgkmcnt(4)")
        c.e(f"s_branch {name}_COPY")
    c.label(f"{name}_COPY")
    c.e(f"""
    s_lshl_b32 s{sT0}, s{sRT}, 2
    s_mul_i32 s{sT0}, s{sT0}, s{sTS}
    s_add_u32 s{sBase}, s{sBase}, s{sT0}
    s_and_b32 s{sT0}, s{sCG}, 1
    s_lshl_b32 s{sT0}, s{sT0}, 4
    s_add_u32 s{sT0}, s{sT0}, s{sW}
    s_mul_i32 s{sT0}, s{sT0}, s{sHS}
    s_add_u32 s{sBase}, s{sBase}, s{sT0}
    s_mul_i32 s{sT1}, s{sW}, 5120
    v_lshl_add_u32 v{vT[0]}, v{vL}, 4, s{sT1}
    """)
    c.e("s_waitcnt lgkmcnt(0)\ns_barrier")
    c.label(f"{name}_CPL")
    for k in range(5): c.e(f"ds_read_b128 {vr(acc+4*k,4)}, v{vT[0]} offset:{1024*k}")
    for k in range(5):
        c.e(f"s_waitcnt lgkmcnt({4-k})")
        c.e(f"buffer_store_dwordx4 {vr(acc+4*k,4)}, v{aC[k]}, s[{srdWS}:{srdWS+3}], s{sBase} offen{SMQ}")
    c.e(f"""
    s_add_u32 s{sW}, s{sW}, 12
    s_cmp_lt_u32 s{sW}, 16
    s_cbranch_scc0 {name}_CPD
    s_mul_i32 s{sT0}, s{sHS}, 12
    s_add_u32 s{sBase}, s{sBase}, s{sT0}
    v_add_u32 v{vT[0]}, {12*5120}, v{vT[0]}
    s_branch {name}_CPL
    {name}_CPD:
    s_sub_u32 s{sW}, s{sW}, 12
    s_cmp_ge_u32 s{sW}, 12
    s_cselect_b32 s{sT0}, 12, 0
    s_sub_u32 s{sW}, s{sW}, s{sT0}
    s_branch {name}_FIN
    """)
    c.label(f"{name}_GATE")
    c.e(f"s_cmp_ge_u32 s{sW}, 8\ns_cbranch_scc1 {name}_END\ns_waitcnt lgkmcnt(0)")
    srd(c, srdX, sAX, 2048*1280); srd(c, srdW, sGW, 1280); srd(c, srdWS, sWS, WS_BYTES)
    c.e(f"""
    s_or_b32 s{sT0}, s{sRT}, s{sW}
    s_cmp_eq_u32 s{sT0}, 0
    s_cbranch_scc0 {name}_NOZ
    v_lshlrev_b32 v{vT[5]}, 7, v{vL}
    v_mov_b32 v{vT[4]}, 0
    s_mov_b32 s{sT0}, {CNT_OFF}
    s_mov_b64 exec, 0xff
    buffer_store_dword v{vT[4]}, v{vT[5]}, s[{srdWS}:{srdWS+3}], s{sT0} offen
    s_mov_b64 exec, -1
    {name}_NOZ:
    """)
    vGw = sets[0][0]; vGx = sets[0][0] + 8
    c.e(f"""
    v_lshlrev_b32 v{vT[5]}, 2, v{vL}
    s_lshl_b32 s{sT0}, s{sRT}, 7
    s_lshl_b32 s{sT1}, s{sW}, 4
    s_add_u32 s{sBase}, s{sT0}, s{sT1}
    s_mul_i32 s{sT1}, s{sBase}, 1280
    """)
    for i in range(5): c.e(f"buffer_load_dword v{vGw+i}, v{vT[5]}, s[{srdW}:{srdW+3}], 0 offen offset:{256*i}")
    NB_ = 8
    for bt in range(2):
        for rr in range(NB_):
            for i in range(5): c.e(f"buffer_load_dword v{vGx+5*rr+i}, v{vT[5]}, s[{srdX}:{srdX+3}], s{sT1} offen offset:{256*i}")
            c.e(f"s_add_u32 s{sT1}, s{sT1}, 1280")
        for rr in range(NB_):
            c.e(f"s_waitcnt vmcnt({5*(NB_-1-rr) + (rr if True else 0)})")
            for i in range(5):
                c.e(f"""
                v_lshlrev_b32 v{vT[0]}, 16, v{vGx+5*rr+i}
                v_and_b32 v{vT[1]}, 0xffff0000, v{vGx+5*rr+i}
                v_lshlrev_b32 v{vT[2]}, 16, v{vGw+i}
                v_and_b32 v{vT[3]}, 0xffff0000, v{vGw+i}
                v_mul_f32 v{vT[0]}, v{vT[0]}, v{vT[2]}
                v_mul_f32 v{vT[1]}, v{vT[1]}, v{vT[3]}
                v_cvt_pk_bf16_f32 v{vT[0]}, v{vT[0]}, v{vT[1]}
                v_lshlrev_b32 v{vT[2]}, 16, v{vT[0]}
                v_and_b32 v{vT[3]}, 0xffff0000, v{vT[0]}
                """)
                if i == 0: c.e(f"v_add_f32 v{vT[4]}, v{vT[2]}, v{vT[3]}")
                else: c.e(f"v_add_f32 v{vT[2]}, v{vT[2]}, v{vT[3]}\nv_add_f32 v{vT[4]}, v{vT[4]}, v{vT[2]}")
            for sh in ("row_shr:1", "row_shr:2", "row_shr:4", "row_shr:8"):
                c.e(f"s_nop 1\nv_add_f32_dpp v{vT[4]}, v{vT[4]}, v{vT[4]} {sh} row_mask:0xf bank_mask:0xf bound_ctrl:0")
            c.e(f"""
            s_nop 1
            v_readlane_b32 s{sT0}, v{vT[4]}, 15
            v_readlane_b32 s{sT2}, v{vT[4]}, 31
            v_readlane_b32 s{sT3}, v{vT[4]}, 47
            v_readlane_b32 s{sHS}, v{vT[4]}, 63
            s_nop 1
            v_mov_b32 v{vT[0]}, s{sT0}
            v_add_f32 v{vT[0]}, s{sT2}, v{vT[0]}
            v_add_f32 v{vT[0]}, s{sT3}, v{vT[0]}
            v_add_f32 v{vT[0]}, s{sHS}, v{vT[0]}
            v_cvt_pk_bf16_f32 v{vT[0]}, v{vT[0]}, v{vT[0]}
            v_lshlrev_b32 v{vT[0]}, 16, v{vT[0]}
            v_mul_f32 v{vT[0]}, {hexf(-LOG2E)}, v{vT[0]}
            v_exp_f32 v{vT[0]}, v{vT[0]}
            s_nop 0
            v_add_f32 v{vT[0]}, 1.0, v{vT[0]}
            v_rcp_f32 v{vT[0]}, v{vT[0]}
            s_nop 0
            v_cvt_pk_bf16_f32 v{vT[0]}, v{vT[0]}, v{vT[0]}
            v_lshlrev_b32 v{vT[6]}, 16, v{vT[0]}
            v_sub_f32 v{vT[1]}, 1.0, v{vT[6]}
            v_cvt_pk_bf16_f32 v{vT[1]}, v{vT[1]}, v{vT[1]}
            v_lshlrev_b32 v{vT[7]}, 16, v{vT[1]}
            s_lshl_b32 s{sT0}, s{sBase}, 3
            s_add_u32 s{sT0}, s{sT0}, {G_OFF}
            v_mov_b32 v{vT[2]}, 0
            s_mov_b64 exec, 1
            buffer_store_dwordx2 {vr(vT[6],2)}, v{vT[2]}, s[{srdWS}:{srdWS+3}], s{sT0} offen
            s_mov_b64 exec, -1
            s_add_u32 s{sBase}, s{sBase}, 1
            """)
    if stamps:
        ST.i = 2; ST.stamp(c); ST.stamp(c)
    c.label(f"{name}_FIN")
    if stamps: c.e("s_waitcnt vmcnt(0)")
    ST.i = 4; ST.stamp(c)
    if stamps:
        c.e(f"s_memrealtime s[{ST.s+14}:{ST.s+15}]"); ST.i = 8
        c.e(f"s_cmp_ge_u32 s{sW}, 8\ns_cbranch_scc1 {name}_END")
    ST.flush(c, sW, srdWS, vT[2], vT[3], sT0)
    c.e(f"""
    {name}_END:
    s_endpgm
    """)
    def S(role, vi=0, idle=False):
        d = {f"{name}_END": False, f"{name}_GATE": role == "gate", f"{name}_GLU": role == "glu", f"{name}_RA_GLU": role == "glu",
             f"{name}_NOEA": role == "glu", f"{name}_EAV": role == "v", f"{name}_NOSCL": False, f"{name}_NOSCLH": False, f"{name}_NOZ": False, f"{name}_PRO_NX": vi % 2 == 1,
             f"{name}_PRO_H": role != "glu", f"{name}_QW": vi % 2 == 0, f"{name}_CPD": (lambda k: k >= 1)}
        for i in range(1, 6): d[f"{name}_VAR{i}"] = (i == vi)
        for i in range(12): d[f"{name}_TCH{i}"] = (i != 3)
        d[f"{name}_SWP"] = False
        return d
    scen = {"qk1": S("qk", 0), "qk0": S("qk", 1), "v1": S("v", 2), "v0": S("v", 3), "glu1": S("glu", 4), "glu0": S("glu", 5), "gate": S("gate")}
    return c, V.hi, scen, K1_LDS

if __name__ == "__main__":
    c, nv, scen, lds = gen_k1()
    errs = check(c.lines, scen, "k1")
    print("vgprs", nv, "lds", lds, "lines", len(c.lines))
    for e in errs[:40]: print(e)
```

```python
from common import *
NST = 20
WSLOT = 24576; WRING = 4; UOFF = 12288
XSLOT = 16384; XRING = 3
XBASE = WSLOT*WRING
K1_LDS = XBASE + XSLOT*XRING
def mfma16(d, a, b, cz=None):
    return f"v_mfma_f32_16x16x32_bf16 {vr(d,4)}, {vr(a,4)}, {vr(b,4)}, " + (vr(d,4) if cz is None else str(cz))

def gen_k1(name="k1_kernel", stamps=False, exp=""):
    c = Code()
    SM = " sc1" if "SC1" in exp else (" sc0 sc1" if "SC01" in exp else ("" if "PLAIN" in exp else (" nt" if "NT" in exp else " sc1")))
    SMQ = SM; SMH = SM
    if "QP" in exp: SMQ = ""
    if "HP" in exp: SMH = ""
    if "QS" in exp: SMQ = " sc1"
    if "HS" in exp: SMH = " sc1"
    V = Alloc(168, 1, "v"); Sg = Alloc(100, 18, "s")
    sAX, sWQ, sGW, sWG, sWU, sWS = 4, 6, 10, 12, 14, 16
    if 'PF2' not in exp and 'PFB' not in exp and 'NOPF' not in exp: exp = exp + "PFW"
    PF = 0 if 'NOPF' in exp else 3
    sX = Sg.take(); sJ = Sg.take(); sCG = Sg.take(); sRT = Sg.take(); sW = Sg.take(); sTH = Sg.take(); sCQ = Sg.take(); sSub = Sg.take()
    sT0 = Sg.take(); sT1 = Sg.take(); sT2 = Sg.take(); sT3 = Sg.take()
    srdX = Sg.take(4, 4); srdW = Sg.take(4, 4); srdWS = Sg.take(4, 4)
    sMw = Sg.take(); sMx = Sg.take(); sKx = Sg.take(); sKw = Sg.take(); sKwStep = Sg.take()
    sBase = Sg.take(); sHS = Sg.take(); sTS = Sg.take(); sScale = Sg.take()
    sWD = Sg.take(2, 2); srdP = Sg.take(4, 4)
    ST = Stamps(Sg, stamps, 0)
    vL = V.take(); vT = [V.take() for _ in range(8)]
    vOffX = V.take(); vOffW = [V.take(), V.take()]
    vXA = [V.take(), V.take()]; vWA = [V.take() for _ in range(4)]; vWH = [V.take() for _ in range(4)]
    sets = [(V.take(16, 4), V.take(16, 4)) for _ in range(2)]
    acc = V.take(64, 4)
    vPF = V.take(); vPx = V.take(); vPw = V.take()
    vE = sets[0][0]
    aE = [V.take() for _ in range(4)]; aO = [V.take() for _ in range(4)]; aC = [V.take() for _ in range(5)]
    D = lambda fb, tb: acc + 16*fb + 4*tb

    c.e(f"""
    s_cmp_ge_u32 s2, 256
    s_cbranch_scc1 {name}_END
    s_load_dwordx4 s[4:7], s[0:1], {KA_AX}
    s_load_dwordx2 s[10:11], s[0:1], {KA_GW}
    s_load_dwordx4 s[12:15], s[0:1], {KA_WG}
    s_load_dwordx2 s[16:17], s[0:1], {KA_WS}
    s_load_dwordx2 s[8:9], s[0:1], {KA_WO}
    s_load_dwordx2 s[{sWD}:{sWD+1}], s[0:1], {KA_WD}
    v_and_b32 v{vL}, 63, v0
    v_lshrrev_b32 v{vT[0]}, 6, v0
    s_and_b32 s{sX}, s2, 7
    s_lshr_b32 s{sJ}, s2, 3
    v_readfirstlane_b32 s{sW}, v{vT[0]}
    s_and_b32 s{sT0}, s{sJ}, 1
    s_lshr_b32 s{sRT}, s{sJ}, 1
    """)
    if "OLDMAP" in exp:
        c.e(f"s_lshl_b32 s{sCG}, s{sX}, 1\ns_add_u32 s{sCG}, s{sCG}, s{sT0}")
    else:
        c.e(f"""
        s_mul_i32 s{sT1}, s{sT0}, 6
        s_add_u32 s{sT1}, s{sT1}, s{sX}
        s_lshl_b32 s{sCG}, s{sX}, 1
        s_add_u32 s{sCG}, s{sCG}, s{sT0}
        s_cmp_lt_u32 s{sX}, 6
        s_cselect_b32 s{sCG}, s{sT1}, s{sCG}
        """)
    if stamps: c.e('s_memrealtime s[%d:%d]' % (ST.s, ST.s+1)); ST.i = 1; c.e('s_waitcnt lgkmcnt(0)')
    ST.stamp(c)
    if "TOUCH" in exp:
        c.e("s_waitcnt lgkmcnt(0)\ns_nop 2")
        tbl = [(sAX, 0, 2048*1280), (sAX, 1310720, 2048*1280), (sWQ, 0, 640*3840), (sWQ, 1228800, 640*3840), (sWG, 0, 640*3456), (sWG, 1105920, 640*3456),
               (sWU, 0, 640*3456), (sWU, 1105920, 640*3456), (sWS, QF_OFF, WS_BYTES), (sWS, KV_OFF + 2097152, WS_BYTES), (sWS, HF_OFF + 1048576, WS_BYTES), (sWS, HF_OFF + 4194304, WS_BYTES)]
        for i, (p, off, sz) in enumerate(tbl):
            c.e(f"""
            s_cmp_eq_u32 s{sW}, {i}
            s_cbranch_scc0 {name}_TCH{i}
            s_mov_b32 s{srdWS}, s{p}
            s_and_b32 s{srdWS+1}, s{p+1}, 0xffff
            s_mov_b32 s{srdWS+2}, {sz}
            s_mov_b32 s{srdWS+3}, 0x20000
            v_mov_b32 v{vT[1]}, {off}
            buffer_load_dword v{vPF}, v{vT[1]}, s[{srdWS}:{srdWS+3}], 0 offen
            {name}_TCH{i}:
            """)
    c.e(f"""
    v_lshrrev_b32 v{vT[1]}, 3, v{vL}
    v_lshrrev_b32 v{vT[2]}, 4, v{vL}
    s_lshl_b32 s{sT0}, s{sW}, 2
    v_add_u32 v{vT[2]}, s{sT0}, v{vT[2]}
    v_xor_b32 v{vT[2]}, v{vT[2]}, v{vL}
    v_and_b32 v{vT[2]}, 7, v{vT[2]}
    s_lshl_b32 s{sT0}, s{sRT}, 7
    s_lshl_b32 s{sT1}, s{sW}, 3
    s_add_u32 s{sT0}, s{sT0}, s{sT1}
    v_add_u32 v{vT[1]}, s{sT0}, v{vT[1]}
    v_mul_u32_u24 v{vT[1]}, 1280, v{vT[1]}
    v_lshl_add_u32 v{vOffX}, v{vT[2]}, 4, v{vT[1]}
    s_lshl_b32 s{sMx}, s{sW}, 10
    s_add_u32 s{sMx}, s{sMx}, {XBASE}
    s_and_b32 s{sTH}, s{sW}, 1
    s_lshr_b32 s{sCQ}, s{sW}, 1
    s_mov_b32 s{sSub}, 0
    s_cmp_eq_u32 s{sCG}, 15
    s_cbranch_scc1 {name}_GATE
    s_lshl_b32 s{sMw}, s{sW}, 11
    s_cmp_lt_u32 s{sCG}, 6
    s_cbranch_scc0 {name}_GLU
    """)
    def woff(i, nch, magic, rs):
        return f"""
        v_add_u32 v{vT[1]}, s{sT0}, v{vL}
        v_mul_u32_u24 v{vT[2]}, {magic}, v{vT[1]}
        v_lshrrev_b32 v{vT[2]}, 16, v{vT[2]}
        v_mul_u32_u24 v{vT[3]}, {nch}, v{vT[2]}
        v_sub_u32 v{vT[3]}, v{vT[1]}, v{vT[3]}
        v_lshrrev_b32 v{vT[4]}, 1, v{vT[2]}
        v_and_b32 v{vT[4]}, 4, v{vT[4]}
        v_and_or_b32 v{vT[4]}, v{vT[2]}, 2, v{vT[4]}
        v_xor_b32 v{vT[3]}, v{vT[3]}, v{vT[4]}
        v_mul_u32_u24 v{vT[2]}, {rs}, v{vT[2]}
        v_lshl_add_u32 v{vT[2]}, v{vT[3]}, 4, v{vT[2]}
        v_add_u32 v{vOffW[i]}, s{sT3}, v{vT[2]}
        s_add_u32 s{sT0}, s{sT0}, 64
        """
    c.e(f"""
    s_lshl_b32 s{sT0}, s{sW}, 7
    s_cmp_lt_u32 s{sW}, 8
    s_cbranch_scc1 {name}_QW
    s_add_u32 s{sT0}, s{sW}, 8
    s_lshl_b32 s{sMw}, s{sT0}, 10
    s_lshl_b32 s{sT0}, s{sT0}, 6
    s_and_b32 s{sSub}, s{sCQ}, 1
    s_mov_b32 s{sCQ}, 4
    {name}_QW:
    s_mul_i32 s{sT3}, s{sCG}, 640
    """)
    c.e(woff(0, 40, 1639, 3840)); c.e(woff(1, 40, 1639, 3840))
    c.e(f"s_mov_b32 s{sKwStep}, {32*3840}\ns_waitcnt lgkmcnt(0)")
    srd(c, srdW, sWQ, 640*3840)
    c.e(f"s_branch {name}_DEC")
    c.label(f"{name}_GLU")
    c.e(f"""
    s_cmp_lt_u32 s{sW}, 6
    s_cselect_b32 s{sT1}, 0, 6
    s_sub_u32 s{sT0}, s{sW}, s{sT1}
    s_lshl_b32 s{sT0}, s{sT0}, 7
    s_sub_u32 s{sT3}, s{sCG}, 6
    s_mul_i32 s{sT3}, s{sT3}, 384
    """)
    c.e(woff(0, 24, 2731, 3456)); c.e(woff(1, 24, 2731, 3456))
    c.e(f"""
    s_mov_b32 s{sKwStep}, {32*3456}
    s_waitcnt lgkmcnt(0)
    s_cmp_lt_u32 s{sW}, 6
    s_cselect_b32 s{srdW}, s{sWG}, s{sWU}
    s_cselect_b32 s{srdW+1}, s{sWG+1}, s{sWU+1}
    s_and_b32 s{srdW+1}, s{srdW+1}, 0xffff
    s_mov_b32 s{srdW+2}, {640*3456}
    s_mov_b32 s{srdW+3}, 0x20000
    """)
    c.label(f"{name}_DEC")
    srd(c, srdX, sAX, 2048*1280)
    if PF:
        srd(c, srdP, sAX, 2048*1280)
        c.e(f"v_mov_b32 v{vPx}, 0\nv_mov_b32 v{vPw}, 0")
    c.e(f"s_mov_b32 s{sKw}, 0")
    def qkv_params():
        c.e(f"""
        s_cmp_lt_u32 s{sCG}, 2
        {csel(sHS, QF_HS, KV_HS)}
        {csel(sTS, QF_TS, KV_TS)}
        {csel(sBase, QF_OFF, KV_OFF)}
        {csel(sScale, hexf(LOG2E*20**-0.5), hexf(1.0))}
        s_cmp_lt_u32 s{sCG}, 4
        s_cselect_b32 s{sBase}, s{sBase}, {KV_OFF + 1280}
        """)
    def qk_addr():
        c.e(f"""
        v_and_b32 v{vT[0]}, 15, v{vL}
        v_lshrrev_b32 v{vT[1]}, 4, v{vL}
        s_lshl_b32 s{sT0}, s{sCQ}, 4
        v_add_u32 v{vT[1]}, s{sT0}, v{vT[1]}
        s_mul_i32 s{sT1}, s{sTH}, 2560
        s_mul_i32 s{sT2}, s{sSub}, 1280
        s_add_u32 s{sT1}, s{sT1}, s{sT2}
        """)
        for fb in range(4):
            c.e(f"""
            v_add_u32 v{vT[2]}, {4*fb}, v{vT[1]}
            v_mul_u32_u24 v{vT[3]}, 13108, v{vT[2]}
            v_lshrrev_b32 v{vT[3]}, 16, v{vT[3]}
            v_mul_u32_u24 v{vT[4]}, 5, v{vT[3]}
            v_sub_u32 v{vT[4]}, v{vT[2]}, v{vT[4]}
            v_mul_u32_u24 v{vT[3]}, 5120, v{vT[3]}
            v_add_u32 v{vT[3]}, s{sT1}, v{vT[3]}
            v_lshrrev_b32 v{vT[5]}, 1, v{vT[4]}
            v_lshlrev_b32 v{vT[5]}, 9, v{vT[5]}
            v_and_b32 v{vT[6]}, 1, v{vT[4]}
            v_lshl_add_u32 v{vT[5]}, v{vT[6]}, 3, v{vT[5]}
            v_lshl_add_u32 v{vT[5]}, v{vT[0]}, 4, v{vT[5]}
            v_lshlrev_b32 v{vT[6]}, 3, v{vT[0]}
            v_add_u32 v{vT[6]}, 1024, v{vT[6]}
            v_cmp_eq_u32 vcc, 4, v{vT[4]}
            v_mov_b32 v{vT[7]}, 256
            v_mov_b32 v{vT[2]}, 128
            v_cndmask_b32 v{vT[5]}, v{vT[5]}, v{vT[6]}, vcc
            v_cndmask_b32 v{vT[7]}, v{vT[7]}, v{vT[2]}, vcc
            v_add_u32 v{aE[fb]}, v{vT[3]}, v{vT[5]}
            v_add_u32 v{aO[fb]}, v{aE[fb]}, v{vT[7]}
            """)

    def v_addr():
        c.e(f"""
        v_and_b32 v{vT[0]}, 15, v{vL}
        v_lshrrev_b32 v{vT[1]}, 4, v{vL}
        s_lshl_b32 s{sT0}, s{sCQ}, 6
        v_add_u32 v{vT[0]}, s{sT0}, v{vT[0]}
        v_and_b32 v{vT[2]}, 1, v{vT[1]}
        v_mul_u32_u24 v{vT[2]}, 320, v{vT[2]}
        v_lshrrev_b32 v{vT[1]}, 1, v{vT[1]}
        v_lshl_add_u32 v{vT[1]}, v{vT[1]}, 3, v{vT[2]}
        s_mul_i32 s{sT1}, s{sTH}, 2560
        s_mul_i32 s{sT2}, s{sSub}, 1280
        s_add_u32 s{sT1}, s{sT1}, s{sT2}
        v_add_u32 v{vT[1]}, s{sT1}, v{vT[1]}
        """)
        for fb in range(4):
            c.e(f"""
            v_add_u32 v{vT[2]}, {16*fb}, v{vT[0]}
            v_mul_u32_u24 v{vT[3]}, 3277, v{vT[2]}
            v_lshrrev_b32 v{vT[3]}, 16, v{vT[3]}
            v_mul_u32_u24 v{vT[4]}, 20, v{vT[3]}
            v_sub_u32 v{vT[4]}, v{vT[2]}, v{vT[4]}
            v_mul_u32_u24 v{vT[3]}, 5120, v{vT[3]}
            v_lshl_add_u32 v{vT[3]}, v{vT[4]}, 4, v{vT[3]}
            v_add_u32 v{aE[fb]}, v{vT[3]}, v{vT[1]}
            """)

    def c_addr():
        for k in range(5):
            c.e(f"""
            v_add_u32 v{vT[1]}, {64*k}, v{vL}
            v_mul_u32_u24 v{vT[2]}, 820, v{vT[1]}
            v_lshrrev_b32 v{vT[2]}, 16, v{vT[2]}
            v_mul_u32_u24 v{vT[3]}, 80, v{vT[2]}
            v_sub_u32 v{vT[3]}, v{vT[1]}, v{vT[3]}
            v_mul_lo_u32 v{vT[2]}, v{vT[2]}, s{sTS}
            v_lshl_add_u32 v{aC[k]}, v{vT[3]}, 4, v{vT[2]}
            """)

    def pf_setup(glu):
        if not PF: return
        c.e(f"""
        s_sub_u32 s{sT0}, s{sW}, 8
        s_lshl_b32 s{sT1}, s{sJ}, 6
        s_lshl_b32 s{sT2}, s{sT0}, 4
        s_add_u32 s{sT1}, s{sT1}, s{sT2}
        v_and_b32 v{vT[1]}, 15, v{vL}
        v_add_u32 v{vT[1]}, s{sT1}, v{vT[1]}
        v_mul_u32_u24 v{vPx}, 1280, v{vT[1]}
        """)
        if glu:
            c.e(f"""
            s_cmp_lt_u32 s{sT0}, 2
            s_cselect_b32 s{srdP}, s{sWG}, s{sWU}
            s_cselect_b32 s{srdP+1}, s{sWG+1}, s{sWU+1}
            s_and_b32 s{srdP+1}, s{srdP+1}, 0xffff
            s_mov_b32 s{srdP+2}, {640*3456}
            s_mov_b32 s{srdP+3}, 0x20000
            v_mul_u32_u24 v{vT[2]}, 21846, v{vL}
            v_lshrrev_b32 v{vT[2]}, 16, v{vT[2]}
            v_mul_u32_u24 v{vT[3]}, 3, v{vT[2]}
            v_sub_u32 v{vT[3]}, v{vL}, v{vT[3]}
            s_sub_u32 s{sT1}, s{sCG}, 6
            s_mul_i32 s{sT1}, s{sT1}, 384
            v_lshl_add_u32 v{vT[3]}, v{vT[3]}, 7, s{sT1}
            s_and_b32 s{sT1}, s{sT0}, 1
            """)
            c.e(f"""
            s_mul_i32 s{sT2}, s{sT1}, 5
            s_mul_i32 s{sT3}, s{sRT}, 10
            s_add_u32 s{sT2}, s{sT2}, s{sT3}
            s_add_u32 s{sT2}, s{sT2}, 96
            v_min_u32 v{vT[4]}, 4, v{vT[2]}
            v_add_u32 v{vT[4]}, s{sT2}, v{vT[4]}
            v_mul_u32_u24 v{vT[4]}, 3456, v{vT[4]}
            v_add_u32 v{vT[4]}, v{vT[4]}, v{vT[3]}
            s_lshl_b32 s{sT2}, s{sT1}, 1
            s_lshl_b32 s{sT3}, s{sRT}, 2
            s_add_u32 s{sT2}, s{sT2}, s{sT3}
            v_min_u32 v{vT[5]}, 1, v{vT[2]}
            v_add_u32 v{vT[5]}, s{sT2}, v{vT[5]}
            v_mul_u32_u24 v{vT[5]}, 3456, v{vT[5]}
            v_add_u32 v{vPw}, v{vT[5]}, v{vT[3]}
            """)
        else:
            c.e(f"""
            s_mov_b32 s{srdP}, s{sWQ}
            s_and_b32 s{srdP+1}, s{sWQ+1}, 0xffff
            s_mov_b32 s{srdP+2}, {640*3840}
            s_mov_b32 s{srdP+3}, 0x20000
            v_mul_u32_u24 v{vT[2]}, 13108, v{vL}
            v_lshrrev_b32 v{vT[2]}, 16, v{vT[2]}
            v_mul_u32_u24 v{vT[3]}, 5, v{vT[2]}
            v_sub_u32 v{vT[3]}, v{vL}, v{vT[3]}
            s_mul_i32 s{sT1}, s{sCG}, 640
            v_lshl_add_u32 v{vT[3]}, v{vT[3]}, 7, s{sT1}
            s_mul_i32 s{sT2}, s{sT0}, 3
            s_mul_i32 s{sT3}, s{sRT}, 10
            s_add_u32 s{sT2}, s{sT2}, s{sT3}
            s_add_u32 s{sT2}, s{sT2}, 96
            v_min_u32 v{vT[4]}, 2, v{vT[2]}
            v_add_u32 v{vT[4]}, s{sT2}, v{vT[4]}
            v_mul_u32_u24 v{vT[4]}, 3840, v{vT[4]}
            v_add_u32 v{vT[4]}, v{vT[4]}, v{vT[3]}
            s_lshl_b32 s{sT2}, s{sRT}, 2
            s_add_u32 s{sT2}, s{sT2}, s{sT0}
            s_mul_i32 s{sT2}, s{sT2}, 3840
            v_mul_u32_u24 v{vT[5]}, 13108, v{vL}
            v_lshrrev_b32 v{vT[5]}, 16, v{vT[5]}
            v_mul_u32_u24 v{vT[5]}, 5, v{vT[5]}
            v_sub_u32 v{vT[5]}, v{vL}, v{vT[5]}
            v_lshl_add_u32 v{vT[5]}, v{vT[5]}, 7, s{sT2}
            s_mul_i32 s{sT1}, s{sCG}, 640
            v_add_u32 v{vPw}, s{sT1}, v{vT[5]}
            """)
        if "PFW" in exp: return
        c.e(f"""
        s_movk_i32 s{sT1}, 256
        buffer_load_dword v{vPF}, v{vPx}, s[{srdX}:{srdX+3}], s{sT1} offen
        buffer_load_dword v{vPF}, v{vPx}, s[{srdX}:{srdX+3}], s{sT1} offen offset:128
        buffer_load_dword v{vPF}, v{vT[4]}, s[{srdP}:{srdP+3}], 0 offen
        """)
    def pf_n(st):
        if not PF: return 0
        if "PFW" in exp: return 1 if st in (5, 7) else 0
        if "PFB" in exp: return 1 if st in (13, 15) else 0
        return 1 if ((st % 2 == 0 and 0 <= st <= 10) or (st % 2 == 1 and st <= 11) or st in (13, 15)) else 0
    def pf_ops(st, rs):
        if not pf_n(st): return []
        if st in ((5, 7) if "PFW" in exp else (13, 15)):
            p, nl, sz = (sWD, 17, 1728*1280) if st in (5, 13) else (8, 7, 640*1280)
            return [f"s_mov_b32 s{srdP}, s{p}", f"s_and_b32 s{srdP+1}, s{p+1}, 0xffff", f"s_mov_b32 s{srdP+2}, {sz}",
                    f"s_lshl_b32 s{sT2}, s2, 2", f"s_add_u32 s{sT2}, s{sT2}, s{sW}", f"s_sub_u32 s{sT2}, s{sT2}, 8", f"s_mul_i32 s{sT2}, s{sT2}, {nl*128}",
                    f"v_min_u32 v{vPw}, {nl-1}, v{vL}", f"v_lshlrev_b32 v{vPw}, 7, v{vPw}",
                    f"buffer_load_dword v{vPF}, v{vPw}, s[{srdP}:{srdP+3}], s{sT2} offen"]
        if st % 2 == 0:
            return [f"s_movk_i32 s{sT2}, {128*(st//2 + 4)}", f"buffer_load_dword v{vPF}, v{vPx}, s[{srdX}:{srdX+3}], s{sT2} offen"]
        rsz = 3456 if rs == 384 else 3840
        return [f"s_mov_b32 s{sT2}, {32*(st + 7)*rsz}", f"buffer_load_dword v{vPF}, v{vPw}, s[{srdP}:{srdP+3}], s{sT2} offen"]
    def dma_w(i, st):
        return [f"s_add_u32 m0, s{sMw}, {(st % WRING)*WSLOT + 1024*i}", "s_nop 0", f"buffer_load_dwordx4 v{vOffW[i]}, s[{srdW}:{srdW+3}], s{sKw} offen lds"]
    def dma_x(u):
        m, hf = u >> 1, u & 1
        return [f"s_add_u32 m0, s{sMx}, {(m % XRING)*XSLOT + hf*8192}", f"s_mov_b32 s{sKx}, {m*128 + hf*64*1280}", f"buffer_load_dwordx4 v{vOffX}, s[{srdX}:{srdX+3}], s{sKx} offen lds"]
    advw = [f"s_add_u32 s{sKw}, s{sKw}, s{sKwStep}"]
    c.e(f"""
    s_cmp_lt_u32 s{sW}, 8
    s_cbranch_scc0 {name}_PRO_NX
    """)
    if "SWAP" in exp:
        c.e(f"s_and_b32 s{sT0}, s{sRT}, 1\ns_cmp_eq_u32 s{sT0}, 1\ns_cbranch_scc1 {name}_SWP")
        c.e("\n".join(dma_x(0) + dma_w(0, 0) + dma_w(1, 0) + advw + dma_x(1)))
        c.e(f"s_branch {name}_SWD\n{name}_SWP:")
        c.e("\n".join(dma_w(0, 0) + dma_w(1, 0) + advw + dma_x(0) + dma_x(1)))
        c.label(f"{name}_SWD")
    else:
        c.e("\n".join(dma_x(0) + dma_w(0, 0) + dma_w(1, 0) + advw + dma_x(1)))
    c.e("\n".join(dma_w(0, 1) + dma_w(1, 1) + advw + dma_x(2) + dma_w(0, 2) + dma_w(1, 2) + advw + dma_x(3)))
    c.e(f"s_branch {name}_PRO_D")
    c.label(f"{name}_PRO_NX")
    c.e(f"s_cmp_lt_u32 s{sCG}, 6\ns_cbranch_scc1 {name}_PRO_H")
    for st in range(3): c.e("\n".join(dma_w(0, st) + dma_w(1, st) + advw))
    pf_setup(True)
    c.e(f"s_branch {name}_PRO_D")
    c.label(f"{name}_PRO_H")
    for st in range(3): c.e("\n".join(dma_w(0, st) + advw))
    pf_setup(False)
    c.label(f"{name}_PRO_D")
    c.e(f"""
    v_and_b32 v{vT[1]}, 15, v{vL}
    v_lshrrev_b32 v{vT[2]}, 4, v{vL}
    v_lshrrev_b32 v{vT[3]}, 1, v{vT[1]}
    v_xor_b32 v{vT[3]}, v{vT[3]}, v{vT[2]}
    v_lshlrev_b32 v{vT[3]}, 4, v{vT[3]}
    v_lshl_add_u32 v{vT[3]}, v{vT[1]}, 7, v{vT[3]}
    s_lshl_b32 s{sT0}, s{sTH}, 13
    s_lshl_b32 s{sT1}, s{sSub}, 12
    s_add_u32 s{sT0}, s{sT0}, s{sT1}
    s_add_u32 s{sT0}, s{sT0}, {XBASE}
    v_add_u32 v{vXA[0]}, s{sT0}, v{vT[3]}
    v_xor_b32 v{vXA[1]}, 64, v{vXA[0]}
    v_lshrrev_b32 v{vT[3]}, 2, v{vT[1]}
    v_lshl_add_u32 v{vT[4]}, v{vT[2]}, 3, v{vT[3]}
    v_lshrrev_b32 v{vT[3]}, 1, v{vT[3]}
    v_and_b32 v{vT[5]}, 1, v{vT[2]}
    v_lshl_or_b32 v{vT[3]}, v{vT[5]}, 1, v{vT[3]}
    v_and_b32 v{vT[5]}, 3, v{vT[1]}
    v_lshlrev_b32 v{vT[5]}, 3, v{vT[5]}
    s_cmp_lt_u32 s{sCG}, 6
    s_cbranch_scc0 {name}_RA_GLU
    v_mul_u32_u24 v{vT[4]}, 640, v{vT[4]}
    v_add_u32 v{vT[4]}, v{vT[4]}, v{vT[5]}
    s_lshl_b32 s{sT0}, s{sCQ}, 7
    v_add_u32 v{vT[4]}, s{sT0}, v{vT[4]}
    """)
    for fb in range(4):
        c.e(f"v_xor_b32 v{vT[6]}, {fb}, v{vT[3]}\nv_lshl_add_u32 v{vWA[fb]}, v{vT[6]}, 5, v{vT[4]}")
    c.e(f"s_branch {name}_RA")
    c.label(f"{name}_RA_GLU")
    c.e(f"""
    v_mul_u32_u24 v{vT[4]}, 384, v{vT[4]}
    v_add_u32 v{vT[4]}, v{vT[4]}, v{vT[5]}
    """)
    for f in range(2):
        c.e(f"""
        s_lshl_b32 s{sT0}, s{sCQ}, 1
        s_add_u32 s{sT0}, s{sT0}, {f}
        s_and_b32 s{sT1}, s{sT0}, 3
        s_andn2_b32 s{sT0}, s{sT0}, 3
        s_lshl_b32 s{sT0}, s{sT0}, 5
        v_xor_b32 v{vT[6]}, s{sT1}, v{vT[3]}
        v_lshl_add_u32 v{vT[6]}, v{vT[6]}, 5, v{vT[4]}
        v_add_u32 v{vWA[f]}, s{sT0}, v{vT[6]}
        v_add_u32 v{vWA[2+f]}, {UOFF}, v{vWA[f]}
        """)
    c.label(f"{name}_RA")
    for fb in range(4): c.e(f"v_add_u32 v{vWH[fb]}, {2*WSLOT}, v{vWA[fb]}")
    srd(c, srdWS, sWS, WS_BYTES)
    for r_ in aE + aO + aC: c.e(f"v_mov_b32 v{r_}, 0")
    c.e(f"s_cmp_lt_u32 s{sCG}, 6\ns_cbranch_scc0 {name}_NOEA")
    qkv_params(); c_addr()
    c.e(f"s_cmp_lt_u32 s{sCG}, 4\ns_cbranch_scc0 {name}_EAV")
    qk_addr()
    c.e(f"s_branch {name}_NOEA")
    c.label(f"{name}_EAV")
    v_addr()
    c.label(f"{name}_NOEA")
    ST.stamp(c)
    c.e(f"""
    s_cmp_lt_u32 s{sW}, 8
    s_cselect_b32 s{sT1}, 0, 1
    s_cmp_lt_u32 s{sCG}, 4
    s_cselect_b32 s{sT0}, 0, 2
    s_cmp_lt_u32 s{sCG}, 6
    s_cselect_b32 s{sT0}, s{sT0}, 4
    s_add_u32 s{sT0}, s{sT0}, s{sT1}
    """)
    variants = [("QK", 1, 4, 2), ("QK", 0, 2, 1), ("V", 1, 4, 2), ("V", 0, 2, 1), ("GLU", 1, 4, 2), ("GLU", 0, 4, 2)]
    for i in range(1, 6): c.e(f"s_cmp_eq_u32 s{sT0}, {i}\ns_cbranch_scc1 {name}_VAR{i}")
    def reads(st, rs, ntb=4):
        xs, ws_ = sets[st % 2]; p = st & 1; xslot = (st >> 1) % XRING; wsl = st % WRING
        base = vWA if wsl < 2 else vWH; so = (wsl & 1)*WSLOT
        L = []
        for i in range(4):
            L.append(f"ds_read_b64_tr_b16 {vr(ws_+4*i,2)}, v{base[i]} offset:{so}")
            L.append(f"ds_read_b64_tr_b16 {vr(ws_+4*i+2,2)}, v{base[i]} offset:{so + 4*rs}")
            if i < ntb: L.append(f"ds_read_b128 {vr(xs+4*i,4)}, v{vXA[p]} offset:{xslot*XSLOT + 2048*i}")
        return L
    def mfmas(st, role, ntb=4):
        xs, ws_ = sets[st % 2]; L = []
        for fb in range(4):
            for tb in range(ntb):
                cz = 0 if st == 0 else None
                L.append(mfma16(D(fb, tb), ws_+4*fb, xs+4*tb, cz) if role != "V" else mfma16(D(fb, tb), xs+4*tb, ws_+4*fb, cz))
        return L
    for vi, (role, nx, ntb, nw) in enumerate(variants):
        if vi: c.label(f"{name}_VAR{vi}")
        rs = 384 if role == "GLU" else 640
        def cnt(x): return ((nw if x + 3 < NST else 0) + (nx if x + 4 < NST else 0))
        def wd(st): return sum([dma_w(i, st) for i in range(nw)], [])
        def allowed(st):
            n = cnt(st-2) + cnt(st-1)
            if nx == 0: n += sum(pf_n(x) for x in range(max(st-3, 0), st)) + (PF if (st <= 2 and 'PFW' not in exp) else 0)
            return n
        pfo = (lambda st: pf_ops(st, rs)) if nx == 0 else (lambda st: [])
        for st in range(NST + 1):
            rd = reads(st, rs, ntb) if st < NST else []
            if st == 0:
                c.e(f"s_waitcnt vmcnt({allowed(0)})\ns_barrier")
                c.e("\n".join(rd))
                c.e("\n".join(wd(3) + advw + (dma_x(4) if nx else []) + pfo(0)))
                continue
            m = mfmas(st - 1, role, ntb)
            nm = len(m)
            g = {}
            pre = [f"s_waitcnt vmcnt({allowed(st)})", "s_barrier"] if st < NST else []
            if ntb == 4:
                g[0] = pre + rd[0:2]
                k = 2
                for i in range(1, 11):
                    g[i] = rd[k:k+1]; k += 1
                if st < NST:
                    if st + 3 < NST:
                        g[11] = dma_w(0, st+3); g[13] = dma_w(1, st+3) + advw
                    if nx and st + 4 < NST: g[15] = dma_x(st+4)
                    g[15] = g.get(15, []) + pfo(st)
            else:
                g[0] = pre + rd[0:2]
                for i in range(1, 5): g[i] = rd[2*i:2*i+2]
                if st < NST and st + 3 < NST: g[6] = dma_w(0, st+3) + advw
                if st < NST: g[7] = pfo(st)
            c.e("s_waitcnt lgkmcnt(0)")
            out = []
            for i, x in enumerate(m):
                out.append(x); out += g.get(i, [])
            c.e("\n".join(out))
            if stamps and st in (3, 15):
                r = ST.s + 2*(5 if st == 3 else 6); c.e(f"{'s_memrealtime' if Stamps.RT else 's_memtime'} s[{r}:{r+1}]")
        c.e(f"s_branch {name}_EPI_{role}" + ("H" if ntb == 2 else ""))
    c.label(f"{name}_EPI_GLU")
    ST.i = 3; ST.stamp(c, wait=True)
    c.e(f"""
    s_lshl_b32 s{sT0}, s{sRT}, 2
    s_lshl_b32 s{sT1}, s{sTH}, 1
    s_add_u32 s{sT0}, s{sT0}, s{sT1}
    s_mul_i32 s{sBase}, s{sT0}, 108
    s_sub_u32 s{sT1}, s{sCG}, 6
    s_mul_i32 s{sT1}, s{sT1}, 12
    s_add_u32 s{sBase}, s{sBase}, s{sT1}
    s_lshl_b32 s{sT1}, s{sCQ}, 1
    s_add_u32 s{sBase}, s{sBase}, s{sT1}
    s_lshl_b32 s{sBase}, s{sBase}, 10
    s_add_u32 s{sBase}, s{sBase}, {HF_OFF}
    v_and_b32 v{vT[1]}, 15, v{vL}
    v_lshrrev_b32 v{vT[2]}, 4, v{vL}
    v_and_b32 v{vT[3]}, 1, v{vT[2]}
    v_lshlrev_b32 v{vT[3]}, 9, v{vT[3]}
    v_lshl_add_u32 v{vT[3]}, v{vT[1]}, 4, v{vT[3]}
    v_lshrrev_b32 v{vT[2]}, 1, v{vT[2]}
    v_lshl_add_u32 v{vT[0]}, v{vT[2]}, 3, v{vT[3]}
    s_mov_b32 s{sT1}, {hexf(-LOG2E)}
    s_add_u32 s{sT2}, s{sBase}, {108*1024}
    """)
    for tb in range(4):
        for f in range(2):
            g_, u_ = D(f, tb), D(2+f, tb)
            for r in range(4): c.e(f"v_mul_f32 v{g_+r}, s{sT1}, v{g_+r}")
        for f in range(2):
            for r in range(4): c.e(f"v_exp_f32 v{D(f,tb)+r}, v{D(f,tb)+r}")
        for f in range(2):
            for r in range(4): c.e(f"v_add_f32 v{D(f,tb)+r}, 1.0, v{D(f,tb)+r}")
        for f in range(2):
            for r in range(4): c.e(f"v_rcp_f32 v{D(f,tb)+r}, v{D(f,tb)+r}")
        for f in range(2):
            for r in range(4): c.e(f"v_mul_f32 v{D(f,tb)+r}, v{D(f,tb)+r}, v{D(2+f,tb)+r}")
        e = vE + 4*(tb % 4)
        for f in range(2):
            c.e(f"v_cvt_pk_bf16_f32 v{e+2*f}, v{D(f,tb)}, v{D(f,tb)+1}\nv_cvt_pk_bf16_f32 v{e+2*f+1}, v{D(f,tb)+2}, v{D(f,tb)+3}")
        for f in range(2):
            c.e(f"buffer_store_dwordx2 {vr(e+2*f,2)}, v{vT[0]}, s[{srdWS}:{srdWS+3}], s{sBase if tb < 2 else sT2} offen offset:{1024*f + 256*(tb & 1)}{SMH}")
    c.e(f"s_branch {name}_FIN")
    t2 = vE + 8
    for ntb in (4, 2):
        sfx = "" if ntb == 4 else "H"
        c.label(f"{name}_EPI_QK{sfx}")
        ST.i = 3; ST.stamp(c, wait=True)
        c.e("s_barrier")
        c.e(f"s_cmp_lt_u32 s{sCG}, 2\ns_cbranch_scc0 {name}_NOSCL{sfx}")
        if ntb == 2: c.e("s_nop 3")
        for fb in range(4):
            for tb in range(ntb):
                for r in range(4): c.e(f"v_mul_f32 v{D(fb,tb)+r}, s{sScale}, v{D(fb,tb)+r}")
        c.label(f"{name}_NOSCL{sfx}")
        if ntb == 2: c.e("s_nop 3")
        for fb in range(4):
            for tb in range(ntb):
                d = D(fb, tb)
                e = t2 + 2*((4*fb + tb) % 8)
                c.e(f"v_cvt_pk_bf16_f32 v{e}, v{d}, v{d+1}\nv_cvt_pk_bf16_f32 v{e+1}, v{d+2}, v{d+3}")
                c.e(f"ds_write_b64 v{aE[fb] if tb % 2 == 0 else aO[fb]}, {vr(e,2)} offset:{1280*(tb >> 1)}")
            c.e("s_waitcnt lgkmcnt(4)")
        c.e(f"s_branch {name}_COPY")
        c.label(f"{name}_EPI_V{sfx}")
        ST.i = 3; ST.stamp(c, wait=True)
        c.e("s_barrier")
        if ntb == 2: c.e("s_nop 5")
        for fb in range(4):
            for tb in range(ntb):
                d = D(fb, tb); e = t2 + 2*((4*fb + tb) % 8)
                c.e(f"v_cvt_pk_bf16_f32 v{e}, v{d}, v{d+1}\nv_cvt_pk_bf16_f32 v{e+1}, v{d+2}, v{d+3}")
                c.e(f"ds_write_b64 v{aE[fb]}, {vr(e,2)} offset:{1280*(tb >> 1) + 640*(tb & 1)}")
            c.e("s_waitcnt lgkmcnt(4)")
        c.e(f"s_branch {name}_COPY")
    c.label(f"{name}_COPY")
    c.e(f"""
    s_lshl_b32 s{sT0}, s{sRT}, 2
    s_mul_i32 s{sT0}, s{sT0}, s{sTS}
    s_add_u32 s{sBase}, s{sBase}, s{sT0}
    s_and_b32 s{sT0}, s{sCG}, 1
    s_lshl_b32 s{sT0}, s{sT0}, 4
    s_add_u32 s{sT0}, s{sT0}, s{sW}
    s_mul_i32 s{sT0}, s{sT0}, s{sHS}
    s_add_u32 s{sBase}, s{sBase}, s{sT0}
    s_mul_i32 s{sT1}, s{sW}, 5120
    v_lshl_add_u32 v{vT[0]}, v{vL}, 4, s{sT1}
    """)
    c.e("s_waitcnt lgkmcnt(0)\ns_barrier")
    c.label(f"{name}_CPL")
    for k in range(5): c.e(f"ds_read_b128 {vr(acc+4*k,4)}, v{vT[0]} offset:{1024*k}")
    for k in range(5):
        c.e(f"s_waitcnt lgkmcnt({4-k})")
        c.e(f"buffer_store_dwordx4 {vr(acc+4*k,4)}, v{aC[k]}, s[{srdWS}:{srdWS+3}], s{sBase} offen{SMQ}")
    c.e(f"""
    s_add_u32 s{sW}, s{sW}, 12
    s_cmp_lt_u32 s{sW}, 16
    s_cbranch_scc0 {name}_CPD
    s_mul_i32 s{sT0}, s{sHS}, 12
    s_add_u32 s{sBase}, s{sBase}, s{sT0}
    v_add_u32 v{vT[0]}, {12*5120}, v{vT[0]}
    s_branch {name}_CPL
    {name}_CPD:
    s_sub_u32 s{sW}, s{sW}, 12
    s_cmp_ge_u32 s{sW}, 12
    s_cselect_b32 s{sT0}, 12, 0
    s_sub_u32 s{sW}, s{sW}, s{sT0}
    s_branch {name}_FIN
    """)
    c.label(f"{name}_GATE")
    c.e(f"s_cmp_ge_u32 s{sW}, 8\ns_cbranch_scc1 {name}_END\ns_waitcnt lgkmcnt(0)")
    srd(c, srdX, sAX, 2048*1280); srd(c, srdW, sGW, 1280); srd(c, srdWS, sWS, WS_BYTES)
    c.e(f"""
    s_or_b32 s{sT0}, s{sRT}, s{sW}
    s_cmp_eq_u32 s{sT0}, 0
    s_cbranch_scc0 {name}_NOZ
    v_lshlrev_b32 v{vT[5]}, 7, v{vL}
    v_mov_b32 v{vT[4]}, 0
    s_mov_b32 s{sT0}, {CNT_OFF}
    s_mov_b64 exec, 0xff
    buffer_store_dword v{vT[4]}, v{vT[5]}, s[{srdWS}:{srdWS+3}], s{sT0} offen
    s_mov_b64 exec, -1
    {name}_NOZ:
    """)
    vGw = sets[0][0]; vGx = sets[0][0] + 8
    c.e(f"""
    v_lshlrev_b32 v{vT[5]}, 2, v{vL}
    s_lshl_b32 s{sT0}, s{sRT}, 7
    s_lshl_b32 s{sT1}, s{sW}, 4
    s_add_u32 s{sBase}, s{sT0}, s{sT1}
    s_mul_i32 s{sT1}, s{sBase}, 1280
    """)
    for i in range(5): c.e(f"buffer_load_dword v{vGw+i}, v{vT[5]}, s[{srdW}:{srdW+3}], 0 offen offset:{256*i}")
    NB_ = 8
    for bt in range(2):
        for rr in range(NB_):
            for i in range(5): c.e(f"buffer_load_dword v{vGx+5*rr+i}, v{vT[5]}, s[{srdX}:{srdX+3}], s{sT1} offen offset:{256*i}")
            c.e(f"s_add_u32 s{sT1}, s{sT1}, 1280")
        for rr in range(NB_):
            c.e(f"s_waitcnt vmcnt({5*(NB_-1-rr) + (rr if True else 0)})")
            for i in range(5):
                c.e(f"""
                v_lshlrev_b32 v{vT[0]}, 16, v{vGx+5*rr+i}
                v_and_b32 v{vT[1]}, 0xffff0000, v{vGx+5*rr+i}
                v_lshlrev_b32 v{vT[2]}, 16, v{vGw+i}
                v_and_b32 v{vT[3]}, 0xffff0000, v{vGw+i}
                v_mul_f32 v{vT[0]}, v{vT[0]}, v{vT[2]}
                v_mul_f32 v{vT[1]}, v{vT[1]}, v{vT[3]}
                v_cvt_pk_bf16_f32 v{vT[0]}, v{vT[0]}, v{vT[1]}
                v_lshlrev_b32 v{vT[2]}, 16, v{vT[0]}
                v_and_b32 v{vT[3]}, 0xffff0000, v{vT[0]}
                """)
                if i == 0: c.e(f"v_add_f32 v{vT[4]}, v{vT[2]}, v{vT[3]}")
                else: c.e(f"v_add_f32 v{vT[2]}, v{vT[2]}, v{vT[3]}\nv_add_f32 v{vT[4]}, v{vT[4]}, v{vT[2]}")
            for sh in ("row_shr:1", "row_shr:2", "row_shr:4", "row_shr:8"):
                c.e(f"s_nop 1\nv_add_f32_dpp v{vT[4]}, v{vT[4]}, v{vT[4]} {sh} row_mask:0xf bank_mask:0xf bound_ctrl:0")
            c.e(f"""
            s_nop 1
            v_readlane_b32 s{sT0}, v{vT[4]}, 15
            v_readlane_b32 s{sT2}, v{vT[4]}, 31
            v_readlane_b32 s{sT3}, v{vT[4]}, 47
            v_readlane_b32 s{sHS}, v{vT[4]}, 63
            s_nop 1
            v_mov_b32 v{vT[0]}, s{sT0}
            v_add_f32 v{vT[0]}, s{sT2}, v{vT[0]}
            v_add_f32 v{vT[0]}, s{sT3}, v{vT[0]}
            v_add_f32 v{vT[0]}, s{sHS}, v{vT[0]}
            v_cvt_pk_bf16_f32 v{vT[0]}, v{vT[0]}, v{vT[0]}
            v_lshlrev_b32 v{vT[0]}, 16, v{vT[0]}
            v_mul_f32 v{vT[0]}, {hexf(-LOG2E)}, v{vT[0]}
            v_exp_f32 v{vT[0]}, v{vT[0]}
            s_nop 0
            v_add_f32 v{vT[0]}, 1.0, v{vT[0]}
            v_rcp_f32 v{vT[0]}, v{vT[0]}
            s_nop 0
            v_cvt_pk_bf16_f32 v{vT[0]}, v{vT[0]}, v{vT[0]}
            v_lshlrev_b32 v{vT[6]}, 16, v{vT[0]}
            v_sub_f32 v{vT[1]}, 1.0, v{vT[6]}
            v_cvt_pk_bf16_f32 v{vT[1]}, v{vT[1]}, v{vT[1]}
            v_lshlrev_b32 v{vT[7]}, 16, v{vT[1]}
            s_lshl_b32 s{sT0}, s{sBase}, 3
            s_add_u32 s{sT0}, s{sT0}, {G_OFF}
            v_mov_b32 v{vT[2]}, 0
            s_mov_b64 exec, 1
            buffer_store_dwordx2 {vr(vT[6],2)}, v{vT[2]}, s[{srdWS}:{srdWS+3}], s{sT0} offen
            s_mov_b64 exec, -1
            s_add_u32 s{sBase}, s{sBase}, 1
            """)
    if stamps:
        ST.i = 2; ST.stamp(c); ST.stamp(c)
    c.label(f"{name}_FIN")
    if stamps: c.e("s_waitcnt vmcnt(0)")
    ST.i = 4; ST.stamp(c)
    if stamps:
        c.e(f"s_memrealtime s[{ST.s+14}:{ST.s+15}]"); ST.i = 8
        c.e(f"s_cmp_ge_u32 s{sW}, 8\ns_cbranch_scc1 {name}_END")
    ST.flush(c, sW, srdWS, vT[2], vT[3], sT0)
    c.e(f"""
    {name}_END:
    s_endpgm
    """)
    def S(role, vi=0, idle=False):
        d = {f"{name}_END": False, f"{name}_GATE": role == "gate", f"{name}_GLU": role == "glu", f"{name}_RA_GLU": role == "glu",
             f"{name}_NOEA": role == "glu", f"{name}_EAV": role == "v", f"{name}_NOSCL": False, f"{name}_NOSCLH": False, f"{name}_NOZ": False, f"{name}_PRO_NX": vi % 2 == 1,
             f"{name}_PRO_H": role != "glu", f"{name}_QW": vi % 2 == 0, f"{name}_CPD": (lambda k: k >= 1)}
        for i in range(1, 6): d[f"{name}_VAR{i}"] = (i == vi)
        for i in range(12): d[f"{name}_TCH{i}"] = (i != 3)
        d[f"{name}_SWP"] = False
        return d
    scen = {"qk1": S("qk", 0), "qk0": S("qk", 1), "v1": S("v", 2), "v0": S("v", 3), "glu1": S("glu", 4), "glu0": S("glu", 5), "gate": S("gate")}
    return c, V.hi, scen, K1_LDS

if __name__ == "__main__":
    c, nv, scen, lds = gen_k1()
    errs = check(c.lines, scen, "k1")
    print("vgprs", nv, "lds", lds, "lines", len(c.lines))
    for e in errs[:40]: print(e)
```

```python
from common import *
NST = 20
WSLOT = 24576; WRING = 4; UOFF = 12288
XSLOT = 16384; XRING = 3
XBASE = WSLOT*WRING
K1_LDS = XBASE + XSLOT*XRING
def mfma16(d, a, b, cz=None):
    return f"v_mfma_f32_16x16x32_bf16 {vr(d,4)}, {vr(a,4)}, {vr(b,4)}, " + (vr(d,4) if cz is None else str(cz))

def gen_k1(name="k1_kernel", stamps=False, exp=""):
    c = Code()
    SM = " sc1" if "SC1" in exp else (" sc0 sc1" if "SC01" in exp else ("" if "PLAIN" in exp else (" nt" if "NT" in exp else " sc1")))
    SMQ = SM; SMH = SM
    if "QP" in exp: SMQ = ""
    if "HP" in exp: SMH = ""
    if "QS" in exp: SMQ = " sc1"
    if "HS" in exp: SMH = " sc1"
    V = Alloc(168, 1, "v"); Sg = Alloc(100, 18, "s")
    sAX, sWQ, sGW, sWG, sWU, sWS = 4, 6, 10, 12, 14, 16
    PFG = "PFG" in exp
    if PFG: exp = exp + "NOPF"
    if 'PF2' not in exp and 'PFB' not in exp and 'NOPF' not in exp: exp = exp + "PFW"
    PF = 0 if 'NOPF' in exp else 3
    PFS = (17, 18) if 'LATE' in exp else ((2, 3) if 'EARLY' in exp else (5, 7))
    sX = Sg.take(); sJ = Sg.take(); sCG = Sg.take(); sRT = Sg.take(); sW = Sg.take(); sTH = Sg.take(); sCQ = Sg.take(); sSub = Sg.take()
    sT0 = Sg.take(); sT1 = Sg.take(); sT2 = Sg.take(); sT3 = Sg.take()
    srdX = Sg.take(4, 4); srdW = Sg.take(4, 4); srdWS = Sg.take(4, 4)
    sMw = Sg.take(); sMx = Sg.take(); sKx = Sg.take(); sKw = Sg.take(); sKwStep = Sg.take()
    sBase = Sg.take(); sHS = Sg.take(); sTS = Sg.take(); sScale = Sg.take()
    sWD = Sg.take(2, 2); srdP = Sg.take(4, 4)
    ST = Stamps(Sg, stamps, 0)
    vL = V.take(); vT = [V.take() for _ in range(8)]
    vOffX = V.take(); vOffW = [V.take(), V.take()]
    vXA = [V.take(), V.take()]; vWA = [V.take() for _ in range(4)]; vWH = [V.take() for _ in range(4)]
    sets = [(V.take(16, 4), V.take(16, 4)) for _ in range(2)]
    acc = V.take(64, 4)
    vPF = V.take(); vPx = V.take(); vPw = V.take()
    vE = sets[0][0]
    aE = [V.take() for _ in range(4)]; aO = [V.take() for _ in range(4)]; aC = [V.take() for _ in range(5)]
    D = lambda fb, tb: acc + 16*fb + 4*tb

    c.e(f"""
    s_cmp_ge_u32 s2, 256
    s_cbranch_scc1 {name}_END
    s_load_dwordx4 s[4:7], s[0:1], {KA_AX}
    s_load_dwordx2 s[10:11], s[0:1], {KA_GW}
    s_load_dwordx4 s[12:15], s[0:1], {KA_WG}
    s_load_dwordx2 s[16:17], s[0:1], {KA_WS}
    s_load_dwordx2 s[8:9], s[0:1], {KA_WO}
    s_load_dwordx2 s[{sWD}:{sWD+1}], s[0:1], {KA_WD}
    v_and_b32 v{vL}, 63, v0
    v_lshrrev_b32 v{vT[0]}, 6, v0
    s_and_b32 s{sX}, s2, 7
    s_lshr_b32 s{sJ}, s2, 3
    v_readfirstlane_b32 s{sW}, v{vT[0]}
    s_and_b32 s{sT0}, s{sJ}, 1
    s_lshr_b32 s{sRT}, s{sJ}, 1
    """)
    if "OLDMAP" in exp:
        c.e(f"s_lshl_b32 s{sCG}, s{sX}, 1\ns_add_u32 s{sCG}, s{sCG}, s{sT0}")
    else:
        c.e(f"""
        s_mul_i32 s{sT1}, s{sT0}, 6
        s_add_u32 s{sT1}, s{sT1}, s{sX}
        s_lshl_b32 s{sCG}, s{sX}, 1
        s_add_u32 s{sCG}, s{sCG}, s{sT0}
        s_cmp_lt_u32 s{sX}, 6
        s_cselect_b32 s{sCG}, s{sT1}, s{sCG}
        """)
    if stamps: c.e('s_memrealtime s[%d:%d]' % (ST.s, ST.s+1)); ST.i = 1; c.e('s_waitcnt lgkmcnt(0)')
    ST.stamp(c)
    if "TOUCH" in exp:
        c.e("s_waitcnt lgkmcnt(0)\ns_nop 2")
        tbl = [(sAX, 0, 2048*1280), (sAX, 1310720, 2048*1280), (sWQ, 0, 640*3840), (sWQ, 1228800, 640*3840), (sWG, 0, 640*3456), (sWG, 1105920, 640*3456),
               (sWU, 0, 640*3456), (sWU, 1105920, 640*3456), (sWS, QF_OFF, WS_BYTES), (sWS, KV_OFF + 2097152, WS_BYTES), (sWS, HF_OFF + 1048576, WS_BYTES), (sWS, HF_OFF + 4194304, WS_BYTES)]
        for i, (p, off, sz) in enumerate(tbl):
            c.e(f"""
            s_cmp_eq_u32 s{sW}, {i}
            s_cbranch_scc0 {name}_TCH{i}
            s_mov_b32 s{srdWS}, s{p}
            s_and_b32 s{srdWS+1}, s{p+1}, 0xffff
            s_mov_b32 s{srdWS+2}, {sz}
            s_mov_b32 s{srdWS+3}, 0x20000
            v_mov_b32 v{vT[1]}, {off}
            buffer_load_dword v{vPF}, v{vT[1]}, s[{srdWS}:{srdWS+3}], 0 offen
            {name}_TCH{i}:
            """)
    c.e(f"""
    v_lshrrev_b32 v{vT[1]}, 3, v{vL}
    v_lshrrev_b32 v{vT[2]}, 4, v{vL}
    s_lshl_b32 s{sT0}, s{sW}, 2
    v_add_u32 v{vT[2]}, s{sT0}, v{vT[2]}
    v_xor_b32 v{vT[2]}, v{vT[2]}, v{vL}
    v_and_b32 v{vT[2]}, 7, v{vT[2]}
    s_lshl_b32 s{sT0}, s{sRT}, 7
    s_lshl_b32 s{sT1}, s{sW}, 3
    s_add_u32 s{sT0}, s{sT0}, s{sT1}
    v_add_u32 v{vT[1]}, s{sT0}, v{vT[1]}
    v_mul_u32_u24 v{vT[1]}, 1280, v{vT[1]}
    v_lshl_add_u32 v{vOffX}, v{vT[2]}, 4, v{vT[1]}
    s_lshl_b32 s{sMx}, s{sW}, 10
    s_add_u32 s{sMx}, s{sMx}, {XBASE}
    s_and_b32 s{sTH}, s{sW}, 1
    s_lshr_b32 s{sCQ}, s{sW}, 1
    s_mov_b32 s{sSub}, 0
    s_cmp_eq_u32 s{sCG}, 15
    s_cbranch_scc1 {name}_GATE
    s_lshl_b32 s{sMw}, s{sW}, 11
    s_cmp_lt_u32 s{sCG}, 6
    s_cbranch_scc0 {name}_GLU
    """)
    def woff(i, nch, magic, rs):
        return f"""
        v_add_u32 v{vT[1]}, s{sT0}, v{vL}
        v_mul_u32_u24 v{vT[2]}, {magic}, v{vT[1]}
        v_lshrrev_b32 v{vT[2]}, 16, v{vT[2]}
        v_mul_u32_u24 v{vT[3]}, {nch}, v{vT[2]}
        v_sub_u32 v{vT[3]}, v{vT[1]}, v{vT[3]}
        v_lshrrev_b32 v{vT[4]}, 1, v{vT[2]}
        v_and_b32 v{vT[4]}, 4, v{vT[4]}
        v_and_or_b32 v{vT[4]}, v{vT[2]}, 2, v{vT[4]}
        v_xor_b32 v{vT[3]}, v{vT[3]}, v{vT[4]}
        v_mul_u32_u24 v{vT[2]}, {rs}, v{vT[2]}
        v_lshl_add_u32 v{vT[2]}, v{vT[3]}, 4, v{vT[2]}
        v_add_u32 v{vOffW[i]}, s{sT3}, v{vT[2]}
        s_add_u32 s{sT0}, s{sT0}, 64
        """
    c.e(f"""
    s_lshl_b32 s{sT0}, s{sW}, 7
    s_cmp_lt_u32 s{sW}, 8
    s_cbranch_scc1 {name}_QW
    s_add_u32 s{sT0}, s{sW}, 8
    s_lshl_b32 s{sMw}, s{sT0}, 10
    s_lshl_b32 s{sT0}, s{sT0}, 6
    s_and_b32 s{sSub}, s{sCQ}, 1
    s_mov_b32 s{sCQ}, 4
    {name}_QW:
    s_mul_i32 s{sT3}, s{sCG}, 640
    """)
    c.e(woff(0, 40, 1639, 3840)); c.e(woff(1, 40, 1639, 3840))
    c.e(f"s_mov_b32 s{sKwStep}, {32*3840}\ns_waitcnt lgkmcnt(0)")
    srd(c, srdW, sWQ, 640*3840)
    c.e(f"s_branch {name}_DEC")
    c.label(f"{name}_GLU")
    c.e(f"""
    s_cmp_lt_u32 s{sW}, 6
    s_cselect_b32 s{sT1}, 0, 6
    s_sub_u32 s{sT0}, s{sW}, s{sT1}
    s_lshl_b32 s{sT0}, s{sT0}, 7
    s_sub_u32 s{sT3}, s{sCG}, 6
    s_mul_i32 s{sT3}, s{sT3}, 384
    """)
    c.e(woff(0, 24, 2731, 3456)); c.e(woff(1, 24, 2731, 3456))
    c.e(f"""
    s_mov_b32 s{sKwStep}, {32*3456}
    s_waitcnt lgkmcnt(0)
    s_cmp_lt_u32 s{sW}, 6
    s_cselect_b32 s{srdW}, s{sWG}, s{sWU}
    s_cselect_b32 s{srdW+1}, s{sWG+1}, s{sWU+1}
    s_and_b32 s{srdW+1}, s{srdW+1}, 0xffff
    s_mov_b32 s{srdW+2}, {640*3456}
    s_mov_b32 s{srdW+3}, 0x20000
    """)
    c.label(f"{name}_DEC")
    srd(c, srdX, sAX, 2048*1280)
    if PF:
        srd(c, srdP, sAX, 2048*1280)
        c.e(f"v_mov_b32 v{vPx}, 0\nv_mov_b32 v{vPw}, 0")
    c.e(f"s_mov_b32 s{sKw}, 0")
    def qkv_params():
        c.e(f"""
        s_cmp_lt_u32 s{sCG}, 2
        {csel(sHS, QF_HS, KV_HS)}
        {csel(sTS, QF_TS, KV_TS)}
        {csel(sBase, QF_OFF, KV_OFF)}
        {csel(sScale, hexf(LOG2E*20**-0.5), hexf(1.0))}
        s_cmp_lt_u32 s{sCG}, 4
        s_cselect_b32 s{sBase}, s{sBase}, {KV_OFF + 1280}
        """)
    def qk_addr():
        c.e(f"""
        v_and_b32 v{vT[0]}, 15, v{vL}
        v_lshrrev_b32 v{vT[1]}, 4, v{vL}
        s_lshl_b32 s{sT0}, s{sCQ}, 4
        v_add_u32 v{vT[1]}, s{sT0}, v{vT[1]}
        s_mul_i32 s{sT1}, s{sTH}, 2560
        s_mul_i32 s{sT2}, s{sSub}, 1280
        s_add_u32 s{sT1}, s{sT1}, s{sT2}
        """)
        for fb in range(4):
            c.e(f"""
            v_add_u32 v{vT[2]}, {4*fb}, v{vT[1]}
            v_mul_u32_u24 v{vT[3]}, 13108, v{vT[2]}
            v_lshrrev_b32 v{vT[3]}, 16, v{vT[3]}
            v_mul_u32_u24 v{vT[4]}, 5, v{vT[3]}
            v_sub_u32 v{vT[4]}, v{vT[2]}, v{vT[4]}
            v_mul_u32_u24 v{vT[3]}, 5120, v{vT[3]}
            v_add_u32 v{vT[3]}, s{sT1}, v{vT[3]}
            v_lshrrev_b32 v{vT[5]}, 1, v{vT[4]}
            v_lshlrev_b32 v{vT[5]}, 9, v{vT[5]}
            v_and_b32 v{vT[6]}, 1, v{vT[4]}
            v_lshl_add_u32 v{vT[5]}, v{vT[6]}, 3, v{vT[5]}
            v_lshl_add_u32 v{vT[5]}, v{vT[0]}, 4, v{vT[5]}
            v_lshlrev_b32 v{vT[6]}, 3, v{vT[0]}
            v_add_u32 v{vT[6]}, 1024, v{vT[6]}
            v_cmp_eq_u32 vcc, 4, v{vT[4]}
            v_mov_b32 v{vT[7]}, 256
            v_mov_b32 v{vT[2]}, 128
            v_cndmask_b32 v{vT[5]}, v{vT[5]}, v{vT[6]}, vcc
            v_cndmask_b32 v{vT[7]}, v{vT[7]}, v{vT[2]}, vcc
            v_add_u32 v{aE[fb]}, v{vT[3]}, v{vT[5]}
            v_add_u32 v{aO[fb]}, v{aE[fb]}, v{vT[7]}
            """)

    def v_addr():
        c.e(f"""
        v_and_b32 v{vT[0]}, 15, v{vL}
        v_lshrrev_b32 v{vT[1]}, 4, v{vL}
        s_lshl_b32 s{sT0}, s{sCQ}, 6
        v_add_u32 v{vT[0]}, s{sT0}, v{vT[0]}
        v_and_b32 v{vT[2]}, 1, v{vT[1]}
        v_mul_u32_u24 v{vT[2]}, 320, v{vT[2]}
        v_lshrrev_b32 v{vT[1]}, 1, v{vT[1]}
        v_lshl_add_u32 v{vT[1]}, v{vT[1]}, 3, v{vT[2]}
        s_mul_i32 s{sT1}, s{sTH}, 2560
        s_mul_i32 s{sT2}, s{sSub}, 1280
        s_add_u32 s{sT1}, s{sT1}, s{sT2}
        v_add_u32 v{vT[1]}, s{sT1}, v{vT[1]}
        """)
        for fb in range(4):
            c.e(f"""
            v_add_u32 v{vT[2]}, {16*fb}, v{vT[0]}
            v_mul_u32_u24 v{vT[3]}, 3277, v{vT[2]}
            v_lshrrev_b32 v{vT[3]}, 16, v{vT[3]}
            v_mul_u32_u24 v{vT[4]}, 20, v{vT[3]}
            v_sub_u32 v{vT[4]}, v{vT[2]}, v{vT[4]}
            v_mul_u32_u24 v{vT[3]}, 5120, v{vT[3]}
            v_lshl_add_u32 v{vT[3]}, v{vT[4]}, 4, v{vT[3]}
            v_add_u32 v{aE[fb]}, v{vT[3]}, v{vT[1]}
            """)

    def c_addr():
        for k in range(5):
            c.e(f"""
            v_add_u32 v{vT[1]}, {64*k}, v{vL}
            v_mul_u32_u24 v{vT[2]}, 820, v{vT[1]}
            v_lshrrev_b32 v{vT[2]}, 16, v{vT[2]}
            v_mul_u32_u24 v{vT[3]}, 80, v{vT[2]}
            v_sub_u32 v{vT[3]}, v{vT[1]}, v{vT[3]}
            v_mul_lo_u32 v{vT[2]}, v{vT[2]}, s{sTS}
            v_lshl_add_u32 v{aC[k]}, v{vT[3]}, 4, v{vT[2]}
            """)

    def pf_setup(glu):
        if not PF or "PFW" in exp: return
        c.e(f"""
        s_sub_u32 s{sT0}, s{sW}, 8
        s_lshl_b32 s{sT1}, s{sJ}, 6
        s_lshl_b32 s{sT2}, s{sT0}, 4
        s_add_u32 s{sT1}, s{sT1}, s{sT2}
        v_and_b32 v{vT[1]}, 15, v{vL}
        v_add_u32 v{vT[1]}, s{sT1}, v{vT[1]}
        v_mul_u32_u24 v{vPx}, 1280, v{vT[1]}
        """)
        if glu:
            c.e(f"""
            s_cmp_lt_u32 s{sT0}, 2
            s_cselect_b32 s{srdP}, s{sWG}, s{sWU}
            s_cselect_b32 s{srdP+1}, s{sWG+1}, s{sWU+1}
            s_and_b32 s{srdP+1}, s{srdP+1}, 0xffff
            s_mov_b32 s{srdP+2}, {640*3456}
            s_mov_b32 s{srdP+3}, 0x20000
            v_mul_u32_u24 v{vT[2]}, 21846, v{vL}
            v_lshrrev_b32 v{vT[2]}, 16, v{vT[2]}
            v_mul_u32_u24 v{vT[3]}, 3, v{vT[2]}
            v_sub_u32 v{vT[3]}, v{vL}, v{vT[3]}
            s_sub_u32 s{sT1}, s{sCG}, 6
            s_mul_i32 s{sT1}, s{sT1}, 384
            v_lshl_add_u32 v{vT[3]}, v{vT[3]}, 7, s{sT1}
            s_and_b32 s{sT1}, s{sT0}, 1
            """)
            c.e(f"""
            s_mul_i32 s{sT2}, s{sT1}, 5
            s_mul_i32 s{sT3}, s{sRT}, 10
            s_add_u32 s{sT2}, s{sT2}, s{sT3}
            s_add_u32 s{sT2}, s{sT2}, 96
            v_min_u32 v{vT[4]}, 4, v{vT[2]}
            v_add_u32 v{vT[4]}, s{sT2}, v{vT[4]}
            v_mul_u32_u24 v{vT[4]}, 3456, v{vT[4]}
            v_add_u32 v{vT[4]}, v{vT[4]}, v{vT[3]}
            s_lshl_b32 s{sT2}, s{sT1}, 1
            s_lshl_b32 s{sT3}, s{sRT}, 2
            s_add_u32 s{sT2}, s{sT2}, s{sT3}
            v_min_u32 v{vT[5]}, 1, v{vT[2]}
            v_add_u32 v{vT[5]}, s{sT2}, v{vT[5]}
            v_mul_u32_u24 v{vT[5]}, 3456, v{vT[5]}
            v_add_u32 v{vPw}, v{vT[5]}, v{vT[3]}
            """)
        else:
            c.e(f"""
            s_mov_b32 s{srdP}, s{sWQ}
            s_and_b32 s{srdP+1}, s{sWQ+1}, 0xffff
            s_mov_b32 s{srdP+2}, {640*3840}
            s_mov_b32 s{srdP+3}, 0x20000
            v_mul_u32_u24 v{vT[2]}, 13108, v{vL}
            v_lshrrev_b32 v{vT[2]}, 16, v{vT[2]}
            v_mul_u32_u24 v{vT[3]}, 5, v{vT[2]}
            v_sub_u32 v{vT[3]}, v{vL}, v{vT[3]}
            s_mul_i32 s{sT1}, s{sCG}, 640
            v_lshl_add_u32 v{vT[3]}, v{vT[3]}, 7, s{sT1}
            s_mul_i32 s{sT2}, s{sT0}, 3
            s_mul_i32 s{sT3}, s{sRT}, 10
            s_add_u32 s{sT2}, s{sT2}, s{sT3}
            s_add_u32 s{sT2}, s{sT2}, 96
            v_min_u32 v{vT[4]}, 2, v{vT[2]}
            v_add_u32 v{vT[4]}, s{sT2}, v{vT[4]}
            v_mul_u32_u24 v{vT[4]}, 3840, v{vT[4]}
            v_add_u32 v{vT[4]}, v{vT[4]}, v{vT[3]}
            s_lshl_b32 s{sT2}, s{sRT}, 2
            s_add_u32 s{sT2}, s{sT2}, s{sT0}
            s_mul_i32 s{sT2}, s{sT2}, 3840
            v_mul_u32_u24 v{vT[5]}, 13108, v{vL}
            v_lshrrev_b32 v{vT[5]}, 16, v{vT[5]}
            v_mul_u32_u24 v{vT[5]}, 5, v{vT[5]}
            v_sub_u32 v{vT[5]}, v{vL}, v{vT[5]}
            v_lshl_add_u32 v{vT[5]}, v{vT[5]}, 7, s{sT2}
            s_mul_i32 s{sT1}, s{sCG}, 640
            v_add_u32 v{vPw}, s{sT1}, v{vT[5]}
            """)
        if "PFW" in exp: return
        c.e(f"""
        s_movk_i32 s{sT1}, 256
        buffer_load_dword v{vPF}, v{vPx}, s[{srdX}:{srdX+3}], s{sT1} offen
        buffer_load_dword v{vPF}, v{vPx}, s[{srdX}:{srdX+3}], s{sT1} offen offset:128
        buffer_load_dword v{vPF}, v{vT[4]}, s[{srdP}:{srdP+3}], 0 offen
        """)
    def pf_n(st):
        if not PF: return 0
        if "PFW" in exp: return 1 if st in PFS else 0
        if "PFB" in exp: return 1 if st in (13, 15) else 0
        return 1 if ((st % 2 == 0 and 0 <= st <= 10) or (st % 2 == 1 and st <= 11) or st in (13, 15)) else 0
    def pf_ops(st, rs):
        if not pf_n(st): return []
        if st in (PFS if "PFW" in exp else (13, 15)):
            p, nl, sz = (sWD, 17, 1728*1280) if st in (PFS[0], 13) else (8, 7, 640*1280)
            return [f"s_mov_b32 s{srdP}, s{p}", f"s_and_b32 s{srdP+1}, s{p+1}, 0xffff", f"s_mov_b32 s{srdP+2}, {sz}",
                    f"s_lshl_b32 s{sT2}, s2, 2", f"s_add_u32 s{sT2}, s{sT2}, s{sW}", f"s_sub_u32 s{sT2}, s{sT2}, 8", f"s_mul_i32 s{sT2}, s{sT2}, {nl*128}",
                    f"v_min_u32 v{vPw}, {nl-1}, v{vL}", f"v_lshlrev_b32 v{vPw}, 7, v{vPw}",
                    f"buffer_load_dword v{vPF}, v{vPw}, s[{srdP}:{srdP+3}], s{sT2} offen"]
        if st % 2 == 0:
            return [f"s_movk_i32 s{sT2}, {128*(st//2 + 4)}", f"buffer_load_dword v{vPF}, v{vPx}, s[{srdX}:{srdX+3}], s{sT2} offen"]
        rsz = 3456 if rs == 384 else 3840
        return [f"s_mov_b32 s{sT2}, {32*(st + 7)*rsz}", f"buffer_load_dword v{vPF}, v{vPw}, s[{srdP}:{srdP+3}], s{sT2} offen"]
    def dma_w(i, st):
        return [f"s_add_u32 m0, s{sMw}, {(st % WRING)*WSLOT + 1024*i}", "s_nop 0", f"buffer_load_dwordx4 v{vOffW[i]}, s[{srdW}:{srdW+3}], s{sKw} offen lds"]
    def dma_x(u):
        m, hf = u >> 1, u & 1
        return [f"s_add_u32 m0, s{sMx}, {(m % XRING)*XSLOT + hf*8192}", f"s_mov_b32 s{sKx}, {m*128 + hf*64*1280}", f"buffer_load_dwordx4 v{vOffX}, s[{srdX}:{srdX+3}], s{sKx} offen lds"]
    advw = [f"s_add_u32 s{sKw}, s{sKw}, s{sKwStep}"]
    c.e(f"""
    s_cmp_lt_u32 s{sW}, 8
    s_cbranch_scc0 {name}_PRO_NX
    """)
    if "SWAP" in exp:
        c.e(f"s_and_b32 s{sT0}, s{sRT}, 1\ns_cmp_eq_u32 s{sT0}, 1\ns_cbranch_scc1 {name}_SWP")
        c.e("\n".join(dma_x(0) + dma_w(0, 0) + dma_w(1, 0) + advw + dma_x(1)))
        c.e(f"s_branch {name}_SWD\n{name}_SWP:")
        c.e("\n".join(dma_w(0, 0) + dma_w(1, 0) + advw + dma_x(0) + dma_x(1)))
        c.label(f"{name}_SWD")
    else:
        c.e("\n".join(dma_x(0) + dma_w(0, 0) + dma_w(1, 0) + advw + dma_x(1)))
    c.e("\n".join(dma_w(0, 1) + dma_w(1, 1) + advw + dma_x(2) + dma_w(0, 2) + dma_w(1, 2) + advw + dma_x(3)))
    c.e(f"s_branch {name}_PRO_D")
    c.label(f"{name}_PRO_NX")
    c.e(f"s_cmp_lt_u32 s{sCG}, 6\ns_cbranch_scc1 {name}_PRO_H")
    for st in range(3): c.e("\n".join(dma_w(0, st) + dma_w(1, st) + advw))
    pf_setup(True)
    c.e(f"s_branch {name}_PRO_D")
    c.label(f"{name}_PRO_H")
    for st in range(3): c.e("\n".join(dma_w(0, st) + advw))
    pf_setup(False)
    c.label(f"{name}_PRO_D")
    c.e(f"""
    v_and_b32 v{vT[1]}, 15, v{vL}
    v_lshrrev_b32 v{vT[2]}, 4, v{vL}
    v_lshrrev_b32 v{vT[3]}, 1, v{vT[1]}
    v_xor_b32 v{vT[3]}, v{vT[3]}, v{vT[2]}
    v_lshlrev_b32 v{vT[3]}, 4, v{vT[3]}
    v_lshl_add_u32 v{vT[3]}, v{vT[1]}, 7, v{vT[3]}
    s_lshl_b32 s{sT0}, s{sTH}, 13
    s_lshl_b32 s{sT1}, s{sSub}, 12
    s_add_u32 s{sT0}, s{sT0}, s{sT1}
    s_add_u32 s{sT0}, s{sT0}, {XBASE}
    v_add_u32 v{vXA[0]}, s{sT0}, v{vT[3]}
    v_xor_b32 v{vXA[1]}, 64, v{vXA[0]}
    v_lshrrev_b32 v{vT[3]}, 2, v{vT[1]}
    v_lshl_add_u32 v{vT[4]}, v{vT[2]}, 3, v{vT[3]}
    v_lshrrev_b32 v{vT[3]}, 1, v{vT[3]}
    v_and_b32 v{vT[5]}, 1, v{vT[2]}
    v_lshl_or_b32 v{vT[3]}, v{vT[5]}, 1, v{vT[3]}
    v_and_b32 v{vT[5]}, 3, v{vT[1]}
    v_lshlrev_b32 v{vT[5]}, 3, v{vT[5]}
    s_cmp_lt_u32 s{sCG}, 6
    s_cbranch_scc0 {name}_RA_GLU
    v_mul_u32_u24 v{vT[4]}, 640, v{vT[4]}
    v_add_u32 v{vT[4]}, v{vT[4]}, v{vT[5]}
    s_lshl_b32 s{sT0}, s{sCQ}, 7
    v_add_u32 v{vT[4]}, s{sT0}, v{vT[4]}
    """)
    for fb in range(4):
        c.e(f"v_xor_b32 v{vT[6]}, {fb}, v{vT[3]}\nv_lshl_add_u32 v{vWA[fb]}, v{vT[6]}, 5, v{vT[4]}")
    c.e(f"s_branch {name}_RA")
    c.label(f"{name}_RA_GLU")
    c.e(f"""
    v_mul_u32_u24 v{vT[4]}, 384, v{vT[4]}
    v_add_u32 v{vT[4]}, v{vT[4]}, v{vT[5]}
    """)
    for f in range(2):
        c.e(f"""
        s_lshl_b32 s{sT0}, s{sCQ}, 1
        s_add_u32 s{sT0}, s{sT0}, {f}
        s_and_b32 s{sT1}, s{sT0}, 3
        s_andn2_b32 s{sT0}, s{sT0}, 3
        s_lshl_b32 s{sT0}, s{sT0}, 5
        v_xor_b32 v{vT[6]}, s{sT1}, v{vT[3]}
        v_lshl_add_u32 v{vT[6]}, v{vT[6]}, 5, v{vT[4]}
        v_add_u32 v{vWA[f]}, s{sT0}, v{vT[6]}
        v_add_u32 v{vWA[2+f]}, {UOFF}, v{vWA[f]}
        """)
    c.label(f"{name}_RA")
    for fb in range(4): c.e(f"v_add_u32 v{vWH[fb]}, {2*WSLOT}, v{vWA[fb]}")
    srd(c, srdWS, sWS, WS_BYTES)
    for r_ in aE + aO + aC: c.e(f"v_mov_b32 v{r_}, 0")
    c.e(f"s_cmp_lt_u32 s{sCG}, 6\ns_cbranch_scc0 {name}_NOEA")
    qkv_params(); c_addr()
    c.e(f"s_cmp_lt_u32 s{sCG}, 4\ns_cbranch_scc0 {name}_EAV")
    qk_addr()
    c.e(f"s_branch {name}_NOEA")
    c.label(f"{name}_EAV")
    v_addr()
    c.label(f"{name}_NOEA")
    ST.stamp(c)
    c.e(f"""
    s_cmp_lt_u32 s{sW}, 8
    s_cselect_b32 s{sT1}, 0, 1
    s_cmp_lt_u32 s{sCG}, 4
    s_cselect_b32 s{sT0}, 0, 2
    s_cmp_lt_u32 s{sCG}, 6
    s_cselect_b32 s{sT0}, s{sT0}, 4
    s_add_u32 s{sT0}, s{sT0}, s{sT1}
    """)
    variants = [("QK", 1, 4, 2), ("QK", 0, 2, 1), ("V", 1, 4, 2), ("V", 0, 2, 1), ("GLU", 1, 4, 2), ("GLU", 0, 4, 2)]
    for i in range(1, 6): c.e(f"s_cmp_eq_u32 s{sT0}, {i}\ns_cbranch_scc1 {name}_VAR{i}")
    def reads(st, rs, ntb=4):
        xs, ws_ = sets[st % 2]; p = st & 1; xslot = (st >> 1) % XRING; wsl = st % WRING
        base = vWA if wsl < 2 else vWH; so = (wsl & 1)*WSLOT
        L = []
        for i in range(4):
            L.append(f"ds_read_b64_tr_b16 {vr(ws_+4*i,2)}, v{base[i]} offset:{so}")
            L.append(f"ds_read_b64_tr_b16 {vr(ws_+4*i+2,2)}, v{base[i]} offset:{so + 4*rs}")
            if i < ntb: L.append(f"ds_read_b128 {vr(xs+4*i,4)}, v{vXA[p]} offset:{xslot*XSLOT + 2048*i}")
        return L
    def mfmas(st, role, ntb=4):
        xs, ws_ = sets[st % 2]; L = []
        for fb in range(4):
            for tb in range(ntb):
                cz = 0 if st == 0 else None
                L.append(mfma16(D(fb, tb), ws_+4*fb, xs+4*tb, cz) if role != "V" else mfma16(D(fb, tb), xs+4*tb, ws_+4*fb, cz))
        return L
    for vi, (role, nx, ntb, nw) in enumerate(variants):
        if vi: c.label(f"{name}_VAR{vi}")
        rs = 384 if role == "GLU" else 640
        def cnt(x): return ((nw if x + 3 < NST else 0) + (nx if x + 4 < NST else 0))
        def wd(st): return sum([dma_w(i, st) for i in range(nw)], [])
        def allowed(st):
            n = cnt(st-2) + cnt(st-1)
            if nx == 0: n += sum(pf_n(x) for x in range(max(st-3, 0), st)) + (PF if (st <= 2 and 'PFW' not in exp) else 0)
            return n
        pfo = (lambda st: pf_ops(st, rs)) if nx == 0 else (lambda st: [])
        for st in range(NST + 1):
            rd = reads(st, rs, ntb) if st < NST else []
            if st == 0:
                c.e(f"s_waitcnt vmcnt({allowed(0)})\ns_barrier")
                c.e("\n".join(rd))
                c.e("\n".join(wd(3) + advw + (dma_x(4) if nx else []) + pfo(0)))
                continue
            m = mfmas(st - 1, role, ntb)
            nm = len(m)
            g = {}
            pre = [f"s_waitcnt vmcnt({allowed(st)})", "s_barrier"] if st < NST else []
            if ntb == 4:
                g[0] = pre + rd[0:2]
                k = 2
                for i in range(1, 11):
                    g[i] = rd[k:k+1]; k += 1
                if st < NST:
                    if st + 3 < NST:
                        g[11] = dma_w(0, st+3); g[13] = dma_w(1, st+3) + advw
                    if nx and st + 4 < NST: g[15] = dma_x(st+4)
                    g[15] = g.get(15, []) + pfo(st)
            else:
                g[0] = pre + rd[0:2]
                for i in range(1, 5): g[i] = rd[2*i:2*i+2]
                if st < NST and st + 3 < NST: g[6] = dma_w(0, st+3) + advw
                if st < NST: g[7] = pfo(st)
            c.e("s_waitcnt lgkmcnt(0)")
            out = []
            for i, x in enumerate(m):
                out.append(x); out += g.get(i, [])
            c.e("\n".join(out))
            if stamps and st in (3, 15):
                r = ST.s + 2*(5 if st == 3 else 6); c.e(f"{'s_memrealtime' if Stamps.RT else 's_memtime'} s[{r}:{r+1}]")
        c.e(f"s_branch {name}_EPI_{role}" + ("H" if ntb == 2 else ""))
    c.label(f"{name}_EPI_GLU")
    ST.i = 3; ST.stamp(c, wait=True)
    c.e(f"""
    s_lshl_b32 s{sT0}, s{sRT}, 2
    s_lshl_b32 s{sT1}, s{sTH}, 1
    s_add_u32 s{sT0}, s{sT0}, s{sT1}
    s_mul_i32 s{sBase}, s{sT0}, 108
    s_sub_u32 s{sT1}, s{sCG}, 6
    s_mul_i32 s{sT1}, s{sT1}, 12
    s_add_u32 s{sBase}, s{sBase}, s{sT1}
    s_lshl_b32 s{sT1}, s{sCQ}, 1
    s_add_u32 s{sBase}, s{sBase}, s{sT1}
    s_lshl_b32 s{sBase}, s{sBase}, 10
    s_add_u32 s{sBase}, s{sBase}, {HF_OFF}
    v_and_b32 v{vT[1]}, 15, v{vL}
    v_lshrrev_b32 v{vT[2]}, 4, v{vL}
    v_and_b32 v{vT[3]}, 1, v{vT[2]}
    v_lshlrev_b32 v{vT[3]}, 9, v{vT[3]}
    v_lshl_add_u32 v{vT[3]}, v{vT[1]}, 4, v{vT[3]}
    v_lshrrev_b32 v{vT[2]}, 1, v{vT[2]}
    v_lshl_add_u32 v{vT[0]}, v{vT[2]}, 3, v{vT[3]}
    s_mov_b32 s{sT1}, {hexf(-LOG2E)}
    s_add_u32 s{sT2}, s{sBase}, {108*1024}
    """)
    for tb in range(4):
        for f in range(2):
            g_, u_ = D(f, tb), D(2+f, tb)
            for r in range(4): c.e(f"v_mul_f32 v{g_+r}, s{sT1}, v{g_+r}")
        for f in range(2):
            for r in range(4): c.e(f"v_exp_f32 v{D(f,tb)+r}, v{D(f,tb)+r}")
        for f in range(2):
            for r in range(4): c.e(f"v_add_f32 v{D(f,tb)+r}, 1.0, v{D(f,tb)+r}")
        for f in range(2):
            for r in range(4): c.e(f"v_rcp_f32 v{D(f,tb)+r}, v{D(f,tb)+r}")
        for f in range(2):
            for r in range(4): c.e(f"v_mul_f32 v{D(f,tb)+r}, v{D(f,tb)+r}, v{D(2+f,tb)+r}")
        e = vE + 4*(tb % 4)
        for f in range(2):
            c.e(f"v_cvt_pk_bf16_f32 v{e+2*f}, v{D(f,tb)}, v{D(f,tb)+1}\nv_cvt_pk_bf16_f32 v{e+2*f+1}, v{D(f,tb)+2}, v{D(f,tb)+3}")
        for f in range(2):
            c.e(f"buffer_store_dwordx2 {vr(e+2*f,2)}, v{vT[0]}, s[{srdWS}:{srdWS+3}], s{sBase if tb < 2 else sT2} offen offset:{1024*f + 256*(tb & 1)}{SMH}")
    c.e(f"s_branch {name}_FIN")
    t2 = vE + 8
    for ntb in (4, 2):
        sfx = "" if ntb == 4 else "H"
        c.label(f"{name}_EPI_QK{sfx}")
        ST.i = 3; ST.stamp(c, wait=True)
        c.e("s_barrier")
        c.e(f"s_cmp_lt_u32 s{sCG}, 2\ns_cbranch_scc0 {name}_NOSCL{sfx}")
        if ntb == 2: c.e("s_nop 3")
        for fb in range(4):
            for tb in range(ntb):
                for r in range(4): c.e(f"v_mul_f32 v{D(fb,tb)+r}, s{sScale}, v{D(fb,tb)+r}")
        c.label(f"{name}_NOSCL{sfx}")
        if ntb == 2: c.e("s_nop 3")
        for fb in range(4):
            for tb in range(ntb):
                d = D(fb, tb)
                e = t2 + 2*((4*fb + tb) % 8)
                c.e(f"v_cvt_pk_bf16_f32 v{e}, v{d}, v{d+1}\nv_cvt_pk_bf16_f32 v{e+1}, v{d+2}, v{d+3}")
                c.e(f"ds_write_b64 v{aE[fb] if tb % 2 == 0 else aO[fb]}, {vr(e,2)} offset:{1280*(tb >> 1)}")
            c.e("s_waitcnt lgkmcnt(4)")
        c.e(f"s_branch {name}_COPY")
        c.label(f"{name}_EPI_V{sfx}")
        ST.i = 3; ST.stamp(c, wait=True)
        c.e("s_barrier")
        if ntb == 2: c.e("s_nop 5")
        for fb in range(4):
            for tb in range(ntb):
                d = D(fb, tb); e = t2 + 2*((4*fb + tb) % 8)
                c.e(f"v_cvt_pk_bf16_f32 v{e}, v{d}, v{d+1}\nv_cvt_pk_bf16_f32 v{e+1}, v{d+2}, v{d+3}")
                c.e(f"ds_write_b64 v{aE[fb]}, {vr(e,2)} offset:{1280*(tb >> 1) + 640*(tb & 1)}")
            c.e("s_waitcnt lgkmcnt(4)")
        c.e(f"s_branch {name}_COPY")
    c.label(f"{name}_COPY")
    c.e(f"""
    s_lshl_b32 s{sT0}, s{sRT}, 2
    s_mul_i32 s{sT0}, s{sT0}, s{sTS}
    s_add_u32 s{sBase}, s{sBase}, s{sT0}
    s_and_b32 s{sT0}, s{sCG}, 1
    s_lshl_b32 s{sT0}, s{sT0}, 4
    s_add_u32 s{sT0}, s{sT0}, s{sW}
    s_mul_i32 s{sT0}, s{sT0}, s{sHS}
    s_add_u32 s{sBase}, s{sBase}, s{sT0}
    s_mul_i32 s{sT1}, s{sW}, 5120
    v_lshl_add_u32 v{vT[0]}, v{vL}, 4, s{sT1}
    """)
    c.e("s_waitcnt lgkmcnt(0)\ns_barrier")
    c.label(f"{name}_CPL")
    for k in range(5): c.e(f"ds_read_b128 {vr(acc+4*k,4)}, v{vT[0]} offset:{1024*k}")
    for k in range(5):
        c.e(f"s_waitcnt lgkmcnt({4-k})")
        c.e(f"buffer_store_dwordx4 {vr(acc+4*k,4)}, v{aC[k]}, s[{srdWS}:{srdWS+3}], s{sBase} offen{SMQ}")
    c.e(f"""
    s_add_u32 s{sW}, s{sW}, 12
    s_cmp_lt_u32 s{sW}, 16
    s_cbranch_scc0 {name}_CPD
    s_mul_i32 s{sT0}, s{sHS}, 12
    s_add_u32 s{sBase}, s{sBase}, s{sT0}
    v_add_u32 v{vT[0]}, {12*5120}, v{vT[0]}
    s_branch {name}_CPL
    {name}_CPD:
    s_sub_u32 s{sW}, s{sW}, 12
    s_cmp_ge_u32 s{sW}, 12
    s_cselect_b32 s{sT0}, 12, 0
    s_sub_u32 s{sW}, s{sW}, s{sT0}
    s_branch {name}_FIN
    """)
    c.label(f"{name}_GATE")
    if PFG:
        c.e(f"s_cmp_ge_u32 s{sW}, 8\ns_cbranch_scc0 {name}_GATE2\ns_waitcnt lgkmcnt(0)")
        c.e(f"""
        s_lshl_b32 s{sT0}, s{sRT}, 2
        s_add_u32 s{sT0}, s{sT0}, s{sW}
        s_sub_u32 s{sT0}, s{sT0}, 8
        """)
        for (p, nl, per, sz) in ((sWD, 54, 5, 1728*1280), (8, 50, 2, 640*1280)):
            srd(c, srdP, p, sz)
            c.e(f"s_mul_i32 s{sT1}, s{sT0}, {nl*per*128}\nv_min_u32 v{vT[1]}, {nl-1}, v{vL}\nv_lshlrev_b32 v{vT[1]}, 7, v{vT[1]}")
            for i in range(per):
                c.e(f"buffer_load_dword v{vPF}, v{vT[1]}, s[{srdP}:{srdP+3}], s{sT1} offen\ns_add_u32 s{sT1}, s{sT1}, {nl*128}")
        c.e(f"s_endpgm\n{name}_GATE2:\ns_waitcnt lgkmcnt(0)")
    else:
        c.e(f"s_cmp_ge_u32 s{sW}, 8\ns_cbranch_scc1 {name}_END\ns_waitcnt lgkmcnt(0)")
    srd(c, srdX, sAX, 2048*1280); srd(c, srdW, sGW, 1280); srd(c, srdWS, sWS, WS_BYTES)
    c.e(f"""
    s_or_b32 s{sT0}, s{sRT}, s{sW}
    s_cmp_eq_u32 s{sT0}, 0
    s_cbranch_scc0 {name}_NOZ
    v_lshlrev_b32 v{vT[5]}, 7, v{vL}
    v_mov_b32 v{vT[4]}, 0
    s_mov_b32 s{sT0}, {CNT_OFF}
    s_mov_b64 exec, 0xff
    buffer_store_dword v{vT[4]}, v{vT[5]}, s[{srdWS}:{srdWS+3}], s{sT0} offen
    s_mov_b64 exec, -1
    {name}_NOZ:
    """)
    vGw = sets[0][0]; vGx = sets[0][0] + 8
    c.e(f"""
    v_lshlrev_b32 v{vT[5]}, 2, v{vL}
    s_lshl_b32 s{sT0}, s{sRT}, 7
    s_lshl_b32 s{sT1}, s{sW}, 4
    s_add_u32 s{sBase}, s{sT0}, s{sT1}
    s_mul_i32 s{sT1}, s{sBase}, 1280
    """)
    for i in range(5): c.e(f"buffer_load_dword v{vGw+i}, v{vT[5]}, s[{srdW}:{srdW+3}], 0 offen offset:{256*i}")
    NB_ = 8
    for bt in range(2):
        for rr in range(NB_):
            for i in range(5): c.e(f"buffer_load_dword v{vGx+5*rr+i}, v{vT[5]}, s[{srdX}:{srdX+3}], s{sT1} offen offset:{256*i}")
            c.e(f"s_add_u32 s{sT1}, s{sT1}, 1280")
        for rr in range(NB_):
            c.e(f"s_waitcnt vmcnt({5*(NB_-1-rr) + (rr if True else 0)})")
            for i in range(5):
                c.e(f"""
                v_lshlrev_b32 v{vT[0]}, 16, v{vGx+5*rr+i}
                v_and_b32 v{vT[1]}, 0xffff0000, v{vGx+5*rr+i}
                v_lshlrev_b32 v{vT[2]}, 16, v{vGw+i}
                v_and_b32 v{vT[3]}, 0xffff0000, v{vGw+i}
                v_mul_f32 v{vT[0]}, v{vT[0]}, v{vT[2]}
                v_mul_f32 v{vT[1]}, v{vT[1]}, v{vT[3]}
                v_cvt_pk_bf16_f32 v{vT[0]}, v{vT[0]}, v{vT[1]}
                v_lshlrev_b32 v{vT[2]}, 16, v{vT[0]}
                v_and_b32 v{vT[3]}, 0xffff0000, v{vT[0]}
                """)
                if i == 0: c.e(f"v_add_f32 v{vT[4]}, v{vT[2]}, v{vT[3]}")
                else: c.e(f"v_add_f32 v{vT[2]}, v{vT[2]}, v{vT[3]}\nv_add_f32 v{vT[4]}, v{vT[4]}, v{vT[2]}")
            for sh in ("row_shr:1", "row_shr:2", "row_shr:4", "row_shr:8"):
                c.e(f"s_nop 1\nv_add_f32_dpp v{vT[4]}, v{vT[4]}, v{vT[4]} {sh} row_mask:0xf bank_mask:0xf bound_ctrl:0")
            c.e(f"""
            s_nop 1
            v_readlane_b32 s{sT0}, v{vT[4]}, 15
            v_readlane_b32 s{sT2}, v{vT[4]}, 31
            v_readlane_b32 s{sT3}, v{vT[4]}, 47
            v_readlane_b32 s{sHS}, v{vT[4]}, 63
            s_nop 1
            v_mov_b32 v{vT[0]}, s{sT0}
            v_add_f32 v{vT[0]}, s{sT2}, v{vT[0]}
            v_add_f32 v{vT[0]}, s{sT3}, v{vT[0]}
            v_add_f32 v{vT[0]}, s{sHS}, v{vT[0]}
            v_cvt_pk_bf16_f32 v{vT[0]}, v{vT[0]}, v{vT[0]}
            v_lshlrev_b32 v{vT[0]}, 16, v{vT[0]}
            v_mul_f32 v{vT[0]}, {hexf(-LOG2E)}, v{vT[0]}
            v_exp_f32 v{vT[0]}, v{vT[0]}
            s_nop 0
            v_add_f32 v{vT[0]}, 1.0, v{vT[0]}
            v_rcp_f32 v{vT[0]}, v{vT[0]}
            s_nop 0
            v_cvt_pk_bf16_f32 v{vT[0]}, v{vT[0]}, v{vT[0]}
            v_lshlrev_b32 v{vT[6]}, 16, v{vT[0]}
            v_sub_f32 v{vT[1]}, 1.0, v{vT[6]}
            v_cvt_pk_bf16_f32 v{vT[1]}, v{vT[1]}, v{vT[1]}
            v_lshlrev_b32 v{vT[7]}, 16, v{vT[1]}
            s_lshl_b32 s{sT0}, s{sBase}, 3
            s_add_u32 s{sT0}, s{sT0}, {G_OFF}
            v_mov_b32 v{vT[2]}, 0
            s_mov_b64 exec, 1
            buffer_store_dwordx2 {vr(vT[6],2)}, v{vT[2]}, s[{srdWS}:{srdWS+3}], s{sT0} offen
            s_mov_b64 exec, -1
            s_add_u32 s{sBase}, s{sBase}, 1
            """)
    if stamps:
        ST.i = 2; ST.stamp(c); ST.stamp(c)
    c.label(f"{name}_FIN")
    if stamps: c.e("s_waitcnt vmcnt(0)")
    ST.i = 4; ST.stamp(c)
    if stamps:
        c.e(f"s_memrealtime s[{ST.s+14}:{ST.s+15}]"); ST.i = 8
        c.e(f"s_cmp_ge_u32 s{sW}, 8\ns_cbranch_scc1 {name}_END")
    ST.flush(c, sW, srdWS, vT[2], vT[3], sT0)
    c.e(f"""
    {name}_END:
    s_endpgm
    """)
    def S(role, vi=0, idle=False):
        d = {f"{name}_END": False, f"{name}_GATE": role == "gate", f"{name}_GLU": role == "glu", f"{name}_RA_GLU": role == "glu",
             f"{name}_NOEA": role == "glu", f"{name}_EAV": role == "v", f"{name}_NOSCL": False, f"{name}_NOSCLH": False, f"{name}_NOZ": False, f"{name}_PRO_NX": vi % 2 == 1,
             f"{name}_PRO_H": role != "glu", f"{name}_QW": vi % 2 == 0, f"{name}_CPD": (lambda k: k >= 1)}
        for i in range(1, 6): d[f"{name}_VAR{i}"] = (i == vi)
        for i in range(12): d[f"{name}_TCH{i}"] = (i != 3)
        d[f"{name}_SWP"] = False; d[f"{name}_GATE2"] = True
        return d
    scen = {"qk1": S("qk", 0), "qk0": S("qk", 1), "v1": S("v", 2), "v0": S("v", 3), "glu1": S("glu", 4), "glu0": S("glu", 5), "gate": S("gate")}
    return c, V.hi, scen, K1_LDS

if __name__ == "__main__":
    c, nv, scen, lds = gen_k1()
    errs = check(c.lines, scen, "k1")
    print("vgprs", nv, "lds", lds, "lines", len(c.lines))
    for e in errs[:40]: print(e)
```

```python
from common import *

CH = 10240
SLOT = 2*CH; RING = 3
DUMMY = SLOT*RING
FLAG = DUMMY + 1024
XCH = FLAG + 64
GRING = XCH + 8*3072
GSLOT = 6144; GWAVE = 3*GSLOT
K2_LDS = GRING + 4*GWAVE
FB_BARRIERS = 16 + 3 + 9 + 1

def gen_k2(name="k2_kernel", stamps=False, exp=""):
    c = Code()
    OM = " sc1" if "OS" in exp else (" nt" if "ON" in exp else (" sc0 sc1" if "OX" in exp else ""))
    SM = " sc1" if "SC1" in exp else (" sc0 sc1" if "SC01" in exp else ("" if ("PLAIN" in exp or "P2" in exp) else " nt"))
    V = Alloc(168, 1, "v"); Sg = Alloc(100, 12, "s")
    sWS = 4; sWD = 6; sWO = 8; sOUT = 10
    sX = Sg.take(); sJ = Sg.take(); sHead = Sg.take(); sQB = Sg.take(); sW = Sg.take(); sQG = Sg.take(); sKH = Sg.take()
    sT0 = Sg.take(); sT1 = Sg.take(); sT2 = Sg.take(); sT3 = Sg.take()
    srdWS = Sg.take(4, 4)
    sMaskLo = Sg.take(2, 2); sMaskV = Sg.take(2, 2); sU = Sg.take(2, 2); sU2 = Sg.take(2, 2)
    sSrc = Sg.take(); sM = [Sg.take() for _ in range(3)]; sSlotW = Sg.take(); sSlotR = Sg.take(); sC = Sg.take(); sMode = Sg.take()
    sSrc0 = Sg.take(); sTile = Sg.take(); sOb = Sg.take()
    ST = Stamps(Sg, stamps, 1)
    vL = V.take(); vT = [V.take() for _ in range(8)]
    vOff = V.take(); vOff3 = V.take()
    vK1a = V.take(); vK2a = V.take(); vVa = V.take()
    vK1c = V.take(); vK2c = V.take(); vVc = V.take()
    vG = [V.take(), V.take()]; vSt = [V.take() for _ in range(3)]; vGo = V.take()
    Q1 = [V.take(4, 4), V.take(4, 4)]; Q2 = [V.take(2, 2), V.take(2, 2)]
    K1 = V.take(4, 4); K2 = V.take(2, 2); V0 = V.take(4, 4); V1 = V.take(4, 4)
    S_ = [V.take(16, 4), V.take(16, 4)]; O = [V.take(16, 4), V.take(16, 4)]
    P = [V.take(4, 4), V.take(4, 4)]; T4 = V.take(4, 4)
    vM = [V.take(), V.take()]
    NM = [V.take(16, 4), V.take(16, 4)]
    srd4 = f"s[{srdWS}:{srdWS+3}]"

    c.e(f"""
    s_cmp_ge_u32 s2, 256
    s_cbranch_scc1 {name}_END
    s_load_dwordx2 s[4:5], s[0:1], {KA_WS}
    s_load_dwordx2 s[6:7], s[0:1], {KA_WD}
    s_load_dwordx2 s[8:9], s[0:1], {KA_WO}
    s_load_dwordx2 s[10:11], s[0:1], {KA_OUT}
    v_and_b32 v{vL}, 63, v0
    v_lshrrev_b32 v{vT[0]}, 6, v0
    s_and_b32 s{sX}, s2, 7
    s_lshr_b32 s{sJ}, s2, 3
    v_readfirstlane_b32 s{sW}, v{vT[0]}
    s_lshr_b32 s{sT0}, s{sJ}, 3
    s_lshl_b32 s{sHead}, s{sX}, 2
    s_add_u32 s{sHead}, s{sHead}, s{sT0}
    s_and_b32 s{sQB}, s{sJ}, 7
    v_lshlrev_b32 v{vOff}, 4, v{vL}
    s_mul_i32 s{sSrc0}, s{sHead}, {KV_HS}
    s_add_u32 s{sSrc0}, s{sSrc0}, {KV_OFF}
    """)
    ST.stamp(c, real=True); ST.stamp(c)
    c.e(f"s_cmp_ge_u32 s{sW}, 8\ns_cbranch_scc1 {name}_GW")
    c.e(f"""
    s_and_b32 s{sQG}, s{sW}, 3
    s_lshr_b32 s{sKH}, s{sW}, 2
    s_mul_i32 s{sT0}, s{sKH}, {32*KV_TS}
    s_add_u32 s{sSrc0}, s{sSrc0}, s{sT0}
    s_lshl_b32 s{sT0}, s{sQG}, 10
    s_add_u32 s{sSrc0}, s{sSrc0}, s{sT0}
    s_mul_i32 s{sT1}, s{sKH}, {CH}
    s_add_u32 s{sM[0]}, s{sT1}, s{sT0}
    s_add_u32 s{sM[1]}, s{sM[0]}, 4096
    s_add_u32 s{sM[2]}, s{sM[0]}, 8192
    s_cmp_lt_u32 s{sQG}, 2
    s_cselect_b32 s{sT0}, 0, 0x7f000000
    v_add_u32 v{vOff3}, s{sT0}, v{vOff}
    s_mov_b32 s{sSrc}, s{sSrc0}
    s_mov_b32 s{sSlotW}, 0
    s_lshl_b32 s{sTile}, s{sQB}, 3
    s_lshl_b32 s{sT0}, s{sQG}, 1
    s_add_u32 s{sTile}, s{sTile}, s{sT0}
    s_waitcnt lgkmcnt(0)
    """)
    if stamps: c.e(f"s_memtime s[{ST.s+12}:{ST.s+13}]")
    srd(c, srdWS, sWS, WS_BYTES)
    def dma_parts():
        g0 = [f"s_add_u32 m0, s{sSlotW}, s{sM[0]}", f"s_add_u32 s{sT0}, s{sSrc}, 4096", f"buffer_load_dwordx4 v{vOff}, {srd4}, s{sSrc} offen lds"]
        g1 = [f"s_add_u32 m0, s{sSlotW}, s{sM[1]}", f"s_add_u32 s{sT1}, s{sSrc}, 8192", f"buffer_load_dwordx4 v{vOff}, {srd4}, s{sT0} offen lds"]
        g2 = [f"s_add_u32 s{sT0}, s{sSlotW}, s{sM[2]}", f"s_cmp_lt_u32 s{sQG}, 2", f"s_cselect_b32 m0, s{sT0}, {DUMMY}", f"s_add_u32 s{sSrc}, s{sSrc}, {CH}",
              f"buffer_load_dwordx4 v{vOff3}, {srd4}, s{sT1} offen lds",
              f"s_add_u32 s{sSlotW}, s{sSlotW}, {SLOT}", f"s_cmp_eq_u32 s{sSlotW}, {SLOT*RING}", f"s_cselect_b32 s{sSlotW}, 0, s{sSlotW}"]
        return g0, g1, g2
    def dma_chunk():
        g = dma_parts(); return g[0] + g[1] + g[2]
    def first_loads():
        c.e("\n".join(dma_chunk()))
    first_loads()
    c.e(f"""
    s_mul_i32 s{sT2}, s{sHead}, {QF_HS}
    s_mul_i32 s{sT1}, s{sTile}, {QF_TS}
    s_add_u32 s{sT2}, s{sT2}, s{sT1}
    s_add_u32 s{sT3}, s{sT2}, {QF_TS}
    v_and_b32 v{vT[0]}, 31, v{vL}
    v_lshlrev_b32 v{vT[1]}, 3, v{vT[0]}
    s_mov_b32 s{sMaskLo}, -1
    s_mov_b32 s{sMaskLo+1}, 0
    v_mov_b32 v{Q2[0]}, 0
    v_mov_b32 v{Q2[0]+1}, 0
    v_mov_b32 v{Q2[1]}, 0
    v_mov_b32 v{Q2[1]+1}, 0
    buffer_load_dwordx4 {vr(Q1[0],4)}, v{vOff}, {srd4}, s{sT2} offen
    buffer_load_dwordx4 {vr(Q1[1],4)}, v{vOff}, {srd4}, s{sT3} offen
    s_mov_b64 exec, s[{sMaskLo}:{sMaskLo+1}]
    buffer_load_dwordx2 {vr(Q2[0],2)}, v{vT[1]}, {srd4}, s{sT2} offen offset:1024
    buffer_load_dwordx2 {vr(Q2[1],2)}, v{vT[1]}, {srd4}, s{sT3} offen offset:1024
    s_mov_b64 exec, -1
    """)
    c.e(f"""
    v_mov_b32 v{vGo}, v{vT[1]}
    s_mov_b32 s{sMode}, 0
    s_mov_b32 s{sMaskV}, 0xfffff
    s_mov_b32 s{sMaskV+1}, 0xfffff
    s_mul_i32 s{sT0}, s{sKH}, {CH}
    v_add_u32 v{vK1a}, s{sT0}, v{vOff}
    v_add_u32 v{vK2a}, s{sT0}, v{vT[1]}
    v_lshrrev_b32 v{vT[2]}, 5, v{vL}
    v_mul_u32_u24 v{vT[7]}, 320, v{vT[2]}
    v_lshl_add_u32 v{vT[7]}, v{vT[0]}, 4, v{vT[7]}
    v_add_u32 v{vVa}, s{sT0}, v{vT[7]}
    v_cmp_eq_u32 vcc, 20, v{vT[0]}
    v_mov_b32 v{vT[3]}, 0
    v_mov_b32 v{vT[4]}, 0x3f803f80
    v_cndmask_b32 v{vT[3]}, v{vT[3]}, v{vT[4]}, vcc
    """)
    for r in range(4): c.e(f"v_mov_b32 v{V0+r}, v{vT[3]}\nv_mov_b32 v{V1+r}, v{vT[3]}")
    c.e(f"v_mov_b32 v{vT[3]}, 0\nv_mov_b32 v{vT[4]}, {FLAG}\nds_write_b32 v{vT[4]}, v{vT[3]}")
    c.e(f"""
    s_add_u32 s{sOb}, s{sTile}, s{sKH}
    s_mul_i32 s{sOb}, s{sOb}, {40*1024}
    s_add_u32 s{sOb}, s{sOb}, {OF_OFF}
    s_mul_i32 s{sT1}, s{sHead}, 5
    v_add_u32 v{vT[2]}, s{sT1}, v{vT[2]}
    v_lshlrev_b32 v{vT[3]}, 4, v{vT[0]}
    """)
    c.e(f"v_lshlrev_b32 v{vT[3]}, 3, v{vT[0]}")
    for g in range(3):
        c.e(f"""
        v_add_u32 v{vT[4]}, {2*g}, v{vT[2]}
        v_lshl_add_u32 v{vSt[g]}, v{vT[4]}, 8, v{vT[3]}
        """)
    def rdK(off):
        return [f"ds_read_b64 {vr(K2,2)}, v{vK2c} offset:{off+1024}", f"ds_read_b128 {vr(K1,4)}, v{vK1c} offset:{off}"]
    def rdV(which, off):
        r = V0 if which == 0 else V1
        return [f"s_mov_b64 exec, s[{sMaskV}:{sMaskV+1}]", f"ds_read_b128 {vr(r,4)}, v{vVc} offset:{off + 1280 + 640*which}", "s_mov_b64 exec, -1"]
    def emit_pass(tag, fb):
        def qk(b): return [f"v_mfma_f32_32x32x16_bf16 {vr(S_[b],16)}, {vr(K1,4)}, {vr(Q1[b],4)}, " + (vr(NM[b],16) if fb else "0"), mfma32x8(S_[b], K2, Q2[b])]
        for b in range(2):
            for r in range(16): c.e(f"v_mov_b32 v{O[b]+r}, 0")
        for r in range(4): c.e(f"v_mov_b32 v{P[1]+r}, 0\nv_mov_b32 v{T4+r}, 0")
        c.e(f"""
        s_mov_b32 s{sSlotR}, 0
        s_mov_b32 s{sC}, 0
        v_mov_b32 v{vK1c}, v{vK1a}
        v_mov_b32 v{vK2c}, v{vK2a}
        v_mov_b32 v{vVc}, v{vVa}
        """)
        if stamps and not fb: c.e(f"s_memtime s[{ST.s+14}:{ST.s+15}]")
        c.e(f"s_waitcnt vmcnt({3 if fb else 0}) lgkmcnt(0)\ns_barrier")
        c.e("\n".join(rdK(0) + rdV(0, 0)))
        if not fb:
            c.e("\n".join(dma_chunk()))
            c.e(f"""
            s_lshl_b32 s{sT2}, s{sTile}, 8
            s_add_u32 s{sT2}, s{sT2}, {G_OFF}
            buffer_load_dword v{vG[0]}, v{vGo}, {srd4}, s{sT2} offen
            buffer_load_dword v{vG[1]}, v{vGo}, {srd4}, s{sT2} offen offset:256
            """)
        c.e(f"s_waitcnt vmcnt({3 if fb else 5}) lgkmcnt(1)") if False else None
        c.e("s_waitcnt lgkmcnt(1)")
        c.e("\n".join(qk(0)))
        c.e("s_nop 7\ns_nop 3")
        if not fb: ST.i = 2; ST.stamp(c, wait=True)
        def half(b, tt):
            s = S_[b]; L = []
            src = lambda i: (s + i) if i < 12 else (T4 + i - 12)
            e = lambda i: f"v_exp_f32 v{src(i)}, v{s+i}"
            cv = lambda p: f"v_cvt_pk_bf16_f32 v{P[p//4] + p%4}, v{src(2*p)}, v{src(2*p+1)}"
            m = qk(1 - b)
            m3 = mfma32(O[b], V0, P[0]); m4p = mfma32(O[1-b], V1, P[1])
            cur = tt*KV_TS; nxt = ((tt + 1) % 4)*KV_TS
            d0 = d1 = d2 = []
            if b == 0 and tt == 0: pass
            if b == 1: L.append("s_waitcnt lgkmcnt(1)")
            L += [m[0], e(0), cv(6), e(1), cv(7), e(2), e(3), m[1]]
            if b == 0:
                if tt == 3:
                    L += ["s_waitcnt vmcnt(0)", "s_barrier",
                          f"s_add_u32 s{sSlotR}, s{sSlotR}, {SLOT}", f"s_cmp_eq_u32 s{sSlotR}, {SLOT*RING}", f"s_cselect_b32 s{sSlotR}, 0, s{sSlotR}",
                          f"v_add_u32 v{vK1c}, s{sSlotR}, v{vK1a}", f"v_add_u32 v{vK2c}, s{sSlotR}, v{vK2a}"]
                L += rdK(nxt)
            L += [e(4), e(5), cv(0), e(6), e(7), cv(1)]
            if b == 1: L.append("s_waitcnt lgkmcnt(0)")
            L.append(m4p)
            if b == 0: L += rdV(1, cur)
            if b == 0 and tt == 3: L += [f"v_add_u32 v{vVc}, s{sSlotR}, v{vVa}"]
            L += [e(8), cv(2), e(9), cv(3), e(10), e(11)]
            if b == 0: L.append("s_waitcnt lgkmcnt(3)")
            L.append(m3)
            if b == 1: L += rdV(0, nxt)
            L += [e(12), e(13), cv(4), e(14), e(15), cv(5)]
            return L
        lp = f"{name}_LOOP{tag}"
        c.label(lp)
        for tt in range(4):
            A = half(0, tt); B = half(1, tt)
            if tt == 3:
                g0, g1, g2 = dma_parts()
                c.e("\n".join(A))
                c.e(f"s_cmp_ge_u32 s{sC}, 6\ns_cbranch_scc1 {lp}_NODMA")
                c.e("\n".join(g0 + g1 + g2))
                c.label(f"{lp}_NODMA")
                c.e("\n".join(B))
            else:
                c.e("\n".join(A)); c.e("\n".join(B))
        c.e(f"""
        s_add_u32 s{sC}, s{sC}, 1
        s_cmp_lt_u32 s{sC}, 8
        s_cbranch_scc1 {lp}
        """)
        c.e(f"v_cvt_pk_bf16_f32 v{P[1]+2}, v{T4}, v{T4+1}\nv_cvt_pk_bf16_f32 v{P[1]+3}, v{T4+2}, v{T4+3}\ns_waitcnt lgkmcnt(0)\ns_nop 0")
        c.e(mfma32(O[1], V1, P[1]))
    if "PA" in exp: c.e("s_setprio 1")
    if "PH" in exp: c.e(f"s_cmp_eq_u32 s{sKH}, 1\ns_cbranch_scc0 {name}_NPH\ns_setprio 1\n{name}_NPH:")
    emit_pass("", False)
    c.label(f"{name}_EPI")
    ST.i = 3; ST.stamp(c, wait=True)
    c.e(f"""
    s_mul_i32 s{sT0}, s{sW}, 3072
    s_add_u32 s{sT0}, s{sT0}, {XCH}
    v_add_u32 v{vT[4]}, s{sT0}, v{vOff}
    s_xor_b32 s{sT0}, s{sW}, 4
    s_mul_i32 s{sT0}, s{sT0}, 3072
    s_add_u32 s{sT0}, s{sT0}, {XCH}
    v_add_u32 v{vT[6]}, s{sT0}, v{vOff}
    v_mov_b32 v{vT[1]}, 0x7f800000
    v_mov_b32 v{vT[2]}, {hexf(2.0**63)}
    v_mov_b32 v{vT[3]}, {hexf(2.0**-63)}
    v_mov_b32 v{vT[5]}, {FLAG}
    s_nop 3
    s_cmp_eq_u32 s{sKH}, 0
    s_cbranch_scc1 {name}_NOSWAP
    """)
    for r in range(12): c.e(f"v_swap_b32 v{O[0]+r}, v{O[1]+r}")
    c.e(f"v_swap_b32 v{vG[0]}, v{vG[1]}")
    c.label(f"{name}_NOSWAP")
    for g in range(3): c.e(f"ds_write_b128 v{vT[4]}, {vr(O[1]+4*g,4)} offset:{1024*g}")
    c.e(f"v_add_f32 v{vT[0]}, |v{O[0]}|, |v{O[1]}|")
    for r in range(1, 12): c.e(f"v_add_f32 v{vT[0]}, |v{O[0]+r}|, v{vT[0]}\nv_add_f32 v{vT[0]}, |v{O[1]+r}|, v{vT[0]}")
    c.e(f"""
    v_min_f32 v{vT[7]}, v{O[0]+8}, v{O[1]+8}
    v_cmp_nlt_f32 s[{sU}:{sU+1}], v{vT[0]}, v{vT[1]}
    v_max_f32 v{vT[0]}, v{O[0]+8}, v{O[1]+8}
    v_cmp_nge_f32 s[{sU2}:{sU2+1}], v{vT[7]}, v{vT[3]}
    v_cmp_nle_f32 vcc, v{vT[0]}, v{vT[2]}
    s_nop 3
    s_or_b64 s[{sU2}:{sU2+1}], s[{sU2}:{sU2+1}], vcc
    s_andn2_b64 s[{sU2}:{sU2+1}], s[{sU2}:{sU2+1}], s[{sMaskLo}:{sMaskLo+1}]
    s_or_b64 s[{sU}:{sU+1}], s[{sU}:{sU+1}], s[{sU2}:{sU2+1}]
    s_cmp_eq_u64 s[{sU}:{sU+1}], 0
    s_cbranch_scc1 {name}_SAFE
    v_mov_b32 v{vT[3]}, 1
    ds_write_b32 v{vT[5]}, v{vT[3]}
    {name}_SAFE:
    s_waitcnt lgkmcnt(0)
    s_barrier
    ds_read_b32 v{vT[3]}, v{vT[5]}
    """)
    for g in range(3): c.e(f"ds_read_b128 {vr(S_[0]+4*g,4)}, v{vT[6]} offset:{1024*g}")
    c.e(f"""
    s_waitcnt lgkmcnt(3)
    v_readfirstlane_b32 s{sT0}, v{vT[3]}
    s_nop 3
    s_cmp_eq_u32 s{sMode}, 0
    s_cselect_b32 s{sT0}, s{sT0}, 0
    s_cmp_eq_u32 s{sT0}, 0
    s_cbranch_scc0 {name}_FALLBACK
    s_waitcnt vmcnt(0) lgkmcnt(0)
    """)
    for r in range(12): c.e(f"v_add_f32 v{O[0]+r}, v{O[0]+r}, v{S_[0]+r}")
    c.e(f"""
    v_mov_b32 v{vT[0]}, v{O[0]+8}
    v_mov_b32 v{vT[1]}, v{O[0]+8}
    s_nop 1
    v_permlane32_swap_b32 v{vT[0]}, v{vT[1]}
    s_nop 1
    v_rcp_f32 v{vT[1]}, v{vT[1]}
    s_nop 0
    v_mul_f32 v{vT[1]}, v{vT[1]}, v{vG[0]}
    """)
    for r in range(12): c.e(f"v_mul_f32 v{O[0]+r}, v{O[0]+r}, v{vT[1]}")
    for p in range(6): c.e(f"v_cvt_pk_bf16_f32 v{S_[1]+p}, v{O[0]+2*p}, v{O[0]+2*p+1}")
    for g in range(3):
        if g == 2: c.e(f"s_mov_b64 exec, s[{sMaskLo}:{sMaskLo+1}]")
        c.e(f"buffer_store_dwordx2 {vr(S_[1]+2*g,2)}, v{vSt[g]}, {srd4}, s{sOb} offen sc1")
    c.e(f"""
    s_mov_b64 exec, -1
    s_waitcnt vmcnt(0)
    s_barrier
    s_cmp_eq_u32 s{sW}, 0
    s_cbranch_scc0 {name}_FIN
    s_lshl_b32 s{sT0}, s{sQB}, 7
    s_add_u32 s{sT0}, s{sT0}, {CNT_OFF}
    v_mov_b32 v{vT[2]}, 0
    v_mov_b32 v{vT[3]}, 1
    s_mov_b64 exec, 1
    buffer_atomic_add v{vT[3]}, v{vT[2]}, {srd4}, s{sT0} offen
    s_mov_b64 exec, -1
    s_branch {name}_FIN
    """)
    c.label(f"{name}_FALLBACK")
    c.e("s_waitcnt vmcnt(0) lgkmcnt(0)")
    c.e(f"s_cmp_eq_u32 s{sKH}, 0\ns_cbranch_scc1 {name}_FB_NOSWAP\nv_swap_b32 v{vG[0]}, v{vG[1]}\n{name}_FB_NOSWAP:")
    c.e(f"""
    s_mov_b32 s{sMode}, 1
    v_mov_b32 v{vM[0]}, 0xff800000
    v_mov_b32 v{vM[1]}, 0xff800000
    s_mov_b32 s{sSrc}, s{sSrc0}
    s_mov_b32 s{sC}, 0
    {name}_FB_LOOP:
    s_barrier
    s_mov_b32 s{sSlotW}, 0
    """)
    c.e("\n".join(dma_chunk()))
    c.e(f"s_waitcnt vmcnt(0)\ns_barrier\nv_mov_b32 v{vK1c}, v{vK1a}\nv_mov_b32 v{vK2c}, v{vK2a}")
    for tt in range(4):
        c.e("\n".join(rdK(tt*KV_TS)))
        c.e("s_waitcnt lgkmcnt(0)")
        for b in range(2): c.e(mfma32(S_[b], K1, Q1[b], cz=0) + "\n" + mfma32x8(S_[b], K2, Q2[b]))
        c.e("s_nop 7\ns_nop 7")
        for b in range(2):
            for r in range(0, 16, 2): c.e(f"v_max3_f32 v{vM[b]}, v{S_[b]+r}, v{S_[b]+r+1}, v{vM[b]}")
    c.e(f"""
    s_add_u32 s{sC}, s{sC}, 1
    s_cmp_lt_u32 s{sC}, 8
    s_cbranch_scc1 {name}_FB_LOOP
    """)
    for b in range(2):
        c.e(f"""
        v_mov_b32 v{vT[0]}, v{vM[b]}
        v_mov_b32 v{vT[1]}, v{vM[b]}
        s_nop 1
        v_permlane32_swap_b32 v{vT[0]}, v{vT[1]}
        s_nop 1
        v_max_f32 v{vM[b]}, v{vT[0]}, v{vT[1]}
        """)
    c.e(f"""
    s_lshl_b32 s{sT0}, s{sW}, 9
    s_add_u32 s{sT0}, s{sT0}, {XCH}
    v_lshlrev_b32 v{vT[2]}, 2, v{vL}
    v_add_u32 v{vT[3]}, s{sT0}, v{vT[2]}
    s_barrier
    ds_write_b32 v{vT[3]}, v{vM[0]}
    ds_write_b32 v{vT[3]}, v{vM[1]} offset:256
    s_xor_b32 s{sT0}, s{sW}, 4
    s_lshl_b32 s{sT0}, s{sT0}, 9
    s_add_u32 s{sT0}, s{sT0}, {XCH}
    v_add_u32 v{vT[3]}, s{sT0}, v{vT[2]}
    s_waitcnt lgkmcnt(0)
    s_barrier
    ds_read_b32 v{vT[4]}, v{vT[3]}
    ds_read_b32 v{vT[5]}, v{vT[3]} offset:256
    s_waitcnt lgkmcnt(0)
    v_max_f32 v{vM[0]}, v{vM[0]}, v{vT[4]}
    v_max_f32 v{vM[1]}, v{vM[1]}, v{vT[5]}
    s_barrier
    """)
    for b in range(2):
        for r in range(16): c.e(f"v_sub_f32 v{NM[b]+r}, 0, v{vM[b]}")
    c.e(f"s_mov_b32 s{sSrc}, s{sSrc0}\ns_mov_b32 s{sSlotW}, 0")
    c.e("\n".join(dma_chunk())); c.e("\n".join(dma_chunk()))
    emit_pass("FB", True)
    c.e(f"s_branch {name}_EPI")
    Vg = Alloc(168, 2, "v")
    gOffW = [Vg.take() for _ in range(5)]; gOffA = Vg.take(); gWA = Vg.take(); gAA = Vg.take(); gOm = Vg.take()
    gT = [Vg.take() for _ in range(6)]
    gact = Vg.take(4, 4); gwf = Vg.take(20, 4); gacc = Vg.take(80, 4); goq = Vg.take(40, 4); gtmp = goq
    sRB, sCG, sKQ, sLB, sKs, sAct = sQG, sKH, sQB, sSrc, sSrc0, sTile
    srdW = Sg.take(4, 4); srdO = Sg.take(4, 4)
    NDOWN = 27; NSTEP = 37; DEFER = 0
    gs = Sg.take(16, 2) if stamps else 0
    gi = [0]
    def gstamp():
        if stamps:
            c.e(f"s_memrealtime s[{gs+2*gi[0]}:{gs+2*gi[0]+1}]\ns_waitcnt lgkmcnt(0)"); gi[0] += 1
    c.label(f"{name}_GW")
    c.e(f"""
    s_sub_u32 s{sKQ}, s{sW}, 8
    s_lshr_b32 s{sT0}, s{sJ}, 2
    s_lshl_b32 s{sRB}, s{sX}, 3
    s_add_u32 s{sRB}, s{sRB}, s{sT0}
    s_and_b32 s{sCG}, s{sJ}, 3
    s_mul_i32 s{sT0}, s{sCG}, 320
    """)
    for i in range(5):
        c.e(f"""
        v_add_u32 v{gT[1]}, {64*i}, v{vL}
        v_mul_u32_u24 v{gT[2]}, 3277, v{gT[1]}
        v_lshrrev_b32 v{gT[2]}, 16, v{gT[2]}
        v_mul_u32_u24 v{gT[3]}, 20, v{gT[2]}
        v_sub_u32 v{gT[3]}, v{gT[1]}, v{gT[3]}
        v_mul_u32_u24 v{gT[2]}, 1280, v{gT[2]}
        v_lshl_add_u32 v{gT[2]}, v{gT[3]}, 4, v{gT[2]}
        v_add_u32 v{gOffW[i]}, s{sT0}, v{gT[2]}
        """)
    c.e(f"""
    v_lshlrev_b32 v{gOffA}, 4, v{vL}
    s_mul_i32 s{sLB}, s{sKQ}, {GWAVE}
    s_add_u32 s{sLB}, s{sLB}, {GRING}
    s_mul_i32 s{sKs}, s{sKQ}, 20480
    s_mul_i32 s{sAct}, s{sRB}, 108
    s_add_u32 s{sAct}, s{sAct}, s{sKQ}
    s_lshl_b32 s{sAct}, s{sAct}, 10
    s_add_u32 s{sAct}, s{sAct}, {HF_OFF}
    s_waitcnt lgkmcnt(0)
    """)
    srd(c, srdWS, sWS, WS_BYTES); srd(c, srdW, sWD, 1728*1280); srd(c, srdO, sOUT, 2048*1280)
    def gdma(n):
        so = (n % 3)*GSLOT; L = []
        for i in range(5):
            L += [f"s_add_u32 m0, s{sLB}, {so + 1024*i}", "s_nop 0", f"buffer_load_dwordx4 v{gOffW[i]}, s[{srdW}:{srdW+3}], s{sKs} offen lds"]
        L += [f"s_add_u32 s{sKs}, s{sKs}, {4*20480}"]
        if n < NDOWN:
            L += [f"s_add_u32 m0, s{sLB}, {so + 5120}", "s_nop 0", f"buffer_load_dwordx4 v{gOffA}, {srd4}, s{sAct} offen lds", f"s_add_u32 s{sAct}, s{sAct}, 4096"]
        return L
    ndma = lambda n: 0 if n >= NDOWN else 6
    c.e(f"""
    v_and_b32 v{gT[0]}, 31, v{vL}
    v_lshlrev_b32 v{gT[1]}, 3, v{gT[0]}
    s_lshl_b32 s{sT0}, s{sRB}, 8
    s_add_u32 s{sT0}, s{sT0}, {G_OFF + 4}
    buffer_load_dword v{gOm}, v{gT[1]}, {srd4}, s{sT0} offen
    v_and_b32 v{gT[3]}, 15, v{vL}
    v_lshrrev_b32 v{gT[4]}, 2, v{gT[3]}
    v_lshrrev_b32 v{gT[2]}, 5, v{vL}
    v_lshl_add_u32 v{gT[4]}, v{gT[2]}, 2, v{gT[4]}
    v_mul_u32_u24 v{gT[4]}, 320, v{gT[4]}
    v_and_b32 v{gT[3]}, 3, v{gT[3]}
    v_lshl_add_u32 v{gT[4]}, v{gT[3]}, 3, v{gT[4]}
    v_lshrrev_b32 v{gT[3]}, 4, v{vL}
    v_and_b32 v{gT[3]}, 1, v{gT[3]}
    v_lshl_add_u32 v{gT[4]}, v{gT[3]}, 5, v{gT[4]}
    v_add_u32 v{gWA}, s{sLB}, v{gT[4]}
    v_add_u32 v{gAA}, 5120, v{gOffA}
    v_add_u32 v{gAA}, s{sLB}, v{gAA}
    """)
    for r in range(80): c.e(f"v_mov_b32 v{gacc+r}, 0")
    if "PG" in exp: c.e("s_setprio 1")
    c.e("s_barrier")
    c.e("\n".join(gdma(0) + gdma(1)))
    def sloc(n, loc=None):
        return loc if loc is not None else (gWA, (n % 3)*GSLOT)
    def rdW(jb, areg, so):
        return [f"ds_read_b64_tr_b16 {vr(gwf+4*jb,2)}, v{areg} offset:{so + 64*jb}", f"ds_read_b64_tr_b16 {vr(gwf+4*jb+2,2)}, v{areg} offset:{so + 64*jb + 2560}"]
    def step(n, wait, post=None, loc=None):
        areg, so = sloc(n, loc)
        c.e(wait)
        act = gact
        if n < NDOWN: c.e(f"ds_read_b128 {vr(gact,4)}, v{gAA} offset:{so}")
        else: act = goq + 4*(n - NDOWN)
        for jb in range(5): c.e("\n".join(rdW(jb, areg, so)))
        if n + 2 < NDOWN: c.e("\n".join(gdma(n + 2)))
        for jb in range(5):
            c.e(f"s_waitcnt lgkmcnt({8 - 2*jb})")
            c.e(mfma32(gacc+16*jb, gwf+4*jb, act))
        if post: c.e("\n".join(post))
    def wo_steps(waits):
        areg, so = wloc(0)
        for jb in range(5): c.e("\n".join(rdW(jb, areg, so)))
        for i in range(10):
            c.e(f"s_waitcnt vmcnt({waits[i][0]})")
            nxt = wloc(i + 1) if i + 1 < 10 else None
            if nxt is not None and waits[i][1] is not None: pass
            for jb in range(5):
                c.e(f"s_waitcnt lgkmcnt({8 if nxt is not None else 8 - 2*jb})")
                c.e(mfma32(gacc+16*jb, gwf+4*jb, goq + 4*i))
                if nxt is not None:
                    if jb == 0 and waits[i][1] is not None: c.e(f"s_waitcnt vmcnt({waits[i][1]})")
                    c.e("\n".join(rdW(jb, nxt[0], nxt[1])))
            if i < 3: c.e("\n".join(wdma(7 + i)))
            if i == 0: gstamp()
    sched = [3, 4, 3, 4, 3, 4, 3, 3]; n = 0
    assert sum(sched) == NDOWN - DEFER
    gWB = gT[5]; sAB = sOb
    def wloc(i):
        if i < 3: return (gWA, GSLOT*i)
        if i < 7: return (gWB, 5120*(i - 3))
        return (gWA, GSLOT*(i - 7))
    def wdma(i):
        L = []
        base, off = (sLB, GSLOT*i) if i < 3 else ((sAB, 5120*(i - 3)) if i < 7 else (sLB, GSLOT*(i - 7)))
        for k in range(5):
            L += [f"s_add_u32 m0, s{base}, {off + 1024*k}", "s_nop 0", f"buffer_load_dwordx4 v{gOffW[k]}, s[{srdW}:{srdW+3}], s{sKs} offen lds"]
        L += [f"s_add_u32 s{sKs}, s{sKs}, {4*20480}"]
        return L
    for k in range(8):
        for _ in range(sched[k]):
            step(n, f"s_waitcnt vmcnt({ndma(n+1)})"); n += 1
        if k == 7:
            c.e(f"""
            s_mov_b32 s{srdW}, s{sWO}
            s_and_b32 s{srdW+1}, s{sWO+1}, 0xffff
            s_mov_b32 s{srdW+2}, {640*1280}
            s_mul_i32 s{sKs}, s{sKQ}, 20480
            s_mul_i32 s{sAB}, s{sKQ}, 20480
            v_subrev_u32 v{gWB}, s{sLB}, v{gWA}
            v_add_u32 v{gWB}, s{sAB}, v{gWB}
            """)
            for i in range(3): c.e("\n".join(wdma(i)))
        c.e("s_barrier")
    c.e("s_nop 7")
    for r in range(80): c.e(f"v_mul_f32 v{gacc+r}, v{gacc+r}, v{gOm}")
    c.e(f"""
    s_barrier
    v_mov_b32 v{gT[3]}, {FLAG}
    ds_read_b32 v{gT[3]}, v{gT[3]}
    s_waitcnt lgkmcnt(0)
    v_readfirstlane_b32 s{sT1}, v{gT[3]}
    s_nop 3
    s_cmp_eq_u32 s{sT1}, 0
    s_cbranch_scc1 {name}_GNOFB
    s_mov_b32 s{sT0}, {FB_BARRIERS}
    {name}_GFB:
    s_barrier
    s_sub_u32 s{sT0}, s{sT0}, 1
    s_cmp_lg_u32 s{sT0}, 0
    s_cbranch_scc1 {name}_GFB
    {name}_GNOFB:
    s_barrier
    """)
    gstamp()
    for i in range(3, 7): c.e("\n".join(wdma(i)))
    gstamp()
    c.e(f"""
    s_lshr_b32 s{sT0}, s{sRB}, 3
    s_lshl_b32 s{sT0}, s{sT0}, 7
    s_add_u32 s{sT0}, s{sT0}, {CNT_OFF}
    v_mov_b32 v{gT[2]}, 0
    s_mov_b32 s{sT2}, 0
    {name}_POLL:
    buffer_load_dword v{gT[3]}, v{gT[2]}, {srd4}, s{sT0} offen sc1
    s_waitcnt vmcnt(0)
    v_readfirstlane_b32 s{sT1}, v{gT[3]}
    s_add_u32 s{sT2}, s{sT2}, 1
    s_nop 2
    s_cmp_ge_u32 s{sT1}, 32
    s_cbranch_scc1 {name}_GO
    s_sleep 1
    s_cmp_lt_u32 s{sT2}, 0x40000
    s_cbranch_scc1 {name}_POLL
    {name}_GO:
    s_mul_i32 s{sT0}, s{sRB}, 40
    s_add_u32 s{sT0}, s{sT0}, s{sKQ}
    s_lshl_b32 s{sT0}, s{sT0}, 10
    s_add_u32 s{sT0}, s{sT0}, {OF_OFF}
    """)
    gstamp()
    c.e(f"v_lshlrev_b32 v{gT[2]}, 3, v{vL}")
    for i in range(10):
        c.e(f"buffer_load_dwordx2 {vr(goq+4*i,2)}, v{gT[2]}, {srd4}, s{sT0} offen sc1\nbuffer_load_dwordx2 {vr(goq+4*i+2,2)}, v{gT[2]}, {srd4}, s{sT0} offen offset:512 sc1\ns_add_u32 s{sT0}, s{sT0}, 4096")
    waits = [(18, None), (21, None), (24, None), (27, None), (25, None), (23, None), (21, 10), (10, 5), (5, 0), (0, None)]
    wo_steps(waits)
    gstamp()
    own = [0,0,0,1,1,1,2,2,3,3]
    c.e("s_nop 7\ns_nop 3\ns_barrier")
    for kq in range(4):
        c.e(f"s_cmp_eq_u32 s{sKQ}, {kq}\ns_cbranch_scc0 {name}_GX{kq}")
        c.e(f"v_add_u32 v{gT[5]}, {GRING}, v{gOffA}\nv_add_u32 v{gT[4]}, {GRING + 30720}, v{gOffA}")
        cnt = 0
        for p in range(10):
            if own[p] == kq: continue
            slot = kq if kq < own[p] else kq - 1
            off = p*6144 + slot*2048
            a_, o = (gT[5], off) if off < 30720 else (gT[4], off - 30720)
            for h in range(2):
                c.e(f"ds_write_b128 v{a_}, {vr(gacc + 8*p + 4*h, 4)} offset:{o + 1024*h}"); cnt += 1
                if cnt % 8 == 0: c.e("s_waitcnt lgkmcnt(4)")
        c.e(f"""
        v_and_b32 v{gT[0]}, 31, v{vL}
        s_lshl_b32 s{sT0}, s{sRB}, 5
        v_add_u32 v{gT[0]}, s{sT0}, v{gT[0]}
        v_mul_u32_u24 v{gT[0]}, 1280, v{gT[0]}
        v_lshrrev_b32 v{gT[2]}, 5, v{vL}
        v_lshl_add_u32 v{gT[0]}, v{gT[2]}, 4, v{gT[0]}
        s_mul_i32 s{sT0}, s{sCG}, 320
        s_waitcnt lgkmcnt(0)
        s_barrier
        """)
        mine = [p for p in range(10) if own[p] == kq]
        for ip, p in enumerate(mine):
            off = p*6144
            a_, o = (gT[5], off) if off < 30720 else (gT[4], off - 30720)
            t = gtmp + 24 + 4*(ip % 2)
            for h in range(2):
                for sl in range(3): c.e(f"ds_read_b128 {vr(gtmp+12*h+4*sl,4)}, v{a_} offset:{o + 2048*sl + 1024*h}")
            for h in range(2):
                for sl in range(3):
                    c.e(f"s_waitcnt lgkmcnt({5 - 3*h - sl})")
                    for r in range(4): c.e(f"v_add_f32 v{gacc+8*p+4*h+r}, v{gacc+8*p+4*h+r}, v{gtmp+12*h+4*sl+r}")
            for q in range(4): c.e(f"v_cvt_pk_bf16_f32 v{t+q}, v{gacc+8*p+2*q}, v{gacc+8*p+2*q+1}")
            c.e(f"""
            s_nop 1
            v_permlane32_swap_b32 v{t}, v{t+2}
            v_permlane32_swap_b32 v{t+1}, v{t+3}
            s_add_u32 s{sT2}, s{sT0}, {32*p}
            s_nop 0
            buffer_store_dwordx4 {vr(t,4)}, v{gT[0]}, s[{srdO}:{srdO+3}], s{sT2} offen{OM}
            """)
        c.e(f"s_branch {name}_GEND")
        c.label(f"{name}_GX{kq}")
    c.label(f"{name}_GEND")
    if stamps:
        c.e("s_waitcnt vmcnt(0)")
        gstamp()
        c.e(f"""
        s_lshl_b32 s{sT0}, s2, 2
        s_add_u32 s{sT0}, s{sT0}, s{sKQ}
        s_lshl_b32 s{sT0}, s{sT0}, 5
        s_add_u32 s{sT0}, s{sT0}, {STAMP_OFF + 2*65536}
        v_mov_b32 v{gT[2]}, 0
        """)
        for i in range(gi[0]):
            c.e(f"v_mov_b32 v{gT[3]}, s{gs+2*i}\nbuffer_store_dword v{gT[3]}, v{gT[2]}, {srd4}, s{sT0} offen offset:{4*i}\ns_nop 1")
    c.e("s_endpgm")
    c.label(f"{name}_FIN")
    if stamps: c.e("s_waitcnt vmcnt(0)")
    ST.i = 4; ST.stamp(c); ST.stamp(c, real=True)
    if stamps: ST.i = 8
    ST.flush(c, sW, srdWS, vT[2], vT[3], sT0)
    c.e(f"""
    {name}_END:
    s_endpgm
    """)
    def S(kh, unsafe=False, fb=False):
        d = {f"{name}_END": False, f"{name}_LOOP_NODMA": (lambda k: k % 3 == 2), f"{name}_LOOPFB_NODMA": (lambda k: k % 3 == 2), f"{name}_NOSWAP": kh == 0, f"{name}_SAFE": not unsafe,
             f"{name}_FALLBACK": (lambda k: k == 0 and fb), f"{name}_FB_NOSWAP": kh == 0}
        return d
    scen = {"kh0": S(0), "kh1": S(1), "fb": S(1, True, True)}
    for k_ in scen: scen[k_][f"{name}_NPH"] = False
    for k_ in scen: scen[k_][f"{name}_GW"] = False; scen[k_][f"{name}_FIN"] = (k_ == "kh1")
    for kq in range(4):
        d = {f"{name}_END": False, f"{name}_GW": True, f"{name}_GNOFB": kq % 2 == 0, f"{name}_GO": (lambda k: k >= 1), f"{name}_POLL": True}
        for q in range(4): d[f"{name}_GX{q}"] = (q != kq)
        scen[f"g{kq}"] = d
    return c, max(V.hi, Vg.hi), scen, K2_LDS
    return c, V.hi, scen, K2_LDS

if __name__ == "__main__":
    c, nv, scen, lds = gen_k2()
    errs = check(c.lines, scen, "k2")
    print("vgprs", nv, "lds", lds, "lines", len(c.lines))
    for e in errs[:40]: print(e)
```

```python
from common import *
NST = 20
WSLOT = 24576; WRING = 4; UOFF = 12288
XSLOT = 16384; XRING = 3
XBASE = WSLOT*WRING
K1_LDS = XBASE + XSLOT*XRING
def mfma16(d, a, b, cz=None):
    return f"v_mfma_f32_16x16x32_bf16 {vr(d,4)}, {vr(a,4)}, {vr(b,4)}, " + (vr(d,4) if cz is None else str(cz))

def gen_k1(name="k1_kernel", stamps=False, exp=""):
    c = Code()
    SM = " sc1" if "SC1" in exp else (" sc0 sc1" if "SC01" in exp else ("" if "PLAIN" in exp else (" nt" if "NT" in exp else " sc1")))
    SMQ = SM; SMH = SM
    if "QP" in exp: SMQ = ""
    if "HP" in exp: SMH = ""
    if "QS" in exp: SMQ = " sc1"
    if "HS" in exp: SMH = " sc1"
    V = Alloc(168, 1, "v"); Sg = Alloc(100, 18, "s")
    sAX, sWQ, sGW, sWG, sWU, sWS = 4, 6, 10, 12, 14, 16
    PFG = not any(k in exp for k in ("PF2", "PFB", "PFW", "NOPF"))
    TCH = 1 if "TLB" in exp else 0
    if PFG: exp = exp + "NOPF"
    if 'PF2' not in exp and 'PFB' not in exp and 'NOPF' not in exp: exp = exp + "PFW"
    PF = 0 if 'NOPF' in exp else 3
    PFS = (17, 18) if 'LATE' in exp else ((2, 3) if 'EARLY' in exp else (5, 7))
    sX = Sg.take(); sJ = Sg.take(); sCG = Sg.take(); sRT = Sg.take(); sW = Sg.take(); sTH = Sg.take(); sCQ = Sg.take(); sSub = Sg.take()
    sT0 = Sg.take(); sT1 = Sg.take(); sT2 = Sg.take(); sT3 = Sg.take()
    srdX = Sg.take(4, 4); srdW = Sg.take(4, 4); srdWS = Sg.take(4, 4)
    sMw = Sg.take(); sMx = Sg.take(); sKx = Sg.take(); sKw = Sg.take(); sKwStep = Sg.take()
    sBase = Sg.take(); sHS = Sg.take(); sTS = Sg.take(); sScale = Sg.take()
    sWD = Sg.take(2, 2); srdP = Sg.take(4, 4)
    ST = Stamps(Sg, stamps, 0)
    vL = V.take(); vT = [V.take() for _ in range(8)]
    vOffX = V.take(); vOffW = [V.take(), V.take()]
    vXA = [V.take(), V.take()]; vWA = [V.take() for _ in range(4)]; vWH = [V.take() for _ in range(4)]
    sets = [(V.take(16, 4), V.take(16, 4)) for _ in range(2)]
    acc = V.take(64, 4)
    vPF = V.take(); vPx = V.take(); vPw = V.take()
    vE = sets[0][0]
    aE = [V.take() for _ in range(4)]; aO = [V.take() for _ in range(4)]; aC = [V.take() for _ in range(5)]
    D = lambda fb, tb: acc + 16*fb + 4*tb

    c.e(f"""
    s_cmp_ge_u32 s2, 256
    s_cbranch_scc1 {name}_END
    s_load_dwordx4 s[4:7], s[0:1], {KA_AX}
    s_load_dwordx2 s[10:11], s[0:1], {KA_GW}
    s_load_dwordx4 s[12:15], s[0:1], {KA_WG}
    s_load_dwordx2 s[16:17], s[0:1], {KA_WS}
    s_load_dwordx2 s[8:9], s[0:1], {KA_WO}
    s_load_dwordx2 s[{sWD}:{sWD+1}], s[0:1], {KA_WD}
    v_and_b32 v{vL}, 63, v0
    v_lshrrev_b32 v{vT[0]}, 6, v0
    s_and_b32 s{sX}, s2, 7
    s_lshr_b32 s{sJ}, s2, 3
    v_readfirstlane_b32 s{sW}, v{vT[0]}
    s_and_b32 s{sT0}, s{sJ}, 1
    s_lshr_b32 s{sRT}, s{sJ}, 1
    """)
    if "OLDMAP" in exp:
        c.e(f"s_lshl_b32 s{sCG}, s{sX}, 1\ns_add_u32 s{sCG}, s{sCG}, s{sT0}")
    else:
        c.e(f"""
        s_mul_i32 s{sT1}, s{sT0}, 6
        s_add_u32 s{sT1}, s{sT1}, s{sX}
        s_lshl_b32 s{sCG}, s{sX}, 1
        s_add_u32 s{sCG}, s{sCG}, s{sT0}
        s_cmp_lt_u32 s{sX}, 6
        s_cselect_b32 s{sCG}, s{sT1}, s{sCG}
        """)
    if stamps: c.e('s_memrealtime s[%d:%d]' % (ST.s, ST.s+1)); ST.i = 1; c.e('s_waitcnt lgkmcnt(0)')
    ST.stamp(c)
    if "TOUCH" in exp:
        c.e("s_waitcnt lgkmcnt(0)\ns_nop 2")
        tbl = [(sAX, 0, 2048*1280), (sAX, 1310720, 2048*1280), (sWQ, 0, 640*3840), (sWQ, 1228800, 640*3840), (sWG, 0, 640*3456), (sWG, 1105920, 640*3456),
               (sWU, 0, 640*3456), (sWU, 1105920, 640*3456), (sWS, QF_OFF, WS_BYTES), (sWS, KV_OFF + 2097152, WS_BYTES), (sWS, HF_OFF + 1048576, WS_BYTES), (sWS, HF_OFF + 4194304, WS_BYTES)]
        for i, (p, off, sz) in enumerate(tbl):
            c.e(f"""
            s_cmp_eq_u32 s{sW}, {i}
            s_cbranch_scc0 {name}_TCH{i}
            s_mov_b32 s{srdWS}, s{p}
            s_and_b32 s{srdWS+1}, s{p+1}, 0xffff
            s_mov_b32 s{srdWS+2}, {sz}
            s_mov_b32 s{srdWS+3}, 0x20000
            v_mov_b32 v{vT[1]}, {off}
            buffer_load_dword v{vPF}, v{vT[1]}, s[{srdWS}:{srdWS+3}], 0 offen
            {name}_TCH{i}:
            """)
    c.e(f"""
    v_lshrrev_b32 v{vT[1]}, 3, v{vL}
    v_lshrrev_b32 v{vT[2]}, 4, v{vL}
    s_lshl_b32 s{sT0}, s{sW}, 2
    v_add_u32 v{vT[2]}, s{sT0}, v{vT[2]}
    v_xor_b32 v{vT[2]}, v{vT[2]}, v{vL}
    v_and_b32 v{vT[2]}, 7, v{vT[2]}
    s_lshl_b32 s{sT0}, s{sRT}, 7
    s_lshl_b32 s{sT1}, s{sW}, 3
    s_add_u32 s{sT0}, s{sT0}, s{sT1}
    v_add_u32 v{vT[1]}, s{sT0}, v{vT[1]}
    v_mul_u32_u24 v{vT[1]}, 1280, v{vT[1]}
    v_lshl_add_u32 v{vOffX}, v{vT[2]}, 4, v{vT[1]}
    s_lshl_b32 s{sMx}, s{sW}, 10
    s_add_u32 s{sMx}, s{sMx}, {XBASE}
    s_and_b32 s{sTH}, s{sW}, 1
    s_lshr_b32 s{sCQ}, s{sW}, 1
    s_mov_b32 s{sSub}, 0
    s_cmp_eq_u32 s{sCG}, 15
    s_cbranch_scc1 {name}_GATE
    s_lshl_b32 s{sMw}, s{sW}, 11
    s_cmp_lt_u32 s{sCG}, 6
    s_cbranch_scc0 {name}_GLU
    """)
    def woff(i, nch, magic, rs):
        return f"""
        v_add_u32 v{vT[1]}, s{sT0}, v{vL}
        v_mul_u32_u24 v{vT[2]}, {magic}, v{vT[1]}
        v_lshrrev_b32 v{vT[2]}, 16, v{vT[2]}
        v_mul_u32_u24 v{vT[3]}, {nch}, v{vT[2]}
        v_sub_u32 v{vT[3]}, v{vT[1]}, v{vT[3]}
        v_lshrrev_b32 v{vT[4]}, 1, v{vT[2]}
        v_and_b32 v{vT[4]}, 4, v{vT[4]}
        v_and_or_b32 v{vT[4]}, v{vT[2]}, 2, v{vT[4]}
        v_xor_b32 v{vT[3]}, v{vT[3]}, v{vT[4]}
        v_mul_u32_u24 v{vT[2]}, {rs}, v{vT[2]}
        v_lshl_add_u32 v{vT[2]}, v{vT[3]}, 4, v{vT[2]}
        v_add_u32 v{vOffW[i]}, s{sT3}, v{vT[2]}
        s_add_u32 s{sT0}, s{sT0}, 64
        """
    c.e(f"""
    s_lshl_b32 s{sT0}, s{sW}, 7
    s_cmp_lt_u32 s{sW}, 8
    s_cbranch_scc1 {name}_QW
    s_add_u32 s{sT0}, s{sW}, 8
    s_lshl_b32 s{sMw}, s{sT0}, 10
    s_lshl_b32 s{sT0}, s{sT0}, 6
    s_and_b32 s{sSub}, s{sCQ}, 1
    s_mov_b32 s{sCQ}, 4
    {name}_QW:
    s_mul_i32 s{sT3}, s{sCG}, 640
    """)
    c.e(woff(0, 40, 1639, 3840)); c.e(woff(1, 40, 1639, 3840))
    c.e(f"s_mov_b32 s{sKwStep}, {32*3840}\ns_waitcnt lgkmcnt(0)")
    srd(c, srdW, sWQ, 640*3840)
    c.e(f"s_branch {name}_DEC")
    c.label(f"{name}_GLU")
    c.e(f"""
    s_cmp_lt_u32 s{sW}, 6
    s_cselect_b32 s{sT1}, 0, 6
    s_sub_u32 s{sT0}, s{sW}, s{sT1}
    s_lshl_b32 s{sT0}, s{sT0}, 7
    s_sub_u32 s{sT3}, s{sCG}, 6
    s_mul_i32 s{sT3}, s{sT3}, 384
    """)
    c.e(woff(0, 24, 2731, 3456)); c.e(woff(1, 24, 2731, 3456))
    c.e(f"""
    s_mov_b32 s{sKwStep}, {32*3456}
    s_waitcnt lgkmcnt(0)
    s_cmp_lt_u32 s{sW}, 6
    s_cselect_b32 s{srdW}, s{sWG}, s{sWU}
    s_cselect_b32 s{srdW+1}, s{sWG+1}, s{sWU+1}
    s_and_b32 s{srdW+1}, s{srdW+1}, 0xffff
    s_mov_b32 s{srdW+2}, {640*3456}
    s_mov_b32 s{srdW+3}, 0x20000
    """)
    c.label(f"{name}_DEC")
    srd(c, srdX, sAX, 2048*1280)
    if PF:
        srd(c, srdP, sAX, 2048*1280)
        c.e(f"v_mov_b32 v{vPx}, 0\nv_mov_b32 v{vPw}, 0")
    c.e(f"s_mov_b32 s{sKw}, 0")
    def qkv_params():
        c.e(f"""
        s_cmp_lt_u32 s{sCG}, 2
        {csel(sHS, QF_HS, KV_HS)}
        {csel(sTS, QF_TS, KV_TS)}
        {csel(sBase, QF_OFF, KV_OFF)}
        {csel(sScale, hexf(LOG2E*20**-0.5), hexf(1.0))}
        s_cmp_lt_u32 s{sCG}, 4
        s_cselect_b32 s{sBase}, s{sBase}, {KV_OFF + 1280}
        """)
    def qk_addr():
        c.e(f"""
        v_and_b32 v{vT[0]}, 15, v{vL}
        v_lshrrev_b32 v{vT[1]}, 4, v{vL}
        s_lshl_b32 s{sT0}, s{sCQ}, 4
        v_add_u32 v{vT[1]}, s{sT0}, v{vT[1]}
        s_mul_i32 s{sT1}, s{sTH}, 2560
        s_mul_i32 s{sT2}, s{sSub}, 1280
        s_add_u32 s{sT1}, s{sT1}, s{sT2}
        """)
        for fb in range(4):
            c.e(f"""
            v_add_u32 v{vT[2]}, {4*fb}, v{vT[1]}
            v_mul_u32_u24 v{vT[3]}, 13108, v{vT[2]}
            v_lshrrev_b32 v{vT[3]}, 16, v{vT[3]}
            v_mul_u32_u24 v{vT[4]}, 5, v{vT[3]}
            v_sub_u32 v{vT[4]}, v{vT[2]}, v{vT[4]}
            v_mul_u32_u24 v{vT[3]}, 5120, v{vT[3]}
            v_add_u32 v{vT[3]}, s{sT1}, v{vT[3]}
            v_lshrrev_b32 v{vT[5]}, 1, v{vT[4]}
            v_lshlrev_b32 v{vT[5]}, 9, v{vT[5]}
            v_and_b32 v{vT[6]}, 1, v{vT[4]}
            v_lshl_add_u32 v{vT[5]}, v{vT[6]}, 3, v{vT[5]}
            v_lshl_add_u32 v{vT[5]}, v{vT[0]}, 4, v{vT[5]}
            v_lshlrev_b32 v{vT[6]}, 3, v{vT[0]}
            v_add_u32 v{vT[6]}, 1024, v{vT[6]}
            v_cmp_eq_u32 vcc, 4, v{vT[4]}
            v_mov_b32 v{vT[7]}, 256
            v_mov_b32 v{vT[2]}, 128
            v_cndmask_b32 v{vT[5]}, v{vT[5]}, v{vT[6]}, vcc
            v_cndmask_b32 v{vT[7]}, v{vT[7]}, v{vT[2]}, vcc
            v_add_u32 v{aE[fb]}, v{vT[3]}, v{vT[5]}
            v_add_u32 v{aO[fb]}, v{aE[fb]}, v{vT[7]}
            """)

    def v_addr():
        c.e(f"""
        v_and_b32 v{vT[0]}, 15, v{vL}
        v_lshrrev_b32 v{vT[1]}, 4, v{vL}
        s_lshl_b32 s{sT0}, s{sCQ}, 6
        v_add_u32 v{vT[0]}, s{sT0}, v{vT[0]}
        v_and_b32 v{vT[2]}, 1, v{vT[1]}
        v_mul_u32_u24 v{vT[2]}, 320, v{vT[2]}
        v_lshrrev_b32 v{vT[1]}, 1, v{vT[1]}
        v_lshl_add_u32 v{vT[1]}, v{vT[1]}, 3, v{vT[2]}
        s_mul_i32 s{sT1}, s{sTH}, 2560
        s_mul_i32 s{sT2}, s{sSub}, 1280
        s_add_u32 s{sT1}, s{sT1}, s{sT2}
        v_add_u32 v{vT[1]}, s{sT1}, v{vT[1]}
        """)
        for fb in range(4):
            c.e(f"""
            v_add_u32 v{vT[2]}, {16*fb}, v{vT[0]}
            v_mul_u32_u24 v{vT[3]}, 3277, v{vT[2]}
            v_lshrrev_b32 v{vT[3]}, 16, v{vT[3]}
            v_mul_u32_u24 v{vT[4]}, 20, v{vT[3]}
            v_sub_u32 v{vT[4]}, v{vT[2]}, v{vT[4]}
            v_mul_u32_u24 v{vT[3]}, 5120, v{vT[3]}
            v_lshl_add_u32 v{vT[3]}, v{vT[4]}, 4, v{vT[3]}
            v_add_u32 v{aE[fb]}, v{vT[3]}, v{vT[1]}
            """)

    def c_addr():
        for k in range(5):
            c.e(f"""
            v_add_u32 v{vT[1]}, {64*k}, v{vL}
            v_mul_u32_u24 v{vT[2]}, 820, v{vT[1]}
            v_lshrrev_b32 v{vT[2]}, 16, v{vT[2]}
            v_mul_u32_u24 v{vT[3]}, 80, v{vT[2]}
            v_sub_u32 v{vT[3]}, v{vT[1]}, v{vT[3]}
            v_mul_lo_u32 v{vT[2]}, v{vT[2]}, s{sTS}
            v_lshl_add_u32 v{aC[k]}, v{vT[3]}, 4, v{vT[2]}
            """)

    def pf_setup(glu):
        if not PF or "PFW" in exp: return
        c.e(f"""
        s_sub_u32 s{sT0}, s{sW}, 8
        s_lshl_b32 s{sT1}, s{sJ}, 6
        s_lshl_b32 s{sT2}, s{sT0}, 4
        s_add_u32 s{sT1}, s{sT1}, s{sT2}
        v_and_b32 v{vT[1]}, 15, v{vL}
        v_add_u32 v{vT[1]}, s{sT1}, v{vT[1]}
        v_mul_u32_u24 v{vPx}, 1280, v{vT[1]}
        """)
        if glu:
            c.e(f"""
            s_cmp_lt_u32 s{sT0}, 2
            s_cselect_b32 s{srdP}, s{sWG}, s{sWU}
            s_cselect_b32 s{srdP+1}, s{sWG+1}, s{sWU+1}
            s_and_b32 s{srdP+1}, s{srdP+1}, 0xffff
            s_mov_b32 s{srdP+2}, {640*3456}
            s_mov_b32 s{srdP+3}, 0x20000
            v_mul_u32_u24 v{vT[2]}, 21846, v{vL}
            v_lshrrev_b32 v{vT[2]}, 16, v{vT[2]}
            v_mul_u32_u24 v{vT[3]}, 3, v{vT[2]}
            v_sub_u32 v{vT[3]}, v{vL}, v{vT[3]}
            s_sub_u32 s{sT1}, s{sCG}, 6
            s_mul_i32 s{sT1}, s{sT1}, 384
            v_lshl_add_u32 v{vT[3]}, v{vT[3]}, 7, s{sT1}
            s_and_b32 s{sT1}, s{sT0}, 1
            """)
            c.e(f"""
            s_mul_i32 s{sT2}, s{sT1}, 5
            s_mul_i32 s{sT3}, s{sRT}, 10
            s_add_u32 s{sT2}, s{sT2}, s{sT3}
            s_add_u32 s{sT2}, s{sT2}, 96
            v_min_u32 v{vT[4]}, 4, v{vT[2]}
            v_add_u32 v{vT[4]}, s{sT2}, v{vT[4]}
            v_mul_u32_u24 v{vT[4]}, 3456, v{vT[4]}
            v_add_u32 v{vT[4]}, v{vT[4]}, v{vT[3]}
            s_lshl_b32 s{sT2}, s{sT1}, 1
            s_lshl_b32 s{sT3}, s{sRT}, 2
            s_add_u32 s{sT2}, s{sT2}, s{sT3}
            v_min_u32 v{vT[5]}, 1, v{vT[2]}
            v_add_u32 v{vT[5]}, s{sT2}, v{vT[5]}
            v_mul_u32_u24 v{vT[5]}, 3456, v{vT[5]}
            v_add_u32 v{vPw}, v{vT[5]}, v{vT[3]}
            """)
        else:
            c.e(f"""
            s_mov_b32 s{srdP}, s{sWQ}
            s_and_b32 s{srdP+1}, s{sWQ+1}, 0xffff
            s_mov_b32 s{srdP+2}, {640*3840}
            s_mov_b32 s{srdP+3}, 0x20000
            v_mul_u32_u24 v{vT[2]}, 13108, v{vL}
            v_lshrrev_b32 v{vT[2]}, 16, v{vT[2]}
            v_mul_u32_u24 v{vT[3]}, 5, v{vT[2]}
            v_sub_u32 v{vT[3]}, v{vL}, v{vT[3]}
            s_mul_i32 s{sT1}, s{sCG}, 640
            v_lshl_add_u32 v{vT[3]}, v{vT[3]}, 7, s{sT1}
            s_mul_i32 s{sT2}, s{sT0}, 3
            s_mul_i32 s{sT3}, s{sRT}, 10
            s_add_u32 s{sT2}, s{sT2}, s{sT3}
            s_add_u32 s{sT2}, s{sT2}, 96
            v_min_u32 v{vT[4]}, 2, v{vT[2]}
            v_add_u32 v{vT[4]}, s{sT2}, v{vT[4]}
            v_mul_u32_u24 v{vT[4]}, 3840, v{vT[4]}
            v_add_u32 v{vT[4]}, v{vT[4]}, v{vT[3]}
            s_lshl_b32 s{sT2}, s{sRT}, 2
            s_add_u32 s{sT2}, s{sT2}, s{sT0}
            s_mul_i32 s{sT2}, s{sT2}, 3840
            v_mul_u32_u24 v{vT[5]}, 13108, v{vL}
            v_lshrrev_b32 v{vT[5]}, 16, v{vT[5]}
            v_mul_u32_u24 v{vT[5]}, 5, v{vT[5]}
            v_sub_u32 v{vT[5]}, v{vL}, v{vT[5]}
            v_lshl_add_u32 v{vT[5]}, v{vT[5]}, 7, s{sT2}
            s_mul_i32 s{sT1}, s{sCG}, 640
            v_add_u32 v{vPw}, s{sT1}, v{vT[5]}
            """)
        if "PFW" in exp: return
        c.e(f"""
        s_movk_i32 s{sT1}, 256
        buffer_load_dword v{vPF}, v{vPx}, s[{srdX}:{srdX+3}], s{sT1} offen
        buffer_load_dword v{vPF}, v{vPx}, s[{srdX}:{srdX+3}], s{sT1} offen offset:128
        buffer_load_dword v{vPF}, v{vT[4]}, s[{srdP}:{srdP+3}], 0 offen
        """)
    def tlb_touch():
        if not TCH: return
        srd(c, srdWS, sWS, WS_BYTES)
        c.e(f"v_min_u32 v{vT[1]}, 15, v{vL}\nv_lshlrev_b32 v{vT[1]}, 20, v{vT[1]}\nbuffer_load_dword v{vPF}, v{vT[1]}, s[{srdWS}:{srdWS+3}], 0 offen")
    def pf_n(st):
        if not PF: return 0
        if "PFW" in exp: return 1 if st in PFS else 0
        if "PFB" in exp: return 1 if st in (13, 15) else 0
        return 1 if ((st % 2 == 0 and 0 <= st <= 10) or (st % 2 == 1 and st <= 11) or st in (13, 15)) else 0
    def pf_ops(st, rs):
        if not pf_n(st): return []
        if st in (PFS if "PFW" in exp else (13, 15)):
            p, nl, sz = (sWD, 17, 1728*1280) if st in (PFS[0], 13) else (8, 7, 640*1280)
            return [f"s_mov_b32 s{srdP}, s{p}", f"s_and_b32 s{srdP+1}, s{p+1}, 0xffff", f"s_mov_b32 s{srdP+2}, {sz}",
                    f"s_lshl_b32 s{sT2}, s2, 2", f"s_add_u32 s{sT2}, s{sT2}, s{sW}", f"s_sub_u32 s{sT2}, s{sT2}, 8", f"s_mul_i32 s{sT2}, s{sT2}, {nl*128}",
                    f"v_min_u32 v{vPw}, {nl-1}, v{vL}", f"v_lshlrev_b32 v{vPw}, 7, v{vPw}",
                    f"buffer_load_dword v{vPF}, v{vPw}, s[{srdP}:{srdP+3}], s{sT2} offen"]
        if st % 2 == 0:
            return [f"s_movk_i32 s{sT2}, {128*(st//2 + 4)}", f"buffer_load_dword v{vPF}, v{vPx}, s[{srdX}:{srdX+3}], s{sT2} offen"]
        rsz = 3456 if rs == 384 else 3840
        return [f"s_mov_b32 s{sT2}, {32*(st + 7)*rsz}", f"buffer_load_dword v{vPF}, v{vPw}, s[{srdP}:{srdP+3}], s{sT2} offen"]
    def dma_w(i, st):
        return [f"s_add_u32 m0, s{sMw}, {(st % WRING)*WSLOT + 1024*i}", "s_nop 0", f"buffer_load_dwordx4 v{vOffW[i]}, s[{srdW}:{srdW+3}], s{sKw} offen lds"]
    def dma_x(u):
        m, hf = u >> 1, u & 1
        return [f"s_add_u32 m0, s{sMx}, {(m % XRING)*XSLOT + hf*8192}", f"s_mov_b32 s{sKx}, {m*128 + hf*64*1280}", f"buffer_load_dwordx4 v{vOffX}, s[{srdX}:{srdX+3}], s{sKx} offen lds"]
    advw = [f"s_add_u32 s{sKw}, s{sKw}, s{sKwStep}"]
    c.e(f"""
    s_cmp_lt_u32 s{sW}, 8
    s_cbranch_scc0 {name}_PRO_NX
    """)
    if "SWAP" in exp:
        c.e(f"s_and_b32 s{sT0}, s{sRT}, 1\ns_cmp_eq_u32 s{sT0}, 1\ns_cbranch_scc1 {name}_SWP")
        c.e("\n".join(dma_x(0) + dma_w(0, 0) + dma_w(1, 0) + advw + dma_x(1)))
        c.e(f"s_branch {name}_SWD\n{name}_SWP:")
        c.e("\n".join(dma_w(0, 0) + dma_w(1, 0) + advw + dma_x(0) + dma_x(1)))
        c.label(f"{name}_SWD")
    else:
        c.e("\n".join(dma_x(0) + dma_w(0, 0) + dma_w(1, 0) + advw + dma_x(1)))
    c.e("\n".join(dma_w(0, 1) + dma_w(1, 1) + advw + dma_x(2) + dma_w(0, 2) + dma_w(1, 2) + advw + dma_x(3)))
    c.e(f"s_branch {name}_PRO_D")
    c.label(f"{name}_PRO_NX")
    c.e(f"s_cmp_lt_u32 s{sCG}, 6\ns_cbranch_scc1 {name}_PRO_H")
    for st in range(3): c.e("\n".join(dma_w(0, st) + dma_w(1, st) + advw))
    pf_setup(True); tlb_touch()
    c.e(f"s_branch {name}_PRO_D")
    c.label(f"{name}_PRO_H")
    for st in range(3): c.e("\n".join(dma_w(0, st) + advw))
    pf_setup(False); tlb_touch()
    c.label(f"{name}_PRO_D")
    c.e(f"""
    v_and_b32 v{vT[1]}, 15, v{vL}
    v_lshrrev_b32 v{vT[2]}, 4, v{vL}
    v_lshrrev_b32 v{vT[3]}, 1, v{vT[1]}
    v_xor_b32 v{vT[3]}, v{vT[3]}, v{vT[2]}
    v_lshlrev_b32 v{vT[3]}, 4, v{vT[3]}
    v_lshl_add_u32 v{vT[3]}, v{vT[1]}, 7, v{vT[3]}
    s_lshl_b32 s{sT0}, s{sTH}, 13
    s_lshl_b32 s{sT1}, s{sSub}, 12
    s_add_u32 s{sT0}, s{sT0}, s{sT1}
    s_add_u32 s{sT0}, s{sT0}, {XBASE}
    v_add_u32 v{vXA[0]}, s{sT0}, v{vT[3]}
    v_xor_b32 v{vXA[1]}, 64, v{vXA[0]}
    v_lshrrev_b32 v{vT[3]}, 2, v{vT[1]}
    v_lshl_add_u32 v{vT[4]}, v{vT[2]}, 3, v{vT[3]}
    v_lshrrev_b32 v{vT[3]}, 1, v{vT[3]}
    v_and_b32 v{vT[5]}, 1, v{vT[2]}
    v_lshl_or_b32 v{vT[3]}, v{vT[5]}, 1, v{vT[3]}
    v_and_b32 v{vT[5]}, 3, v{vT[1]}
    v_lshlrev_b32 v{vT[5]}, 3, v{vT[5]}
    s_cmp_lt_u32 s{sCG}, 6
    s_cbranch_scc0 {name}_RA_GLU
    v_mul_u32_u24 v{vT[4]}, 640, v{vT[4]}
    v_add_u32 v{vT[4]}, v{vT[4]}, v{vT[5]}
    s_lshl_b32 s{sT0}, s{sCQ}, 7
    v_add_u32 v{vT[4]}, s{sT0}, v{vT[4]}
    """)
    for fb in range(4):
        c.e(f"v_xor_b32 v{vT[6]}, {fb}, v{vT[3]}\nv_lshl_add_u32 v{vWA[fb]}, v{vT[6]}, 5, v{vT[4]}")
    c.e(f"s_branch {name}_RA")
    c.label(f"{name}_RA_GLU")
    c.e(f"""
    v_mul_u32_u24 v{vT[4]}, 384, v{vT[4]}
    v_add_u32 v{vT[4]}, v{vT[4]}, v{vT[5]}
    """)
    for f in range(2):
        c.e(f"""
        s_lshl_b32 s{sT0}, s{sCQ}, 1
        s_add_u32 s{sT0}, s{sT0}, {f}
        s_and_b32 s{sT1}, s{sT0}, 3
        s_andn2_b32 s{sT0}, s{sT0}, 3
        s_lshl_b32 s{sT0}, s{sT0}, 5
        v_xor_b32 v{vT[6]}, s{sT1}, v{vT[3]}
        v_lshl_add_u32 v{vT[6]}, v{vT[6]}, 5, v{vT[4]}
        v_add_u32 v{vWA[f]}, s{sT0}, v{vT[6]}
        v_add_u32 v{vWA[2+f]}, {UOFF}, v{vWA[f]}
        """)
    c.label(f"{name}_RA")
    for fb in range(4): c.e(f"v_add_u32 v{vWH[fb]}, {2*WSLOT}, v{vWA[fb]}")
    srd(c, srdWS, sWS, WS_BYTES)
    for r_ in aE + aO + aC: c.e(f"v_mov_b32 v{r_}, 0")
    c.e(f"s_cmp_lt_u32 s{sCG}, 6\ns_cbranch_scc0 {name}_NOEA")
    qkv_params(); c_addr()
    c.e(f"s_cmp_lt_u32 s{sCG}, 4\ns_cbranch_scc0 {name}_EAV")
    qk_addr()
    c.e(f"s_branch {name}_NOEA")
    c.label(f"{name}_EAV")
    v_addr()
    c.label(f"{name}_NOEA")
    ST.stamp(c)
    c.e(f"""
    s_cmp_lt_u32 s{sW}, 8
    s_cselect_b32 s{sT1}, 0, 1
    s_cmp_lt_u32 s{sCG}, 4
    s_cselect_b32 s{sT0}, 0, 2
    s_cmp_lt_u32 s{sCG}, 6
    s_cselect_b32 s{sT0}, s{sT0}, 4
    s_add_u32 s{sT0}, s{sT0}, s{sT1}
    """)
    variants = [("QK", 1, 4, 2), ("QK", 0, 2, 1), ("V", 1, 4, 2), ("V", 0, 2, 1), ("GLU", 1, 4, 2), ("GLU", 0, 4, 2)]
    for i in range(1, 6): c.e(f"s_cmp_eq_u32 s{sT0}, {i}\ns_cbranch_scc1 {name}_VAR{i}")
    def reads(st, rs, ntb=4):
        xs, ws_ = sets[st % 2]; p = st & 1; xslot = (st >> 1) % XRING; wsl = st % WRING
        base = vWA if wsl < 2 else vWH; so = (wsl & 1)*WSLOT
        L = []
        for i in range(4):
            L.append(f"ds_read_b64_tr_b16 {vr(ws_+4*i,2)}, v{base[i]} offset:{so}")
            L.append(f"ds_read_b64_tr_b16 {vr(ws_+4*i+2,2)}, v{base[i]} offset:{so + 4*rs}")
            if i < ntb: L.append(f"ds_read_b128 {vr(xs+4*i,4)}, v{vXA[p]} offset:{xslot*XSLOT + 2048*i}")
        return L
    def mfmas(st, role, ntb=4):
        xs, ws_ = sets[st % 2]; L = []
        for fb in range(4):
            for tb in range(ntb):
                cz = 0 if st == 0 else None
                L.append(mfma16(D(fb, tb), ws_+4*fb, xs+4*tb, cz) if role != "V" else mfma16(D(fb, tb), xs+4*tb, ws_+4*fb, cz))
        return L
    for vi, (role, nx, ntb, nw) in enumerate(variants):
        if vi: c.label(f"{name}_VAR{vi}")
        rs = 384 if role == "GLU" else 640
        def cnt(x): return ((nw if x + 3 < NST else 0) + (nx if x + 4 < NST else 0))
        def wd(st): return sum([dma_w(i, st) for i in range(nw)], [])
        def allowed(st):
            n = cnt(st-2) + cnt(st-1)
            if nx == 0: n += sum(pf_n(x) for x in range(max(st-3, 0), st)) + (PF if (st <= 2 and 'PFW' not in exp) else 0) + (TCH if st <= 2 else 0)
            return n
        pfo = (lambda st: pf_ops(st, rs)) if nx == 0 else (lambda st: [])
        for st in range(NST + 1):
            rd = reads(st, rs, ntb) if st < NST else []
            if st == 0:
                c.e(f"s_waitcnt vmcnt({allowed(0)})\ns_barrier")
                c.e("\n".join(rd))
                c.e("\n".join(wd(3) + advw + (dma_x(4) if nx else []) + pfo(0)))
                continue
            m = mfmas(st - 1, role, ntb)
            nm = len(m)
            g = {}
            pre = [f"s_waitcnt vmcnt({allowed(st)})", "s_barrier"] if st < NST else []
            if ntb == 4:
                g[0] = pre + rd[0:2]
                k = 2
                for i in range(1, 11):
                    g[i] = rd[k:k+1]; k += 1
                if st < NST:
                    if st + 3 < NST:
                        g[11] = dma_w(0, st+3); g[13] = dma_w(1, st+3) + advw
                    if nx and st + 4 < NST: g[15] = dma_x(st+4)
                    g[15] = g.get(15, []) + pfo(st)
            else:
                g[0] = pre + rd[0:2]
                for i in range(1, 5): g[i] = rd[2*i:2*i+2]
                if st < NST and st + 3 < NST: g[6] = dma_w(0, st+3) + advw
                if st < NST: g[7] = pfo(st)
            c.e("s_waitcnt lgkmcnt(0)")
            out = []
            for i, x in enumerate(m):
                out.append(x); out += g.get(i, [])
            c.e("\n".join(out))
            if stamps and st in (3, 15):
                r = ST.s + 2*(5 if st == 3 else 6); c.e(f"{'s_memrealtime' if Stamps.RT else 's_memtime'} s[{r}:{r+1}]")
        c.e(f"s_branch {name}_EPI_{role}" + ("H" if ntb == 2 else ""))
    c.label(f"{name}_EPI_GLU")
    ST.i = 3; ST.stamp(c, wait=True)
    c.e(f"""
    s_lshl_b32 s{sT0}, s{sRT}, 2
    s_lshl_b32 s{sT1}, s{sTH}, 1
    s_add_u32 s{sT0}, s{sT0}, s{sT1}
    s_mul_i32 s{sBase}, s{sT0}, 108
    s_sub_u32 s{sT1}, s{sCG}, 6
    s_mul_i32 s{sT1}, s{sT1}, 12
    s_add_u32 s{sBase}, s{sBase}, s{sT1}
    s_lshl_b32 s{sT1}, s{sCQ}, 1
    s_add_u32 s{sBase}, s{sBase}, s{sT1}
    s_lshl_b32 s{sBase}, s{sBase}, 10
    s_add_u32 s{sBase}, s{sBase}, {HF_OFF}
    v_and_b32 v{vT[1]}, 15, v{vL}
    v_lshrrev_b32 v{vT[2]}, 4, v{vL}
    v_and_b32 v{vT[3]}, 1, v{vT[2]}
    v_lshlrev_b32 v{vT[3]}, 9, v{vT[3]}
    v_lshl_add_u32 v{vT[3]}, v{vT[1]}, 4, v{vT[3]}
    v_lshrrev_b32 v{vT[2]}, 1, v{vT[2]}
    v_lshl_add_u32 v{vT[0]}, v{vT[2]}, 3, v{vT[3]}
    s_mov_b32 s{sT1}, {hexf(-LOG2E)}
    s_add_u32 s{sT2}, s{sBase}, {108*1024}
    """)
    for tb in range(4):
        for f in range(2):
            g_, u_ = D(f, tb), D(2+f, tb)
            for r in range(4): c.e(f"v_mul_f32 v{g_+r}, s{sT1}, v{g_+r}")
        for f in range(2):
            for r in range(4): c.e(f"v_exp_f32 v{D(f,tb)+r}, v{D(f,tb)+r}")
        for f in range(2):
            for r in range(4): c.e(f"v_add_f32 v{D(f,tb)+r}, 1.0, v{D(f,tb)+r}")
        for f in range(2):
            for r in range(4): c.e(f"v_rcp_f32 v{D(f,tb)+r}, v{D(f,tb)+r}")
        for f in range(2):
            for r in range(4): c.e(f"v_mul_f32 v{D(f,tb)+r}, v{D(f,tb)+r}, v{D(2+f,tb)+r}")
        e = vE + 4*(tb % 4)
        for f in range(2):
            c.e(f"v_cvt_pk_bf16_f32 v{e+2*f}, v{D(f,tb)}, v{D(f,tb)+1}\nv_cvt_pk_bf16_f32 v{e+2*f+1}, v{D(f,tb)+2}, v{D(f,tb)+3}")
        for f in range(2):
            c.e(f"buffer_store_dwordx2 {vr(e+2*f,2)}, v{vT[0]}, s[{srdWS}:{srdWS+3}], s{sBase if tb < 2 else sT2} offen offset:{1024*f + 256*(tb & 1)}{SMH}")
    c.e(f"s_branch {name}_FIN")
    t2 = vE + 8
    for ntb in (4, 2):
        sfx = "" if ntb == 4 else "H"
        c.label(f"{name}_EPI_QK{sfx}")
        ST.i = 3; ST.stamp(c, wait=True)
        c.e("s_barrier")
        c.e(f"s_cmp_lt_u32 s{sCG}, 2\ns_cbranch_scc0 {name}_NOSCL{sfx}")
        if ntb == 2: c.e("s_nop 3")
        for fb in range(4):
            for tb in range(ntb):
                for r in range(4): c.e(f"v_mul_f32 v{D(fb,tb)+r}, s{sScale}, v{D(fb,tb)+r}")
        c.label(f"{name}_NOSCL{sfx}")
        if ntb == 2: c.e("s_nop 3")
        for fb in range(4):
            for tb in range(ntb):
                d = D(fb, tb)
                e = t2 + 2*((4*fb + tb) % 8)
                c.e(f"v_cvt_pk_bf16_f32 v{e}, v{d}, v{d+1}\nv_cvt_pk_bf16_f32 v{e+1}, v{d+2}, v{d+3}")
                c.e(f"ds_write_b64 v{aE[fb] if tb % 2 == 0 else aO[fb]}, {vr(e,2)} offset:{1280*(tb >> 1)}")
            c.e("s_waitcnt lgkmcnt(4)")
        c.e(f"s_branch {name}_COPY")
        c.label(f"{name}_EPI_V{sfx}")
        ST.i = 3; ST.stamp(c, wait=True)
        c.e("s_barrier")
        if ntb == 2: c.e("s_nop 5")
        for fb in range(4):
            for tb in range(ntb):
                d = D(fb, tb); e = t2 + 2*((4*fb + tb) % 8)
                c.e(f"v_cvt_pk_bf16_f32 v{e}, v{d}, v{d+1}\nv_cvt_pk_bf16_f32 v{e+1}, v{d+2}, v{d+3}")
                c.e(f"ds_write_b64 v{aE[fb]}, {vr(e,2)} offset:{1280*(tb >> 1) + 640*(tb & 1)}")
            c.e("s_waitcnt lgkmcnt(4)")
        c.e(f"s_branch {name}_COPY")
    c.label(f"{name}_COPY")
    c.e(f"""
    s_lshl_b32 s{sT0}, s{sRT}, 2
    s_mul_i32 s{sT0}, s{sT0}, s{sTS}
    s_add_u32 s{sBase}, s{sBase}, s{sT0}
    s_and_b32 s{sT0}, s{sCG}, 1
    s_lshl_b32 s{sT0}, s{sT0}, 4
    s_add_u32 s{sT0}, s{sT0}, s{sW}
    s_mul_i32 s{sT0}, s{sT0}, s{sHS}
    s_add_u32 s{sBase}, s{sBase}, s{sT0}
    s_mul_i32 s{sT1}, s{sW}, 5120
    v_lshl_add_u32 v{vT[0]}, v{vL}, 4, s{sT1}
    """)
    c.e("s_waitcnt lgkmcnt(0)\ns_barrier")
    c.label(f"{name}_CPL")
    for k in range(5): c.e(f"ds_read_b128 {vr(acc+4*k,4)}, v{vT[0]} offset:{1024*k}")
    for k in range(5):
        c.e(f"s_waitcnt lgkmcnt({4-k})")
        c.e(f"buffer_store_dwordx4 {vr(acc+4*k,4)}, v{aC[k]}, s[{srdWS}:{srdWS+3}], s{sBase} offen{SMQ}")
    c.e(f"""
    s_add_u32 s{sW}, s{sW}, 12
    s_cmp_lt_u32 s{sW}, 16
    s_cbranch_scc0 {name}_CPD
    s_mul_i32 s{sT0}, s{sHS}, 12
    s_add_u32 s{sBase}, s{sBase}, s{sT0}
    v_add_u32 v{vT[0]}, {12*5120}, v{vT[0]}
    s_branch {name}_CPL
    {name}_CPD:
    s_sub_u32 s{sW}, s{sW}, 12
    s_cmp_ge_u32 s{sW}, 12
    s_cselect_b32 s{sT0}, 12, 0
    s_sub_u32 s{sW}, s{sW}, s{sT0}
    s_branch {name}_FIN
    """)
    c.label(f"{name}_GATE")
    if PFG:
        c.e(f"s_cmp_ge_u32 s{sW}, 8\ns_cbranch_scc0 {name}_GATE2\ns_waitcnt lgkmcnt(0)")
        c.e(f"""
        s_lshl_b32 s{sT0}, s{sRT}, 2
        s_add_u32 s{sT0}, s{sT0}, s{sW}
        s_sub_u32 s{sT0}, s{sT0}, 8
        """)
        for (p, nl, per, sz) in ((sWD, 54, 5, 1728*1280), (8, 50, 2, 640*1280)):
            srd(c, srdP, p, sz)
            c.e(f"s_mul_i32 s{sT1}, s{sT0}, {nl*per*128}\nv_min_u32 v{vT[1]}, {nl-1}, v{vL}\nv_lshlrev_b32 v{vT[1]}, 7, v{vT[1]}")
            for i in range(per):
                c.e(f"buffer_load_dword v{vPF}, v{vT[1]}, s[{srdP}:{srdP+3}], s{sT1} offen\ns_add_u32 s{sT1}, s{sT1}, {nl*128}")
        c.e(f"s_endpgm\n{name}_GATE2:\ns_waitcnt lgkmcnt(0)")
    else:
        c.e(f"s_cmp_ge_u32 s{sW}, 8\ns_cbranch_scc1 {name}_END\ns_waitcnt lgkmcnt(0)")
    srd(c, srdX, sAX, 2048*1280); srd(c, srdW, sGW, 1280); srd(c, srdWS, sWS, WS_BYTES)
    c.e(f"""
    s_or_b32 s{sT0}, s{sRT}, s{sW}
    s_cmp_eq_u32 s{sT0}, 0
    s_cbranch_scc0 {name}_NOZ
    v_lshlrev_b32 v{vT[5]}, 7, v{vL}
    v_mov_b32 v{vT[4]}, 0
    s_mov_b32 s{sT0}, {CNT_OFF}
    s_mov_b64 exec, 0xff
    buffer_store_dword v{vT[4]}, v{vT[5]}, s[{srdWS}:{srdWS+3}], s{sT0} offen
    s_mov_b64 exec, -1
    {name}_NOZ:
    """)
    vGw = sets[0][0]; vGx = sets[0][0] + 8
    c.e(f"""
    v_lshlrev_b32 v{vT[5]}, 2, v{vL}
    s_lshl_b32 s{sT0}, s{sRT}, 7
    s_lshl_b32 s{sT1}, s{sW}, 4
    s_add_u32 s{sBase}, s{sT0}, s{sT1}
    s_mul_i32 s{sT1}, s{sBase}, 1280
    """)
    for i in range(5): c.e(f"buffer_load_dword v{vGw+i}, v{vT[5]}, s[{srdW}:{srdW+3}], 0 offen offset:{256*i}")
    NB_ = 8
    for bt in range(2):
        for rr in range(NB_):
            for i in range(5): c.e(f"buffer_load_dword v{vGx+5*rr+i}, v{vT[5]}, s[{srdX}:{srdX+3}], s{sT1} offen offset:{256*i}")
            c.e(f"s_add_u32 s{sT1}, s{sT1}, 1280")
        for rr in range(NB_):
            c.e(f"s_waitcnt vmcnt({5*(NB_-1-rr) + (rr if True else 0)})")
            for i in range(5):
                c.e(f"""
                v_lshlrev_b32 v{vT[0]}, 16, v{vGx+5*rr+i}
                v_and_b32 v{vT[1]}, 0xffff0000, v{vGx+5*rr+i}
                v_lshlrev_b32 v{vT[2]}, 16, v{vGw+i}
                v_and_b32 v{vT[3]}, 0xffff0000, v{vGw+i}
                v_mul_f32 v{vT[0]}, v{vT[0]}, v{vT[2]}
                v_mul_f32 v{vT[1]}, v{vT[1]}, v{vT[3]}
                v_cvt_pk_bf16_f32 v{vT[0]}, v{vT[0]}, v{vT[1]}
                v_lshlrev_b32 v{vT[2]}, 16, v{vT[0]}
                v_and_b32 v{vT[3]}, 0xffff0000, v{vT[0]}
                """)
                if i == 0: c.e(f"v_add_f32 v{vT[4]}, v{vT[2]}, v{vT[3]}")
                else: c.e(f"v_add_f32 v{vT[2]}, v{vT[2]}, v{vT[3]}\nv_add_f32 v{vT[4]}, v{vT[4]}, v{vT[2]}")
            for sh in ("row_shr:1", "row_shr:2", "row_shr:4", "row_shr:8"):
                c.e(f"s_nop 1\nv_add_f32_dpp v{vT[4]}, v{vT[4]}, v{vT[4]} {sh} row_mask:0xf bank_mask:0xf bound_ctrl:0")
            c.e(f"""
            s_nop 1
            v_readlane_b32 s{sT0}, v{vT[4]}, 15
            v_readlane_b32 s{sT2}, v{vT[4]}, 31
            v_readlane_b32 s{sT3}, v{vT[4]}, 47
            v_readlane_b32 s{sHS}, v{vT[4]}, 63
            s_nop 1
            v_mov_b32 v{vT[0]}, s{sT0}
            v_add_f32 v{vT[0]}, s{sT2}, v{vT[0]}
            v_add_f32 v{vT[0]}, s{sT3}, v{vT[0]}
            v_add_f32 v{vT[0]}, s{sHS}, v{vT[0]}
            v_cvt_pk_bf16_f32 v{vT[0]}, v{vT[0]}, v{vT[0]}
            v_lshlrev_b32 v{vT[0]}, 16, v{vT[0]}
            v_mul_f32 v{vT[0]}, {hexf(-LOG2E)}, v{vT[0]}
            v_exp_f32 v{vT[0]}, v{vT[0]}
            s_nop 0
            v_add_f32 v{vT[0]}, 1.0, v{vT[0]}
            v_rcp_f32 v{vT[0]}, v{vT[0]}
            s_nop 0
            v_cvt_pk_bf16_f32 v{vT[0]}, v{vT[0]}, v{vT[0]}
            v_lshlrev_b32 v{vT[6]}, 16, v{vT[0]}
            v_sub_f32 v{vT[1]}, 1.0, v{vT[6]}
            v_cvt_pk_bf16_f32 v{vT[1]}, v{vT[1]}, v{vT[1]}
            v_lshlrev_b32 v{vT[7]}, 16, v{vT[1]}
            s_lshl_b32 s{sT0}, s{sBase}, 3
            s_add_u32 s{sT0}, s{sT0}, {G_OFF}
            v_mov_b32 v{vT[2]}, 0
            s_mov_b64 exec, 1
            buffer_store_dwordx2 {vr(vT[6],2)}, v{vT[2]}, s[{srdWS}:{srdWS+3}], s{sT0} offen
            s_mov_b64 exec, -1
            s_add_u32 s{sBase}, s{sBase}, 1
            """)
    if stamps:
        ST.i = 2; ST.stamp(c); ST.stamp(c)
    c.label(f"{name}_FIN")
    if stamps: c.e("s_waitcnt vmcnt(0)")
    ST.i = 4; ST.stamp(c)
    if stamps:
        c.e(f"s_memrealtime s[{ST.s+14}:{ST.s+15}]"); ST.i = 8
        c.e(f"s_cmp_ge_u32 s{sW}, 8\ns_cbranch_scc1 {name}_END")
    ST.flush(c, sW, srdWS, vT[2], vT[3], sT0)
    c.e(f"""
    {name}_END:
    s_endpgm
    """)
    def S(role, vi=0, idle=False):
        d = {f"{name}_END": False, f"{name}_GATE": role == "gate", f"{name}_GLU": role == "glu", f"{name}_RA_GLU": role == "glu",
             f"{name}_NOEA": role == "glu", f"{name}_EAV": role == "v", f"{name}_NOSCL": False, f"{name}_NOSCLH": False, f"{name}_NOZ": False, f"{name}_PRO_NX": vi % 2 == 1,
             f"{name}_PRO_H": role != "glu", f"{name}_QW": vi % 2 == 0, f"{name}_CPD": (lambda k: k >= 1)}
        for i in range(1, 6): d[f"{name}_VAR{i}"] = (i == vi)
        for i in range(12): d[f"{name}_TCH{i}"] = (i != 3)
        d[f"{name}_SWP"] = False; d[f"{name}_GATE2"] = True
        return d
    scen = {"qk1": S("qk", 0), "qk0": S("qk", 1), "v1": S("v", 2), "v0": S("v", 3), "glu1": S("glu", 4), "glu0": S("glu", 5), "gate": S("gate")}
    return c, V.hi, scen, K1_LDS

if __name__ == "__main__":
    c, nv, scen, lds = gen_k1()
    errs = check(c.lines, scen, "k1")
    print("vgprs", nv, "lds", lds, "lines", len(c.lines))
    for e in errs[:40]: print(e)
```

```python
from common import *

CH = 10240
SLOT = 2*CH; RING = 3
DUMMY = SLOT*RING
FLAG = DUMMY + 1024
XCH = FLAG + 64
GRING = XCH + 8*3072
GSLOT = 6144; GWAVE = 3*GSLOT
K2_LDS = GRING + 4*GWAVE
FB_BARRIERS = 16 + 3 + 9 + 1

def gen_k2(name="k2_kernel", stamps=False, exp=""):
    c = Code()
    OM = " sc1" if "OS" in exp else (" nt" if "ON" in exp else (" sc0 sc1" if "OX" in exp else ""))
    SM = " sc1" if "SC1" in exp else (" sc0 sc1" if "SC01" in exp else ("" if ("PLAIN" in exp or "P2" in exp) else " nt"))
    V = Alloc(168, 1, "v"); Sg = Alloc(100, 12, "s")
    sWS = 4; sWD = 6; sWO = 8; sOUT = 10
    sX = Sg.take(); sJ = Sg.take(); sHead = Sg.take(); sQB = Sg.take(); sW = Sg.take(); sQG = Sg.take(); sKH = Sg.take()
    sT0 = Sg.take(); sT1 = Sg.take(); sT2 = Sg.take(); sT3 = Sg.take()
    srdWS = Sg.take(4, 4)
    sMaskLo = Sg.take(2, 2); sMaskV = Sg.take(2, 2); sU = Sg.take(2, 2); sU2 = Sg.take(2, 2)
    sSrc = Sg.take(); sM = [Sg.take() for _ in range(3)]; sSlotW = Sg.take(); sSlotR = Sg.take(); sC = Sg.take(); sMode = Sg.take()
    sSrc0 = Sg.take(); sTile = Sg.take(); sOb = Sg.take()
    ST = Stamps(Sg, stamps, 1)
    vL = V.take(); vT = [V.take() for _ in range(8)]
    vOff = V.take(); vOff3 = V.take()
    vK1a = V.take(); vK2a = V.take(); vVa = V.take()
    vK1c = V.take(); vK2c = V.take(); vVc = V.take()
    vG = [V.take(), V.take()]; vSt = [V.take() for _ in range(3)]; vGo = V.take()
    Q1 = [V.take(4, 4), V.take(4, 4)]; Q2 = [V.take(2, 2), V.take(2, 2)]
    K1 = V.take(4, 4); K2 = V.take(2, 2); V0 = V.take(4, 4); V1 = V.take(4, 4)
    S_ = [V.take(16, 4), V.take(16, 4)]; O = [V.take(16, 4), V.take(16, 4)]
    P = [V.take(4, 4), V.take(4, 4)]; T4 = V.take(4, 4)
    vM = [V.take(), V.take()]
    NM = [V.take(16, 4), V.take(16, 4)]
    srd4 = f"s[{srdWS}:{srdWS+3}]"

    c.e(f"""
    s_cmp_ge_u32 s2, 256
    s_cbranch_scc1 {name}_END
    s_load_dwordx2 s[4:5], s[0:1], {KA_WS}
    s_load_dwordx2 s[6:7], s[0:1], {KA_WD}
    s_load_dwordx2 s[8:9], s[0:1], {KA_WO}
    s_load_dwordx2 s[10:11], s[0:1], {KA_OUT}
    v_and_b32 v{vL}, 63, v0
    v_lshrrev_b32 v{vT[0]}, 6, v0
    s_and_b32 s{sX}, s2, 7
    s_lshr_b32 s{sJ}, s2, 3
    v_readfirstlane_b32 s{sW}, v{vT[0]}
    s_lshr_b32 s{sT0}, s{sJ}, 3
    s_lshl_b32 s{sHead}, s{sX}, 2
    s_add_u32 s{sHead}, s{sHead}, s{sT0}
    s_and_b32 s{sQB}, s{sJ}, 7
    v_lshlrev_b32 v{vOff}, 4, v{vL}
    s_mul_i32 s{sSrc0}, s{sHead}, {KV_HS}
    s_add_u32 s{sSrc0}, s{sSrc0}, {KV_OFF}
    """)
    ST.stamp(c, real=True); ST.stamp(c)
    c.e(f"s_cmp_ge_u32 s{sW}, 8\ns_cbranch_scc1 {name}_GW")
    c.e(f"""
    s_and_b32 s{sQG}, s{sW}, 3
    s_lshr_b32 s{sKH}, s{sW}, 2
    s_mul_i32 s{sT0}, s{sKH}, {32*KV_TS}
    s_add_u32 s{sSrc0}, s{sSrc0}, s{sT0}
    s_lshl_b32 s{sT0}, s{sQG}, 10
    s_add_u32 s{sSrc0}, s{sSrc0}, s{sT0}
    s_mul_i32 s{sT1}, s{sKH}, {CH}
    s_add_u32 s{sM[0]}, s{sT1}, s{sT0}
    s_add_u32 s{sM[1]}, s{sM[0]}, 4096
    s_add_u32 s{sM[2]}, s{sM[0]}, 8192
    s_cmp_lt_u32 s{sQG}, 2
    s_cselect_b32 s{sT0}, 0, 0x7f000000
    v_add_u32 v{vOff3}, s{sT0}, v{vOff}
    s_mov_b32 s{sSrc}, s{sSrc0}
    s_mov_b32 s{sSlotW}, 0
    s_lshl_b32 s{sTile}, s{sQB}, 3
    s_lshl_b32 s{sT0}, s{sQG}, 1
    s_add_u32 s{sTile}, s{sTile}, s{sT0}
    s_waitcnt lgkmcnt(0)
    """)
    if stamps: c.e(f"s_memtime s[{ST.s+12}:{ST.s+13}]")
    srd(c, srdWS, sWS, WS_BYTES)
    def dma_parts():
        g0 = [f"s_add_u32 m0, s{sSlotW}, s{sM[0]}", f"s_add_u32 s{sT0}, s{sSrc}, 4096", f"buffer_load_dwordx4 v{vOff}, {srd4}, s{sSrc} offen lds"]
        g1 = [f"s_add_u32 m0, s{sSlotW}, s{sM[1]}", f"s_add_u32 s{sT1}, s{sSrc}, 8192", f"buffer_load_dwordx4 v{vOff}, {srd4}, s{sT0} offen lds"]
        g2 = [f"s_add_u32 s{sT0}, s{sSlotW}, s{sM[2]}", f"s_cmp_lt_u32 s{sQG}, 2", f"s_cselect_b32 m0, s{sT0}, {DUMMY}", f"s_add_u32 s{sSrc}, s{sSrc}, {CH}",
              f"buffer_load_dwordx4 v{vOff3}, {srd4}, s{sT1} offen lds",
              f"s_add_u32 s{sSlotW}, s{sSlotW}, {SLOT}", f"s_cmp_eq_u32 s{sSlotW}, {SLOT*RING}", f"s_cselect_b32 s{sSlotW}, 0, s{sSlotW}"]
        return g0, g1, g2
    def dma_chunk():
        g = dma_parts(); return g[0] + g[1] + g[2]
    def first_loads():
        c.e("\n".join(dma_chunk()))
    first_loads()
    c.e(f"""
    s_mul_i32 s{sT2}, s{sHead}, {QF_HS}
    s_mul_i32 s{sT1}, s{sTile}, {QF_TS}
    s_add_u32 s{sT2}, s{sT2}, s{sT1}
    s_add_u32 s{sT3}, s{sT2}, {QF_TS}
    v_and_b32 v{vT[0]}, 31, v{vL}
    v_lshlrev_b32 v{vT[1]}, 3, v{vT[0]}
    s_mov_b32 s{sMaskLo}, -1
    s_mov_b32 s{sMaskLo+1}, 0
    v_mov_b32 v{Q2[0]}, 0
    v_mov_b32 v{Q2[0]+1}, 0
    v_mov_b32 v{Q2[1]}, 0
    v_mov_b32 v{Q2[1]+1}, 0
    buffer_load_dwordx4 {vr(Q1[0],4)}, v{vOff}, {srd4}, s{sT2} offen
    buffer_load_dwordx4 {vr(Q1[1],4)}, v{vOff}, {srd4}, s{sT3} offen
    s_mov_b64 exec, s[{sMaskLo}:{sMaskLo+1}]
    buffer_load_dwordx2 {vr(Q2[0],2)}, v{vT[1]}, {srd4}, s{sT2} offen offset:1024
    buffer_load_dwordx2 {vr(Q2[1],2)}, v{vT[1]}, {srd4}, s{sT3} offen offset:1024
    s_mov_b64 exec, -1
    """)
    c.e(f"""
    v_mov_b32 v{vGo}, v{vT[1]}
    s_mov_b32 s{sMode}, 0
    s_mov_b32 s{sMaskV}, 0xfffff
    s_mov_b32 s{sMaskV+1}, 0xfffff
    s_mul_i32 s{sT0}, s{sKH}, {CH}
    v_add_u32 v{vK1a}, s{sT0}, v{vOff}
    v_add_u32 v{vK2a}, s{sT0}, v{vT[1]}
    v_lshrrev_b32 v{vT[2]}, 5, v{vL}
    v_mul_u32_u24 v{vT[7]}, 320, v{vT[2]}
    v_lshl_add_u32 v{vT[7]}, v{vT[0]}, 4, v{vT[7]}
    v_add_u32 v{vVa}, s{sT0}, v{vT[7]}
    v_cmp_eq_u32 vcc, 20, v{vT[0]}
    v_mov_b32 v{vT[3]}, 0
    v_mov_b32 v{vT[4]}, 0x3f803f80
    v_cndmask_b32 v{vT[3]}, v{vT[3]}, v{vT[4]}, vcc
    """)
    for r in range(4): c.e(f"v_mov_b32 v{V0+r}, v{vT[3]}\nv_mov_b32 v{V1+r}, v{vT[3]}")
    c.e(f"v_mov_b32 v{vT[3]}, 0\nv_mov_b32 v{vT[4]}, {FLAG}\nds_write_b32 v{vT[4]}, v{vT[3]}")
    c.e(f"""
    s_add_u32 s{sOb}, s{sTile}, s{sKH}
    s_mul_i32 s{sOb}, s{sOb}, {40*1024}
    s_add_u32 s{sOb}, s{sOb}, {OF_OFF}
    s_mul_i32 s{sT1}, s{sHead}, 5
    v_add_u32 v{vT[2]}, s{sT1}, v{vT[2]}
    v_lshlrev_b32 v{vT[3]}, 4, v{vT[0]}
    """)
    c.e(f"v_lshlrev_b32 v{vT[3]}, 3, v{vT[0]}")
    for g in range(3):
        c.e(f"""
        v_add_u32 v{vT[4]}, {2*g}, v{vT[2]}
        v_lshl_add_u32 v{vSt[g]}, v{vT[4]}, 8, v{vT[3]}
        """)
    def rdK(off):
        return [f"ds_read_b64 {vr(K2,2)}, v{vK2c} offset:{off+1024}", f"ds_read_b128 {vr(K1,4)}, v{vK1c} offset:{off}"]
    def rdV(which, off):
        r = V0 if which == 0 else V1
        return [f"s_mov_b64 exec, s[{sMaskV}:{sMaskV+1}]", f"ds_read_b128 {vr(r,4)}, v{vVc} offset:{off + 1280 + 640*which}", "s_mov_b64 exec, -1"]
    def emit_pass(tag, fb):
        def qk(b): return [f"v_mfma_f32_32x32x16_bf16 {vr(S_[b],16)}, {vr(K1,4)}, {vr(Q1[b],4)}, " + (vr(NM[b],16) if fb else "0"), mfma32x8(S_[b], K2, Q2[b])]
        for b in range(2):
            for r in range(16): c.e(f"v_mov_b32 v{O[b]+r}, 0")
        for r in range(4): c.e(f"v_mov_b32 v{P[1]+r}, 0\nv_mov_b32 v{T4+r}, 0")
        c.e(f"""
        s_mov_b32 s{sSlotR}, 0
        s_mov_b32 s{sC}, 0
        v_mov_b32 v{vK1c}, v{vK1a}
        v_mov_b32 v{vK2c}, v{vK2a}
        v_mov_b32 v{vVc}, v{vVa}
        """)
        if stamps and not fb: c.e(f"s_memtime s[{ST.s+14}:{ST.s+15}]")
        c.e(f"s_waitcnt vmcnt({3 if fb else 0}) lgkmcnt(0)\ns_barrier")
        c.e("\n".join(rdK(0) + rdV(0, 0)))
        if not fb:
            c.e("\n".join(dma_chunk()))
            c.e(f"""
            s_lshl_b32 s{sT2}, s{sTile}, 8
            s_add_u32 s{sT2}, s{sT2}, {G_OFF}
            buffer_load_dword v{vG[0]}, v{vGo}, {srd4}, s{sT2} offen
            buffer_load_dword v{vG[1]}, v{vGo}, {srd4}, s{sT2} offen offset:256
            """)
        c.e(f"s_waitcnt vmcnt({3 if fb else 5}) lgkmcnt(1)") if False else None
        c.e("s_waitcnt lgkmcnt(1)")
        c.e("\n".join(qk(0)))
        c.e("s_nop 7\ns_nop 3")
        if not fb: ST.i = 2; ST.stamp(c, wait=True)
        def half(b, tt):
            s = S_[b]; L = []
            src = lambda i: (s + i) if i < 12 else (T4 + i - 12)
            e = lambda i: f"v_exp_f32 v{src(i)}, v{s+i}"
            cv = lambda p: f"v_cvt_pk_bf16_f32 v{P[p//4] + p%4}, v{src(2*p)}, v{src(2*p+1)}"
            m = qk(1 - b)
            m3 = mfma32(O[b], V0, P[0]); m4p = mfma32(O[1-b], V1, P[1])
            cur = tt*KV_TS; nxt = ((tt + 1) % 4)*KV_TS
            d0 = d1 = d2 = []
            if b == 0 and tt == 0: pass
            if b == 1: L.append("s_waitcnt lgkmcnt(1)")
            L += [m[0], e(0), cv(6), e(1), cv(7), e(2), e(3), m[1]]
            if b == 0:
                if tt == 3:
                    L += ["s_waitcnt vmcnt(0)", "s_barrier",
                          f"s_add_u32 s{sSlotR}, s{sSlotR}, {SLOT}", f"s_cmp_eq_u32 s{sSlotR}, {SLOT*RING}", f"s_cselect_b32 s{sSlotR}, 0, s{sSlotR}",
                          f"v_add_u32 v{vK1c}, s{sSlotR}, v{vK1a}", f"v_add_u32 v{vK2c}, s{sSlotR}, v{vK2a}"]
                L += rdK(nxt)
            L += [e(4), e(5), cv(0), e(6), e(7), cv(1)]
            if b == 1: L.append("s_waitcnt lgkmcnt(0)")
            L.append(m4p)
            if b == 0: L += rdV(1, cur)
            if b == 0 and tt == 3: L += [f"v_add_u32 v{vVc}, s{sSlotR}, v{vVa}"]
            L += [e(8), cv(2), e(9), cv(3), e(10), e(11)]
            if b == 0: L.append("s_waitcnt lgkmcnt(3)")
            L.append(m3)
            if b == 1: L += rdV(0, nxt)
            L += [e(12), e(13), cv(4), e(14), e(15), cv(5)]
            return L
        lp = f"{name}_LOOP{tag}"
        c.label(lp)
        for tt in range(4):
            A = half(0, tt); B = half(1, tt)
            if tt == 3:
                g0, g1, g2 = dma_parts()
                c.e("\n".join(A))
                c.e(f"s_cmp_ge_u32 s{sC}, 6\ns_cbranch_scc1 {lp}_NODMA")
                c.e("\n".join(g0 + g1 + g2))
                c.label(f"{lp}_NODMA")
                c.e("\n".join(B))
            else:
                c.e("\n".join(A)); c.e("\n".join(B))
        c.e(f"""
        s_add_u32 s{sC}, s{sC}, 1
        s_cmp_lt_u32 s{sC}, 8
        s_cbranch_scc1 {lp}
        """)
        c.e(f"v_cvt_pk_bf16_f32 v{P[1]+2}, v{T4}, v{T4+1}\nv_cvt_pk_bf16_f32 v{P[1]+3}, v{T4+2}, v{T4+3}\ns_waitcnt lgkmcnt(0)\ns_nop 0")
        c.e(mfma32(O[1], V1, P[1]))
    if "PA" in exp: c.e("s_setprio 1")
    if "PH" in exp: c.e(f"s_cmp_eq_u32 s{sKH}, 1\ns_cbranch_scc0 {name}_NPH\ns_setprio 1\n{name}_NPH:")
    emit_pass("", False)
    c.label(f"{name}_EPI")
    ST.i = 3; ST.stamp(c, wait=True)
    c.e(f"""
    s_mul_i32 s{sT0}, s{sW}, 3072
    s_add_u32 s{sT0}, s{sT0}, {XCH}
    v_add_u32 v{vT[4]}, s{sT0}, v{vOff}
    s_xor_b32 s{sT0}, s{sW}, 4
    s_mul_i32 s{sT0}, s{sT0}, 3072
    s_add_u32 s{sT0}, s{sT0}, {XCH}
    v_add_u32 v{vT[6]}, s{sT0}, v{vOff}
    v_mov_b32 v{vT[1]}, 0x7f800000
    v_mov_b32 v{vT[2]}, {hexf(2.0**63)}
    v_mov_b32 v{vT[3]}, {hexf(2.0**-63)}
    v_mov_b32 v{vT[5]}, {FLAG}
    s_nop 3
    s_cmp_eq_u32 s{sKH}, 0
    s_cbranch_scc1 {name}_NOSWAP
    """)
    for r in range(12): c.e(f"v_swap_b32 v{O[0]+r}, v{O[1]+r}")
    c.e(f"v_swap_b32 v{vG[0]}, v{vG[1]}")
    c.label(f"{name}_NOSWAP")
    for g in range(3): c.e(f"ds_write_b128 v{vT[4]}, {vr(O[1]+4*g,4)} offset:{1024*g}")
    c.e(f"v_add_f32 v{vT[0]}, |v{O[0]}|, |v{O[1]}|")
    for r in range(1, 12): c.e(f"v_add_f32 v{vT[0]}, |v{O[0]+r}|, v{vT[0]}\nv_add_f32 v{vT[0]}, |v{O[1]+r}|, v{vT[0]}")
    c.e(f"""
    v_min_f32 v{vT[7]}, v{O[0]+8}, v{O[1]+8}
    v_cmp_nlt_f32 s[{sU}:{sU+1}], v{vT[0]}, v{vT[1]}
    v_max_f32 v{vT[0]}, v{O[0]+8}, v{O[1]+8}
    v_cmp_nge_f32 s[{sU2}:{sU2+1}], v{vT[7]}, v{vT[3]}
    v_cmp_nle_f32 vcc, v{vT[0]}, v{vT[2]}
    s_nop 3
    s_or_b64 s[{sU2}:{sU2+1}], s[{sU2}:{sU2+1}], vcc
    s_andn2_b64 s[{sU2}:{sU2+1}], s[{sU2}:{sU2+1}], s[{sMaskLo}:{sMaskLo+1}]
    s_or_b64 s[{sU}:{sU+1}], s[{sU}:{sU+1}], s[{sU2}:{sU2+1}]
    s_cmp_eq_u64 s[{sU}:{sU+1}], 0
    s_cbranch_scc1 {name}_SAFE
    v_mov_b32 v{vT[3]}, 1
    ds_write_b32 v{vT[5]}, v{vT[3]}
    {name}_SAFE:
    s_waitcnt lgkmcnt(0)
    s_barrier
    ds_read_b32 v{vT[3]}, v{vT[5]}
    """)
    for g in range(3): c.e(f"ds_read_b128 {vr(S_[0]+4*g,4)}, v{vT[6]} offset:{1024*g}")
    c.e(f"""
    s_waitcnt lgkmcnt(3)
    v_readfirstlane_b32 s{sT0}, v{vT[3]}
    s_nop 3
    s_cmp_eq_u32 s{sMode}, 0
    s_cselect_b32 s{sT0}, s{sT0}, 0
    s_cmp_eq_u32 s{sT0}, 0
    s_cbranch_scc0 {name}_FALLBACK
    s_waitcnt vmcnt(0) lgkmcnt(0)
    """)
    for r in range(12): c.e(f"v_add_f32 v{O[0]+r}, v{O[0]+r}, v{S_[0]+r}")
    c.e(f"""
    v_mov_b32 v{vT[0]}, v{O[0]+8}
    v_mov_b32 v{vT[1]}, v{O[0]+8}
    s_nop 1
    v_permlane32_swap_b32 v{vT[0]}, v{vT[1]}
    s_nop 1
    v_rcp_f32 v{vT[1]}, v{vT[1]}
    s_nop 0
    v_mul_f32 v{vT[1]}, v{vT[1]}, v{vG[0]}
    """)
    for r in range(12): c.e(f"v_mul_f32 v{O[0]+r}, v{O[0]+r}, v{vT[1]}")
    for p in range(6): c.e(f"v_cvt_pk_bf16_f32 v{S_[1]+p}, v{O[0]+2*p}, v{O[0]+2*p+1}")
    for g in range(3):
        if g == 2: c.e(f"s_mov_b64 exec, s[{sMaskLo}:{sMaskLo+1}]")
        c.e(f"buffer_store_dwordx2 {vr(S_[1]+2*g,2)}, v{vSt[g]}, {srd4}, s{sOb} offen sc1")
    c.e(f"""
    s_mov_b64 exec, -1
    s_waitcnt vmcnt(0)
    s_barrier
    s_cmp_eq_u32 s{sW}, 0
    s_cbranch_scc0 {name}_FIN
    s_lshl_b32 s{sT0}, s{sQB}, 7
    s_add_u32 s{sT0}, s{sT0}, {CNT_OFF}
    v_mov_b32 v{vT[2]}, 0
    v_mov_b32 v{vT[3]}, 1
    s_mov_b64 exec, 1
    buffer_atomic_add v{vT[3]}, v{vT[2]}, {srd4}, s{sT0} offen
    s_mov_b64 exec, -1
    s_branch {name}_FIN
    """)
    c.label(f"{name}_FALLBACK")
    c.e("s_waitcnt vmcnt(0) lgkmcnt(0)")
    c.e(f"s_cmp_eq_u32 s{sKH}, 0\ns_cbranch_scc1 {name}_FB_NOSWAP\nv_swap_b32 v{vG[0]}, v{vG[1]}\n{name}_FB_NOSWAP:")
    c.e(f"""
    s_mov_b32 s{sMode}, 1
    v_mov_b32 v{vM[0]}, 0xff800000
    v_mov_b32 v{vM[1]}, 0xff800000
    s_mov_b32 s{sSrc}, s{sSrc0}
    s_mov_b32 s{sC}, 0
    {name}_FB_LOOP:
    s_barrier
    s_mov_b32 s{sSlotW}, 0
    """)
    c.e("\n".join(dma_chunk()))
    c.e(f"s_waitcnt vmcnt(0)\ns_barrier\nv_mov_b32 v{vK1c}, v{vK1a}\nv_mov_b32 v{vK2c}, v{vK2a}")
    for tt in range(4):
        c.e("\n".join(rdK(tt*KV_TS)))
        c.e("s_waitcnt lgkmcnt(0)")
        for b in range(2): c.e(mfma32(S_[b], K1, Q1[b], cz=0) + "\n" + mfma32x8(S_[b], K2, Q2[b]))
        c.e("s_nop 7\ns_nop 7")
        for b in range(2):
            for r in range(0, 16, 2): c.e(f"v_max3_f32 v{vM[b]}, v{S_[b]+r}, v{S_[b]+r+1}, v{vM[b]}")
    c.e(f"""
    s_add_u32 s{sC}, s{sC}, 1
    s_cmp_lt_u32 s{sC}, 8
    s_cbranch_scc1 {name}_FB_LOOP
    """)
    for b in range(2):
        c.e(f"""
        v_mov_b32 v{vT[0]}, v{vM[b]}
        v_mov_b32 v{vT[1]}, v{vM[b]}
        s_nop 1
        v_permlane32_swap_b32 v{vT[0]}, v{vT[1]}
        s_nop 1
        v_max_f32 v{vM[b]}, v{vT[0]}, v{vT[1]}
        """)
    c.e(f"""
    s_lshl_b32 s{sT0}, s{sW}, 9
    s_add_u32 s{sT0}, s{sT0}, {XCH}
    v_lshlrev_b32 v{vT[2]}, 2, v{vL}
    v_add_u32 v{vT[3]}, s{sT0}, v{vT[2]}
    s_barrier
    ds_write_b32 v{vT[3]}, v{vM[0]}
    ds_write_b32 v{vT[3]}, v{vM[1]} offset:256
    s_xor_b32 s{sT0}, s{sW}, 4
    s_lshl_b32 s{sT0}, s{sT0}, 9
    s_add_u32 s{sT0}, s{sT0}, {XCH}
    v_add_u32 v{vT[3]}, s{sT0}, v{vT[2]}
    s_waitcnt lgkmcnt(0)
    s_barrier
    ds_read_b32 v{vT[4]}, v{vT[3]}
    ds_read_b32 v{vT[5]}, v{vT[3]} offset:256
    s_waitcnt lgkmcnt(0)
    v_max_f32 v{vM[0]}, v{vM[0]}, v{vT[4]}
    v_max_f32 v{vM[1]}, v{vM[1]}, v{vT[5]}
    s_barrier
    """)
    for b in range(2):
        for r in range(16): c.e(f"v_sub_f32 v{NM[b]+r}, 0, v{vM[b]}")
    c.e(f"s_mov_b32 s{sSrc}, s{sSrc0}\ns_mov_b32 s{sSlotW}, 0")
    c.e("\n".join(dma_chunk())); c.e("\n".join(dma_chunk()))
    emit_pass("FB", True)
    c.e(f"s_branch {name}_EPI")
    Vg = Alloc(168, 2, "v")
    gOffW = [Vg.take() for _ in range(5)]; gOffA = Vg.take(); gWA = Vg.take(); gAA = Vg.take(); gOm = Vg.take()
    gT = [Vg.take() for _ in range(6)]
    gact = Vg.take(4, 4); gwf = Vg.take(20, 4); gacc = Vg.take(80, 4); goq = Vg.take(40, 4); gtmp = goq
    sRB, sCG, sKQ, sLB, sKs, sAct = sQG, sKH, sQB, sSrc, sSrc0, sTile
    srdW = Sg.take(4, 4); srdO = Sg.take(4, 4)
    NDOWN = 27; NSTEP = 37; DEFER = 0
    gs = Sg.take(16, 2) if stamps else 0
    gi = [0]
    def gstamp():
        if stamps:
            c.e(f"s_memrealtime s[{gs+2*gi[0]}:{gs+2*gi[0]+1}]\ns_waitcnt lgkmcnt(0)"); gi[0] += 1
    c.label(f"{name}_GW")
    c.e(f"""
    s_sub_u32 s{sKQ}, s{sW}, 8
    s_lshr_b32 s{sT0}, s{sJ}, 2
    s_lshl_b32 s{sRB}, s{sX}, 3
    s_add_u32 s{sRB}, s{sRB}, s{sT0}
    s_and_b32 s{sCG}, s{sJ}, 3
    s_mul_i32 s{sT0}, s{sCG}, 320
    """)
    for i in range(5):
        c.e(f"""
        v_add_u32 v{gT[1]}, {64*i}, v{vL}
        v_mul_u32_u24 v{gT[2]}, 3277, v{gT[1]}
        v_lshrrev_b32 v{gT[2]}, 16, v{gT[2]}
        v_mul_u32_u24 v{gT[3]}, 20, v{gT[2]}
        v_sub_u32 v{gT[3]}, v{gT[1]}, v{gT[3]}
        v_mul_u32_u24 v{gT[2]}, 1280, v{gT[2]}
        v_lshl_add_u32 v{gT[2]}, v{gT[3]}, 4, v{gT[2]}
        v_add_u32 v{gOffW[i]}, s{sT0}, v{gT[2]}
        """)
    c.e(f"""
    v_lshlrev_b32 v{gOffA}, 4, v{vL}
    s_mul_i32 s{sLB}, s{sKQ}, {GWAVE}
    s_add_u32 s{sLB}, s{sLB}, {GRING}
    s_mul_i32 s{sKs}, s{sKQ}, 20480
    s_mul_i32 s{sAct}, s{sRB}, 108
    s_add_u32 s{sAct}, s{sAct}, s{sKQ}
    s_lshl_b32 s{sAct}, s{sAct}, 10
    s_add_u32 s{sAct}, s{sAct}, {HF_OFF}
    s_waitcnt lgkmcnt(0)
    """)
    srd(c, srdWS, sWS, WS_BYTES); srd(c, srdW, sWD, 1728*1280); srd(c, srdO, sOUT, 2048*1280)
    def gdma(n):
        so = (n % 3)*GSLOT; L = []
        for i in range(5):
            L += [f"s_add_u32 m0, s{sLB}, {so + 1024*i}", "s_nop 0", f"buffer_load_dwordx4 v{gOffW[i]}, s[{srdW}:{srdW+3}], s{sKs} offen lds"]
        L += [f"s_add_u32 s{sKs}, s{sKs}, {4*20480}"]
        if n < NDOWN:
            L += [f"s_add_u32 m0, s{sLB}, {so + 5120}", "s_nop 0", f"buffer_load_dwordx4 v{gOffA}, {srd4}, s{sAct} offen lds", f"s_add_u32 s{sAct}, s{sAct}, 4096"]
        return L
    ndma = lambda n: 0 if n >= NDOWN else 6
    c.e(f"""
    v_and_b32 v{gT[0]}, 31, v{vL}
    v_lshlrev_b32 v{gT[1]}, 3, v{gT[0]}
    s_lshl_b32 s{sT0}, s{sRB}, 8
    s_add_u32 s{sT0}, s{sT0}, {G_OFF + 4}
    buffer_load_dword v{gOm}, v{gT[1]}, {srd4}, s{sT0} offen
    """)
    if "TLB" in exp:
        c.e(f"""
        v_min_u32 v{gT[2]}, 3, v{vL}
        v_lshlrev_b32 v{gT[2]}, 20, v{gT[2]}
        s_mov_b32 s{sT0}, {OF_OFF}
        buffer_load_dword v{goq}, v{gT[2]}, {srd4}, s{sT0} offen
        v_min_u32 v{gT[2]}, 2, v{vL}
        v_lshlrev_b32 v{gT[2]}, 20, v{gT[2]}
        buffer_load_dword v{goq+1}, v{gT[2]}, s[{srdO}:{srdO+3}], 0 offen
        """)
    c.e(f"""
    v_and_b32 v{gT[3]}, 15, v{vL}
    v_lshrrev_b32 v{gT[4]}, 2, v{gT[3]}
    v_lshrrev_b32 v{gT[2]}, 5, v{vL}
    v_lshl_add_u32 v{gT[4]}, v{gT[2]}, 2, v{gT[4]}
    v_mul_u32_u24 v{gT[4]}, 320, v{gT[4]}
    v_and_b32 v{gT[3]}, 3, v{gT[3]}
    v_lshl_add_u32 v{gT[4]}, v{gT[3]}, 3, v{gT[4]}
    v_lshrrev_b32 v{gT[3]}, 4, v{vL}
    v_and_b32 v{gT[3]}, 1, v{gT[3]}
    v_lshl_add_u32 v{gT[4]}, v{gT[3]}, 5, v{gT[4]}
    v_add_u32 v{gWA}, s{sLB}, v{gT[4]}
    v_add_u32 v{gAA}, 5120, v{gOffA}
    v_add_u32 v{gAA}, s{sLB}, v{gAA}
    """)
    for r in range(80): c.e(f"v_mov_b32 v{gacc+r}, 0")
    if "PG" in exp: c.e("s_setprio 1")
    c.e("s_barrier")
    c.e("\n".join(gdma(0) + gdma(1)))
    def sloc(n, loc=None):
        return loc if loc is not None else (gWA, (n % 3)*GSLOT)
    def rdW(jb, areg, so):
        return [f"ds_read_b64_tr_b16 {vr(gwf+4*jb,2)}, v{areg} offset:{so + 64*jb}", f"ds_read_b64_tr_b16 {vr(gwf+4*jb+2,2)}, v{areg} offset:{so + 64*jb + 2560}"]
    def step(n, wait, post=None, loc=None):
        areg, so = sloc(n, loc)
        c.e(wait)
        act = gact
        if n < NDOWN: c.e(f"ds_read_b128 {vr(gact,4)}, v{gAA} offset:{so}")
        else: act = goq + 4*(n - NDOWN)
        for jb in range(5): c.e("\n".join(rdW(jb, areg, so)))
        if n + 2 < NDOWN: c.e("\n".join(gdma(n + 2)))
        for jb in range(5):
            c.e(f"s_waitcnt lgkmcnt({8 - 2*jb})")
            c.e(mfma32(gacc+16*jb, gwf+4*jb, act))
        if post: c.e("\n".join(post))
    def wo_steps(waits):
        areg, so = wloc(0)
        for jb in range(5): c.e("\n".join(rdW(jb, areg, so)))
        for i in range(10):
            c.e(f"s_waitcnt vmcnt({waits[i][0]})")
            nxt = wloc(i + 1) if i + 1 < 10 else None
            if nxt is not None and waits[i][1] is not None: pass
            for jb in range(5):
                c.e(f"s_waitcnt lgkmcnt({8 if nxt is not None else 8 - 2*jb})")
                c.e(mfma32(gacc+16*jb, gwf+4*jb, goq + 4*i))
                if nxt is not None:
                    if jb == 0 and waits[i][1] is not None: c.e(f"s_waitcnt vmcnt({waits[i][1]})")
                    c.e("\n".join(rdW(jb, nxt[0], nxt[1])))
            if i < 3: c.e("\n".join(wdma(7 + i)))
            if i == 0: gstamp()
    sched = [3, 4, 3, 4, 3, 4, 3, 3]; n = 0
    assert sum(sched) == NDOWN - DEFER
    gWB = gT[5]; sAB = sOb
    def wloc(i):
        if i < 3: return (gWA, GSLOT*i)
        if i < 7: return (gWB, 5120*(i - 3))
        return (gWA, GSLOT*(i - 7))
    def wdma(i):
        L = []
        base, off = (sLB, GSLOT*i) if i < 3 else ((sAB, 5120*(i - 3)) if i < 7 else (sLB, GSLOT*(i - 7)))
        for k in range(5):
            L += [f"s_add_u32 m0, s{base}, {off + 1024*k}", "s_nop 0", f"buffer_load_dwordx4 v{gOffW[k]}, s[{srdW}:{srdW+3}], s{sKs} offen lds"]
        L += [f"s_add_u32 s{sKs}, s{sKs}, {4*20480}"]
        return L
    for k in range(8):
        for _ in range(sched[k]):
            step(n, f"s_waitcnt vmcnt({ndma(n+1)})"); n += 1
        if k == 7:
            c.e(f"""
            s_mov_b32 s{srdW}, s{sWO}
            s_and_b32 s{srdW+1}, s{sWO+1}, 0xffff
            s_mov_b32 s{srdW+2}, {640*1280}
            s_mul_i32 s{sKs}, s{sKQ}, 20480
            s_mul_i32 s{sAB}, s{sKQ}, 20480
            v_subrev_u32 v{gWB}, s{sLB}, v{gWA}
            v_add_u32 v{gWB}, s{sAB}, v{gWB}
            """)
            for i in range(3): c.e("\n".join(wdma(i)))
        c.e("s_barrier")
    c.e("s_nop 7")
    for r in range(80): c.e(f"v_mul_f32 v{gacc+r}, v{gacc+r}, v{gOm}")
    c.e(f"""
    s_barrier
    v_mov_b32 v{gT[3]}, {FLAG}
    ds_read_b32 v{gT[3]}, v{gT[3]}
    s_waitcnt lgkmcnt(0)
    v_readfirstlane_b32 s{sT1}, v{gT[3]}
    s_nop 3
    s_cmp_eq_u32 s{sT1}, 0
    s_cbranch_scc1 {name}_GNOFB
    s_mov_b32 s{sT0}, {FB_BARRIERS}
    {name}_GFB:
    s_barrier
    s_sub_u32 s{sT0}, s{sT0}, 1
    s_cmp_lg_u32 s{sT0}, 0
    s_cbranch_scc1 {name}_GFB
    {name}_GNOFB:
    s_barrier
    """)
    gstamp()
    for i in range(3, 7): c.e("\n".join(wdma(i)))
    gstamp()
    c.e(f"""
    s_lshr_b32 s{sT0}, s{sRB}, 3
    s_lshl_b32 s{sT0}, s{sT0}, 7
    s_add_u32 s{sT0}, s{sT0}, {CNT_OFF}
    v_mov_b32 v{gT[2]}, 0
    s_mov_b32 s{sT2}, 0
    {name}_POLL:
    buffer_load_dword v{gT[3]}, v{gT[2]}, {srd4}, s{sT0} offen sc1
    s_waitcnt vmcnt(0)
    v_readfirstlane_b32 s{sT1}, v{gT[3]}
    s_add_u32 s{sT2}, s{sT2}, 1
    s_nop 2
    s_cmp_ge_u32 s{sT1}, 32
    s_cbranch_scc1 {name}_GO
    s_sleep 1
    s_cmp_lt_u32 s{sT2}, 0x40000
    s_cbranch_scc1 {name}_POLL
    {name}_GO:
    s_mul_i32 s{sT0}, s{sRB}, 40
    s_add_u32 s{sT0}, s{sT0}, s{sKQ}
    s_lshl_b32 s{sT0}, s{sT0}, 10
    s_add_u32 s{sT0}, s{sT0}, {OF_OFF}
    """)
    gstamp()
    c.e(f"v_lshlrev_b32 v{gT[2]}, 3, v{vL}")
    for i in range(10):
        c.e(f"buffer_load_dwordx2 {vr(goq+4*i,2)}, v{gT[2]}, {srd4}, s{sT0} offen sc1\nbuffer_load_dwordx2 {vr(goq+4*i+2,2)}, v{gT[2]}, {srd4}, s{sT0} offen offset:512 sc1\ns_add_u32 s{sT0}, s{sT0}, 4096")
    waits = [(18, None), (21, None), (24, None), (27, None), (25, None), (23, None), (21, 10), (10, 5), (5, 0), (0, None)]
    wo_steps(waits)
    gstamp()
    own = [0,0,0,1,1,1,2,2,3,3]
    c.e("s_nop 7\ns_nop 3\ns_barrier")
    for kq in range(4):
        c.e(f"s_cmp_eq_u32 s{sKQ}, {kq}\ns_cbranch_scc0 {name}_GX{kq}")
        c.e(f"v_add_u32 v{gT[5]}, {GRING}, v{gOffA}\nv_add_u32 v{gT[4]}, {GRING + 30720}, v{gOffA}")
        cnt = 0
        for p in range(10):
            if own[p] == kq: continue
            slot = kq if kq < own[p] else kq - 1
            off = p*6144 + slot*2048
            a_, o = (gT[5], off) if off < 30720 else (gT[4], off - 30720)
            for h in range(2):
                c.e(f"ds_write_b128 v{a_}, {vr(gacc + 8*p + 4*h, 4)} offset:{o + 1024*h}"); cnt += 1
                if cnt % 8 == 0: c.e("s_waitcnt lgkmcnt(4)")
        c.e(f"""
        v_and_b32 v{gT[0]}, 31, v{vL}
        s_lshl_b32 s{sT0}, s{sRB}, 5
        v_add_u32 v{gT[0]}, s{sT0}, v{gT[0]}
        v_mul_u32_u24 v{gT[0]}, 1280, v{gT[0]}
        v_lshrrev_b32 v{gT[2]}, 5, v{vL}
        v_lshl_add_u32 v{gT[0]}, v{gT[2]}, 4, v{gT[0]}
        s_mul_i32 s{sT0}, s{sCG}, 320
        s_waitcnt lgkmcnt(0)
        s_barrier
        """)
        mine = [p for p in range(10) if own[p] == kq]
        for ip, p in enumerate(mine):
            off = p*6144
            a_, o = (gT[5], off) if off < 30720 else (gT[4], off - 30720)
            t = gtmp + 24 + 4*(ip % 2)
            for h in range(2):
                for sl in range(3): c.e(f"ds_read_b128 {vr(gtmp+12*h+4*sl,4)}, v{a_} offset:{o + 2048*sl + 1024*h}")
            for h in range(2):
                for sl in range(3):
                    c.e(f"s_waitcnt lgkmcnt({5 - 3*h - sl})")
                    for r in range(4): c.e(f"v_add_f32 v{gacc+8*p+4*h+r}, v{gacc+8*p+4*h+r}, v{gtmp+12*h+4*sl+r}")
            for q in range(4): c.e(f"v_cvt_pk_bf16_f32 v{t+q}, v{gacc+8*p+2*q}, v{gacc+8*p+2*q+1}")
            c.e(f"""
            s_nop 1
            v_permlane32_swap_b32 v{t}, v{t+2}
            v_permlane32_swap_b32 v{t+1}, v{t+3}
            s_add_u32 s{sT2}, s{sT0}, {32*p}
            s_nop 0
            buffer_store_dwordx4 {vr(t,4)}, v{gT[0]}, s[{srdO}:{srdO+3}], s{sT2} offen{OM}
            """)
        c.e(f"s_branch {name}_GEND")
        c.label(f"{name}_GX{kq}")
    c.label(f"{name}_GEND")
    if stamps:
        c.e("s_waitcnt vmcnt(0)")
        gstamp()
        c.e(f"""
        s_lshl_b32 s{sT0}, s2, 2
        s_add_u32 s{sT0}, s{sT0}, s{sKQ}
        s_lshl_b32 s{sT0}, s{sT0}, 5
        s_add_u32 s{sT0}, s{sT0}, {STAMP_OFF + 2*65536}
        v_mov_b32 v{gT[2]}, 0
        """)
        for i in range(gi[0]):
            c.e(f"v_mov_b32 v{gT[3]}, s{gs+2*i}\nbuffer_store_dword v{gT[3]}, v{gT[2]}, {srd4}, s{sT0} offen offset:{4*i}\ns_nop 1")
    c.e("s_endpgm")
    c.label(f"{name}_FIN")
    if stamps: c.e("s_waitcnt vmcnt(0)")
    ST.i = 4; ST.stamp(c); ST.stamp(c, real=True)
    if stamps: ST.i = 8
    ST.flush(c, sW, srdWS, vT[2], vT[3], sT0)
    c.e(f"""
    {name}_END:
    s_endpgm
    """)
    def S(kh, unsafe=False, fb=False):
        d = {f"{name}_END": False, f"{name}_LOOP_NODMA": (lambda k: k % 3 == 2), f"{name}_LOOPFB_NODMA": (lambda k: k % 3 == 2), f"{name}_NOSWAP": kh == 0, f"{name}_SAFE": not unsafe,
             f"{name}_FALLBACK": (lambda k: k == 0 and fb), f"{name}_FB_NOSWAP": kh == 0}
        return d
    scen = {"kh0": S(0), "kh1": S(1), "fb": S(1, True, True)}
    for k_ in scen: scen[k_][f"{name}_NPH"] = False
    for k_ in scen: scen[k_][f"{name}_GW"] = False; scen[k_][f"{name}_FIN"] = (k_ == "kh1")
    for kq in range(4):
        d = {f"{name}_END": False, f"{name}_GW": True, f"{name}_GNOFB": kq % 2 == 0, f"{name}_GO": (lambda k: k >= 1), f"{name}_POLL": True}
        for q in range(4): d[f"{name}_GX{q}"] = (q != kq)
        scen[f"g{kq}"] = d
    return c, max(V.hi, Vg.hi), scen, K2_LDS
    return c, V.hi, scen, K2_LDS

if __name__ == "__main__":
    c, nv, scen, lds = gen_k2()
    errs = check(c.lines, scen, "k2")
    print("vgprs", nv, "lds", lds, "lines", len(c.lines))
    for e in errs[:40]: print(e)
```

```python
from common import *
NST = 20
WSLOT = 24576; WRING = 4; UOFF = 12288
XSLOT = 16384; XRING = 3
XBASE = WSLOT*WRING
K1_LDS = XBASE + XSLOT*XRING
def mfma16(d, a, b, cz=None):
    return f"v_mfma_f32_16x16x32_bf16 {vr(d,4)}, {vr(a,4)}, {vr(b,4)}, " + (vr(d,4) if cz is None else str(cz))

def gen_k1(name="k1_kernel", stamps=False, exp="", fused=None):
    c = Code()
    SM = " sc1" if "SC1" in exp else (" sc0 sc1" if "SC01" in exp else ("" if "PLAIN" in exp else (" nt" if "NT" in exp else " sc1")))
    SMQ = SM; SMH = SM
    if "QP" in exp: SMQ = ""
    if "HP" in exp: SMH = ""
    if "QS" in exp: SMQ = " sc1"
    if "HS" in exp: SMH = " sc1"
    V = Alloc(168, 1, "v"); Sg = Alloc(100, 18, "s")
    sAX, sWQ, sGW, sWG, sWU, sWS = 4, 6, 10, 12, 14, 16
    PFG = not any(k in exp for k in ("PF2", "PFB", "PFW", "NOPF"))
    TCH = 1 if "TLB" in exp else 0
    if PFG: exp = exp + "NOPF"
    if 'PF2' not in exp and 'PFB' not in exp and 'NOPF' not in exp: exp = exp + "PFW"
    PF = 0 if 'NOPF' in exp else 3
    PFS = (17, 18) if 'LATE' in exp else ((2, 3) if 'EARLY' in exp else (5, 7))
    sX = Sg.take(); sJ = Sg.take(); sCG = Sg.take(); sRT = Sg.take(); sW = Sg.take(); sTH = Sg.take(); sCQ = Sg.take(); sSub = Sg.take()
    sT0 = Sg.take(); sT1 = Sg.take(); sT2 = Sg.take(); sT3 = Sg.take()
    srdX = Sg.take(4, 4); srdW = Sg.take(4, 4); srdWS = Sg.take(4, 4)
    sMw = Sg.take(); sMx = Sg.take(); sKx = Sg.take(); sKw = Sg.take(); sKwStep = Sg.take()
    sBase = Sg.take(); sHS = Sg.take(); sTS = Sg.take(); sScale = Sg.take()
    sWD = Sg.take(2, 2); srdP = Sg.take(4, 4); sDB = Sg.take(2, 2)
    ST = Stamps(Sg, stamps, 0)
    vL = V.take(); vT = [V.take() for _ in range(8)]
    vOffX = V.take(); vOffW = [V.take(), V.take()]
    vXA = [V.take(), V.take()]; vWA = [V.take() for _ in range(4)]; vWH = [V.take() for _ in range(4)]
    sets = [(V.take(16, 4), V.take(16, 4)) for _ in range(2)]
    acc = V.take(64, 4)
    vPF = V.take(); vPx = V.take(); vPw = V.take()
    vE = sets[0][0]
    aE = [V.take() for _ in range(4)]; aO = [V.take() for _ in range(4)]; aC = [V.take() for _ in range(5)]
    D = lambda fb, tb: acc + 16*fb + 4*tb

    c.e(f"""
    s_cmp_ge_u32 s2, 256
    s_cbranch_scc1 {name}_END
    s_load_dwordx4 s[4:7], s[0:1], {KA_AX}
    s_load_dwordx2 s[10:11], s[0:1], {KA_GW}
    s_load_dwordx4 s[12:15], s[0:1], {KA_WG}
    s_load_dwordx2 s[16:17], s[0:1], {KA_WS}
    s_load_dwordx2 s[8:9], s[0:1], {KA_WO}
    s_load_dwordx2 s[{sWD}:{sWD+1}], s[0:1], {KA_WD}
    """)
    if fused: c.e(f"s_load_dwordx2 s[{sDB}:{sDB+1}], s[0:1], {KA_DBG}")
    c.e(f"""
    v_and_b32 v{vL}, 63, v0
    v_lshrrev_b32 v{vT[0]}, 6, v0
    s_and_b32 s{sX}, s2, 7
    s_lshr_b32 s{sJ}, s2, 3
    v_readfirstlane_b32 s{sW}, v{vT[0]}
    s_and_b32 s{sT0}, s{sJ}, 1
    s_lshr_b32 s{sRT}, s{sJ}, 1
    """)
    if "OLDMAP" in exp:
        c.e(f"s_lshl_b32 s{sCG}, s{sX}, 1\ns_add_u32 s{sCG}, s{sCG}, s{sT0}")
    else:
        c.e(f"""
        s_mul_i32 s{sT1}, s{sT0}, 6
        s_add_u32 s{sT1}, s{sT1}, s{sX}
        s_lshl_b32 s{sCG}, s{sX}, 1
        s_add_u32 s{sCG}, s{sCG}, s{sT0}
        s_cmp_lt_u32 s{sX}, 6
        s_cselect_b32 s{sCG}, s{sT1}, s{sCG}
        """)
    if stamps: c.e('s_waitcnt lgkmcnt(0)\ns_memrealtime s[%d:%d]' % (ST.s, ST.s+1)); ST.i = 1; c.e('s_waitcnt lgkmcnt(0)')
    ST.stamp(c)
    if "TOUCH" in exp:
        c.e("s_waitcnt lgkmcnt(0)\ns_nop 2")
        tbl = [(sAX, 0, 2048*1280), (sAX, 1310720, 2048*1280), (sWQ, 0, 640*3840), (sWQ, 1228800, 640*3840), (sWG, 0, 640*3456), (sWG, 1105920, 640*3456),
               (sWU, 0, 640*3456), (sWU, 1105920, 640*3456), (sWS, QF_OFF, WS_BYTES), (sWS, KV_OFF + 2097152, WS_BYTES), (sWS, HF_OFF + 1048576, WS_BYTES), (sWS, HF_OFF + 4194304, WS_BYTES)]
        for i, (p, off, sz) in enumerate(tbl):
            c.e(f"""
            s_cmp_eq_u32 s{sW}, {i}
            s_cbranch_scc0 {name}_TCH{i}
            s_mov_b32 s{srdWS}, s{p}
            s_and_b32 s{srdWS+1}, s{p+1}, 0xffff
            s_mov_b32 s{srdWS+2}, {sz}
            s_mov_b32 s{srdWS+3}, 0x20000
            v_mov_b32 v{vT[1]}, {off}
            buffer_load_dword v{vPF}, v{vT[1]}, s[{srdWS}:{srdWS+3}], 0 offen
            {name}_TCH{i}:
            """)
    c.e(f"""
    v_lshrrev_b32 v{vT[1]}, 3, v{vL}
    v_lshrrev_b32 v{vT[2]}, 4, v{vL}
    s_lshl_b32 s{sT0}, s{sW}, 2
    v_add_u32 v{vT[2]}, s{sT0}, v{vT[2]}
    v_xor_b32 v{vT[2]}, v{vT[2]}, v{vL}
    v_and_b32 v{vT[2]}, 7, v{vT[2]}
    s_lshl_b32 s{sT0}, s{sRT}, 7
    s_lshl_b32 s{sT1}, s{sW}, 3
    s_add_u32 s{sT0}, s{sT0}, s{sT1}
    v_add_u32 v{vT[1]}, s{sT0}, v{vT[1]}
    v_mul_u32_u24 v{vT[1]}, 1280, v{vT[1]}
    v_lshl_add_u32 v{vOffX}, v{vT[2]}, 4, v{vT[1]}
    s_lshl_b32 s{sMx}, s{sW}, 10
    s_add_u32 s{sMx}, s{sMx}, {XBASE}
    s_and_b32 s{sTH}, s{sW}, 1
    s_lshr_b32 s{sCQ}, s{sW}, 1
    s_mov_b32 s{sSub}, 0
    s_cmp_eq_u32 s{sCG}, 15
    s_cbranch_scc1 {name}_GATE
    s_lshl_b32 s{sMw}, s{sW}, 11
    s_cmp_lt_u32 s{sCG}, 6
    s_cbranch_scc0 {name}_GLU
    """)
    def woff(i, nch, magic, rs):
        return f"""
        v_add_u32 v{vT[1]}, s{sT0}, v{vL}
        v_mul_u32_u24 v{vT[2]}, {magic}, v{vT[1]}
        v_lshrrev_b32 v{vT[2]}, 16, v{vT[2]}
        v_mul_u32_u24 v{vT[3]}, {nch}, v{vT[2]}
        v_sub_u32 v{vT[3]}, v{vT[1]}, v{vT[3]}
        v_lshrrev_b32 v{vT[4]}, 1, v{vT[2]}
        v_and_b32 v{vT[4]}, 4, v{vT[4]}
        v_and_or_b32 v{vT[4]}, v{vT[2]}, 2, v{vT[4]}
        v_xor_b32 v{vT[3]}, v{vT[3]}, v{vT[4]}
        v_mul_u32_u24 v{vT[2]}, {rs}, v{vT[2]}
        v_lshl_add_u32 v{vT[2]}, v{vT[3]}, 4, v{vT[2]}
        v_add_u32 v{vOffW[i]}, s{sT3}, v{vT[2]}
        s_add_u32 s{sT0}, s{sT0}, 64
        """
    c.e(f"""
    s_lshl_b32 s{sT0}, s{sW}, 7
    s_cmp_lt_u32 s{sW}, 8
    s_cbranch_scc1 {name}_QW
    s_add_u32 s{sT0}, s{sW}, 8
    s_lshl_b32 s{sMw}, s{sT0}, 10
    s_lshl_b32 s{sT0}, s{sT0}, 6
    s_and_b32 s{sSub}, s{sCQ}, 1
    s_mov_b32 s{sCQ}, 4
    {name}_QW:
    s_mul_i32 s{sT3}, s{sCG}, 640
    """)
    c.e(woff(0, 40, 1639, 3840)); c.e(woff(1, 40, 1639, 3840))
    c.e(f"s_mov_b32 s{sKwStep}, {32*3840}\ns_waitcnt lgkmcnt(0)")
    srd(c, srdW, sWQ, 640*3840)
    c.e(f"s_branch {name}_DEC")
    c.label(f"{name}_GLU")
    c.e(f"""
    s_cmp_lt_u32 s{sW}, 6
    s_cselect_b32 s{sT1}, 0, 6
    s_sub_u32 s{sT0}, s{sW}, s{sT1}
    s_lshl_b32 s{sT0}, s{sT0}, 7
    s_sub_u32 s{sT3}, s{sCG}, 6
    s_mul_i32 s{sT3}, s{sT3}, 384
    """)
    c.e(woff(0, 24, 2731, 3456)); c.e(woff(1, 24, 2731, 3456))
    c.e(f"""
    s_mov_b32 s{sKwStep}, {32*3456}
    s_waitcnt lgkmcnt(0)
    s_cmp_lt_u32 s{sW}, 6
    s_cselect_b32 s{srdW}, s{sWG}, s{sWU}
    s_cselect_b32 s{srdW+1}, s{sWG+1}, s{sWU+1}
    s_and_b32 s{srdW+1}, s{srdW+1}, 0xffff
    s_mov_b32 s{srdW+2}, {640*3456}
    s_mov_b32 s{srdW+3}, 0x20000
    """)
    c.label(f"{name}_DEC")
    srd(c, srdX, sAX, 2048*1280)
    if PF:
        srd(c, srdP, sAX, 2048*1280)
        c.e(f"v_mov_b32 v{vPx}, 0\nv_mov_b32 v{vPw}, 0")
    c.e(f"s_mov_b32 s{sKw}, 0")
    def qkv_params():
        c.e(f"""
        s_cmp_lt_u32 s{sCG}, 2
        {csel(sHS, QF_HS, KV_HS)}
        {csel(sTS, QF_TS, KV_TS)}
        {csel(sBase, QF_OFF, KV_OFF)}
        {csel(sScale, hexf(LOG2E*20**-0.5), hexf(1.0))}
        s_cmp_lt_u32 s{sCG}, 4
        s_cselect_b32 s{sBase}, s{sBase}, {KV_OFF + 1280}
        """)
    def qk_addr():
        c.e(f"""
        v_and_b32 v{vT[0]}, 15, v{vL}
        v_lshrrev_b32 v{vT[1]}, 4, v{vL}
        s_lshl_b32 s{sT0}, s{sCQ}, 4
        v_add_u32 v{vT[1]}, s{sT0}, v{vT[1]}
        s_mul_i32 s{sT1}, s{sTH}, 2560
        s_mul_i32 s{sT2}, s{sSub}, 1280
        s_add_u32 s{sT1}, s{sT1}, s{sT2}
        """)
        for fb in range(4):
            c.e(f"""
            v_add_u32 v{vT[2]}, {4*fb}, v{vT[1]}
            v_mul_u32_u24 v{vT[3]}, 13108, v{vT[2]}
            v_lshrrev_b32 v{vT[3]}, 16, v{vT[3]}
            v_mul_u32_u24 v{vT[4]}, 5, v{vT[3]}
            v_sub_u32 v{vT[4]}, v{vT[2]}, v{vT[4]}
            v_mul_u32_u24 v{vT[3]}, 5120, v{vT[3]}
            v_add_u32 v{vT[3]}, s{sT1}, v{vT[3]}
            v_lshrrev_b32 v{vT[5]}, 1, v{vT[4]}
            v_lshlrev_b32 v{vT[5]}, 9, v{vT[5]}
            v_and_b32 v{vT[6]}, 1, v{vT[4]}
            v_lshl_add_u32 v{vT[5]}, v{vT[6]}, 3, v{vT[5]}
            v_lshl_add_u32 v{vT[5]}, v{vT[0]}, 4, v{vT[5]}
            v_lshlrev_b32 v{vT[6]}, 3, v{vT[0]}
            v_add_u32 v{vT[6]}, 1024, v{vT[6]}
            v_cmp_eq_u32 vcc, 4, v{vT[4]}
            v_mov_b32 v{vT[7]}, 256
            v_mov_b32 v{vT[2]}, 128
            v_cndmask_b32 v{vT[5]}, v{vT[5]}, v{vT[6]}, vcc
            v_cndmask_b32 v{vT[7]}, v{vT[7]}, v{vT[2]}, vcc
            v_add_u32 v{aE[fb]}, v{vT[3]}, v{vT[5]}
            v_add_u32 v{aO[fb]}, v{aE[fb]}, v{vT[7]}
            """)

    def v_addr():
        c.e(f"""
        v_and_b32 v{vT[0]}, 15, v{vL}
        v_lshrrev_b32 v{vT[1]}, 4, v{vL}
        s_lshl_b32 s{sT0}, s{sCQ}, 6
        v_add_u32 v{vT[0]}, s{sT0}, v{vT[0]}
        v_and_b32 v{vT[2]}, 1, v{vT[1]}
        v_mul_u32_u24 v{vT[2]}, 320, v{vT[2]}
        v_lshrrev_b32 v{vT[1]}, 1, v{vT[1]}
        v_lshl_add_u32 v{vT[1]}, v{vT[1]}, 3, v{vT[2]}
        s_mul_i32 s{sT1}, s{sTH}, 2560
        s_mul_i32 s{sT2}, s{sSub}, 1280
        s_add_u32 s{sT1}, s{sT1}, s{sT2}
        v_add_u32 v{vT[1]}, s{sT1}, v{vT[1]}
        """)
        for fb in range(4):
            c.e(f"""
            v_add_u32 v{vT[2]}, {16*fb}, v{vT[0]}
            v_mul_u32_u24 v{vT[3]}, 3277, v{vT[2]}
            v_lshrrev_b32 v{vT[3]}, 16, v{vT[3]}
            v_mul_u32_u24 v{vT[4]}, 20, v{vT[3]}
            v_sub_u32 v{vT[4]}, v{vT[2]}, v{vT[4]}
            v_mul_u32_u24 v{vT[3]}, 5120, v{vT[3]}
            v_lshl_add_u32 v{vT[3]}, v{vT[4]}, 4, v{vT[3]}
            v_add_u32 v{aE[fb]}, v{vT[3]}, v{vT[1]}
            """)

    def c_addr():
        for k in range(5):
            c.e(f"""
            v_add_u32 v{vT[1]}, {64*k}, v{vL}
            v_mul_u32_u24 v{vT[2]}, 820, v{vT[1]}
            v_lshrrev_b32 v{vT[2]}, 16, v{vT[2]}
            v_mul_u32_u24 v{vT[3]}, 80, v{vT[2]}
            v_sub_u32 v{vT[3]}, v{vT[1]}, v{vT[3]}
            v_mul_lo_u32 v{vT[2]}, v{vT[2]}, s{sTS}
            v_lshl_add_u32 v{aC[k]}, v{vT[3]}, 4, v{vT[2]}
            """)

    def pf_setup(glu):
        if not PF or "PFW" in exp: return
        c.e(f"""
        s_sub_u32 s{sT0}, s{sW}, 8
        s_lshl_b32 s{sT1}, s{sJ}, 6
        s_lshl_b32 s{sT2}, s{sT0}, 4
        s_add_u32 s{sT1}, s{sT1}, s{sT2}
        v_and_b32 v{vT[1]}, 15, v{vL}
        v_add_u32 v{vT[1]}, s{sT1}, v{vT[1]}
        v_mul_u32_u24 v{vPx}, 1280, v{vT[1]}
        """)
        if glu:
            c.e(f"""
            s_cmp_lt_u32 s{sT0}, 2
            s_cselect_b32 s{srdP}, s{sWG}, s{sWU}
            s_cselect_b32 s{srdP+1}, s{sWG+1}, s{sWU+1}
            s_and_b32 s{srdP+1}, s{srdP+1}, 0xffff
            s_mov_b32 s{srdP+2}, {640*3456}
            s_mov_b32 s{srdP+3}, 0x20000
            v_mul_u32_u24 v{vT[2]}, 21846, v{vL}
            v_lshrrev_b32 v{vT[2]}, 16, v{vT[2]}
            v_mul_u32_u24 v{vT[3]}, 3, v{vT[2]}
            v_sub_u32 v{vT[3]}, v{vL}, v{vT[3]}
            s_sub_u32 s{sT1}, s{sCG}, 6
            s_mul_i32 s{sT1}, s{sT1}, 384
            v_lshl_add_u32 v{vT[3]}, v{vT[3]}, 7, s{sT1}
            s_and_b32 s{sT1}, s{sT0}, 1
            """)
            c.e(f"""
            s_mul_i32 s{sT2}, s{sT1}, 5
            s_mul_i32 s{sT3}, s{sRT}, 10
            s_add_u32 s{sT2}, s{sT2}, s{sT3}
            s_add_u32 s{sT2}, s{sT2}, 96
            v_min_u32 v{vT[4]}, 4, v{vT[2]}
            v_add_u32 v{vT[4]}, s{sT2}, v{vT[4]}
            v_mul_u32_u24 v{vT[4]}, 3456, v{vT[4]}
            v_add_u32 v{vT[4]}, v{vT[4]}, v{vT[3]}
            s_lshl_b32 s{sT2}, s{sT1}, 1
            s_lshl_b32 s{sT3}, s{sRT}, 2
            s_add_u32 s{sT2}, s{sT2}, s{sT3}
            v_min_u32 v{vT[5]}, 1, v{vT[2]}
            v_add_u32 v{vT[5]}, s{sT2}, v{vT[5]}
            v_mul_u32_u24 v{vT[5]}, 3456, v{vT[5]}
            v_add_u32 v{vPw}, v{vT[5]}, v{vT[3]}
            """)
        else:
            c.e(f"""
            s_mov_b32 s{srdP}, s{sWQ}
            s_and_b32 s{srdP+1}, s{sWQ+1}, 0xffff
            s_mov_b32 s{srdP+2}, {640*3840}
            s_mov_b32 s{srdP+3}, 0x20000
            v_mul_u32_u24 v{vT[2]}, 13108, v{vL}
            v_lshrrev_b32 v{vT[2]}, 16, v{vT[2]}
            v_mul_u32_u24 v{vT[3]}, 5, v{vT[2]}
            v_sub_u32 v{vT[3]}, v{vL}, v{vT[3]}
            s_mul_i32 s{sT1}, s{sCG}, 640
            v_lshl_add_u32 v{vT[3]}, v{vT[3]}, 7, s{sT1}
            s_mul_i32 s{sT2}, s{sT0}, 3
            s_mul_i32 s{sT3}, s{sRT}, 10
            s_add_u32 s{sT2}, s{sT2}, s{sT3}
            s_add_u32 s{sT2}, s{sT2}, 96
            v_min_u32 v{vT[4]}, 2, v{vT[2]}
            v_add_u32 v{vT[4]}, s{sT2}, v{vT[4]}
            v_mul_u32_u24 v{vT[4]}, 3840, v{vT[4]}
            v_add_u32 v{vT[4]}, v{vT[4]}, v{vT[3]}
            s_lshl_b32 s{sT2}, s{sRT}, 2
            s_add_u32 s{sT2}, s{sT2}, s{sT0}
            s_mul_i32 s{sT2}, s{sT2}, 3840
            v_mul_u32_u24 v{vT[5]}, 13108, v{vL}
            v_lshrrev_b32 v{vT[5]}, 16, v{vT[5]}
            v_mul_u32_u24 v{vT[5]}, 5, v{vT[5]}
            v_sub_u32 v{vT[5]}, v{vL}, v{vT[5]}
            v_lshl_add_u32 v{vT[5]}, v{vT[5]}, 7, s{sT2}
            s_mul_i32 s{sT1}, s{sCG}, 640
            v_add_u32 v{vPw}, s{sT1}, v{vT[5]}
            """)
        if "PFW" in exp: return
        c.e(f"""
        s_movk_i32 s{sT1}, 256
        buffer_load_dword v{vPF}, v{vPx}, s[{srdX}:{srdX+3}], s{sT1} offen
        buffer_load_dword v{vPF}, v{vPx}, s[{srdX}:{srdX+3}], s{sT1} offen offset:128
        buffer_load_dword v{vPF}, v{vT[4]}, s[{srdP}:{srdP+3}], 0 offen
        """)
    def tlb_touch():
        if not TCH: return
        srd(c, srdWS, sWS, WS_BYTES)
        c.e(f"v_min_u32 v{vT[1]}, 15, v{vL}\nv_lshlrev_b32 v{vT[1]}, 20, v{vT[1]}\nbuffer_load_dword v{vPF}, v{vT[1]}, s[{srdWS}:{srdWS+3}], 0 offen")
    def pf_n(st):
        if not PF: return 0
        if "PFW" in exp: return 1 if st in PFS else 0
        if "PFB" in exp: return 1 if st in (13, 15) else 0
        return 1 if ((st % 2 == 0 and 0 <= st <= 10) or (st % 2 == 1 and st <= 11) or st in (13, 15)) else 0
    def pf_ops(st, rs):
        if not pf_n(st): return []
        if st in (PFS if "PFW" in exp else (13, 15)):
            p, nl, sz = (sWD, 17, 1728*1280) if st in (PFS[0], 13) else (8, 7, 640*1280)
            return [f"s_mov_b32 s{srdP}, s{p}", f"s_and_b32 s{srdP+1}, s{p+1}, 0xffff", f"s_mov_b32 s{srdP+2}, {sz}",
                    f"s_lshl_b32 s{sT2}, s2, 2", f"s_add_u32 s{sT2}, s{sT2}, s{sW}", f"s_sub_u32 s{sT2}, s{sT2}, 8", f"s_mul_i32 s{sT2}, s{sT2}, {nl*128}",
                    f"v_min_u32 v{vPw}, {nl-1}, v{vL}", f"v_lshlrev_b32 v{vPw}, 7, v{vPw}",
                    f"buffer_load_dword v{vPF}, v{vPw}, s[{srdP}:{srdP+3}], s{sT2} offen"]
        if st % 2 == 0:
            return [f"s_movk_i32 s{sT2}, {128*(st//2 + 4)}", f"buffer_load_dword v{vPF}, v{vPx}, s[{srdX}:{srdX+3}], s{sT2} offen"]
        rsz = 3456 if rs == 384 else 3840
        return [f"s_mov_b32 s{sT2}, {32*(st + 7)*rsz}", f"buffer_load_dword v{vPF}, v{vPw}, s[{srdP}:{srdP+3}], s{sT2} offen"]
    def dma_w(i, st):
        if "XD" in exp and st >= 3: return []
        return [f"s_add_u32 m0, s{sMw}, {(st % WRING)*WSLOT + 1024*i}", "s_nop 0", f"buffer_load_dwordx4 v{vOffW[i]}, s[{srdW}:{srdW+3}], s{sKw} offen lds"]
    def dma_x(u):
        if "XD" in exp and u >= 4: return []
        m, hf = u >> 1, u & 1
        return [f"s_add_u32 m0, s{sMx}, {(m % XRING)*XSLOT + hf*8192}", f"s_mov_b32 s{sKx}, {m*128 + hf*64*1280}", f"buffer_load_dwordx4 v{vOffX}, s[{srdX}:{srdX+3}], s{sKx} offen lds"]
    advw = [f"s_add_u32 s{sKw}, s{sKw}, s{sKwStep}"]
    c.e(f"""
    s_cmp_lt_u32 s{sW}, 8
    s_cbranch_scc0 {name}_PRO_NX
    """)
    if "SWAP" in exp:
        c.e(f"s_and_b32 s{sT0}, s{sRT}, 1\ns_cmp_eq_u32 s{sT0}, 1\ns_cbranch_scc1 {name}_SWP")
        c.e("\n".join(dma_x(0) + dma_w(0, 0) + dma_w(1, 0) + advw + dma_x(1)))
        c.e(f"s_branch {name}_SWD\n{name}_SWP:")
        c.e("\n".join(dma_w(0, 0) + dma_w(1, 0) + advw + dma_x(0) + dma_x(1)))
        c.label(f"{name}_SWD")
    else:
        c.e("\n".join(dma_x(0) + dma_w(0, 0) + dma_w(1, 0) + advw + dma_x(1)))
    c.e("\n".join(dma_w(0, 1) + dma_w(1, 1) + advw + dma_x(2) + dma_w(0, 2) + dma_w(1, 2) + advw + dma_x(3)))
    c.e(f"s_branch {name}_PRO_D")
    c.label(f"{name}_PRO_NX")
    c.e(f"s_cmp_lt_u32 s{sCG}, 6\ns_cbranch_scc1 {name}_PRO_H")
    for st in range(3): c.e("\n".join(dma_w(0, st) + dma_w(1, st) + advw))
    pf_setup(True); tlb_touch()
    c.e(f"s_branch {name}_PRO_D")
    c.label(f"{name}_PRO_H")
    for st in range(3): c.e("\n".join(dma_w(0, st) + advw))
    pf_setup(False); tlb_touch()
    c.label(f"{name}_PRO_D")
    c.e(f"""
    v_and_b32 v{vT[1]}, 15, v{vL}
    v_lshrrev_b32 v{vT[2]}, 4, v{vL}
    v_lshrrev_b32 v{vT[3]}, 1, v{vT[1]}
    v_xor_b32 v{vT[3]}, v{vT[3]}, v{vT[2]}
    v_lshlrev_b32 v{vT[3]}, 4, v{vT[3]}
    v_lshl_add_u32 v{vT[3]}, v{vT[1]}, 7, v{vT[3]}
    s_lshl_b32 s{sT0}, s{sTH}, 13
    s_lshl_b32 s{sT1}, s{sSub}, 12
    s_add_u32 s{sT0}, s{sT0}, s{sT1}
    s_add_u32 s{sT0}, s{sT0}, {XBASE}
    v_add_u32 v{vXA[0]}, s{sT0}, v{vT[3]}
    v_xor_b32 v{vXA[1]}, 64, v{vXA[0]}
    v_lshrrev_b32 v{vT[3]}, 2, v{vT[1]}
    v_lshl_add_u32 v{vT[4]}, v{vT[2]}, 3, v{vT[3]}
    v_lshrrev_b32 v{vT[3]}, 1, v{vT[3]}
    v_and_b32 v{vT[5]}, 1, v{vT[2]}
    v_lshl_or_b32 v{vT[3]}, v{vT[5]}, 1, v{vT[3]}
    v_and_b32 v{vT[5]}, 3, v{vT[1]}
    v_lshlrev_b32 v{vT[5]}, 3, v{vT[5]}
    s_cmp_lt_u32 s{sCG}, 6
    s_cbranch_scc0 {name}_RA_GLU
    v_mul_u32_u24 v{vT[4]}, 640, v{vT[4]}
    v_add_u32 v{vT[4]}, v{vT[4]}, v{vT[5]}
    s_lshl_b32 s{sT0}, s{sCQ}, 7
    v_add_u32 v{vT[4]}, s{sT0}, v{vT[4]}
    """)
    for fb in range(4):
        c.e(f"v_xor_b32 v{vT[6]}, {fb}, v{vT[3]}\nv_lshl_add_u32 v{vWA[fb]}, v{vT[6]}, 5, v{vT[4]}")
    c.e(f"s_branch {name}_RA")
    c.label(f"{name}_RA_GLU")
    c.e(f"""
    v_mul_u32_u24 v{vT[4]}, 384, v{vT[4]}
    v_add_u32 v{vT[4]}, v{vT[4]}, v{vT[5]}
    """)
    for f in range(2):
        c.e(f"""
        s_lshl_b32 s{sT0}, s{sCQ}, 1
        s_add_u32 s{sT0}, s{sT0}, {f}
        s_and_b32 s{sT1}, s{sT0}, 3
        s_andn2_b32 s{sT0}, s{sT0}, 3
        s_lshl_b32 s{sT0}, s{sT0}, 5
        v_xor_b32 v{vT[6]}, s{sT1}, v{vT[3]}
        v_lshl_add_u32 v{vT[6]}, v{vT[6]}, 5, v{vT[4]}
        v_add_u32 v{vWA[f]}, s{sT0}, v{vT[6]}
        v_add_u32 v{vWA[2+f]}, {UOFF}, v{vWA[f]}
        """)
    c.label(f"{name}_RA")
    for fb in range(4): c.e(f"v_add_u32 v{vWH[fb]}, {2*WSLOT}, v{vWA[fb]}")
    srd(c, srdWS, sWS, WS_BYTES)
    for r_ in aE + aO + aC: c.e(f"v_mov_b32 v{r_}, 0")
    c.e(f"s_cmp_lt_u32 s{sCG}, 6\ns_cbranch_scc0 {name}_NOEA")
    qkv_params(); c_addr()
    c.e(f"s_cmp_lt_u32 s{sCG}, 4\ns_cbranch_scc0 {name}_EAV")
    qk_addr()
    c.e(f"s_branch {name}_NOEA")
    c.label(f"{name}_EAV")
    v_addr()
    c.label(f"{name}_NOEA")
    ST.stamp(c)
    c.e(f"""
    s_cmp_lt_u32 s{sW}, 8
    s_cselect_b32 s{sT1}, 0, 1
    s_cmp_lt_u32 s{sCG}, 4
    s_cselect_b32 s{sT0}, 0, 2
    s_cmp_lt_u32 s{sCG}, 6
    s_cselect_b32 s{sT0}, s{sT0}, 4
    s_add_u32 s{sT0}, s{sT0}, s{sT1}
    """)
    variants = [("QK", 1, 4, 2), ("QK", 0, 2, 1), ("V", 1, 4, 2), ("V", 0, 2, 1), ("GLU", 1, 4, 2), ("GLU", 0, 4, 2)]
    for i in range(1, 6): c.e(f"s_cmp_eq_u32 s{sT0}, {i}\ns_cbranch_scc1 {name}_VAR{i}")
    def reads(st, rs, ntb=4):
        xs, ws_ = sets[st % 2]; p = st & 1; xslot = (st >> 1) % XRING; wsl = st % WRING
        base = vWA if wsl < 2 else vWH; so = (wsl & 1)*WSLOT
        L = []
        if "XR" in exp and st > 1: return ["s_nop 0"]*(8 + ntb)
        for i in range(4):
            L.append(f"ds_read_b64_tr_b16 {vr(ws_+4*i,2)}, v{base[i]} offset:{so}")
            L.append(f"ds_read_b64_tr_b16 {vr(ws_+4*i+2,2)}, v{base[i]} offset:{so + 4*rs}")
            if i < ntb: L.append(f"ds_read_b128 {vr(xs+4*i,4)}, v{vXA[p]} offset:{xslot*XSLOT + 2048*i}")
        return L
    def mfmas(st, role, ntb=4):
        if "XM" in exp and st > 0: return ["s_nop 0"]*(4*ntb)
        xs, ws_ = sets[st % 2]; L = []
        for fb in range(4):
            for tb in range(ntb):
                cz = 0 if st == 0 else None
                L.append(mfma16(D(fb, tb), ws_+4*fb, xs+4*tb, cz) if role != "V" else mfma16(D(fb, tb), xs+4*tb, ws_+4*fb, cz))
        return L
    for vi, (role, nx, ntb, nw) in enumerate(variants):
        if vi: c.label(f"{name}_VAR{vi}")
        rs = 384 if role == "GLU" else 640
        def cnt(x): return ((nw if x + 3 < NST else 0) + (nx if x + 4 < NST else 0))
        def wd(st): return sum([dma_w(i, st) for i in range(nw)], [])
        def allowed(st):
            if "XD" in exp: return 0
            n = cnt(st-2) + cnt(st-1)
            if nx == 0: n += sum(pf_n(x) for x in range(max(st-3, 0), st)) + (PF if (st <= 2 and 'PFW' not in exp) else 0) + (TCH if st <= 2 else 0)
            return n
        pfo = (lambda st: pf_ops(st, rs)) if nx == 0 else (lambda st: [])
        for st in range(NST + 1):
            rd = reads(st, rs, ntb) if st < NST else []
            if st == 0:
                c.e(f"s_waitcnt vmcnt({allowed(0)})\ns_barrier")
                c.e("\n".join(rd))
                c.e("\n".join(wd(3) + advw + (dma_x(4) if nx else []) + pfo(0)))
                continue
            m = mfmas(st - 1, role, ntb)
            nm = len(m)
            g = {}
            pre = [f"s_waitcnt vmcnt({allowed(st)})", "s_barrier"] if st < NST else []
            if ntb == 4:
                g[0] = pre + rd[0:2]
                k = 2
                for i in range(1, 11):
                    g[i] = rd[k:k+1]; k += 1
                if st < NST:
                    if st + 3 < NST:
                        g[11] = dma_w(0, st+3); g[13] = dma_w(1, st+3) + advw
                    if nx and st + 4 < NST: g[15] = dma_x(st+4)
                    g[15] = g.get(15, []) + pfo(st)
            else:
                g[0] = pre + rd[0:2]
                for i in range(1, 5): g[i] = rd[2*i:2*i+2]
                if st < NST and st + 3 < NST: g[6] = dma_w(0, st+3) + advw
                if st < NST: g[7] = pfo(st)
            c.e("s_waitcnt lgkmcnt(0)")
            out = []
            for i, x in enumerate(m):
                out.append(x); out += g.get(i, [])
            c.e("\n".join(out))
            if stamps and st in (3, 15):
                r = ST.s + 2*(5 if st == 3 else 6); c.e(f"{'s_memrealtime' if Stamps.RT else 's_memtime'} s[{r}:{r+1}]")
        c.e(f"s_branch {name}_EPI_{role}" + ("H" if ntb == 2 else ""))
    c.label(f"{name}_EPI_GLU")
    ST.i = 3; ST.stamp(c, wait=True)
    c.e(f"""
    s_lshl_b32 s{sT0}, s{sRT}, 2
    s_lshl_b32 s{sT1}, s{sTH}, 1
    s_add_u32 s{sT0}, s{sT0}, s{sT1}
    s_mul_i32 s{sBase}, s{sT0}, 108
    s_sub_u32 s{sT1}, s{sCG}, 6
    s_mul_i32 s{sT1}, s{sT1}, 12
    s_add_u32 s{sBase}, s{sBase}, s{sT1}
    s_lshl_b32 s{sT1}, s{sCQ}, 1
    s_add_u32 s{sBase}, s{sBase}, s{sT1}
    s_lshl_b32 s{sBase}, s{sBase}, 10
    s_add_u32 s{sBase}, s{sBase}, {HF_OFF}
    v_and_b32 v{vT[1]}, 15, v{vL}
    v_lshrrev_b32 v{vT[2]}, 4, v{vL}
    v_and_b32 v{vT[3]}, 1, v{vT[2]}
    v_lshlrev_b32 v{vT[3]}, 9, v{vT[3]}
    v_lshl_add_u32 v{vT[3]}, v{vT[1]}, 4, v{vT[3]}
    v_lshrrev_b32 v{vT[2]}, 1, v{vT[2]}
    v_lshl_add_u32 v{vT[0]}, v{vT[2]}, 3, v{vT[3]}
    s_mov_b32 s{sT1}, {hexf(-LOG2E)}
    s_add_u32 s{sT2}, s{sBase}, {108*1024}
    """)
    for tb in range(4):
        for f in range(2):
            g_, u_ = D(f, tb), D(2+f, tb)
            for r in range(4): c.e(f"v_mul_f32 v{g_+r}, s{sT1}, v{g_+r}")
        for f in range(2):
            for r in range(4): c.e(f"v_exp_f32 v{D(f,tb)+r}, v{D(f,tb)+r}")
        for f in range(2):
            for r in range(4): c.e(f"v_add_f32 v{D(f,tb)+r}, 1.0, v{D(f,tb)+r}")
        for f in range(2):
            for r in range(4): c.e(f"v_rcp_f32 v{D(f,tb)+r}, v{D(f,tb)+r}")
        for f in range(2):
            for r in range(4): c.e(f"v_mul_f32 v{D(f,tb)+r}, v{D(f,tb)+r}, v{D(2+f,tb)+r}")
        e = vE + 4*(tb % 4)
        for f in range(2):
            c.e(f"v_cvt_pk_bf16_f32 v{e+2*f}, v{D(f,tb)}, v{D(f,tb)+1}\nv_cvt_pk_bf16_f32 v{e+2*f+1}, v{D(f,tb)+2}, v{D(f,tb)+3}")
        for f in range(2):
            c.e(f"buffer_store_dwordx2 {vr(e+2*f,2)}, v{vT[0]}, s[{srdWS}:{srdWS+3}], s{sBase if tb < 2 else sT2} offen offset:{1024*f + 256*(tb & 1)}{SMH}")
    c.e(f"s_branch {name}_FIN")
    t2 = vE + 8
    for ntb in (4, 2):
        sfx = "" if ntb == 4 else "H"
        c.label(f"{name}_EPI_QK{sfx}")
        ST.i = 3; ST.stamp(c, wait=True)
        c.e("s_barrier")
        c.e(f"s_cmp_lt_u32 s{sCG}, 2\ns_cbranch_scc0 {name}_NOSCL{sfx}")
        if ntb == 2: c.e("s_nop 3")
        for fb in range(4):
            for tb in range(ntb):
                for r in range(4): c.e(f"v_mul_f32 v{D(fb,tb)+r}, s{sScale}, v{D(fb,tb)+r}")
        c.label(f"{name}_NOSCL{sfx}")
        if ntb == 2: c.e("s_nop 3")
        for fb in range(4):
            for tb in range(ntb):
                d = D(fb, tb)
                e = t2 + 2*((4*fb + tb) % 8)
                c.e(f"v_cvt_pk_bf16_f32 v{e}, v{d}, v{d+1}\nv_cvt_pk_bf16_f32 v{e+1}, v{d+2}, v{d+3}")
                c.e(f"ds_write_b64 v{aE[fb] if tb % 2 == 0 else aO[fb]}, {vr(e,2)} offset:{1280*(tb >> 1)}")
            c.e("s_waitcnt lgkmcnt(4)")
        c.e(f"s_branch {name}_COPY")
        c.label(f"{name}_EPI_V{sfx}")
        ST.i = 3; ST.stamp(c, wait=True)
        c.e("s_barrier")
        if ntb == 2: c.e("s_nop 5")
        for fb in range(4):
            for tb in range(ntb):
                d = D(fb, tb); e = t2 + 2*((4*fb + tb) % 8)
                c.e(f"v_cvt_pk_bf16_f32 v{e}, v{d}, v{d+1}\nv_cvt_pk_bf16_f32 v{e+1}, v{d+2}, v{d+3}")
                c.e(f"ds_write_b64 v{aE[fb]}, {vr(e,2)} offset:{1280*(tb >> 1) + 640*(tb & 1)}")
            c.e("s_waitcnt lgkmcnt(4)")
        c.e(f"s_branch {name}_COPY")
    c.label(f"{name}_COPY")
    c.e(f"""
    s_lshl_b32 s{sT0}, s{sRT}, 2
    s_mul_i32 s{sT0}, s{sT0}, s{sTS}
    s_add_u32 s{sBase}, s{sBase}, s{sT0}
    s_and_b32 s{sT0}, s{sCG}, 1
    s_lshl_b32 s{sT0}, s{sT0}, 4
    s_add_u32 s{sT0}, s{sT0}, s{sW}
    s_mul_i32 s{sT0}, s{sT0}, s{sHS}
    s_add_u32 s{sBase}, s{sBase}, s{sT0}
    s_mul_i32 s{sT1}, s{sW}, 5120
    v_lshl_add_u32 v{vT[0]}, v{vL}, 4, s{sT1}
    """)
    c.e("s_waitcnt lgkmcnt(0)\ns_barrier")
    c.label(f"{name}_CPL")
    for k in range(5): c.e(f"ds_read_b128 {vr(acc+4*k,4)}, v{vT[0]} offset:{1024*k}")
    for k in range(5):
        c.e(f"s_waitcnt lgkmcnt({4-k})")
        c.e(f"buffer_store_dwordx4 {vr(acc+4*k,4)}, v{aC[k]}, s[{srdWS}:{srdWS+3}], s{sBase} offen{SMQ}")
    c.e(f"""
    s_add_u32 s{sW}, s{sW}, 12
    s_cmp_lt_u32 s{sW}, 16
    s_cbranch_scc0 {name}_CPD
    s_mul_i32 s{sT0}, s{sHS}, 12
    s_add_u32 s{sBase}, s{sBase}, s{sT0}
    v_add_u32 v{vT[0]}, {12*5120}, v{vT[0]}
    s_branch {name}_CPL
    {name}_CPD:
    s_sub_u32 s{sW}, s{sW}, 12
    s_cmp_ge_u32 s{sW}, 12
    s_cselect_b32 s{sT0}, 12, 0
    s_sub_u32 s{sW}, s{sW}, s{sT0}
    s_branch {name}_FIN
    """)
    c.label(f"{name}_GATE")
    if PFG:
        c.e(f"s_cmp_ge_u32 s{sW}, 8\ns_cbranch_scc0 {name}_GATE2\ns_waitcnt lgkmcnt(0)")
        c.e(f"""
        s_lshl_b32 s{sT0}, s{sRT}, 2
        s_add_u32 s{sT0}, s{sT0}, s{sW}
        s_sub_u32 s{sT0}, s{sT0}, 8
        """)
        for (p, nl, per, sz) in ((sWD, 54, 5, 1728*1280), (8, 50, 2, 640*1280)):
            srd(c, srdP, p, sz)
            c.e(f"s_mul_i32 s{sT1}, s{sT0}, {nl*per*128}\nv_min_u32 v{vT[1]}, {nl-1}, v{vL}\nv_lshlrev_b32 v{vT[1]}, 7, v{vT[1]}")
            for i in range(per):
                c.e(f"buffer_load_dword v{vPF}, v{vT[1]}, s[{srdP}:{srdP+3}], s{sT1} offen\ns_add_u32 s{sT1}, s{sT1}, {nl*128}")
        if fused:
            c.e(f"s_cmp_eq_u32 s{sW}, 8\ns_cbranch_scc0 {name}_FIN")
            srd(c, srdWS, sWS, WS_BYTES); srd(c, srdP, sDB, 256)
            c.e(f"""
            s_mul_i32 s{sT0}, s{sRT}, {3*128}
            s_add_u32 s{sT0}, s{sT0}, {CNT_OFF}
            v_min_u32 v{vT[1]}, 2, v{vL}
            v_lshlrev_b32 v{vT[1]}, 7, v{vT[1]}
            v_mov_b32 v{vT[2]}, 0
            v_mov_b32 v{vT[3]}, 1
            s_mov_b64 exec, 7
            buffer_store_dword v{vT[2]}, v{vT[1]}, s[{srdWS}:{srdWS+3}], s{sT0} offen sc1
            s_waitcnt vmcnt(0)
            s_mov_b64 exec, 1
            buffer_atomic_add v{vT[3]}, v{vT[2]}, s[{srdP}:{srdP+3}], 0 offen
            s_mov_b64 exec, -1
            s_branch {name}_FIN
            """)
            c.e(f"{name}_GATE2:\ns_waitcnt lgkmcnt(0)")
        else:
            c.e(f"s_endpgm\n{name}_GATE2:\ns_waitcnt lgkmcnt(0)")
    else:
        c.e(f"s_cmp_ge_u32 s{sW}, 8\ns_cbranch_scc1 {name}_END\ns_waitcnt lgkmcnt(0)")
    srd(c, srdX, sAX, 2048*1280); srd(c, srdW, sGW, 1280); srd(c, srdWS, sWS, WS_BYTES)
    if not fused:
        c.e(f"""
        s_or_b32 s{sT0}, s{sRT}, s{sW}
        s_cmp_eq_u32 s{sT0}, 0
        s_cbranch_scc0 {name}_NOZ
        v_lshlrev_b32 v{vT[5]}, 7, v{vL}
        v_mov_b32 v{vT[4]}, 0
        s_mov_b32 s{sT0}, {CNT_OFF}
        s_mov_b64 exec, 0xff
        buffer_store_dword v{vT[4]}, v{vT[5]}, s[{srdWS}:{srdWS+3}], s{sT0} offen
        s_mov_b64 exec, -1
        {name}_NOZ:
        """)
    vGw = sets[0][0]; vGx = sets[0][0] + 8
    c.e(f"""
    v_lshlrev_b32 v{vT[5]}, 2, v{vL}
    s_lshl_b32 s{sT0}, s{sRT}, 7
    s_lshl_b32 s{sT1}, s{sW}, 4
    s_add_u32 s{sBase}, s{sT0}, s{sT1}
    s_mul_i32 s{sT1}, s{sBase}, 1280
    """)
    for i in range(5): c.e(f"buffer_load_dword v{vGw+i}, v{vT[5]}, s[{srdW}:{srdW+3}], 0 offen offset:{256*i}")
    NB_ = 8
    for bt in range(2):
        for rr in range(NB_):
            for i in range(5): c.e(f"buffer_load_dword v{vGx+5*rr+i}, v{vT[5]}, s[{srdX}:{srdX+3}], s{sT1} offen offset:{256*i}")
            c.e(f"s_add_u32 s{sT1}, s{sT1}, 1280")
        for rr in range(NB_):
            c.e(f"s_waitcnt vmcnt({5*(NB_-1-rr) + (rr if True else 0)})")
            for i in range(5):
                c.e(f"""
                v_lshlrev_b32 v{vT[0]}, 16, v{vGx+5*rr+i}
                v_and_b32 v{vT[1]}, 0xffff0000, v{vGx+5*rr+i}
                v_lshlrev_b32 v{vT[2]}, 16, v{vGw+i}
                v_and_b32 v{vT[3]}, 0xffff0000, v{vGw+i}
                v_mul_f32 v{vT[0]}, v{vT[0]}, v{vT[2]}
                v_mul_f32 v{vT[1]}, v{vT[1]}, v{vT[3]}
                v_cvt_pk_bf16_f32 v{vT[0]}, v{vT[0]}, v{vT[1]}
                v_lshlrev_b32 v{vT[2]}, 16, v{vT[0]}
                v_and_b32 v{vT[3]}, 0xffff0000, v{vT[0]}
                """)
                if i == 0: c.e(f"v_add_f32 v{vT[4]}, v{vT[2]}, v{vT[3]}")
                else: c.e(f"v_add_f32 v{vT[2]}, v{vT[2]}, v{vT[3]}\nv_add_f32 v{vT[4]}, v{vT[4]}, v{vT[2]}")
            for sh in ("row_shr:1", "row_shr:2", "row_shr:4", "row_shr:8"):
                c.e(f"s_nop 1\nv_add_f32_dpp v{vT[4]}, v{vT[4]}, v{vT[4]} {sh} row_mask:0xf bank_mask:0xf bound_ctrl:0")
            c.e(f"""
            s_nop 1
            v_readlane_b32 s{sT0}, v{vT[4]}, 15
            v_readlane_b32 s{sT2}, v{vT[4]}, 31
            v_readlane_b32 s{sT3}, v{vT[4]}, 47
            v_readlane_b32 s{sHS}, v{vT[4]}, 63
            s_nop 1
            v_mov_b32 v{vT[0]}, s{sT0}
            v_add_f32 v{vT[0]}, s{sT2}, v{vT[0]}
            v_add_f32 v{vT[0]}, s{sT3}, v{vT[0]}
            v_add_f32 v{vT[0]}, s{sHS}, v{vT[0]}
            v_cvt_pk_bf16_f32 v{vT[0]}, v{vT[0]}, v{vT[0]}
            v_lshlrev_b32 v{vT[0]}, 16, v{vT[0]}
            v_mul_f32 v{vT[0]}, {hexf(-LOG2E)}, v{vT[0]}
            v_exp_f32 v{vT[0]}, v{vT[0]}
            s_nop 0
            v_add_f32 v{vT[0]}, 1.0, v{vT[0]}
            v_rcp_f32 v{vT[0]}, v{vT[0]}
            s_nop 0
            v_cvt_pk_bf16_f32 v{vT[0]}, v{vT[0]}, v{vT[0]}
            v_lshlrev_b32 v{vT[6]}, 16, v{vT[0]}
            v_sub_f32 v{vT[1]}, 1.0, v{vT[6]}
            v_cvt_pk_bf16_f32 v{vT[1]}, v{vT[1]}, v{vT[1]}
            v_lshlrev_b32 v{vT[7]}, 16, v{vT[1]}
            s_lshl_b32 s{sT0}, s{sBase}, 3
            s_add_u32 s{sT0}, s{sT0}, {G_OFF}
            v_mov_b32 v{vT[2]}, 0
            s_mov_b64 exec, 1
            buffer_store_dwordx2 {vr(vT[6],2)}, v{vT[2]}, s[{srdWS}:{srdWS+3}], s{sT0} offen{" sc1" if fused else ""}
            s_mov_b64 exec, -1
            s_add_u32 s{sBase}, s{sBase}, 1
            """)
    if stamps:
        ST.i = 2; ST.stamp(c); ST.stamp(c)
    c.label(f"{name}_FIN")
    if fused:
        c.e("s_waitcnt lgkmcnt(0)")
        srd(c, srdWS, sWS, WS_BYTES); srd(c, srdP, sDB, 256)
        c.e(f"""
        v_mov_b32 v{vT[2]}, 0
        buffer_load_dword v{vT[4]}, v{vT[2]}, s[{srdP}:{srdP+3}], 0 offen sc1
        s_waitcnt vmcnt(0)
        """)
        if stamps:
            ST.i = 4; ST.stamp(c); c.e(f"s_memrealtime s[{ST.s+14}:{ST.s+15}]"); ST.i = 8
            c.e(f"s_cmp_ge_u32 s{sW}, 8\ns_cbranch_scc1 {name}_NOST")
            ST.flush(c, sW, srdWS, vT[2], vT[3], sT0)
            c.e(f"s_waitcnt vmcnt(0)\n{name}_NOST:")
        c.e(f"""
        s_barrier
        s_cmp_eq_u32 s{sW}, 0
        s_cbranch_scc0 {fused}
        s_mov_b32 s{sT2}, 0
        {name}_INITW:
        v_readfirstlane_b32 s{sT1}, v{vT[4]}
        s_add_u32 s{sT2}, s{sT2}, 1
        s_nop 3
        s_cmp_ge_u32 s{sT1}, 16
        s_cbranch_scc1 {name}_INITOK
        s_sleep 1
        v_mov_b32 v{vT[2]}, 0
        buffer_load_dword v{vT[4]}, v{vT[2]}, s[{srdP}:{srdP+3}], 0 offen sc1
        s_waitcnt vmcnt(0)
        s_cmp_lt_u32 s{sT2}, 0x40000
        s_cbranch_scc1 {name}_INITW
        {name}_INITOK:
        s_add_u32 s{sT0}, s{sRT}, {C_H}
        s_add_u32 s{sT1}, s{sRT}, {C_G}
        s_cmp_eq_u32 s{sCG}, 15
        s_cselect_b32 s{sT0}, s{sT1}, s{sT0}
        s_add_u32 s{sT1}, s{sCG}, {C_Q}
        s_cmp_lt_u32 s{sCG}, 6
        s_cselect_b32 s{sT0}, s{sT1}, s{sT0}
        s_lshl_b32 s{sT0}, s{sT0}, 7
        s_add_u32 s{sT0}, s{sT0}, {CNT_OFF}
        v_mov_b32 v{vT[2]}, 0
        v_mov_b32 v{vT[3]}, 1
        s_mov_b64 exec, 1
        buffer_atomic_add v{vT[3]}, v{vT[2]}, s[{srdWS}:{srdWS+3}], s{sT0} offen
        s_mov_b64 exec, -1
        s_branch {fused}
        """)
        c.e(f"{name}_END:\ns_endpgm")
    else:
        if stamps: c.e("s_waitcnt vmcnt(0)")
        ST.i = 4; ST.stamp(c)
        if stamps:
            c.e(f"s_memrealtime s[{ST.s+14}:{ST.s+15}]"); ST.i = 8
            c.e(f"s_cmp_ge_u32 s{sW}, 8\ns_cbranch_scc1 {name}_END")
        ST.flush(c, sW, srdWS, vT[2], vT[3], sT0)
        c.e(f"""
        {name}_END:
        s_endpgm
        """)
    def S(role, vi=0, idle=False):
        d = {f"{name}_END": False, f"{name}_GATE": role == "gate", f"{name}_GLU": role == "glu", f"{name}_RA_GLU": role == "glu",
             f"{name}_NOEA": role == "glu", f"{name}_EAV": role == "v", f"{name}_NOSCL": False, f"{name}_NOSCLH": False, f"{name}_NOZ": False, f"{name}_PRO_NX": vi % 2 == 1,
             f"{name}_PRO_H": role != "glu", f"{name}_QW": vi % 2 == 0, f"{name}_CPD": (lambda k: k >= 1)}
        for i in range(1, 6): d[f"{name}_VAR{i}"] = (i == vi)
        for i in range(12): d[f"{name}_TCH{i}"] = (i != 3)
        d[f"{name}_SWP"] = False; d[f"{name}_GATE2"] = True
        d[f"{name}_FIN"] = False; d[f"{name}_INITOK"] = (lambda k: k >= 1); d[f"{name}_INITW"] = True; d[f"{name}_NOST"] = False
        if fused: d[fused] = False
        return d
    scen = {"qk1": S("qk", 0), "qk0": S("qk", 1), "v1": S("v", 2), "v0": S("v", 3), "glu1": S("glu", 4), "glu0": S("glu", 5), "gate": S("gate")}
    return c, V.hi, scen, K1_LDS

if __name__ == "__main__":
    c, nv, scen, lds = gen_k1()
    errs = check(c.lines, scen, "k1")
    print("vgprs", nv, "lds", lds, "lines", len(c.lines))
    for e in errs[:40]: print(e)
```

```python
from common import *

CH = 10240
SLOT = 2*CH; RING = 3
DUMMY = SLOT*RING
FLAG = DUMMY + 1024
XCH = FLAG + 64
GRING = XCH + 8*3072
GSLOT = 6144; GWAVE = 3*GSLOT
K2_LDS = GRING + 4*GWAVE
FB_BARRIERS = 16 + 3 + 9 + 1

def gen_k2(name="k2_kernel", stamps=False, exp="", fused=False):
    c = Code()
    CS = "TOG" not in exp
    OM = " sc1" if "OS" in exp else (" nt" if "ON" in exp else (" sc0 sc1" if "OX" in exp else ""))
    SM = " sc1" if "SC1" in exp else (" sc0 sc1" if "SC01" in exp else ("" if ("PLAIN" in exp or "P2" in exp) else " nt"))
    V = Alloc(168, 1, "v"); Sg = Alloc(100, 12, "s")
    sWS = 4; sWD = 6; sWO = 8; sOUT = 10
    sX = Sg.take(); sJ = Sg.take(); sHead = Sg.take(); sQB = Sg.take(); sW = Sg.take(); sQG = Sg.take(); sKH = Sg.take()
    sT0 = Sg.take(); sT1 = Sg.take(); sT2 = Sg.take(); sT3 = Sg.take()
    srdWS = Sg.take(4, 4)
    sMaskLo = Sg.take(2, 2); sMaskV = Sg.take(2, 2); sU = Sg.take(2, 2); sU2 = Sg.take(2, 2)
    sSrc = Sg.take(); sM = [Sg.take() for _ in range(3)]; sSlotW = Sg.take(); sSlotR = Sg.take(); sC = Sg.take(); sMode = Sg.take()
    sSrc0 = Sg.take(); sTile = Sg.take(); sOb = Sg.take()
    ST = Stamps(Sg, stamps, 1)
    vL = V.take(); vT = [V.take() for _ in range(8)]
    vOff = V.take(); vOff3 = V.take()
    vK1a = V.take(); vK2a = V.take(); vVa = V.take()
    vK1c = V.take(); vK2c = V.take(); vVc = V.take()
    vG = [V.take(), V.take()]; vSt = [V.take() for _ in range(3)]; vGo = V.take(); vVm = V.take()
    Q1 = [V.take(4, 4), V.take(4, 4)]; Q2 = [V.take(2, 2), V.take(2, 2)]
    K1 = V.take(4, 4); K2 = V.take(2, 2); V0 = V.take(4, 4); V1 = V.take(4, 4)
    S_ = [V.take(16, 4), V.take(16, 4)]; O = [V.take(16, 4), V.take(16, 4)]
    P = [V.take(4, 4), V.take(4, 4)]; T4 = V.take(4, 4)
    vM = [V.take(), V.take()]
    NM = [V.take(16, 4), V.take(16, 4)]
    srd4 = f"s[{srdWS}:{srdWS+3}]"

    HS = " sc1" if (fused and "NOHS" not in exp) else ""
    if fused: c.label(f"{name}_ENTRY")
    else: c.e(f"s_cmp_ge_u32 s2, 256\ns_cbranch_scc1 {name}_END")
    c.e(f"""
    s_load_dwordx2 s[4:5], s[0:1], {KA_WS}
    s_load_dwordx2 s[6:7], s[0:1], {KA_WD}
    s_load_dwordx2 s[8:9], s[0:1], {KA_WO}
    s_load_dwordx2 s[10:11], s[0:1], {KA_OUT}
    v_and_b32 v{vL}, 63, v0
    v_lshrrev_b32 v{vT[0]}, 6, v0
    s_and_b32 s{sX}, s2, 7
    s_lshr_b32 s{sJ}, s2, 3
    v_readfirstlane_b32 s{sW}, v{vT[0]}
    s_lshr_b32 s{sT0}, s{sJ}, 3
    s_lshl_b32 s{sHead}, s{sX}, 2
    s_add_u32 s{sHead}, s{sHead}, s{sT0}
    s_and_b32 s{sQB}, s{sJ}, 7
    v_lshlrev_b32 v{vOff}, 4, v{vL}
    s_mul_i32 s{sSrc0}, s{sHead}, {KV_HS}
    s_add_u32 s{sSrc0}, s{sSrc0}, {KV_OFF}
    """)
    ST.stamp(c, real=True); ST.stamp(c)
    c.e(f"s_cmp_ge_u32 s{sW}, 8\ns_cbranch_scc1 {name}_GW")
    c.e(f"""
    s_and_b32 s{sQG}, s{sW}, 3
    s_lshr_b32 s{sKH}, s{sW}, 2
    s_mul_i32 s{sT0}, s{sKH}, {32*KV_TS}
    s_add_u32 s{sSrc0}, s{sSrc0}, s{sT0}
    s_lshl_b32 s{sT0}, s{sQG}, 10
    s_add_u32 s{sSrc0}, s{sSrc0}, s{sT0}
    s_mul_i32 s{sT1}, s{sKH}, {CH}
    s_add_u32 s{sM[0]}, s{sT1}, s{sT0}
    s_add_u32 s{sM[1]}, s{sM[0]}, 4096
    s_add_u32 s{sM[2]}, s{sM[0]}, 8192
    s_cmp_lt_u32 s{sQG}, 2
    s_cselect_b32 s{sT0}, 0, 0x7f000000
    v_add_u32 v{vOff3}, s{sT0}, v{vOff}
    s_mov_b32 s{sSrc}, s{sSrc0}
    s_mov_b32 s{sSlotW}, 0
    s_lshl_b32 s{sTile}, s{sQB}, 3
    s_lshl_b32 s{sT0}, s{sQG}, 1
    s_add_u32 s{sTile}, s{sTile}, s{sT0}
    s_waitcnt lgkmcnt(0)
    """)
    if stamps: c.e(f"s_memtime s[{ST.s+12}:{ST.s+13}]")
    srd(c, srdWS, sWS, WS_BYTES)
    def dma_parts():
        g0 = [f"s_add_u32 m0, s{sSlotW}, s{sM[0]}", f"s_add_u32 s{sT0}, s{sSrc}, 4096", f"buffer_load_dwordx4 v{vOff}, {srd4}, s{sSrc} offen{HS} lds"]
        g1 = [f"s_add_u32 m0, s{sSlotW}, s{sM[1]}", f"s_add_u32 s{sT1}, s{sSrc}, 8192", f"buffer_load_dwordx4 v{vOff}, {srd4}, s{sT0} offen{HS} lds"]
        g2 = [f"s_add_u32 s{sT0}, s{sSlotW}, s{sM[2]}", f"s_cmp_lt_u32 s{sQG}, 2", f"s_cselect_b32 m0, s{sT0}, {DUMMY}", f"s_add_u32 s{sSrc}, s{sSrc}, {CH}",
              f"buffer_load_dwordx4 v{vOff3}, {srd4}, s{sT1} offen{HS} lds",
              f"s_add_u32 s{sSlotW}, s{sSlotW}, {SLOT}", f"s_cmp_eq_u32 s{sSlotW}, {SLOT*RING}", f"s_cselect_b32 s{sSlotW}, 0, s{sSlotW}"]
        return g0, g1, g2
    def dma_chunk():
        g = dma_parts(); return g[0] + g[1] + g[2]
    def first_loads():
        c.e("\n".join(dma_chunk()))
    def poll(tag, vA, vTg, vV, nl):
        m = (1 << nl) - 1
        c.e(f"""
        s_mov_b32 s{sT2}, 0
        s_mov_b64 exec, {m}
        {name}_{tag}:
        buffer_load_dword v{vV}, v{vA}, {srd4}, 0 offen sc1
        s_waitcnt vmcnt(0)
        v_cmp_ge_u32 vcc, v{vV}, v{vTg}
        s_add_u32 s{sT2}, s{sT2}, 1
        s_nop 3
        s_cmp_eq_u64 vcc, exec
        s_cbranch_scc1 {name}_{tag}OK
        s_sleep 1
        s_cmp_lt_u32 s{sT2}, 0x40000
        s_cbranch_scc1 {name}_{tag}
        {name}_{tag}OK:
        s_mov_b64 exec, -1
        """)
    if fused:
        c.e(f"""
        s_cmp_eq_u32 s{sW}, 0
        s_cbranch_scc0 {name}_NOPOLL
        s_lshr_b32 s{sT0}, s{sHead}, 4
        s_add_u32 s{sT0}, s{sT0}, {C_Q}
        s_lshl_b32 s{sT1}, s{sQB}, 1
        s_add_u32 s{sT1}, s{sT1}, {C_G - 3}
        v_lshlrev_b32 v{vT[1]}, 1, v{vL}
        v_add_u32 v{vT[1]}, s{sT0}, v{vT[1]}
        v_add_u32 v{vT[2]}, s{sT1}, v{vL}
        v_cmp_lt_u32 vcc, 2, v{vL}
        v_mov_b32 v{vT[3]}, 16
        v_mov_b32 v{vT[4]}, 1
        v_cndmask_b32 v{vT[1]}, v{vT[1]}, v{vT[2]}, vcc
        v_cndmask_b32 v{vT[3]}, v{vT[3]}, v{vT[4]}, vcc
        v_lshlrev_b32 v{vT[1]}, 7, v{vT[1]}
        v_add_u32 v{vT[1]}, {CNT_OFF}, v{vT[1]}
        """)
        poll("POLLQ", vT[1], vT[3], vT[4], 5)
        c.e(f"{name}_NOPOLL:\ns_barrier")
    first_loads()
    c.e(f"""
    s_mul_i32 s{sT2}, s{sHead}, {QF_HS}
    s_mul_i32 s{sT1}, s{sTile}, {QF_TS}
    s_add_u32 s{sT2}, s{sT2}, s{sT1}
    s_add_u32 s{sT3}, s{sT2}, {QF_TS}
    v_and_b32 v{vT[0]}, 31, v{vL}
    v_lshlrev_b32 v{vT[1]}, 3, v{vT[0]}
    s_mov_b32 s{sMaskLo}, -1
    s_mov_b32 s{sMaskLo+1}, 0
    v_mov_b32 v{Q2[0]}, 0
    v_mov_b32 v{Q2[0]+1}, 0
    v_mov_b32 v{Q2[1]}, 0
    v_mov_b32 v{Q2[1]+1}, 0
    buffer_load_dwordx4 {vr(Q1[0],4)}, v{vOff}, {srd4}, s{sT2} offen{HS}
    buffer_load_dwordx4 {vr(Q1[1],4)}, v{vOff}, {srd4}, s{sT3} offen{HS}
    s_mov_b64 exec, s[{sMaskLo}:{sMaskLo+1}]
    buffer_load_dwordx2 {vr(Q2[0],2)}, v{vT[1]}, {srd4}, s{sT2} offen offset:1024{HS}
    buffer_load_dwordx2 {vr(Q2[1],2)}, v{vT[1]}, {srd4}, s{sT3} offen offset:1024{HS}
    s_mov_b64 exec, -1
    """)
    c.e(f"""
    v_mov_b32 v{vGo}, v{vT[1]}
    s_mov_b32 s{sMode}, 0
    s_mov_b32 s{sMaskV}, 0xfffff
    s_mov_b32 s{sMaskV+1}, 0xfffff
    s_mul_i32 s{sT0}, s{sKH}, {CH}
    v_add_u32 v{vK1a}, s{sT0}, v{vOff}
    v_add_u32 v{vK2a}, s{sT0}, v{vT[1]}
    v_lshrrev_b32 v{vT[2]}, 5, v{vL}
    v_mul_u32_u24 v{vT[7]}, 320, v{vT[2]}
    v_lshl_add_u32 v{vT[7]}, v{vT[0]}, 4, v{vT[7]}
    v_add_u32 v{vVa}, s{sT0}, v{vT[7]}
    """)
    if CS:
        CB = XCH - 1280 + ((16 - ((XCH - 1280)//16) % 16) % 16)*16
        assert CB % 256 == 0 and CB + 1280 >= XCH and CB + 3*KV_TS + 1280 + 640 + 320 + 13*16 <= XCH + 8*3072
        c.e(f"""
        v_mov_b32 v{vT[5]}, 5
        v_mov_b32 v{vT[6]}, 4
        v_cmp_eq_u32 vcc, 20, v{vT[0]}
        v_mov_b32 v{vT[4]}, 12
        s_nop 0
        v_cndmask_b32 v{vT[5]}, v{vT[5]}, v{vT[6]}, vcc
        v_cmp_lt_u32 vcc, 27, v{vT[0]}
        v_mul_u32_u24 v{vT[6]}, 320, v{vT[2]}
        s_nop 0
        v_cndmask_b32 v{vT[5]}, v{vT[5]}, v{vT[4]}, vcc
        v_lshl_add_u32 v{vT[5]}, v{vT[5]}, 4, v{vT[6]}
        v_add_u32 v{vT[5]}, {CB}, v{vT[5]}
        v_cmp_lt_u32 vcc, 19, v{vT[0]}
        v_mov_b32 v{vT[4]}, 1
        v_mov_b32 v{vT[6]}, 0
        v_cndmask_b32 v{vVa}, v{vVa}, v{vT[5]}, vcc
        v_cndmask_b32 v{vVm}, v{vT[4]}, v{vT[6]}, vcc
        """)
    c.e(f"""
    v_cmp_eq_u32 vcc, 20, v{vT[0]}
    v_mov_b32 v{vT[3]}, 0
    v_mov_b32 v{vT[4]}, 0x3f803f80
    v_cndmask_b32 v{vT[3]}, v{vT[3]}, v{vT[4]}, vcc
    """)
    for r in range(4): c.e(f"v_mov_b32 v{V0+r}, v{vT[3]}\nv_mov_b32 v{V1+r}, v{vT[3]}")
    c.e(f"v_mov_b32 v{K2}, 0\nv_mov_b32 v{K2+1}, 0")
    c.e(f"v_mov_b32 v{vT[3]}, 0\nv_mov_b32 v{vT[4]}, {FLAG}\nds_write_b32 v{vT[4]}, v{vT[3]}")
    c.e(f"""
    s_add_u32 s{sOb}, s{sTile}, s{sKH}
    s_mul_i32 s{sOb}, s{sOb}, {40*1024}
    s_add_u32 s{sOb}, s{sOb}, {OF_OFF}
    s_mul_i32 s{sT1}, s{sHead}, 5
    v_add_u32 v{vT[2]}, s{sT1}, v{vT[2]}
    v_lshlrev_b32 v{vT[3]}, 4, v{vT[0]}
    """)
    c.e(f"v_lshlrev_b32 v{vT[3]}, 3, v{vT[0]}")
    for g in range(3):
        c.e(f"""
        v_add_u32 v{vT[4]}, {2*g}, v{vT[2]}
        v_lshl_add_u32 v{vSt[g]}, v{vT[4]}, 8, v{vT[3]}
        """)
    def const_spots():
        if not CS: return
        CB = XCH - 1280 + ((16 - ((XCH - 1280)//16) % 16) % 16)*16
        c.e(f"""
        v_mul_u32_u24 v{vT[1]}, 21846, v{vL}
        v_lshrrev_b32 v{vT[1]}, 16, v{vT[1]}
        v_mul_u32_u24 v{vT[2]}, 3, v{vT[1]}
        v_sub_u32 v{vT[2]}, v{vL}, v{vT[2]}
        v_and_b32 v{vT[3]}, 1, v{vT[1]}
        v_mul_u32_u24 v{vT[3]}, 320, v{vT[3]}
        v_bfe_u32 v{vT[4]}, v{vT[1]}, 1, 1
        v_mul_u32_u24 v{vT[4]}, 640, v{vT[4]}
        v_lshrrev_b32 v{vT[1]}, 2, v{vT[1]}
        v_mul_u32_u24 v{vT[1]}, {KV_TS}, v{vT[1]}
        v_add3_u32 v{vT[1]}, v{vT[1]}, v{vT[3]}, v{vT[4]}
        v_mov_b32 v{vT[3]}, 4
        v_mov_b32 v{vT[4]}, 5
        v_cmp_eq_u32 vcc, 1, v{vT[2]}
        v_mov_b32 v{vT[5]}, 12
        v_mov_b32 v{vT[6]}, 0x3f803f80
        v_cndmask_b32 v{vT[3]}, v{vT[3]}, v{vT[4]}, vcc
        v_cmp_eq_u32 vcc, 2, v{vT[2]}
        v_mov_b32 v{vT[4]}, 0
        s_nop 0
        v_cndmask_b32 v{vT[3]}, v{vT[3]}, v{vT[5]}, vcc
        v_cmp_eq_u32 vcc, 0, v{vT[2]}
        v_lshl_add_u32 v{vT[1]}, v{vT[3]}, 4, v{vT[1]}
        v_add_u32 v{vT[1]}, {CB + 1280}, v{vT[1]}
        v_cndmask_b32 v{T4}, v{vT[4]}, v{vT[6]}, vcc
        v_cndmask_b32 v{T4+1}, v{vT[4]}, v{vT[6]}, vcc
        v_cndmask_b32 v{T4+2}, v{vT[4]}, v{vT[6]}, vcc
        v_cndmask_b32 v{T4+3}, v{vT[4]}, v{vT[6]}, vcc
        s_mov_b32 exec_lo, -1
        s_mov_b32 exec_hi, 0xffff
        ds_write_b128 v{vT[1]}, {vr(T4,4)}
        s_mov_b64 exec, -1
        """)
    def rdK(off):
        if "KZ" in exp:
            return [f"s_mov_b64 exec, s[{sMaskLo}:{sMaskLo+1}]", f"ds_read_b64 {vr(K2,2)}, v{vK2c} offset:{off+1024}", "s_mov_b64 exec, -1", f"ds_read_b128 {vr(K1,4)}, v{vK1c} offset:{off}"]
        return [f"ds_read_b64 {vr(K2,2)}, v{vK2c} offset:{off+1024}", f"ds_read_b128 {vr(K1,4)}, v{vK1c} offset:{off}"]
    def rdV(which, off):
        r = V0 if which == 0 else V1
        if CS: return [f"ds_read_b128 {vr(r,4)}, v{vVc} offset:{off + 1280 + 640*which}"]
        return [f"s_mov_b64 exec, s[{sMaskV}:{sMaskV+1}]", f"ds_read_b128 {vr(r,4)}, v{vVc} offset:{off + 1280 + 640*which}", "s_mov_b64 exec, -1"]
    def emit_pass(tag, fb):
        def qk(b): return [f"v_mfma_f32_32x32x16_bf16 {vr(S_[b],16)}, {vr(K1,4)}, {vr(Q1[b],4)}, " + (vr(NM[b],16) if fb else "0"), mfma32x8(S_[b], K2, Q2[b])]
        const_spots()
        for b in range(2):
            for r in range(16): c.e(f"v_mov_b32 v{O[b]+r}, 0")
        for r in range(4): c.e(f"v_mov_b32 v{P[1]+r}, 0\nv_mov_b32 v{T4+r}, 0")
        c.e(f"""
        s_mov_b32 s{sSlotR}, 0
        s_mov_b32 s{sC}, 0
        v_mov_b32 v{vK1c}, v{vK1a}
        v_mov_b32 v{vK2c}, v{vK2a}
        v_mov_b32 v{vVc}, v{vVa}
        """)
        if stamps and not fb: c.e(f"s_memtime s[{ST.s+14}:{ST.s+15}]")
        c.e(f"s_waitcnt vmcnt({3 if fb else 0}) lgkmcnt(0)\ns_barrier")
        c.e("\n".join(rdK(0) + rdV(0, 0)))
        if not fb:
            c.e("\n".join(dma_chunk()))
            c.e(f"""
            s_lshl_b32 s{sT2}, s{sTile}, 8
            s_add_u32 s{sT2}, s{sT2}, {G_OFF}
            buffer_load_dword v{vG[0]}, v{vGo}, {srd4}, s{sT2} offen{HS}
            buffer_load_dword v{vG[1]}, v{vGo}, {srd4}, s{sT2} offen offset:256{HS}
            """)
        c.e(f"s_waitcnt vmcnt({3 if fb else 5}) lgkmcnt(1)") if False else None
        c.e("s_waitcnt lgkmcnt(1)")
        c.e("\n".join(qk(0)))
        c.e("s_nop 7\ns_nop 3")
        if not fb: ST.i = 2; ST.stamp(c, wait=True)
        def half(b, tt):
            s = S_[b]; L = []
            src = lambda i: (s + i) if i < 12 else (T4 + i - 12)
            e = lambda i: f"v_exp_f32 v{src(i)}, v{s+i}"
            cv = lambda p: f"v_cvt_pk_bf16_f32 v{P[p//4] + p%4}, v{src(2*p)}, v{src(2*p+1)}"
            m = qk(1 - b)
            m3 = mfma32(O[b], V0, P[0]); m4p = mfma32(O[1-b], V1, P[1])
            cur = tt*KV_TS; nxt = ((tt + 1) % 4)*KV_TS
            d0 = d1 = d2 = []
            if b == 0 and tt == 0: pass
            if b == 1: L.append("s_waitcnt lgkmcnt(0)" if "W3" in exp else "s_waitcnt lgkmcnt(1)")
            L += [m[0], e(0), cv(6), e(1), cv(7), e(2), e(3), m[1]]
            if b == 0:
                if tt == 3:
                    L += ["s_waitcnt vmcnt(0)", "s_barrier",
                          f"s_add_u32 s{sSlotR}, s{sSlotR}, {SLOT}", f"s_cmp_eq_u32 s{sSlotR}, {SLOT*RING}", f"s_cselect_b32 s{sSlotR}, 0, s{sSlotR}",
                          f"v_add_u32 v{vK1c}, s{sSlotR}, v{vK1a}", f"v_add_u32 v{vK2c}, s{sSlotR}, v{vK2a}"]
                L += rdK(nxt)
            L += [e(4), e(5), cv(0), e(6), e(7), cv(1)]
            if b == 1 and "W3" not in exp: L.append("s_waitcnt lgkmcnt(0)")
            L.append(m4p)
            if b == 0: L += rdV(1, cur)
            if b == 0 and tt == 3: L += ([f"v_mad_u32_u24 v{vVc}, v{vVm}, s{sSlotR}, v{vVa}"] if CS else [f"v_add_u32 v{vVc}, s{sSlotR}, v{vVa}"])
            L += [e(8), cv(2), e(9), cv(3), e(10), e(11)]
            if b == 0: L.append("s_waitcnt lgkmcnt(3)")
            L.append(m3)
            if b == 1: L += rdV(0, nxt)
            L += [e(12), e(13), cv(4), e(14), e(15), cv(5)]
            return L
        lp = f"{name}_LOOP{tag}"
        c.label(lp)
        for tt in range(4):
            A = half(0, tt); B = half(1, tt)
            if tt == 3:
                g0, g1, g2 = dma_parts()
                c.e("\n".join(A))
                c.e(f"s_cmp_ge_u32 s{sC}, 6\ns_cbranch_scc1 {lp}_NODMA")
                c.e("\n".join(g0 + g1 + g2))
                c.label(f"{lp}_NODMA")
                c.e("\n".join(B))
            else:
                c.e("\n".join(A)); c.e("\n".join(B))
        c.e(f"""
        s_add_u32 s{sC}, s{sC}, 1
        s_cmp_lt_u32 s{sC}, 8
        s_cbranch_scc1 {lp}
        """)
        c.e(f"v_cvt_pk_bf16_f32 v{P[1]+2}, v{T4}, v{T4+1}\nv_cvt_pk_bf16_f32 v{P[1]+3}, v{T4+2}, v{T4+3}\ns_waitcnt lgkmcnt(0)\ns_nop 0")
        c.e(mfma32(O[1], V1, P[1]))
    if "PA" in exp: c.e("s_setprio 1")
    if "PH" in exp: c.e(f"s_cmp_eq_u32 s{sKH}, 1\ns_cbranch_scc0 {name}_NPH\ns_setprio 1\n{name}_NPH:")
    emit_pass("", False)
    c.label(f"{name}_EPI")
    ST.i = 3; ST.stamp(c, wait=True)
    c.e(f"""
    s_mul_i32 s{sT0}, s{sQG}, 3072
    s_mul_i32 s{sT1}, s{sKH}, {2*SLOT}
    s_add_u32 s{sT2}, s{sT0}, s{sT1}
    v_add_u32 v{vT[4]}, s{sT2}, v{vOff}
    s_sub_u32 s{sT1}, {2*SLOT}, s{sT1}
    s_add_u32 s{sT2}, s{sT0}, s{sT1}
    v_add_u32 v{vT[6]}, s{sT2}, v{vOff}
    v_mov_b32 v{vT[1]}, 0x7f800000
    v_mov_b32 v{vT[2]}, {hexf(2.0**63)}
    v_mov_b32 v{vT[3]}, {hexf(2.0**-63)}
    v_mov_b32 v{vT[5]}, {FLAG}
    s_nop 3
    s_cmp_eq_u32 s{sKH}, 0
    s_cbranch_scc1 {name}_NOSWAP
    """)
    for r in range(12): c.e(f"v_swap_b32 v{O[0]+r}, v{O[1]+r}")
    c.e(f"v_swap_b32 v{vG[0]}, v{vG[1]}")
    c.label(f"{name}_NOSWAP")
    for g in range(3): c.e(f"ds_write_b128 v{vT[4]}, {vr(O[1]+4*g,4)} offset:{1024*g}")
    c.e(f"v_add_f32 v{vT[0]}, |v{O[0]}|, |v{O[1]}|")
    for r in range(1, 12): c.e(f"v_add_f32 v{vT[0]}, |v{O[0]+r}|, v{vT[0]}\nv_add_f32 v{vT[0]}, |v{O[1]+r}|, v{vT[0]}")
    c.e(f"""
    v_min_f32 v{vT[7]}, v{O[0]+8}, v{O[1]+8}
    v_cmp_nlt_f32 s[{sU}:{sU+1}], v{vT[0]}, v{vT[1]}
    v_max_f32 v{vT[0]}, v{O[0]+8}, v{O[1]+8}
    v_cmp_nge_f32 s[{sU2}:{sU2+1}], v{vT[7]}, v{vT[3]}
    v_cmp_nle_f32 vcc, v{vT[0]}, v{vT[2]}
    s_nop 3
    s_or_b64 s[{sU2}:{sU2+1}], s[{sU2}:{sU2+1}], vcc
    s_andn2_b64 s[{sU2}:{sU2+1}], s[{sU2}:{sU2+1}], s[{sMaskLo}:{sMaskLo+1}]
    s_or_b64 s[{sU}:{sU+1}], s[{sU}:{sU+1}], s[{sU2}:{sU2+1}]
    s_cmp_eq_u64 s[{sU}:{sU+1}], 0
    s_cbranch_scc1 {name}_SAFE
    v_mov_b32 v{vT[3]}, 1
    ds_write_b32 v{vT[5]}, v{vT[3]}
    {name}_SAFE:
    s_waitcnt lgkmcnt(0)
    s_barrier
    ds_read_b32 v{vT[3]}, v{vT[5]}
    """)
    for g in range(3): c.e(f"ds_read_b128 {vr(S_[0]+4*g,4)}, v{vT[6]} offset:{1024*g}")
    c.e(f"""
    s_waitcnt lgkmcnt(3)
    v_readfirstlane_b32 s{sT0}, v{vT[3]}
    s_nop 3
    s_cmp_eq_u32 s{sMode}, 0
    s_cselect_b32 s{sT0}, s{sT0}, 0
    s_cmp_eq_u32 s{sT0}, 0
    s_cbranch_scc0 {name}_FALLBACK
    s_waitcnt vmcnt(0) lgkmcnt(0)
    """)
    for r in range(12): c.e(f"v_add_f32 v{O[0]+r}, v{O[0]+r}, v{S_[0]+r}")
    c.e(f"""
    v_mov_b32 v{vT[0]}, v{O[0]+8}
    v_mov_b32 v{vT[1]}, v{O[0]+8}
    s_nop 1
    v_permlane32_swap_b32 v{vT[0]}, v{vT[1]}
    s_nop 1
    v_rcp_f32 v{vT[1]}, v{vT[1]}
    s_nop 0
    v_mul_f32 v{vT[1]}, v{vT[1]}, v{vG[0]}
    """)
    for r in range(12): c.e(f"v_mul_f32 v{O[0]+r}, v{O[0]+r}, v{vT[1]}")
    for p in range(6): c.e(f"v_cvt_pk_bf16_f32 v{S_[1]+p}, v{O[0]+2*p}, v{O[0]+2*p+1}")
    for g in range(3):
        if g == 2: c.e(f"s_mov_b64 exec, s[{sMaskLo}:{sMaskLo+1}]")
        c.e(f"buffer_store_dwordx2 {vr(S_[1]+2*g,2)}, v{vSt[g]}, {srd4}, s{sOb} offen sc1")
    c.e(f"""
    s_mov_b64 exec, -1
    s_waitcnt vmcnt(0)
    s_barrier
    s_cmp_eq_u32 s{sW}, 0
    s_cbranch_scc0 {name}_FIN
    s_lshl_b32 s{sT0}, s{sQB}, 7
    s_add_u32 s{sT0}, s{sT0}, {CNT_OFF}
    v_mov_b32 v{vT[2]}, 0
    v_mov_b32 v{vT[3]}, 1
    s_mov_b64 exec, 1
    buffer_atomic_add v{vT[3]}, v{vT[2]}, {srd4}, s{sT0} offen
    s_mov_b64 exec, -1
    s_branch {name}_FIN
    """)
    c.label(f"{name}_FALLBACK")
    c.e("s_waitcnt vmcnt(0) lgkmcnt(0)")
    c.e(f"s_cmp_eq_u32 s{sKH}, 0\ns_cbranch_scc1 {name}_FB_NOSWAP\nv_swap_b32 v{vG[0]}, v{vG[1]}\n{name}_FB_NOSWAP:")
    c.e(f"""
    s_mov_b32 s{sMode}, 1
    v_mov_b32 v{vM[0]}, 0xff800000
    v_mov_b32 v{vM[1]}, 0xff800000
    s_mov_b32 s{sSrc}, s{sSrc0}
    s_mov_b32 s{sC}, 0
    {name}_FB_LOOP:
    s_barrier
    s_mov_b32 s{sSlotW}, 0
    """)
    c.e("\n".join(dma_chunk()))
    c.e(f"s_waitcnt vmcnt(0)\ns_barrier\nv_mov_b32 v{vK1c}, v{vK1a}\nv_mov_b32 v{vK2c}, v{vK2a}")
    for tt in range(4):
        c.e("\n".join(rdK(tt*KV_TS)))
        c.e("s_waitcnt lgkmcnt(0)")
        for b in range(2): c.e(mfma32(S_[b], K1, Q1[b], cz=0) + "\n" + mfma32x8(S_[b], K2, Q2[b]))
        c.e("s_nop 7\ns_nop 7")
        for b in range(2):
            for r in range(0, 16, 2): c.e(f"v_max3_f32 v{vM[b]}, v{S_[b]+r}, v{S_[b]+r+1}, v{vM[b]}")
    c.e(f"""
    s_add_u32 s{sC}, s{sC}, 1
    s_cmp_lt_u32 s{sC}, 8
    s_cbranch_scc1 {name}_FB_LOOP
    """)
    for b in range(2):
        c.e(f"""
        v_mov_b32 v{vT[0]}, v{vM[b]}
        v_mov_b32 v{vT[1]}, v{vM[b]}
        s_nop 1
        v_permlane32_swap_b32 v{vT[0]}, v{vT[1]}
        s_nop 1
        v_max_f32 v{vM[b]}, v{vT[0]}, v{vT[1]}
        """)
    c.e(f"""
    s_lshl_b32 s{sT0}, s{sW}, 9
    s_add_u32 s{sT0}, s{sT0}, {XCH}
    v_lshlrev_b32 v{vT[2]}, 2, v{vL}
    v_add_u32 v{vT[3]}, s{sT0}, v{vT[2]}
    s_barrier
    ds_write_b32 v{vT[3]}, v{vM[0]}
    ds_write_b32 v{vT[3]}, v{vM[1]} offset:256
    s_xor_b32 s{sT0}, s{sW}, 4
    s_lshl_b32 s{sT0}, s{sT0}, 9
    s_add_u32 s{sT0}, s{sT0}, {XCH}
    v_add_u32 v{vT[3]}, s{sT0}, v{vT[2]}
    s_waitcnt lgkmcnt(0)
    s_barrier
    ds_read_b32 v{vT[4]}, v{vT[3]}
    ds_read_b32 v{vT[5]}, v{vT[3]} offset:256
    s_waitcnt lgkmcnt(0)
    v_max_f32 v{vM[0]}, v{vM[0]}, v{vT[4]}
    v_max_f32 v{vM[1]}, v{vM[1]}, v{vT[5]}
    s_barrier
    """)
    for b in range(2):
        for r in range(16): c.e(f"v_sub_f32 v{NM[b]+r}, 0, v{vM[b]}")
    c.e(f"s_mov_b32 s{sSrc}, s{sSrc0}\ns_mov_b32 s{sSlotW}, 0")
    c.e("\n".join(dma_chunk())); c.e("\n".join(dma_chunk()))
    emit_pass("FB", True)
    c.e(f"s_branch {name}_EPI")
    Vg = Alloc(168, 2, "v")
    gOffW = [Vg.take() for _ in range(5)]; gOffA = Vg.take(); gWA = Vg.take(); gAA = Vg.take(); gOm = Vg.take()
    gT = [Vg.take() for _ in range(6)]
    gact = Vg.take(4, 4); gwf = Vg.take(20, 4); gacc = Vg.take(80, 4); goq = Vg.take(40, 4); gtmp = goq
    sRB, sCG, sKQ, sLB, sKs, sAct = sQG, sKH, sQB, sSrc, sSrc0, sTile
    srdW = Sg.take(4, 4); srdO = Sg.take(4, 4); sOmA = Sg.take()
    gAc_ = goq + 39
    NDOWN = 27; NSTEP = 37; DEFER = 0
    gs = Sg.take(16, 2) if stamps else 0
    gi = [0]
    def gstamp():
        if stamps:
            c.e(f"s_memrealtime s[{gs+2*gi[0]}:{gs+2*gi[0]+1}]\ns_waitcnt lgkmcnt(0)"); gi[0] += 1
    c.label(f"{name}_GW")
    c.e(f"""
    s_sub_u32 s{sKQ}, s{sW}, 8
    s_lshr_b32 s{sT0}, s{sJ}, 2
    s_lshl_b32 s{sRB}, s{sX}, 3
    s_add_u32 s{sRB}, s{sRB}, s{sT0}
    s_and_b32 s{sCG}, s{sJ}, 3
    s_mul_i32 s{sT0}, s{sCG}, 320
    """)
    for i in range(5):
        c.e(f"""
        v_add_u32 v{gT[1]}, {64*i}, v{vL}
        v_mul_u32_u24 v{gT[2]}, 3277, v{gT[1]}
        v_lshrrev_b32 v{gT[2]}, 16, v{gT[2]}
        v_mul_u32_u24 v{gT[3]}, 20, v{gT[2]}
        v_sub_u32 v{gT[3]}, v{gT[1]}, v{gT[3]}
        v_mul_u32_u24 v{gT[2]}, 1280, v{gT[2]}
        v_lshl_add_u32 v{gT[2]}, v{gT[3]}, 4, v{gT[2]}
        v_add_u32 v{gOffW[i]}, s{sT0}, v{gT[2]}
        """)
    c.e(f"""
    v_lshlrev_b32 v{gOffA}, 4, v{vL}
    s_mul_i32 s{sLB}, s{sKQ}, {GWAVE}
    s_add_u32 s{sLB}, s{sLB}, {GRING}
    s_mul_i32 s{sKs}, s{sKQ}, 20480
    s_mul_i32 s{sAct}, s{sRB}, 108
    s_add_u32 s{sAct}, s{sAct}, s{sKQ}
    s_lshl_b32 s{sAct}, s{sAct}, 10
    s_add_u32 s{sAct}, s{sAct}, {HF_OFF}
    s_waitcnt lgkmcnt(0)
    """)
    srd(c, srdWS, sWS, WS_BYTES); srd(c, srdW, sWD, 1728*1280); srd(c, srdO, sOUT, 2048*1280)
    if fused: c.e("s_barrier")
    def gdma(n):
        so = (n % 3)*GSLOT; L = []
        for i in range(5):
            L += [f"s_add_u32 m0, s{sLB}, {so + 1024*i}", "s_nop 0", f"buffer_load_dwordx4 v{gOffW[i]}, s[{srdW}:{srdW+3}], s{sKs} offen lds"]
        L += [f"s_add_u32 s{sKs}, s{sKs}, {4*20480}"]
        if n < NDOWN:
            L += [f"s_add_u32 m0, s{sLB}, {so + 5120}", "s_nop 0", f"buffer_load_dwordx4 v{gOffA}, {srd4}, s{sAct} offen{HS} lds", f"s_add_u32 s{sAct}, s{sAct}, 4096"]
        return L
    ndma = lambda n: 0 if n >= NDOWN else 6
    c.e(f"""
    v_and_b32 v{gT[0]}, 31, v{vL}
    v_lshlrev_b32 v{gT[1]}, 3, v{gT[0]}
    s_lshl_b32 s{sT0}, s{sRB}, 8
    s_add_u32 s{sT0}, s{sT0}, {G_OFF + 4}
    s_mov_b32 s{sOmA}, s{sT0}
    """)
    if not fused: c.e(f"buffer_load_dword v{gOm}, v{gT[1]}, {srd4}, s{sT0} offen")
    else: c.e(f"v_mov_b32 v{gAc_}, v{gT[1]}")
    if "TLB" in exp:
        c.e(f"""
        v_min_u32 v{gT[2]}, 6, v{vL}
        v_lshlrev_b32 v{gT[2]}, 20, v{gT[2]}
        s_mov_b32 s{sT0}, {OF_OFF}
        buffer_load_dword v{goq}, v{gT[2]}, {srd4}, s{sT0} offen
        v_min_u32 v{gT[2]}, 2, v{vL}
        v_lshlrev_b32 v{gT[2]}, 20, v{gT[2]}
        buffer_load_dword v{goq+1}, v{gT[2]}, s[{srdO}:{srdO+3}], 0 offen
        """)
    c.e(f"""
    v_and_b32 v{gT[3]}, 15, v{vL}
    v_lshrrev_b32 v{gT[4]}, 2, v{gT[3]}
    v_lshrrev_b32 v{gT[2]}, 5, v{vL}
    v_lshl_add_u32 v{gT[4]}, v{gT[2]}, 2, v{gT[4]}
    v_mul_u32_u24 v{gT[4]}, 320, v{gT[4]}
    v_and_b32 v{gT[3]}, 3, v{gT[3]}
    v_lshl_add_u32 v{gT[4]}, v{gT[3]}, 3, v{gT[4]}
    v_lshrrev_b32 v{gT[3]}, 4, v{vL}
    v_and_b32 v{gT[3]}, 1, v{gT[3]}
    v_lshl_add_u32 v{gT[4]}, v{gT[3]}, 5, v{gT[4]}
    v_add_u32 v{gWA}, s{sLB}, v{gT[4]}
    v_add_u32 v{gAA}, 5120, v{gOffA}
    v_add_u32 v{gAA}, s{sLB}, v{gAA}
    """)
    for r in range(80): c.e(f"v_mov_b32 v{gacc+r}, 0")
    if "PG" in exp: c.e("s_setprio 1")
    c.e("s_barrier")
    if fused:
        c.e(f"""
        s_lshr_b32 s{sT0}, s{sRB}, 2
        s_add_u32 s{sT1}, s{sT0}, {C_H}
        s_add_u32 s{sT0}, s{sT0}, {C_G}
        v_mov_b32 v{gT[2]}, s{sT1}
        v_mov_b32 v{gT[3]}, s{sT0}
        v_cmp_eq_u32 vcc, 0, v{vL}
        v_mov_b32 v{gT[4]}, 1
        v_mov_b32 v{gT[5]}, 9
        v_cndmask_b32 v{gT[2]}, v{gT[3]}, v{gT[2]}, vcc
        v_cndmask_b32 v{gT[4]}, v{gT[4]}, v{gT[5]}, vcc
        v_lshlrev_b32 v{gT[2]}, 7, v{gT[2]}
        v_add_u32 v{gT[2]}, {CNT_OFF}, v{gT[2]}
        """)
        poll("POLLH", gT[2], gT[4], gT[3], 2)
        c.e(f"buffer_load_dword v{gOm}, v{gAc_}, {srd4}, s{sOmA} offen sc1")
    c.e("\n".join(gdma(0) + gdma(1)))
    def sloc(n, loc=None):
        return loc if loc is not None else (gWA, (n % 3)*GSLOT)
    def rdW(jb, areg, so):
        return [f"ds_read_b64_tr_b16 {vr(gwf+4*jb,2)}, v{areg} offset:{so + 64*jb}", f"ds_read_b64_tr_b16 {vr(gwf+4*jb+2,2)}, v{areg} offset:{so + 64*jb + 2560}"]
    def step(n, wait, post=None, loc=None):
        areg, so = sloc(n, loc)
        c.e(wait)
        act = gact
        if n < NDOWN: c.e(f"ds_read_b128 {vr(gact,4)}, v{gAA} offset:{so}")
        else: act = goq + 4*(n - NDOWN)
        for jb in range(5): c.e("\n".join(rdW(jb, areg, so)))
        if n + 2 < NDOWN: c.e("\n".join(gdma(n + 2)))
        for jb in range(5):
            c.e(f"s_waitcnt lgkmcnt({8 - 2*jb})")
            c.e(mfma32(gacc+16*jb, gwf+4*jb, act))
        if post: c.e("\n".join(post))
    def wo_steps(waits):
        areg, so = wloc(0)
        for jb in range(5): c.e("\n".join(rdW(jb, areg, so)))
        for i in range(10):
            c.e(f"s_waitcnt vmcnt({waits[i][0]})")
            nxt = wloc(i + 1) if i + 1 < 10 else None
            if nxt is not None and waits[i][1] is not None: pass
            for jb in range(5):
                c.e(f"s_waitcnt lgkmcnt({8 if nxt is not None else 8 - 2*jb})")
                c.e(mfma32(gacc+16*jb, gwf+4*jb, goq + 4*i))
                if nxt is not None:
                    if jb == 0 and waits[i][1] is not None: c.e(f"s_waitcnt vmcnt({waits[i][1]})")
                    c.e("\n".join(rdW(jb, nxt[0], nxt[1])))
            if i < 3: c.e("\n".join(wdma(7 + i)))
            if i == 0: gstamp()
    sched = [3, 4, 3, 4, 3, 4, 3, 3]; n = 0
    assert sum(sched) == NDOWN - DEFER
    gWB = gT[5]; sAB = sOb
    def wloc(i):
        if i < 3: return (gWA, GSLOT*i)
        if i < 7: return (gWB, 5120*(i - 3))
        return (gWA, GSLOT*(i - 7))
    def wdma(i):
        L = []
        base, off = (sLB, GSLOT*i) if i < 3 else ((sAB, 5120*(i - 3)) if i < 7 else (sLB, GSLOT*(i - 7)))
        for k in range(5):
            L += [f"s_add_u32 m0, s{base}, {off + 1024*k}", "s_nop 0", f"buffer_load_dwordx4 v{gOffW[k]}, s[{srdW}:{srdW+3}], s{sKs} offen lds"]
        L += [f"s_add_u32 s{sKs}, s{sKs}, {4*20480}"]
        return L
    for k in range(8):
        for _ in range(sched[k]):
            step(n, f"s_waitcnt vmcnt({ndma(n+1)})"); n += 1
        if k == 7:
            c.e(f"""
            s_mov_b32 s{srdW}, s{sWO}
            s_and_b32 s{srdW+1}, s{sWO+1}, 0xffff
            s_mov_b32 s{srdW+2}, {640*1280}
            s_mul_i32 s{sKs}, s{sKQ}, 20480
            s_mul_i32 s{sAB}, s{sKQ}, 20480
            v_subrev_u32 v{gWB}, s{sLB}, v{gWA}
            v_add_u32 v{gWB}, s{sAB}, v{gWB}
            """)
            for i in range(3): c.e("\n".join(wdma(i)))
        c.e("s_barrier")
    c.e("s_nop 7")
    for r in range(80): c.e(f"v_mul_f32 v{gacc+r}, v{gacc+r}, v{gOm}")
    c.e(f"""
    s_barrier
    v_mov_b32 v{gT[3]}, {FLAG}
    ds_read_b32 v{gT[3]}, v{gT[3]}
    s_waitcnt lgkmcnt(0)
    v_readfirstlane_b32 s{sT1}, v{gT[3]}
    s_nop 3
    s_cmp_eq_u32 s{sT1}, 0
    s_cbranch_scc1 {name}_GNOFB
    s_mov_b32 s{sT0}, {FB_BARRIERS}
    {name}_GFB:
    s_barrier
    s_sub_u32 s{sT0}, s{sT0}, 1
    s_cmp_lg_u32 s{sT0}, 0
    s_cbranch_scc1 {name}_GFB
    {name}_GNOFB:
    s_barrier
    """)
    gstamp()
    c.e(f"""
    s_lshr_b32 s{sT3}, s{sRB}, 3
    s_lshl_b32 s{sT3}, s{sT3}, 7
    s_add_u32 s{sT3}, s{sT3}, {CNT_OFF}
    v_mov_b32 v{gT[2]}, 0
    """)
    for i in range(3, 5): c.e("\n".join(wdma(i)))
    c.e(f"buffer_load_dword v{gT[3]}, v{gT[2]}, {srd4}, s{sT3} offen sc1")
    for i in range(5, 7): c.e("\n".join(wdma(i)))
    c.e(f"""
    s_waitcnt vmcnt(10)
    v_readfirstlane_b32 s{sT1}, v{gT[3]}
    s_nop 3
    s_cmp_ge_u32 s{sT1}, 32
    s_cbranch_scc1 {name}_GO
    """)
    gstamp()
    c.e(f"""
    s_lshr_b32 s{sT0}, s{sRB}, 3
    s_lshl_b32 s{sT0}, s{sT0}, 7
    s_add_u32 s{sT0}, s{sT0}, {CNT_OFF}
    v_mov_b32 v{gT[2]}, 0
    s_mov_b32 s{sT2}, 0
    {name}_POLL:
    buffer_load_dword v{gT[3]}, v{gT[2]}, {srd4}, s{sT0} offen sc1
    s_waitcnt vmcnt(0)
    v_readfirstlane_b32 s{sT1}, v{gT[3]}
    s_add_u32 s{sT2}, s{sT2}, 1
    s_nop 2
    s_cmp_ge_u32 s{sT1}, 32
    s_cbranch_scc1 {name}_GO
    s_sleep 1
    s_cmp_lt_u32 s{sT2}, 0x40000
    s_cbranch_scc1 {name}_POLL
    {name}_GO:
    s_mul_i32 s{sT0}, s{sRB}, 40
    s_add_u32 s{sT0}, s{sT0}, s{sKQ}
    s_lshl_b32 s{sT0}, s{sT0}, 10
    s_add_u32 s{sT0}, s{sT0}, {OF_OFF}
    """)
    gstamp()
    c.e(f"v_lshlrev_b32 v{gT[2]}, 3, v{vL}")
    for i in range(10):
        c.e(f"buffer_load_dwordx2 {vr(goq+4*i,2)}, v{gT[2]}, {srd4}, s{sT0} offen sc1\nbuffer_load_dwordx2 {vr(goq+4*i+2,2)}, v{gT[2]}, {srd4}, s{sT0} offen offset:512 sc1\ns_add_u32 s{sT0}, s{sT0}, 4096")
    waits = [(18, None), (21, None), (24, None), (27, None), (25, None), (23, None), (21, 10), (10, 5), (5, 0), (0, None)]
    wo_steps(waits)
    gstamp()
    own = [0,0,0,1,1,1,2,2,3,3]
    c.e("s_nop 7\ns_nop 3\ns_barrier")
    for kq in range(4):
        c.e(f"s_cmp_eq_u32 s{sKQ}, {kq}\ns_cbranch_scc0 {name}_GX{kq}")
        c.e(f"v_add_u32 v{gT[5]}, {GRING}, v{gOffA}\nv_add_u32 v{gT[4]}, {GRING + 30720}, v{gOffA}")
        cnt = 0
        for p in range(10):
            if own[p] == kq: continue
            slot = kq if kq < own[p] else kq - 1
            off = p*6144 + slot*2048
            a_, o = (gT[5], off) if off < 30720 else (gT[4], off - 30720)
            for h in range(2):
                c.e(f"ds_write_b128 v{a_}, {vr(gacc + 8*p + 4*h, 4)} offset:{o + 1024*h}"); cnt += 1
                if cnt % 8 == 0: c.e("s_waitcnt lgkmcnt(4)")
        c.e(f"""
        v_and_b32 v{gT[0]}, 31, v{vL}
        s_lshl_b32 s{sT0}, s{sRB}, 5
        v_add_u32 v{gT[0]}, s{sT0}, v{gT[0]}
        v_mul_u32_u24 v{gT[0]}, 1280, v{gT[0]}
        v_lshrrev_b32 v{gT[2]}, 5, v{vL}
        v_lshl_add_u32 v{gT[0]}, v{gT[2]}, 4, v{gT[0]}
        s_mul_i32 s{sT0}, s{sCG}, 320
        s_waitcnt lgkmcnt(0)
        s_barrier
        """)
        mine = [p for p in range(10) if own[p] == kq]
        for ip, p in enumerate(mine):
            off = p*6144
            a_, o = (gT[5], off) if off < 30720 else (gT[4], off - 30720)
            t = gtmp + 24 + 4*(ip % 2)
            for h in range(2):
                for sl in range(3): c.e(f"ds_read_b128 {vr(gtmp+12*h+4*sl,4)}, v{a_} offset:{o + 2048*sl + 1024*h}")
            for h in range(2):
                for sl in range(3):
                    c.e(f"s_waitcnt lgkmcnt({5 - 3*h - sl})")
                    for r in range(4): c.e(f"v_add_f32 v{gacc+8*p+4*h+r}, v{gacc+8*p+4*h+r}, v{gtmp+12*h+4*sl+r}")
            for q in range(4): c.e(f"v_cvt_pk_bf16_f32 v{t+q}, v{gacc+8*p+2*q}, v{gacc+8*p+2*q+1}")
            c.e(f"""
            s_nop 1
            v_permlane32_swap_b32 v{t}, v{t+2}
            v_permlane32_swap_b32 v{t+1}, v{t+3}
            s_add_u32 s{sT2}, s{sT0}, {32*p}
            s_nop 0
            buffer_store_dwordx4 {vr(t,4)}, v{gT[0]}, s[{srdO}:{srdO+3}], s{sT2} offen{OM}
            """)
        c.e(f"s_branch {name}_GEND")
        c.label(f"{name}_GX{kq}")
    c.label(f"{name}_GEND")
    if stamps:
        c.e("s_waitcnt vmcnt(0)")
        gstamp()
        c.e(f"""
        s_lshl_b32 s{sT0}, s2, 2
        s_add_u32 s{sT0}, s{sT0}, s{sKQ}
        s_lshl_b32 s{sT0}, s{sT0}, 5
        s_add_u32 s{sT0}, s{sT0}, {STAMP_OFF + 2*65536}
        v_mov_b32 v{gT[2]}, 0
        """)
        for i in range(gi[0]):
            c.e(f"v_mov_b32 v{gT[3]}, s{gs+2*i}\nbuffer_store_dword v{gT[3]}, v{gT[2]}, {srd4}, s{sT0} offen offset:{4*i}\ns_nop 1")
    c.e("s_endpgm")
    c.label(f"{name}_FIN")
    if stamps: c.e("s_waitcnt vmcnt(0)")
    ST.i = 4; ST.stamp(c); ST.stamp(c, real=True)
    if stamps: ST.i = 8
    ST.flush(c, sW, srdWS, vT[2], vT[3], sT0)
    c.e(f"""
    {name}_END:
    s_endpgm
    """)
    def S(kh, unsafe=False, fb=False):
        d = {f"{name}_END": False, f"{name}_LOOP_NODMA": (lambda k: k % 3 == 2), f"{name}_LOOPFB_NODMA": (lambda k: k % 3 == 2), f"{name}_NOSWAP": kh == 0, f"{name}_SAFE": not unsafe,
             f"{name}_FALLBACK": (lambda k: k == 0 and fb), f"{name}_FB_NOSWAP": kh == 0}
        return d
    scen = {"kh0": S(0), "kh1": S(1), "fb": S(1, True, True)}
    for k_ in scen:
        scen[k_][f"{name}_NOPOLL"] = (k_ == "kh1"); scen[k_][f"{name}_POLLQOK"] = (lambda k: k >= 1); scen[k_][f"{name}_POLLQ"] = True
    for k_ in scen: scen[k_][f"{name}_NPH"] = False
    for k_ in scen: scen[k_][f"{name}_GW"] = False; scen[k_][f"{name}_FIN"] = (k_ == "kh1")
    for kq in range(4):
        d = {f"{name}_END": False, f"{name}_GW": True, f"{name}_GNOFB": kq % 2 == 0, f"{name}_GO": ((lambda k: k >= 1) if kq != 1 else True), f"{name}_POLL": True, f"{name}_POLLHOK": (lambda k: k >= 1), f"{name}_POLLH": True}
        for q in range(4): d[f"{name}_GX{q}"] = (q != kq)
        scen[f"g{kq}"] = d
    return c, max(V.hi, Vg.hi), scen, K2_LDS
    return c, V.hi, scen, K2_LDS

if __name__ == "__main__":
    c, nv, scen, lds = gen_k2()
    errs = check(c.lines, scen, "k2")
    print("vgprs", nv, "lds", lds, "lines", len(c.lines))
    for e in errs[:40]: print(e)
```

```python
from common import *
NST = 20
WSLOT = 24576; WRING = 4; UOFF = 12288
XSLOT = 16384; XRING = 3
XBASE = WSLOT*WRING
K1_LDS = XBASE + XSLOT*XRING
def mfma16(d, a, b, cz=None):
    return f"v_mfma_f32_16x16x32_bf16 {vr(d,4)}, {vr(a,4)}, {vr(b,4)}, " + (vr(d,4) if cz is None else str(cz))

def gen_k1(name="k1_kernel", stamps=False, exp="", fused=None):
    c = Code()
    SM = " sc1" if "SC1" in exp else (" sc0 sc1" if "SC01" in exp else ("" if "PLAIN" in exp else (" nt" if "NT" in exp else " sc1")))
    SMQ = SM; SMH = SM
    if "QP" in exp: SMQ = ""
    if "HP" in exp: SMH = ""
    if "QS" in exp: SMQ = " sc1"
    if "HS" in exp: SMH = " sc1"
    V = Alloc(168, 1, "v"); Sg = Alloc(100, 18, "s")
    sAX, sWQ, sGW, sWG, sWU, sWS = 4, 6, 10, 12, 14, 16
    PFG = not any(k in exp for k in ("PF2", "PFB", "PFW", "NOPF"))
    TCH = 1 if "TLB" in exp else 0
    if PFG: exp = exp + "NOPF"
    if 'PF2' not in exp and 'PFB' not in exp and 'NOPF' not in exp: exp = exp + "PFW"
    PF = 0 if 'NOPF' in exp else 3
    PFS = (17, 18) if 'LATE' in exp else ((2, 3) if 'EARLY' in exp else (5, 7))
    sX = Sg.take(); sJ = Sg.take(); sCG = Sg.take(); sRT = Sg.take(); sW = Sg.take(); sTH = Sg.take(); sCQ = Sg.take(); sSub = Sg.take()
    sT0 = Sg.take(); sT1 = Sg.take(); sT2 = Sg.take(); sT3 = Sg.take()
    srdX = Sg.take(4, 4); srdW = Sg.take(4, 4); srdWS = Sg.take(4, 4)
    sMw = Sg.take(); sMx = Sg.take(); sKx = Sg.take(); sKw = Sg.take(); sKwStep = Sg.take()
    sBase = Sg.take(); sHS = Sg.take(); sTS = Sg.take(); sScale = Sg.take()
    sWD = Sg.take(2, 2); srdP = Sg.take(4, 4); sDB = Sg.take(2, 2)
    ST = Stamps(Sg, stamps, 0)
    vL = V.take(); vT = [V.take() for _ in range(8)]
    vOffX = V.take(); vOffW = [V.take(), V.take()]
    vXA = [V.take(), V.take()]; vWA = [V.take() for _ in range(4)]; vWH = [V.take() for _ in range(4)]
    sets = [(V.take(16, 4), V.take(16, 4)) for _ in range(2)]
    acc = V.take(64, 4)
    vPF = V.take(); vPx = V.take(); vPw = V.take()
    vE = sets[0][0]
    aE = [V.take() for _ in range(4)]; aO = [V.take() for _ in range(4)]; aC = [V.take() for _ in range(5)]
    D = lambda fb, tb: acc + 16*fb + 4*tb

    c.e(f"""
    s_cmp_ge_u32 s2, 256
    s_cbranch_scc1 {name}_END
    s_load_dwordx4 s[4:7], s[0:1], {KA_AX}
    s_load_dwordx2 s[10:11], s[0:1], {KA_GW}
    s_load_dwordx4 s[12:15], s[0:1], {KA_WG}
    s_load_dwordx2 s[16:17], s[0:1], {KA_WS}
    s_load_dwordx2 s[8:9], s[0:1], {KA_WO}
    s_load_dwordx2 s[{sWD}:{sWD+1}], s[0:1], {KA_WD}
    """)
    if fused: c.e(f"s_load_dwordx2 s[{sDB}:{sDB+1}], s[0:1], {KA_DBG}")
    c.e(f"""
    v_and_b32 v{vL}, 63, v0
    v_lshrrev_b32 v{vT[0]}, 6, v0
    s_and_b32 s{sX}, s2, 7
    s_lshr_b32 s{sJ}, s2, 3
    v_readfirstlane_b32 s{sW}, v{vT[0]}
    s_and_b32 s{sT0}, s{sJ}, 1
    s_lshr_b32 s{sRT}, s{sJ}, 1
    """)
    if "MAP84" in exp:
        c.e(f"""
        s_and_b32 s{sT0}, s{sX}, 1
        s_lshl_b32 s{sT0}, s{sT0}, 3
        s_lshr_b32 s{sRT}, s{sJ}, 2
        s_add_u32 s{sRT}, s{sRT}, s{sT0}
        s_lshr_b32 s{sT0}, s{sX}, 1
        s_lshl_b32 s{sT0}, s{sT0}, 2
        s_and_b32 s{sT1}, s{sJ}, 3
        s_add_u32 s{sT0}, s{sT0}, s{sT1}
        s_lshl_b32 s{sT0}, s{sT0}, 2
        s_mov_b32 s{srdP}, 0x98317620
        s_mov_b32 s{srdP+1}, 0xFED5CBA4
        s_lshr_b64 s[{srdP}:{srdP+1}], s[{srdP}:{srdP+1}], s{sT0}
        s_and_b32 s{sCG}, s{srdP}, 15
        """)
    elif "OLDMAP" in exp:
        c.e(f"s_lshl_b32 s{sCG}, s{sX}, 1\ns_add_u32 s{sCG}, s{sCG}, s{sT0}")
    else:
        c.e(f"""
        s_mul_i32 s{sT1}, s{sT0}, 6
        s_add_u32 s{sT1}, s{sT1}, s{sX}
        s_lshl_b32 s{sCG}, s{sX}, 1
        s_add_u32 s{sCG}, s{sCG}, s{sT0}
        s_cmp_lt_u32 s{sX}, 6
        s_cselect_b32 s{sCG}, s{sT1}, s{sCG}
        """)
    if stamps: c.e('s_waitcnt lgkmcnt(0)\ns_memrealtime s[%d:%d]' % (ST.s, ST.s+1)); ST.i = 1; c.e('s_waitcnt lgkmcnt(0)')
    ST.stamp(c)
    if "TOUCH" in exp:
        c.e("s_waitcnt lgkmcnt(0)\ns_nop 2")
        tbl = [(sAX, 0, 2048*1280), (sAX, 1310720, 2048*1280), (sWQ, 0, 640*3840), (sWQ, 1228800, 640*3840), (sWG, 0, 640*3456), (sWG, 1105920, 640*3456),
               (sWU, 0, 640*3456), (sWU, 1105920, 640*3456), (sWS, QF_OFF, WS_BYTES), (sWS, KV_OFF + 2097152, WS_BYTES), (sWS, HF_OFF + 1048576, WS_BYTES), (sWS, HF_OFF + 4194304, WS_BYTES)]
        for i, (p, off, sz) in enumerate(tbl):
            c.e(f"""
            s_cmp_eq_u32 s{sW}, {i}
            s_cbranch_scc0 {name}_TCH{i}
            s_mov_b32 s{srdWS}, s{p}
            s_and_b32 s{srdWS+1}, s{p+1}, 0xffff
            s_mov_b32 s{srdWS+2}, {sz}
            s_mov_b32 s{srdWS+3}, 0x20000
            v_mov_b32 v{vT[1]}, {off}
            buffer_load_dword v{vPF}, v{vT[1]}, s[{srdWS}:{srdWS+3}], 0 offen
            {name}_TCH{i}:
            """)
    c.e(f"""
    v_lshrrev_b32 v{vT[1]}, 3, v{vL}
    v_lshrrev_b32 v{vT[2]}, 4, v{vL}
    s_lshl_b32 s{sT0}, s{sW}, 2
    v_add_u32 v{vT[2]}, s{sT0}, v{vT[2]}
    v_xor_b32 v{vT[2]}, v{vT[2]}, v{vL}
    v_and_b32 v{vT[2]}, 7, v{vT[2]}
    s_lshl_b32 s{sT0}, s{sRT}, 7
    s_lshl_b32 s{sT1}, s{sW}, 3
    s_add_u32 s{sT0}, s{sT0}, s{sT1}
    v_add_u32 v{vT[1]}, s{sT0}, v{vT[1]}
    v_mul_u32_u24 v{vT[1]}, 1280, v{vT[1]}
    v_lshl_add_u32 v{vOffX}, v{vT[2]}, 4, v{vT[1]}
    s_lshl_b32 s{sMx}, s{sW}, 10
    s_add_u32 s{sMx}, s{sMx}, {XBASE}
    s_and_b32 s{sTH}, s{sW}, 1
    s_lshr_b32 s{sCQ}, s{sW}, 1
    s_mov_b32 s{sSub}, 0
    s_cmp_eq_u32 s{sCG}, 15
    s_cbranch_scc1 {name}_GATE
    s_lshl_b32 s{sMw}, s{sW}, 11
    s_cmp_lt_u32 s{sCG}, 6
    s_cbranch_scc0 {name}_GLU
    """)
    def woff(i, nch, magic, rs):
        return f"""
        v_add_u32 v{vT[1]}, s{sT0}, v{vL}
        v_mul_u32_u24 v{vT[2]}, {magic}, v{vT[1]}
        v_lshrrev_b32 v{vT[2]}, 16, v{vT[2]}
        v_mul_u32_u24 v{vT[3]}, {nch}, v{vT[2]}
        v_sub_u32 v{vT[3]}, v{vT[1]}, v{vT[3]}
        v_lshrrev_b32 v{vT[4]}, 1, v{vT[2]}
        v_and_b32 v{vT[4]}, 4, v{vT[4]}
        v_and_or_b32 v{vT[4]}, v{vT[2]}, 2, v{vT[4]}
        v_xor_b32 v{vT[3]}, v{vT[3]}, v{vT[4]}
        v_mul_u32_u24 v{vT[2]}, {rs}, v{vT[2]}
        v_lshl_add_u32 v{vT[2]}, v{vT[3]}, 4, v{vT[2]}
        v_add_u32 v{vOffW[i]}, s{sT3}, v{vT[2]}
        s_add_u32 s{sT0}, s{sT0}, 64
        """
    c.e(f"""
    s_lshl_b32 s{sT0}, s{sW}, 7
    s_cmp_lt_u32 s{sW}, 8
    s_cbranch_scc1 {name}_QW
    s_add_u32 s{sT0}, s{sW}, 8
    s_lshl_b32 s{sMw}, s{sT0}, 10
    s_lshl_b32 s{sT0}, s{sT0}, 6
    s_and_b32 s{sSub}, s{sCQ}, 1
    s_mov_b32 s{sCQ}, 4
    {name}_QW:
    s_mul_i32 s{sT3}, s{sCG}, 640
    """)
    c.e(woff(0, 40, 1639, 3840)); c.e(woff(1, 40, 1639, 3840))
    c.e(f"s_mov_b32 s{sKwStep}, {32*3840}\ns_waitcnt lgkmcnt(0)")
    srd(c, srdW, sWQ, 640*3840)
    c.e(f"s_branch {name}_DEC")
    c.label(f"{name}_GLU")
    c.e(f"""
    s_cmp_lt_u32 s{sW}, 6
    s_cselect_b32 s{sT1}, 0, 6
    s_sub_u32 s{sT0}, s{sW}, s{sT1}
    s_lshl_b32 s{sT0}, s{sT0}, 7
    s_sub_u32 s{sT3}, s{sCG}, 6
    s_mul_i32 s{sT3}, s{sT3}, 384
    """)
    c.e(woff(0, 24, 2731, 3456)); c.e(woff(1, 24, 2731, 3456))
    c.e(f"""
    s_mov_b32 s{sKwStep}, {32*3456}
    s_waitcnt lgkmcnt(0)
    s_cmp_lt_u32 s{sW}, 6
    s_cselect_b32 s{srdW}, s{sWG}, s{sWU}
    s_cselect_b32 s{srdW+1}, s{sWG+1}, s{sWU+1}
    s_and_b32 s{srdW+1}, s{srdW+1}, 0xffff
    s_mov_b32 s{srdW+2}, {640*3456}
    s_mov_b32 s{srdW+3}, 0x20000
    """)
    c.label(f"{name}_DEC")
    srd(c, srdX, sAX, 2048*1280)
    if PF:
        srd(c, srdP, sAX, 2048*1280)
        c.e(f"v_mov_b32 v{vPx}, 0\nv_mov_b32 v{vPw}, 0")
    c.e(f"s_mov_b32 s{sKw}, 0")
    def qkv_params():
        c.e(f"""
        s_cmp_lt_u32 s{sCG}, 2
        {csel(sHS, QF_HS, KV_HS)}
        {csel(sTS, QF_TS, KV_TS)}
        {csel(sBase, QF_OFF, KV_OFF)}
        {csel(sScale, hexf(LOG2E*20**-0.5), hexf(1.0))}
        s_cmp_lt_u32 s{sCG}, 4
        s_cselect_b32 s{sBase}, s{sBase}, {KV_OFF + 1280}
        """)
    def qk_addr():
        c.e(f"""
        v_and_b32 v{vT[0]}, 15, v{vL}
        v_lshrrev_b32 v{vT[1]}, 4, v{vL}
        s_lshl_b32 s{sT0}, s{sCQ}, 4
        v_add_u32 v{vT[1]}, s{sT0}, v{vT[1]}
        s_mul_i32 s{sT1}, s{sTH}, 2560
        s_mul_i32 s{sT2}, s{sSub}, 1280
        s_add_u32 s{sT1}, s{sT1}, s{sT2}
        """)
        for fb in range(4):
            c.e(f"""
            v_add_u32 v{vT[2]}, {4*fb}, v{vT[1]}
            v_mul_u32_u24 v{vT[3]}, 13108, v{vT[2]}
            v_lshrrev_b32 v{vT[3]}, 16, v{vT[3]}
            v_mul_u32_u24 v{vT[4]}, 5, v{vT[3]}
            v_sub_u32 v{vT[4]}, v{vT[2]}, v{vT[4]}
            v_mul_u32_u24 v{vT[3]}, 5120, v{vT[3]}
            v_add_u32 v{vT[3]}, s{sT1}, v{vT[3]}
            v_lshrrev_b32 v{vT[5]}, 1, v{vT[4]}
            v_lshlrev_b32 v{vT[5]}, 9, v{vT[5]}
            v_and_b32 v{vT[6]}, 1, v{vT[4]}
            v_lshl_add_u32 v{vT[5]}, v{vT[6]}, 3, v{vT[5]}
            v_lshl_add_u32 v{vT[5]}, v{vT[0]}, 4, v{vT[5]}
            v_lshlrev_b32 v{vT[6]}, 3, v{vT[0]}
            v_add_u32 v{vT[6]}, 1024, v{vT[6]}
            v_cmp_eq_u32 vcc, 4, v{vT[4]}
            v_mov_b32 v{vT[7]}, 256
            v_mov_b32 v{vT[2]}, 128
            v_cndmask_b32 v{vT[5]}, v{vT[5]}, v{vT[6]}, vcc
            v_cndmask_b32 v{vT[7]}, v{vT[7]}, v{vT[2]}, vcc
            v_add_u32 v{aE[fb]}, v{vT[3]}, v{vT[5]}
            v_add_u32 v{aO[fb]}, v{aE[fb]}, v{vT[7]}
            """)

    def v_addr():
        c.e(f"""
        v_and_b32 v{vT[0]}, 15, v{vL}
        v_lshrrev_b32 v{vT[1]}, 4, v{vL}
        s_lshl_b32 s{sT0}, s{sCQ}, 6
        v_add_u32 v{vT[0]}, s{sT0}, v{vT[0]}
        v_and_b32 v{vT[2]}, 1, v{vT[1]}
        v_mul_u32_u24 v{vT[2]}, 320, v{vT[2]}
        v_lshrrev_b32 v{vT[1]}, 1, v{vT[1]}
        v_lshl_add_u32 v{vT[1]}, v{vT[1]}, 3, v{vT[2]}
        s_mul_i32 s{sT1}, s{sTH}, 2560
        s_mul_i32 s{sT2}, s{sSub}, 1280
        s_add_u32 s{sT1}, s{sT1}, s{sT2}
        v_add_u32 v{vT[1]}, s{sT1}, v{vT[1]}
        """)
        for fb in range(4):
            c.e(f"""
            v_add_u32 v{vT[2]}, {16*fb}, v{vT[0]}
            v_mul_u32_u24 v{vT[3]}, 3277, v{vT[2]}
            v_lshrrev_b32 v{vT[3]}, 16, v{vT[3]}
            v_mul_u32_u24 v{vT[4]}, 20, v{vT[3]}
            v_sub_u32 v{vT[4]}, v{vT[2]}, v{vT[4]}
            v_mul_u32_u24 v{vT[3]}, 5120, v{vT[3]}
            v_lshl_add_u32 v{vT[3]}, v{vT[4]}, 4, v{vT[3]}
            v_add_u32 v{aE[fb]}, v{vT[3]}, v{vT[1]}
            """)

    def c_addr():
        for k in range(5):
            c.e(f"""
            v_add_u32 v{vT[1]}, {64*k}, v{vL}
            v_mul_u32_u24 v{vT[2]}, 820, v{vT[1]}
            v_lshrrev_b32 v{vT[2]}, 16, v{vT[2]}
            v_mul_u32_u24 v{vT[3]}, 80, v{vT[2]}
            v_sub_u32 v{vT[3]}, v{vT[1]}, v{vT[3]}
            v_mul_lo_u32 v{vT[2]}, v{vT[2]}, s{sTS}
            v_lshl_add_u32 v{aC[k]}, v{vT[3]}, 4, v{vT[2]}
            """)

    def pf_setup(glu):
        if not PF or "PFW" in exp: return
        c.e(f"""
        s_sub_u32 s{sT0}, s{sW}, 8
        s_lshl_b32 s{sT1}, s{sJ}, 6
        s_lshl_b32 s{sT2}, s{sT0}, 4
        s_add_u32 s{sT1}, s{sT1}, s{sT2}
        v_and_b32 v{vT[1]}, 15, v{vL}
        v_add_u32 v{vT[1]}, s{sT1}, v{vT[1]}
        v_mul_u32_u24 v{vPx}, 1280, v{vT[1]}
        """)
        if glu:
            c.e(f"""
            s_cmp_lt_u32 s{sT0}, 2
            s_cselect_b32 s{srdP}, s{sWG}, s{sWU}
            s_cselect_b32 s{srdP+1}, s{sWG+1}, s{sWU+1}
            s_and_b32 s{srdP+1}, s{srdP+1}, 0xffff
            s_mov_b32 s{srdP+2}, {640*3456}
            s_mov_b32 s{srdP+3}, 0x20000
            v_mul_u32_u24 v{vT[2]}, 21846, v{vL}
            v_lshrrev_b32 v{vT[2]}, 16, v{vT[2]}
            v_mul_u32_u24 v{vT[3]}, 3, v{vT[2]}
            v_sub_u32 v{vT[3]}, v{vL}, v{vT[3]}
            s_sub_u32 s{sT1}, s{sCG}, 6
            s_mul_i32 s{sT1}, s{sT1}, 384
            v_lshl_add_u32 v{vT[3]}, v{vT[3]}, 7, s{sT1}
            s_and_b32 s{sT1}, s{sT0}, 1
            """)
            c.e(f"""
            s_mul_i32 s{sT2}, s{sT1}, 5
            s_mul_i32 s{sT3}, s{sRT}, 10
            s_add_u32 s{sT2}, s{sT2}, s{sT3}
            s_add_u32 s{sT2}, s{sT2}, 96
            v_min_u32 v{vT[4]}, 4, v{vT[2]}
            v_add_u32 v{vT[4]}, s{sT2}, v{vT[4]}
            v_mul_u32_u24 v{vT[4]}, 3456, v{vT[4]}
            v_add_u32 v{vT[4]}, v{vT[4]}, v{vT[3]}
            s_lshl_b32 s{sT2}, s{sT1}, 1
            s_lshl_b32 s{sT3}, s{sRT}, 2
            s_add_u32 s{sT2}, s{sT2}, s{sT3}
            v_min_u32 v{vT[5]}, 1, v{vT[2]}
            v_add_u32 v{vT[5]}, s{sT2}, v{vT[5]}
            v_mul_u32_u24 v{vT[5]}, 3456, v{vT[5]}
            v_add_u32 v{vPw}, v{vT[5]}, v{vT[3]}
            """)
        else:
            c.e(f"""
            s_mov_b32 s{srdP}, s{sWQ}
            s_and_b32 s{srdP+1}, s{sWQ+1}, 0xffff
            s_mov_b32 s{srdP+2}, {640*3840}
            s_mov_b32 s{srdP+3}, 0x20000
            v_mul_u32_u24 v{vT[2]}, 13108, v{vL}
            v_lshrrev_b32 v{vT[2]}, 16, v{vT[2]}
            v_mul_u32_u24 v{vT[3]}, 5, v{vT[2]}
            v_sub_u32 v{vT[3]}, v{vL}, v{vT[3]}
            s_mul_i32 s{sT1}, s{sCG}, 640
            v_lshl_add_u32 v{vT[3]}, v{vT[3]}, 7, s{sT1}
            s_mul_i32 s{sT2}, s{sT0}, 3
            s_mul_i32 s{sT3}, s{sRT}, 10
            s_add_u32 s{sT2}, s{sT2}, s{sT3}
            s_add_u32 s{sT2}, s{sT2}, 96
            v_min_u32 v{vT[4]}, 2, v{vT[2]}
            v_add_u32 v{vT[4]}, s{sT2}, v{vT[4]}
            v_mul_u32_u24 v{vT[4]}, 3840, v{vT[4]}
            v_add_u32 v{vT[4]}, v{vT[4]}, v{vT[3]}
            s_lshl_b32 s{sT2}, s{sRT}, 2
            s_add_u32 s{sT2}, s{sT2}, s{sT0}
            s_mul_i32 s{sT2}, s{sT2}, 3840
            v_mul_u32_u24 v{vT[5]}, 13108, v{vL}
            v_lshrrev_b32 v{vT[5]}, 16, v{vT[5]}
            v_mul_u32_u24 v{vT[5]}, 5, v{vT[5]}
            v_sub_u32 v{vT[5]}, v{vL}, v{vT[5]}
            v_lshl_add_u32 v{vT[5]}, v{vT[5]}, 7, s{sT2}
            s_mul_i32 s{sT1}, s{sCG}, 640
            v_add_u32 v{vPw}, s{sT1}, v{vT[5]}
            """)
        if "PFW" in exp: return
        c.e(f"""
        s_movk_i32 s{sT1}, 256
        buffer_load_dword v{vPF}, v{vPx}, s[{srdX}:{srdX+3}], s{sT1} offen
        buffer_load_dword v{vPF}, v{vPx}, s[{srdX}:{srdX+3}], s{sT1} offen offset:128
        buffer_load_dword v{vPF}, v{vT[4]}, s[{srdP}:{srdP+3}], 0 offen
        """)
    def tlb_touch():
        if not TCH: return
        srd(c, srdWS, sWS, WS_BYTES)
        c.e(f"v_min_u32 v{vT[1]}, 15, v{vL}\nv_lshlrev_b32 v{vT[1]}, 20, v{vT[1]}\nbuffer_load_dword v{vPF}, v{vT[1]}, s[{srdWS}:{srdWS+3}], 0 offen")
    def pf_n(st):
        if not PF: return 0
        if "PFW" in exp: return 1 if st in PFS else 0
        if "PFB" in exp: return 1 if st in (13, 15) else 0
        return 1 if ((st % 2 == 0 and 0 <= st <= 10) or (st % 2 == 1 and st <= 11) or st in (13, 15)) else 0
    def pf_ops(st, rs):
        if not pf_n(st): return []
        if st in (PFS if "PFW" in exp else (13, 15)):
            p, nl, sz = (sWD, 17, 1728*1280) if st in (PFS[0], 13) else (8, 7, 640*1280)
            return [f"s_mov_b32 s{srdP}, s{p}", f"s_and_b32 s{srdP+1}, s{p+1}, 0xffff", f"s_mov_b32 s{srdP+2}, {sz}",
                    f"s_lshl_b32 s{sT2}, s2, 2", f"s_add_u32 s{sT2}, s{sT2}, s{sW}", f"s_sub_u32 s{sT2}, s{sT2}, 8", f"s_mul_i32 s{sT2}, s{sT2}, {nl*128}",
                    f"v_min_u32 v{vPw}, {nl-1}, v{vL}", f"v_lshlrev_b32 v{vPw}, 7, v{vPw}",
                    f"buffer_load_dword v{vPF}, v{vPw}, s[{srdP}:{srdP+3}], s{sT2} offen"]
        if st % 2 == 0:
            return [f"s_movk_i32 s{sT2}, {128*(st//2 + 4)}", f"buffer_load_dword v{vPF}, v{vPx}, s[{srdX}:{srdX+3}], s{sT2} offen"]
        rsz = 3456 if rs == 384 else 3840
        return [f"s_mov_b32 s{sT2}, {32*(st + 7)*rsz}", f"buffer_load_dword v{vPF}, v{vPw}, s[{srdP}:{srdP+3}], s{sT2} offen"]
    def dma_w(i, st):
        if "XD" in exp and st >= 3: return []
        return [f"s_add_u32 m0, s{sMw}, {(st % WRING)*WSLOT + 1024*i}", "s_nop 0", f"buffer_load_dwordx4 v{vOffW[i]}, s[{srdW}:{srdW+3}], s{sKw} offen lds"]
    def dma_x(u):
        if "XD" in exp and u >= 4: return []
        m, hf = u >> 1, u & 1
        return [f"s_add_u32 m0, s{sMx}, {(m % XRING)*XSLOT + hf*8192}", f"s_mov_b32 s{sKx}, {m*128 + hf*64*1280}", f"buffer_load_dwordx4 v{vOffX}, s[{srdX}:{srdX+3}], s{sKx} offen lds"]
    advw = [f"s_add_u32 s{sKw}, s{sKw}, s{sKwStep}"]
    c.e(f"""
    s_cmp_lt_u32 s{sW}, 8
    s_cbranch_scc0 {name}_PRO_NX
    """)
    if "SWAP" in exp:
        c.e(f"s_and_b32 s{sT0}, s{sRT}, 1\ns_cmp_eq_u32 s{sT0}, 1\ns_cbranch_scc1 {name}_SWP")
        c.e("\n".join(dma_x(0) + dma_w(0, 0) + dma_w(1, 0) + advw + dma_x(1)))
        c.e(f"s_branch {name}_SWD\n{name}_SWP:")
        c.e("\n".join(dma_w(0, 0) + dma_w(1, 0) + advw + dma_x(0) + dma_x(1)))
        c.label(f"{name}_SWD")
    else:
        c.e("\n".join(dma_x(0) + dma_w(0, 0) + dma_w(1, 0) + advw + dma_x(1)))
    c.e("\n".join(dma_w(0, 1) + dma_w(1, 1) + advw + dma_x(2) + dma_w(0, 2) + dma_w(1, 2) + advw + dma_x(3)))
    c.e(f"s_branch {name}_PRO_D")
    c.label(f"{name}_PRO_NX")
    c.e(f"s_cmp_lt_u32 s{sCG}, 6\ns_cbranch_scc1 {name}_PRO_H")
    for st in range(3): c.e("\n".join(dma_w(0, st) + dma_w(1, st) + advw))
    pf_setup(True); tlb_touch()
    c.e(f"s_branch {name}_PRO_D")
    c.label(f"{name}_PRO_H")
    for st in range(3): c.e("\n".join(dma_w(0, st) + advw))
    pf_setup(False); tlb_touch()
    c.label(f"{name}_PRO_D")
    c.e(f"""
    v_and_b32 v{vT[1]}, 15, v{vL}
    v_lshrrev_b32 v{vT[2]}, 4, v{vL}
    v_lshrrev_b32 v{vT[3]}, 1, v{vT[1]}
    v_xor_b32 v{vT[3]}, v{vT[3]}, v{vT[2]}
    v_lshlrev_b32 v{vT[3]}, 4, v{vT[3]}
    v_lshl_add_u32 v{vT[3]}, v{vT[1]}, 7, v{vT[3]}
    s_lshl_b32 s{sT0}, s{sTH}, 13
    s_lshl_b32 s{sT1}, s{sSub}, 12
    s_add_u32 s{sT0}, s{sT0}, s{sT1}
    s_add_u32 s{sT0}, s{sT0}, {XBASE}
    v_add_u32 v{vXA[0]}, s{sT0}, v{vT[3]}
    v_xor_b32 v{vXA[1]}, 64, v{vXA[0]}
    v_lshrrev_b32 v{vT[3]}, 2, v{vT[1]}
    v_lshl_add_u32 v{vT[4]}, v{vT[2]}, 3, v{vT[3]}
    v_lshrrev_b32 v{vT[3]}, 1, v{vT[3]}
    v_and_b32 v{vT[5]}, 1, v{vT[2]}
    v_lshl_or_b32 v{vT[3]}, v{vT[5]}, 1, v{vT[3]}
    v_and_b32 v{vT[5]}, 3, v{vT[1]}
    v_lshlrev_b32 v{vT[5]}, 3, v{vT[5]}
    s_cmp_lt_u32 s{sCG}, 6
    s_cbranch_scc0 {name}_RA_GLU
    v_mul_u32_u24 v{vT[4]}, 640, v{vT[4]}
    v_add_u32 v{vT[4]}, v{vT[4]}, v{vT[5]}
    s_lshl_b32 s{sT0}, s{sCQ}, 7
    v_add_u32 v{vT[4]}, s{sT0}, v{vT[4]}
    """)
    for fb in range(4):
        c.e(f"v_xor_b32 v{vT[6]}, {fb}, v{vT[3]}\nv_lshl_add_u32 v{vWA[fb]}, v{vT[6]}, 5, v{vT[4]}")
    c.e(f"s_branch {name}_RA")
    c.label(f"{name}_RA_GLU")
    c.e(f"""
    v_mul_u32_u24 v{vT[4]}, 384, v{vT[4]}
    v_add_u32 v{vT[4]}, v{vT[4]}, v{vT[5]}
    """)
    for f in range(2):
        c.e(f"""
        s_lshl_b32 s{sT0}, s{sCQ}, 1
        s_add_u32 s{sT0}, s{sT0}, {f}
        s_and_b32 s{sT1}, s{sT0}, 3
        s_andn2_b32 s{sT0}, s{sT0}, 3
        s_lshl_b32 s{sT0}, s{sT0}, 5
        v_xor_b32 v{vT[6]}, s{sT1}, v{vT[3]}
        v_lshl_add_u32 v{vT[6]}, v{vT[6]}, 5, v{vT[4]}
        v_add_u32 v{vWA[f]}, s{sT0}, v{vT[6]}
        v_add_u32 v{vWA[2+f]}, {UOFF}, v{vWA[f]}
        """)
    c.label(f"{name}_RA")
    for fb in range(4): c.e(f"v_add_u32 v{vWH[fb]}, {2*WSLOT}, v{vWA[fb]}")
    srd(c, srdWS, sWS, WS_BYTES)
    for r_ in aE + aO + aC: c.e(f"v_mov_b32 v{r_}, 0")
    c.e(f"s_cmp_lt_u32 s{sCG}, 6\ns_cbranch_scc0 {name}_NOEA")
    qkv_params(); c_addr()
    c.e(f"s_cmp_lt_u32 s{sCG}, 4\ns_cbranch_scc0 {name}_EAV")
    qk_addr()
    c.e(f"s_branch {name}_NOEA")
    c.label(f"{name}_EAV")
    v_addr()
    c.label(f"{name}_NOEA")
    ST.stamp(c)
    c.e(f"""
    s_cmp_lt_u32 s{sW}, 8
    s_cselect_b32 s{sT1}, 0, 1
    s_cmp_lt_u32 s{sCG}, 4
    s_cselect_b32 s{sT0}, 0, 2
    s_cmp_lt_u32 s{sCG}, 6
    s_cselect_b32 s{sT0}, s{sT0}, 4
    s_add_u32 s{sT0}, s{sT0}, s{sT1}
    """)
    variants = [("QK", 1, 4, 2), ("QK", 0, 2, 1), ("V", 1, 4, 2), ("V", 0, 2, 1), ("GLU", 1, 4, 2), ("GLU", 0, 4, 2)]
    for i in range(1, 6): c.e(f"s_cmp_eq_u32 s{sT0}, {i}\ns_cbranch_scc1 {name}_VAR{i}")
    def reads(st, rs, ntb=4):
        xs, ws_ = sets[st % 2]; p = st & 1; xslot = (st >> 1) % XRING; wsl = st % WRING
        base = vWA if wsl < 2 else vWH; so = (wsl & 1)*WSLOT
        L = []
        if "XR" in exp and st > 1: return ["s_nop 0"]*(8 + ntb)
        for i in range(4):
            L.append(f"ds_read_b64_tr_b16 {vr(ws_+4*i,2)}, v{base[i]} offset:{so}")
            L.append(f"ds_read_b64_tr_b16 {vr(ws_+4*i+2,2)}, v{base[i]} offset:{so + 4*rs}")
            if i < ntb: L.append(f"ds_read_b128 {vr(xs+4*i,4)}, v{vXA[p]} offset:{xslot*XSLOT + 2048*i}")
        return L
    def mfmas(st, role, ntb=4):
        if "XM" in exp and st > 0: return ["s_nop 0"]*(4*ntb)
        xs, ws_ = sets[st % 2]; L = []
        for fb in range(4):
            for tb in range(ntb):
                cz = 0 if st == 0 else None
                L.append(mfma16(D(fb, tb), ws_+4*fb, xs+4*tb, cz) if role != "V" else mfma16(D(fb, tb), xs+4*tb, ws_+4*fb, cz))
        return L
    for vi, (role, nx, ntb, nw) in enumerate(variants):
        if vi: c.label(f"{name}_VAR{vi}")
        rs = 384 if role == "GLU" else 640
        def cnt(x): return ((nw if x + 3 < NST else 0) + (nx if x + 4 < NST else 0))
        def wd(st): return sum([dma_w(i, st) for i in range(nw)], [])
        def allowed(st):
            if "XD" in exp: return 0
            n = cnt(st-2) + cnt(st-1)
            if nx == 0: n += sum(pf_n(x) for x in range(max(st-3, 0), st)) + (PF if (st <= 2 and 'PFW' not in exp) else 0) + (TCH if st <= 2 else 0)
            return n
        pfo = (lambda st: pf_ops(st, rs)) if nx == 0 else (lambda st: [])
        for st in range(NST + 1):
            rd = reads(st, rs, ntb) if st < NST else []
            if st == 0:
                c.e(f"s_waitcnt vmcnt({allowed(0)})\ns_barrier")
                c.e("\n".join(rd))
                c.e("\n".join(wd(3) + advw + (dma_x(4) if nx else []) + pfo(0)))
                continue
            m = mfmas(st - 1, role, ntb)
            nm = len(m)
            g = {}
            pre = [f"s_waitcnt vmcnt({allowed(st)})", "s_barrier"] if st < NST else []
            if ntb == 4:
                g[0] = pre + rd[0:2]
                k = 2
                for i in range(1, 11):
                    g[i] = rd[k:k+1]; k += 1
                if st < NST:
                    if st + 3 < NST:
                        g[11] = dma_w(0, st+3); g[13] = dma_w(1, st+3) + advw
                    if nx and st + 4 < NST: g[15] = dma_x(st+4)
                    g[15] = g.get(15, []) + pfo(st)
            else:
                g[0] = pre + rd[0:2]
                for i in range(1, 5): g[i] = rd[2*i:2*i+2]
                if st < NST and st + 3 < NST: g[6] = dma_w(0, st+3) + advw
                if st < NST: g[7] = pfo(st)
            c.e("s_waitcnt lgkmcnt(0)")
            out = []
            for i, x in enumerate(m):
                out.append(x); out += g.get(i, [])
            c.e("\n".join(out))
            if stamps and st in (3, 15):
                r = ST.s + 2*(5 if st == 3 else 6); c.e(f"{'s_memrealtime' if Stamps.RT else 's_memtime'} s[{r}:{r+1}]")
        c.e(f"s_branch {name}_EPI_{role}" + ("H" if ntb == 2 else ""))
    c.label(f"{name}_EPI_GLU")
    ST.i = 3; ST.stamp(c, wait=True)
    c.e(f"""
    s_lshl_b32 s{sT0}, s{sRT}, 2
    s_lshl_b32 s{sT1}, s{sTH}, 1
    s_add_u32 s{sT0}, s{sT0}, s{sT1}
    s_mul_i32 s{sBase}, s{sT0}, 108
    s_sub_u32 s{sT1}, s{sCG}, 6
    s_mul_i32 s{sT1}, s{sT1}, 12
    s_add_u32 s{sBase}, s{sBase}, s{sT1}
    s_lshl_b32 s{sT1}, s{sCQ}, 1
    s_add_u32 s{sBase}, s{sBase}, s{sT1}
    s_lshl_b32 s{sBase}, s{sBase}, 10
    s_add_u32 s{sBase}, s{sBase}, {HF_OFF}
    v_and_b32 v{vT[1]}, 15, v{vL}
    v_lshrrev_b32 v{vT[2]}, 4, v{vL}
    v_and_b32 v{vT[3]}, 1, v{vT[2]}
    v_lshlrev_b32 v{vT[3]}, 9, v{vT[3]}
    v_lshl_add_u32 v{vT[3]}, v{vT[1]}, 4, v{vT[3]}
    v_lshrrev_b32 v{vT[2]}, 1, v{vT[2]}
    v_lshl_add_u32 v{vT[0]}, v{vT[2]}, 3, v{vT[3]}
    s_mov_b32 s{sT1}, {hexf(-LOG2E)}
    s_add_u32 s{sT2}, s{sBase}, {108*1024}
    """)
    for tb in range(4):
        for f in range(2):
            g_, u_ = D(f, tb), D(2+f, tb)
            for r in range(4): c.e(f"v_mul_f32 v{g_+r}, s{sT1}, v{g_+r}")
        for f in range(2):
            for r in range(4): c.e(f"v_exp_f32 v{D(f,tb)+r}, v{D(f,tb)+r}")
        for f in range(2):
            for r in range(4): c.e(f"v_add_f32 v{D(f,tb)+r}, 1.0, v{D(f,tb)+r}")
        for f in range(2):
            for r in range(4): c.e(f"v_rcp_f32 v{D(f,tb)+r}, v{D(f,tb)+r}")
        for f in range(2):
            for r in range(4): c.e(f"v_mul_f32 v{D(f,tb)+r}, v{D(f,tb)+r}, v{D(2+f,tb)+r}")
        e = vE + 4*(tb % 4)
        for f in range(2):
            c.e(f"v_cvt_pk_bf16_f32 v{e+2*f}, v{D(f,tb)}, v{D(f,tb)+1}\nv_cvt_pk_bf16_f32 v{e+2*f+1}, v{D(f,tb)+2}, v{D(f,tb)+3}")
        for f in range(2):
            c.e(f"buffer_store_dwordx2 {vr(e+2*f,2)}, v{vT[0]}, s[{srdWS}:{srdWS+3}], s{sBase if tb < 2 else sT2} offen offset:{1024*f + 256*(tb & 1)}{SMH}")
    c.e(f"s_branch {name}_FIN")
    t2 = vE + 8
    for ntb in (4, 2):
        sfx = "" if ntb == 4 else "H"
        c.label(f"{name}_EPI_QK{sfx}")
        ST.i = 3; ST.stamp(c, wait=True)
        c.e("s_barrier")
        c.e(f"s_cmp_lt_u32 s{sCG}, 2\ns_cbranch_scc0 {name}_NOSCL{sfx}")
        if ntb == 2: c.e("s_nop 3")
        for fb in range(4):
            for tb in range(ntb):
                for r in range(4): c.e(f"v_mul_f32 v{D(fb,tb)+r}, s{sScale}, v{D(fb,tb)+r}")
        c.label(f"{name}_NOSCL{sfx}")
        if ntb == 2: c.e("s_nop 3")
        for fb in range(4):
            for tb in range(ntb):
                d = D(fb, tb)
                e = t2 + 2*((4*fb + tb) % 8)
                c.e(f"v_cvt_pk_bf16_f32 v{e}, v{d}, v{d+1}\nv_cvt_pk_bf16_f32 v{e+1}, v{d+2}, v{d+3}")
                c.e(f"ds_write_b64 v{aE[fb] if tb % 2 == 0 else aO[fb]}, {vr(e,2)} offset:{1280*(tb >> 1)}")
            c.e("s_waitcnt lgkmcnt(4)")
        c.e(f"s_branch {name}_COPY")
        c.label(f"{name}_EPI_V{sfx}")
        ST.i = 3; ST.stamp(c, wait=True)
        c.e("s_barrier")
        if ntb == 2: c.e("s_nop 5")
        for fb in range(4):
            for tb in range(ntb):
                d = D(fb, tb); e = t2 + 2*((4*fb + tb) % 8)
                c.e(f"v_cvt_pk_bf16_f32 v{e}, v{d}, v{d+1}\nv_cvt_pk_bf16_f32 v{e+1}, v{d+2}, v{d+3}")
                c.e(f"ds_write_b64 v{aE[fb]}, {vr(e,2)} offset:{1280*(tb >> 1) + 640*(tb & 1)}")
            c.e("s_waitcnt lgkmcnt(4)")
        c.e(f"s_branch {name}_COPY")
    c.label(f"{name}_COPY")
    c.e(f"""
    s_lshl_b32 s{sT0}, s{sRT}, 2
    s_mul_i32 s{sT0}, s{sT0}, s{sTS}
    s_add_u32 s{sBase}, s{sBase}, s{sT0}
    s_and_b32 s{sT0}, s{sCG}, 1
    s_lshl_b32 s{sT0}, s{sT0}, 4
    s_add_u32 s{sT0}, s{sT0}, s{sW}
    s_mul_i32 s{sT0}, s{sT0}, s{sHS}
    s_add_u32 s{sBase}, s{sBase}, s{sT0}
    s_mul_i32 s{sT1}, s{sW}, 5120
    v_lshl_add_u32 v{vT[0]}, v{vL}, 4, s{sT1}
    """)
    c.e("s_waitcnt lgkmcnt(0)\ns_barrier")
    c.label(f"{name}_CPL")
    for k in range(5): c.e(f"ds_read_b128 {vr(acc+4*k,4)}, v{vT[0]} offset:{1024*k}")
    for k in range(5):
        c.e(f"s_waitcnt lgkmcnt({4-k})")
        c.e(f"buffer_store_dwordx4 {vr(acc+4*k,4)}, v{aC[k]}, s[{srdWS}:{srdWS+3}], s{sBase} offen{SMQ}")
    c.e(f"""
    s_add_u32 s{sW}, s{sW}, 12
    s_cmp_lt_u32 s{sW}, 16
    s_cbranch_scc0 {name}_CPD
    s_mul_i32 s{sT0}, s{sHS}, 12
    s_add_u32 s{sBase}, s{sBase}, s{sT0}
    v_add_u32 v{vT[0]}, {12*5120}, v{vT[0]}
    s_branch {name}_CPL
    {name}_CPD:
    s_sub_u32 s{sW}, s{sW}, 12
    s_cmp_ge_u32 s{sW}, 12
    s_cselect_b32 s{sT0}, 12, 0
    s_sub_u32 s{sW}, s{sW}, s{sT0}
    s_branch {name}_FIN
    """)
    c.label(f"{name}_GATE")
    if PFG:
        c.e(f"s_cmp_ge_u32 s{sW}, 8\ns_cbranch_scc0 {name}_GATE2\ns_waitcnt lgkmcnt(0)")
        c.e(f"""
        s_lshl_b32 s{sT0}, s{sRT}, 2
        s_add_u32 s{sT0}, s{sT0}, s{sW}
        s_sub_u32 s{sT0}, s{sT0}, 8
        """)
        for (p, nl, per, sz) in ((sWD, 54, 5, 1728*1280), (8, 50, 2, 640*1280)):
            srd(c, srdP, p, sz)
            c.e(f"s_mul_i32 s{sT1}, s{sT0}, {nl*per*128}\nv_min_u32 v{vT[1]}, {nl-1}, v{vL}\nv_lshlrev_b32 v{vT[1]}, 7, v{vT[1]}")
            for i in range(per):
                c.e(f"buffer_load_dword v{vPF}, v{vT[1]}, s[{srdP}:{srdP+3}], s{sT1} offen\ns_add_u32 s{sT1}, s{sT1}, {nl*128}")
        if fused:
            c.e(f"s_cmp_eq_u32 s{sW}, 8\ns_cbranch_scc0 {name}_FIN")
            srd(c, srdWS, sWS, WS_BYTES); srd(c, srdP, sDB, 256)
            c.e(f"""
            s_mul_i32 s{sT0}, s{sRT}, {3*128}
            s_add_u32 s{sT0}, s{sT0}, {CNT_OFF}
            v_min_u32 v{vT[1]}, 2, v{vL}
            v_lshlrev_b32 v{vT[1]}, 7, v{vT[1]}
            v_mov_b32 v{vT[2]}, 0
            v_mov_b32 v{vT[3]}, 1
            s_mov_b64 exec, 7
            buffer_store_dword v{vT[2]}, v{vT[1]}, s[{srdWS}:{srdWS+3}], s{sT0} offen sc1
            s_waitcnt vmcnt(0)
            s_mov_b64 exec, 1
            buffer_atomic_add v{vT[3]}, v{vT[2]}, s[{srdP}:{srdP+3}], 0 offen
            s_mov_b64 exec, -1
            s_branch {name}_FIN
            """)
            c.e(f"{name}_GATE2:\ns_waitcnt lgkmcnt(0)")
        else:
            c.e(f"s_endpgm\n{name}_GATE2:\ns_waitcnt lgkmcnt(0)")
    else:
        c.e(f"s_cmp_ge_u32 s{sW}, 8\ns_cbranch_scc1 {name}_END\ns_waitcnt lgkmcnt(0)")
    srd(c, srdX, sAX, 2048*1280); srd(c, srdW, sGW, 1280); srd(c, srdWS, sWS, WS_BYTES)
    if not fused:
        c.e(f"""
        s_or_b32 s{sT0}, s{sRT}, s{sW}
        s_cmp_eq_u32 s{sT0}, 0
        s_cbranch_scc0 {name}_NOZ
        v_lshlrev_b32 v{vT[5]}, 7, v{vL}
        v_mov_b32 v{vT[4]}, 0
        s_mov_b32 s{sT0}, {CNT_OFF}
        s_mov_b64 exec, 0xff
        buffer_store_dword v{vT[4]}, v{vT[5]}, s[{srdWS}:{srdWS+3}], s{sT0} offen
        s_mov_b64 exec, -1
        {name}_NOZ:
        """)
    vGw = sets[0][0]; vGx = sets[0][0] + 8
    c.e(f"""
    v_lshlrev_b32 v{vT[5]}, 2, v{vL}
    s_lshl_b32 s{sT0}, s{sRT}, 7
    s_lshl_b32 s{sT1}, s{sW}, 4
    s_add_u32 s{sBase}, s{sT0}, s{sT1}
    s_mul_i32 s{sT1}, s{sBase}, 1280
    """)
    for i in range(5): c.e(f"buffer_load_dword v{vGw+i}, v{vT[5]}, s[{srdW}:{srdW+3}], 0 offen offset:{256*i}")
    NB_ = 8
    for bt in range(2):
        for rr in range(NB_):
            for i in range(5): c.e(f"buffer_load_dword v{vGx+5*rr+i}, v{vT[5]}, s[{srdX}:{srdX+3}], s{sT1} offen offset:{256*i}")
            c.e(f"s_add_u32 s{sT1}, s{sT1}, 1280")
        for rr in range(NB_):
            c.e(f"s_waitcnt vmcnt({5*(NB_-1-rr) + (rr if True else 0)})")
            for i in range(5):
                c.e(f"""
                v_lshlrev_b32 v{vT[0]}, 16, v{vGx+5*rr+i}
                v_and_b32 v{vT[1]}, 0xffff0000, v{vGx+5*rr+i}
                v_lshlrev_b32 v{vT[2]}, 16, v{vGw+i}
                v_and_b32 v{vT[3]}, 0xffff0000, v{vGw+i}
                v_mul_f32 v{vT[0]}, v{vT[0]}, v{vT[2]}
                v_mul_f32 v{vT[1]}, v{vT[1]}, v{vT[3]}
                v_cvt_pk_bf16_f32 v{vT[0]}, v{vT[0]}, v{vT[1]}
                v_lshlrev_b32 v{vT[2]}, 16, v{vT[0]}
                v_and_b32 v{vT[3]}, 0xffff0000, v{vT[0]}
                """)
                if i == 0: c.e(f"v_add_f32 v{vT[4]}, v{vT[2]}, v{vT[3]}")
                else: c.e(f"v_add_f32 v{vT[2]}, v{vT[2]}, v{vT[3]}\nv_add_f32 v{vT[4]}, v{vT[4]}, v{vT[2]}")
            for sh in ("row_shr:1", "row_shr:2", "row_shr:4", "row_shr:8"):
                c.e(f"s_nop 1\nv_add_f32_dpp v{vT[4]}, v{vT[4]}, v{vT[4]} {sh} row_mask:0xf bank_mask:0xf bound_ctrl:0")
            c.e(f"""
            s_nop 1
            v_readlane_b32 s{sT0}, v{vT[4]}, 15
            v_readlane_b32 s{sT2}, v{vT[4]}, 31
            v_readlane_b32 s{sT3}, v{vT[4]}, 47
            v_readlane_b32 s{sHS}, v{vT[4]}, 63
            s_nop 1
            v_mov_b32 v{vT[0]}, s{sT0}
            v_add_f32 v{vT[0]}, s{sT2}, v{vT[0]}
            v_add_f32 v{vT[0]}, s{sT3}, v{vT[0]}
            v_add_f32 v{vT[0]}, s{sHS}, v{vT[0]}
            v_cvt_pk_bf16_f32 v{vT[0]}, v{vT[0]}, v{vT[0]}
            v_lshlrev_b32 v{vT[0]}, 16, v{vT[0]}
            v_mul_f32 v{vT[0]}, {hexf(-LOG2E)}, v{vT[0]}
            v_exp_f32 v{vT[0]}, v{vT[0]}
            s_nop 0
            v_add_f32 v{vT[0]}, 1.0, v{vT[0]}
            v_rcp_f32 v{vT[0]}, v{vT[0]}
            s_nop 0
            v_cvt_pk_bf16_f32 v{vT[0]}, v{vT[0]}, v{vT[0]}
            v_lshlrev_b32 v{vT[6]}, 16, v{vT[0]}
            v_sub_f32 v{vT[1]}, 1.0, v{vT[6]}
            v_cvt_pk_bf16_f32 v{vT[1]}, v{vT[1]}, v{vT[1]}
            v_lshlrev_b32 v{vT[7]}, 16, v{vT[1]}
            s_lshl_b32 s{sT0}, s{sBase}, 3
            s_add_u32 s{sT0}, s{sT0}, {G_OFF}
            v_mov_b32 v{vT[2]}, 0
            s_mov_b64 exec, 1
            buffer_store_dwordx2 {vr(vT[6],2)}, v{vT[2]}, s[{srdWS}:{srdWS+3}], s{sT0} offen{" sc1" if fused else ""}
            s_mov_b64 exec, -1
            s_add_u32 s{sBase}, s{sBase}, 1
            """)
    if stamps:
        ST.i = 2; ST.stamp(c); ST.stamp(c)
    c.label(f"{name}_FIN")
    if fused:
        c.e("s_waitcnt lgkmcnt(0)")
        srd(c, srdWS, sWS, WS_BYTES); srd(c, srdP, sDB, 256)
        c.e(f"""
        v_mov_b32 v{vT[2]}, 0
        buffer_load_dword v{vT[4]}, v{vT[2]}, s[{srdP}:{srdP+3}], 0 offen sc1
        s_waitcnt vmcnt(0)
        """)
        if stamps:
            ST.i = 4; ST.stamp(c); c.e(f"s_memrealtime s[{ST.s+14}:{ST.s+15}]"); ST.i = 8
            c.e(f"s_cmp_ge_u32 s{sW}, 8\ns_cbranch_scc1 {name}_NOST")
            ST.flush(c, sW, srdWS, vT[2], vT[3], sT0)
            c.e(f"s_waitcnt vmcnt(0)\n{name}_NOST:")
        c.e(f"""
        s_barrier
        s_cmp_eq_u32 s{sW}, 0
        s_cbranch_scc0 {fused}
        s_mov_b32 s{sT2}, 0
        {name}_INITW:
        v_readfirstlane_b32 s{sT1}, v{vT[4]}
        s_add_u32 s{sT2}, s{sT2}, 1
        s_nop 3
        s_cmp_ge_u32 s{sT1}, 16
        s_cbranch_scc1 {name}_INITOK
        s_sleep 1
        v_mov_b32 v{vT[2]}, 0
        buffer_load_dword v{vT[4]}, v{vT[2]}, s[{srdP}:{srdP+3}], 0 offen sc1
        s_waitcnt vmcnt(0)
        s_cmp_lt_u32 s{sT2}, 0x40000
        s_cbranch_scc1 {name}_INITW
        {name}_INITOK:
        s_add_u32 s{sT0}, s{sRT}, {C_H}
        s_add_u32 s{sT1}, s{sRT}, {C_G}
        s_cmp_eq_u32 s{sCG}, 15
        s_cselect_b32 s{sT0}, s{sT1}, s{sT0}
        s_add_u32 s{sT1}, s{sCG}, {C_Q}
        s_cmp_lt_u32 s{sCG}, 6
        s_cselect_b32 s{sT0}, s{sT1}, s{sT0}
        s_lshl_b32 s{sT0}, s{sT0}, 7
        s_add_u32 s{sT0}, s{sT0}, {CNT_OFF}
        v_mov_b32 v{vT[2]}, 0
        v_mov_b32 v{vT[3]}, 1
        s_mov_b64 exec, 1
        buffer_atomic_add v{vT[3]}, v{vT[2]}, s[{srdWS}:{srdWS+3}], s{sT0} offen
        s_mov_b64 exec, -1
        s_branch {fused}
        """)
        c.e(f"{name}_END:\ns_endpgm")
    else:
        if stamps: c.e("s_waitcnt vmcnt(0)")
        ST.i = 4; ST.stamp(c)
        if stamps:
            c.e(f"s_memrealtime s[{ST.s+14}:{ST.s+15}]"); ST.i = 8
            c.e(f"s_cmp_ge_u32 s{sW}, 8\ns_cbranch_scc1 {name}_END")
        ST.flush(c, sW, srdWS, vT[2], vT[3], sT0)
        c.e(f"""
        {name}_END:
        s_endpgm
        """)
    def S(role, vi=0, idle=False):
        d = {f"{name}_END": False, f"{name}_GATE": role == "gate", f"{name}_GLU": role == "glu", f"{name}_RA_GLU": role == "glu",
             f"{name}_NOEA": role == "glu", f"{name}_EAV": role == "v", f"{name}_NOSCL": False, f"{name}_NOSCLH": False, f"{name}_NOZ": False, f"{name}_PRO_NX": vi % 2 == 1,
             f"{name}_PRO_H": role != "glu", f"{name}_QW": vi % 2 == 0, f"{name}_CPD": (lambda k: k >= 1)}
        for i in range(1, 6): d[f"{name}_VAR{i}"] = (i == vi)
        for i in range(12): d[f"{name}_TCH{i}"] = (i != 3)
        d[f"{name}_SWP"] = False; d[f"{name}_GATE2"] = True
        d[f"{name}_FIN"] = False; d[f"{name}_INITOK"] = (lambda k: k >= 1); d[f"{name}_INITW"] = True; d[f"{name}_NOST"] = False
        if fused: d[fused] = False
        return d
    scen = {"qk1": S("qk", 0), "qk0": S("qk", 1), "v1": S("v", 2), "v0": S("v", 3), "glu1": S("glu", 4), "glu0": S("glu", 5), "gate": S("gate")}
    return c, V.hi, scen, K1_LDS

if __name__ == "__main__":
    c, nv, scen, lds = gen_k1()
    errs = check(c.lines, scen, "k1")
    print("vgprs", nv, "lds", lds, "lines", len(c.lines))
    for e in errs[:40]: print(e)
```

```python
from common import *
NST = 20
WSLOT = 24576; WRING = 4; UOFF = 12288
XSLOT = 16384; XRING = 3
XBASE = WSLOT*WRING
K1_LDS = XBASE + XSLOT*XRING
def mfma16(d, a, b, cz=None):
    return f"v_mfma_f32_16x16x32_bf16 {vr(d,4)}, {vr(a,4)}, {vr(b,4)}, " + (vr(d,4) if cz is None else str(cz))

def gen_k1(name="k1_kernel", stamps=False, exp="", fused=None):
    c = Code()
    SM = " sc1" if "SC1" in exp else (" sc0 sc1" if "SC01" in exp else ("" if "PLAIN" in exp else (" nt" if "NT" in exp else " sc1")))
    SMQ = SM; SMH = SM
    if "QP" in exp: SMQ = ""
    if "HP" in exp: SMH = ""
    if "QS" in exp: SMQ = " sc1"
    if "HS" in exp: SMH = " sc1"
    V = Alloc(168, 1, "v"); Sg = Alloc(100, 18, "s")
    sAX, sWQ, sGW, sWG, sWU, sWS = 4, 6, 10, 12, 14, 16
    PFG = not any(k in exp for k in ("PFB", "PFW", "NOPF"))
    TCH = 1 if "TLB" in exp else 0
    if PFG and "PF2" not in exp: exp = exp + "NOPF"
    if 'PF2' not in exp and 'PFB' not in exp and 'NOPF' not in exp: exp = exp + "PFW"
    PF = 0 if 'NOPF' in exp else 3
    PFS = (17, 18) if 'LATE' in exp else ((2, 3) if 'EARLY' in exp else (5, 7))
    sX = Sg.take(); sJ = Sg.take(); sCG = Sg.take(); sRT = Sg.take(); sW = Sg.take(); sTH = Sg.take(); sCQ = Sg.take(); sSub = Sg.take()
    sT0 = Sg.take(); sT1 = Sg.take(); sT2 = Sg.take(); sT3 = Sg.take()
    srdX = Sg.take(4, 4); srdW = Sg.take(4, 4); srdWS = Sg.take(4, 4)
    sMw = Sg.take(); sMx = Sg.take(); sKx = Sg.take(); sKw = Sg.take(); sKwStep = Sg.take()
    sBase = Sg.take(); sHS = Sg.take(); sTS = Sg.take(); sScale = Sg.take()
    sWD = Sg.take(2, 2); srdP = Sg.take(4, 4); sDB = Sg.take(2, 2)
    ST = Stamps(Sg, stamps, 0)
    vL = V.take(); vT = [V.take() for _ in range(8)]
    vOffX = V.take(); vOffW = [V.take(), V.take()]
    vXA = [V.take(), V.take()]; vWA = [V.take() for _ in range(4)]; vWH = [V.take() for _ in range(4)]
    sets = [(V.take(16, 4), V.take(16, 4)) for _ in range(2)]
    acc = V.take(64, 4)
    vPF = V.take(); vPx = V.take(); vPw = V.take()
    vE = sets[0][0]
    aE = [V.take() for _ in range(4)]; aO = [V.take() for _ in range(4)]; aC = [V.take() for _ in range(5)]
    D = lambda fb, tb: acc + 16*fb + 4*tb

    c.e(f"""
    s_cmp_ge_u32 s2, 256
    s_cbranch_scc1 {name}_END
    s_load_dwordx4 s[4:7], s[0:1], {KA_AX}
    s_load_dwordx2 s[10:11], s[0:1], {KA_GW}
    s_load_dwordx4 s[12:15], s[0:1], {KA_WG}
    s_load_dwordx2 s[16:17], s[0:1], {KA_WS}
    s_load_dwordx2 s[8:9], s[0:1], {KA_WO}
    s_load_dwordx2 s[{sWD}:{sWD+1}], s[0:1], {KA_WD}
    """)
    if fused: c.e(f"s_load_dwordx2 s[{sDB}:{sDB+1}], s[0:1], {KA_DBG}")
    c.e(f"""
    v_and_b32 v{vL}, 63, v0
    v_lshrrev_b32 v{vT[0]}, 6, v0
    s_and_b32 s{sX}, s2, 7
    s_lshr_b32 s{sJ}, s2, 3
    v_readfirstlane_b32 s{sW}, v{vT[0]}
    s_and_b32 s{sT0}, s{sJ}, 1
    s_lshr_b32 s{sRT}, s{sJ}, 1
    """)
    if "MAP84" in exp:
        c.e(f"""
        s_and_b32 s{sT0}, s{sX}, 1
        s_lshl_b32 s{sT0}, s{sT0}, 3
        s_lshr_b32 s{sRT}, s{sJ}, 2
        s_add_u32 s{sRT}, s{sRT}, s{sT0}
        s_lshr_b32 s{sT0}, s{sX}, 1
        s_lshl_b32 s{sT0}, s{sT0}, 2
        s_and_b32 s{sT1}, s{sJ}, 3
        s_add_u32 s{sT0}, s{sT0}, s{sT1}
        s_lshl_b32 s{sT0}, s{sT0}, 2
        s_mov_b32 s{srdP}, 0x98317620
        s_mov_b32 s{srdP+1}, 0xFED5CBA4
        s_lshr_b64 s[{srdP}:{srdP+1}], s[{srdP}:{srdP+1}], s{sT0}
        s_and_b32 s{sCG}, s{srdP}, 15
        """)
    elif "OLDMAP" in exp:
        c.e(f"s_lshl_b32 s{sCG}, s{sX}, 1\ns_add_u32 s{sCG}, s{sCG}, s{sT0}")
    else:
        c.e(f"""
        s_mul_i32 s{sT1}, s{sT0}, 6
        s_add_u32 s{sT1}, s{sT1}, s{sX}
        s_lshl_b32 s{sCG}, s{sX}, 1
        s_add_u32 s{sCG}, s{sCG}, s{sT0}
        s_cmp_lt_u32 s{sX}, 6
        s_cselect_b32 s{sCG}, s{sT1}, s{sCG}
        """)
    if stamps: c.e('s_waitcnt lgkmcnt(0)\ns_memrealtime s[%d:%d]' % (ST.s, ST.s+1)); ST.i = 1; c.e('s_waitcnt lgkmcnt(0)')
    ST.stamp(c)
    if "TOUCH" in exp:
        c.e("s_waitcnt lgkmcnt(0)\ns_nop 2")
        tbl = [(sAX, 0, 2048*1280), (sAX, 1310720, 2048*1280), (sWQ, 0, 640*3840), (sWQ, 1228800, 640*3840), (sWG, 0, 640*3456), (sWG, 1105920, 640*3456),
               (sWU, 0, 640*3456), (sWU, 1105920, 640*3456), (sWS, QF_OFF, WS_BYTES), (sWS, KV_OFF + 2097152, WS_BYTES), (sWS, HF_OFF + 1048576, WS_BYTES), (sWS, HF_OFF + 4194304, WS_BYTES)]
        for i, (p, off, sz) in enumerate(tbl):
            c.e(f"""
            s_cmp_eq_u32 s{sW}, {i}
            s_cbranch_scc0 {name}_TCH{i}
            s_mov_b32 s{srdWS}, s{p}
            s_and_b32 s{srdWS+1}, s{p+1}, 0xffff
            s_mov_b32 s{srdWS+2}, {sz}
            s_mov_b32 s{srdWS+3}, 0x20000
            v_mov_b32 v{vT[1]}, {off}
            buffer_load_dword v{vPF}, v{vT[1]}, s[{srdWS}:{srdWS+3}], 0 offen
            {name}_TCH{i}:
            """)
    c.e(f"""
    v_lshrrev_b32 v{vT[1]}, 3, v{vL}
    v_lshrrev_b32 v{vT[2]}, 4, v{vL}
    s_lshl_b32 s{sT0}, s{sW}, 2
    v_add_u32 v{vT[2]}, s{sT0}, v{vT[2]}
    v_xor_b32 v{vT[2]}, v{vT[2]}, v{vL}
    v_and_b32 v{vT[2]}, 7, v{vT[2]}
    s_lshl_b32 s{sT0}, s{sRT}, 7
    s_lshl_b32 s{sT1}, s{sW}, 3
    s_add_u32 s{sT0}, s{sT0}, s{sT1}
    v_add_u32 v{vT[1]}, s{sT0}, v{vT[1]}
    v_mul_u32_u24 v{vT[1]}, 1280, v{vT[1]}
    v_lshl_add_u32 v{vOffX}, v{vT[2]}, 4, v{vT[1]}
    s_lshl_b32 s{sMx}, s{sW}, 10
    s_add_u32 s{sMx}, s{sMx}, {XBASE}
    s_and_b32 s{sTH}, s{sW}, 1
    s_lshr_b32 s{sCQ}, s{sW}, 1
    s_mov_b32 s{sSub}, 0
    s_cmp_eq_u32 s{sCG}, 15
    s_cbranch_scc1 {name}_GATE
    s_lshl_b32 s{sMw}, s{sW}, 11
    s_cmp_lt_u32 s{sCG}, 6
    s_cbranch_scc0 {name}_GLU
    """)
    def woff(i, nch, magic, rs):
        return f"""
        v_add_u32 v{vT[1]}, s{sT0}, v{vL}
        v_mul_u32_u24 v{vT[2]}, {magic}, v{vT[1]}
        v_lshrrev_b32 v{vT[2]}, 16, v{vT[2]}
        v_mul_u32_u24 v{vT[3]}, {nch}, v{vT[2]}
        v_sub_u32 v{vT[3]}, v{vT[1]}, v{vT[3]}
        v_lshrrev_b32 v{vT[4]}, 1, v{vT[2]}
        v_and_b32 v{vT[4]}, 4, v{vT[4]}
        v_and_or_b32 v{vT[4]}, v{vT[2]}, 2, v{vT[4]}
        v_xor_b32 v{vT[3]}, v{vT[3]}, v{vT[4]}
        v_mul_u32_u24 v{vT[2]}, {rs}, v{vT[2]}
        v_lshl_add_u32 v{vT[2]}, v{vT[3]}, 4, v{vT[2]}
        v_add_u32 v{vOffW[i]}, s{sT3}, v{vT[2]}
        s_add_u32 s{sT0}, s{sT0}, 64
        """
    c.e(f"""
    s_lshl_b32 s{sT0}, s{sW}, 7
    s_cmp_lt_u32 s{sW}, 8
    s_cbranch_scc1 {name}_QW
    s_add_u32 s{sT0}, s{sW}, 8
    s_lshl_b32 s{sMw}, s{sT0}, 10
    s_lshl_b32 s{sT0}, s{sT0}, 6
    s_and_b32 s{sSub}, s{sCQ}, 1
    s_mov_b32 s{sCQ}, 4
    {name}_QW:
    s_mul_i32 s{sT3}, s{sCG}, 640
    """)
    c.e(woff(0, 40, 1639, 3840)); c.e(woff(1, 40, 1639, 3840))
    c.e(f"s_mov_b32 s{sKwStep}, {32*3840}\ns_waitcnt lgkmcnt(0)")
    srd(c, srdW, sWQ, 640*3840)
    c.e(f"s_branch {name}_DEC")
    c.label(f"{name}_GLU")
    c.e(f"""
    s_cmp_lt_u32 s{sW}, 6
    s_cselect_b32 s{sT1}, 0, 6
    s_sub_u32 s{sT0}, s{sW}, s{sT1}
    s_lshl_b32 s{sT0}, s{sT0}, 7
    s_sub_u32 s{sT3}, s{sCG}, 6
    s_mul_i32 s{sT3}, s{sT3}, 384
    """)
    c.e(woff(0, 24, 2731, 3456)); c.e(woff(1, 24, 2731, 3456))
    c.e(f"""
    s_mov_b32 s{sKwStep}, {32*3456}
    s_waitcnt lgkmcnt(0)
    s_cmp_lt_u32 s{sW}, 6
    s_cselect_b32 s{srdW}, s{sWG}, s{sWU}
    s_cselect_b32 s{srdW+1}, s{sWG+1}, s{sWU+1}
    s_and_b32 s{srdW+1}, s{srdW+1}, 0xffff
    s_mov_b32 s{srdW+2}, {640*3456}
    s_mov_b32 s{srdW+3}, 0x20000
    """)
    c.label(f"{name}_DEC")
    srd(c, srdX, sAX, 2048*1280)
    if PF:
        srd(c, srdP, sAX, 2048*1280)
        c.e(f"v_mov_b32 v{vPx}, 0\nv_mov_b32 v{vPw}, 0")
    c.e(f"s_mov_b32 s{sKw}, 0")
    def qkv_params():
        c.e(f"""
        s_cmp_lt_u32 s{sCG}, 2
        {csel(sHS, QF_HS, KV_HS)}
        {csel(sTS, QF_TS, KV_TS)}
        {csel(sBase, QF_OFF, KV_OFF)}
        {csel(sScale, hexf(LOG2E*20**-0.5), hexf(1.0))}
        s_cmp_lt_u32 s{sCG}, 4
        s_cselect_b32 s{sBase}, s{sBase}, {KV_OFF + 1280}
        """)
    def qk_addr():
        c.e(f"""
        v_and_b32 v{vT[0]}, 15, v{vL}
        v_lshrrev_b32 v{vT[1]}, 4, v{vL}
        s_lshl_b32 s{sT0}, s{sCQ}, 4
        v_add_u32 v{vT[1]}, s{sT0}, v{vT[1]}
        s_mul_i32 s{sT1}, s{sTH}, 2560
        s_mul_i32 s{sT2}, s{sSub}, 1280
        s_add_u32 s{sT1}, s{sT1}, s{sT2}
        """)
        for fb in range(4):
            c.e(f"""
            v_add_u32 v{vT[2]}, {4*fb}, v{vT[1]}
            v_mul_u32_u24 v{vT[3]}, 13108, v{vT[2]}
            v_lshrrev_b32 v{vT[3]}, 16, v{vT[3]}
            v_mul_u32_u24 v{vT[4]}, 5, v{vT[3]}
            v_sub_u32 v{vT[4]}, v{vT[2]}, v{vT[4]}
            v_mul_u32_u24 v{vT[3]}, 5120, v{vT[3]}
            v_add_u32 v{vT[3]}, s{sT1}, v{vT[3]}
            v_lshrrev_b32 v{vT[5]}, 1, v{vT[4]}
            v_lshlrev_b32 v{vT[5]}, 9, v{vT[5]}
            v_and_b32 v{vT[6]}, 1, v{vT[4]}
            v_lshl_add_u32 v{vT[5]}, v{vT[6]}, 3, v{vT[5]}
            v_lshl_add_u32 v{vT[5]}, v{vT[0]}, 4, v{vT[5]}
            v_lshlrev_b32 v{vT[6]}, 3, v{vT[0]}
            v_add_u32 v{vT[6]}, 1024, v{vT[6]}
            v_cmp_eq_u32 vcc, 4, v{vT[4]}
            v_mov_b32 v{vT[7]}, 256
            v_mov_b32 v{vT[2]}, 128
            v_cndmask_b32 v{vT[5]}, v{vT[5]}, v{vT[6]}, vcc
            v_cndmask_b32 v{vT[7]}, v{vT[7]}, v{vT[2]}, vcc
            v_add_u32 v{aE[fb]}, v{vT[3]}, v{vT[5]}
            v_add_u32 v{aO[fb]}, v{aE[fb]}, v{vT[7]}
            """)

    def v_addr():
        c.e(f"""
        v_and_b32 v{vT[0]}, 15, v{vL}
        v_lshrrev_b32 v{vT[1]}, 4, v{vL}
        s_lshl_b32 s{sT0}, s{sCQ}, 6
        v_add_u32 v{vT[0]}, s{sT0}, v{vT[0]}
        v_and_b32 v{vT[2]}, 1, v{vT[1]}
        v_mul_u32_u24 v{vT[2]}, 320, v{vT[2]}
        v_lshrrev_b32 v{vT[1]}, 1, v{vT[1]}
        v_lshl_add_u32 v{vT[1]}, v{vT[1]}, 3, v{vT[2]}
        s_mul_i32 s{sT1}, s{sTH}, 2560
        s_mul_i32 s{sT2}, s{sSub}, 1280
        s_add_u32 s{sT1}, s{sT1}, s{sT2}
        v_add_u32 v{vT[1]}, s{sT1}, v{vT[1]}
        """)
        for fb in range(4):
            c.e(f"""
            v_add_u32 v{vT[2]}, {16*fb}, v{vT[0]}
            v_mul_u32_u24 v{vT[3]}, 3277, v{vT[2]}
            v_lshrrev_b32 v{vT[3]}, 16, v{vT[3]}
            v_mul_u32_u24 v{vT[4]}, 20, v{vT[3]}
            v_sub_u32 v{vT[4]}, v{vT[2]}, v{vT[4]}
            v_mul_u32_u24 v{vT[3]}, 5120, v{vT[3]}
            v_lshl_add_u32 v{vT[3]}, v{vT[4]}, 4, v{vT[3]}
            v_add_u32 v{aE[fb]}, v{vT[3]}, v{vT[1]}
            """)

    def c_addr():
        for k in range(5):
            c.e(f"""
            v_add_u32 v{vT[1]}, {64*k}, v{vL}
            v_mul_u32_u24 v{vT[2]}, 820, v{vT[1]}
            v_lshrrev_b32 v{vT[2]}, 16, v{vT[2]}
            v_mul_u32_u24 v{vT[3]}, 80, v{vT[2]}
            v_sub_u32 v{vT[3]}, v{vT[1]}, v{vT[3]}
            v_mul_lo_u32 v{vT[2]}, v{vT[2]}, s{sTS}
            v_lshl_add_u32 v{aC[k]}, v{vT[3]}, 4, v{vT[2]}
            """)

    def pf_setup(glu):
        if not PF or "PFW" in exp: return
        c.e(f"""
        s_sub_u32 s{sT0}, s{sW}, 8
        s_lshl_b32 s{sT1}, s{sJ}, 6
        s_lshl_b32 s{sT2}, s{sT0}, 4
        s_add_u32 s{sT1}, s{sT1}, s{sT2}
        v_and_b32 v{vT[1]}, 15, v{vL}
        v_add_u32 v{vT[1]}, s{sT1}, v{vT[1]}
        v_mul_u32_u24 v{vPx}, 1280, v{vT[1]}
        """)
        if glu:
            c.e(f"""
            s_cmp_lt_u32 s{sT0}, 2
            s_cselect_b32 s{srdP}, s{sWG}, s{sWU}
            s_cselect_b32 s{srdP+1}, s{sWG+1}, s{sWU+1}
            s_and_b32 s{srdP+1}, s{srdP+1}, 0xffff
            s_mov_b32 s{srdP+2}, {640*3456}
            s_mov_b32 s{srdP+3}, 0x20000
            v_mul_u32_u24 v{vT[2]}, 21846, v{vL}
            v_lshrrev_b32 v{vT[2]}, 16, v{vT[2]}
            v_mul_u32_u24 v{vT[3]}, 3, v{vT[2]}
            v_sub_u32 v{vT[3]}, v{vL}, v{vT[3]}
            s_sub_u32 s{sT1}, s{sCG}, 6
            s_mul_i32 s{sT1}, s{sT1}, 384
            v_lshl_add_u32 v{vT[3]}, v{vT[3]}, 7, s{sT1}
            s_and_b32 s{sT1}, s{sT0}, 1
            """)
            c.e(f"""
            s_mul_i32 s{sT2}, s{sT1}, 5
            s_mul_i32 s{sT3}, s{sRT}, 10
            s_add_u32 s{sT2}, s{sT2}, s{sT3}
            s_add_u32 s{sT2}, s{sT2}, 96
            v_min_u32 v{vT[4]}, 4, v{vT[2]}
            v_add_u32 v{vT[4]}, s{sT2}, v{vT[4]}
            v_mul_u32_u24 v{vT[4]}, 3456, v{vT[4]}
            v_add_u32 v{vT[4]}, v{vT[4]}, v{vT[3]}
            s_lshl_b32 s{sT2}, s{sT1}, 1
            s_lshl_b32 s{sT3}, s{sRT}, 2
            s_add_u32 s{sT2}, s{sT2}, s{sT3}
            v_min_u32 v{vT[5]}, 1, v{vT[2]}
            v_add_u32 v{vT[5]}, s{sT2}, v{vT[5]}
            v_mul_u32_u24 v{vT[5]}, 3456, v{vT[5]}
            v_add_u32 v{vPw}, v{vT[5]}, v{vT[3]}
            """)
        else:
            c.e(f"""
            s_mov_b32 s{srdP}, s{sWQ}
            s_and_b32 s{srdP+1}, s{sWQ+1}, 0xffff
            s_mov_b32 s{srdP+2}, {640*3840}
            s_mov_b32 s{srdP+3}, 0x20000
            v_mul_u32_u24 v{vT[2]}, 13108, v{vL}
            v_lshrrev_b32 v{vT[2]}, 16, v{vT[2]}
            v_mul_u32_u24 v{vT[3]}, 5, v{vT[2]}
            v_sub_u32 v{vT[3]}, v{vL}, v{vT[3]}
            s_mul_i32 s{sT1}, s{sCG}, 640
            v_lshl_add_u32 v{vT[3]}, v{vT[3]}, 7, s{sT1}
            s_mul_i32 s{sT2}, s{sT0}, 3
            s_mul_i32 s{sT3}, s{sRT}, 10
            s_add_u32 s{sT2}, s{sT2}, s{sT3}
            s_add_u32 s{sT2}, s{sT2}, 96
            v_min_u32 v{vT[4]}, 2, v{vT[2]}
            v_add_u32 v{vT[4]}, s{sT2}, v{vT[4]}
            v_mul_u32_u24 v{vT[4]}, 3840, v{vT[4]}
            v_add_u32 v{vT[4]}, v{vT[4]}, v{vT[3]}
            s_lshl_b32 s{sT2}, s{sRT}, 2
            s_add_u32 s{sT2}, s{sT2}, s{sT0}
            s_mul_i32 s{sT2}, s{sT2}, 3840
            v_mul_u32_u24 v{vT[5]}, 13108, v{vL}
            v_lshrrev_b32 v{vT[5]}, 16, v{vT[5]}
            v_mul_u32_u24 v{vT[5]}, 5, v{vT[5]}
            v_sub_u32 v{vT[5]}, v{vL}, v{vT[5]}
            v_lshl_add_u32 v{vT[5]}, v{vT[5]}, 7, s{sT2}
            s_mul_i32 s{sT1}, s{sCG}, 640
            v_add_u32 v{vPw}, s{sT1}, v{vT[5]}
            """)
        if "PFW" in exp: return
        c.e(f"""
        s_movk_i32 s{sT1}, 256
        buffer_load_dword v{vPF}, v{vPx}, s[{srdX}:{srdX+3}], s{sT1} offen
        buffer_load_dword v{vPF}, v{vPx}, s[{srdX}:{srdX+3}], s{sT1} offen offset:128
        buffer_load_dword v{vPF}, v{vT[4]}, s[{srdP}:{srdP+3}], 0 offen
        """)
    def tlb_touch():
        if not TCH: return
        srd(c, srdWS, sWS, WS_BYTES)
        c.e(f"v_min_u32 v{vT[1]}, 15, v{vL}\nv_lshlrev_b32 v{vT[1]}, 20, v{vT[1]}\nbuffer_load_dword v{vPF}, v{vT[1]}, s[{srdWS}:{srdWS+3}], 0 offen")
    def pf_n(st):
        if not PF: return 0
        if "PFW" in exp: return 1 if st in PFS else 0
        if "PFB" in exp: return 1 if st in (13, 15) else 0
        return 1 if ((st % 2 == 0 and 0 <= st <= 10) or (st % 2 == 1 and st <= 11) or (st in (13, 15) and not PFG)) else 0
    def pf_ops(st, rs):
        if not pf_n(st): return []
        if st in (PFS if "PFW" in exp else (13, 15)):
            p, nl, sz = (sWD, 17, 1728*1280) if st in (PFS[0], 13) else (8, 7, 640*1280)
            return [f"s_mov_b32 s{srdP}, s{p}", f"s_and_b32 s{srdP+1}, s{p+1}, 0xffff", f"s_mov_b32 s{srdP+2}, {sz}",
                    f"s_lshl_b32 s{sT2}, s2, 2", f"s_add_u32 s{sT2}, s{sT2}, s{sW}", f"s_sub_u32 s{sT2}, s{sT2}, 8", f"s_mul_i32 s{sT2}, s{sT2}, {nl*128}",
                    f"v_min_u32 v{vPw}, {nl-1}, v{vL}", f"v_lshlrev_b32 v{vPw}, 7, v{vPw}",
                    f"buffer_load_dword v{vPF}, v{vPw}, s[{srdP}:{srdP+3}], s{sT2} offen"]
        if st % 2 == 0:
            return [f"s_movk_i32 s{sT2}, {128*(st//2 + 4)}", f"buffer_load_dword v{vPF}, v{vPx}, s[{srdX}:{srdX+3}], s{sT2} offen"]
        rsz = 3456 if rs == 384 else 3840
        return [f"s_mov_b32 s{sT2}, {32*(st + 7)*rsz}", f"buffer_load_dword v{vPF}, v{vPw}, s[{srdP}:{srdP+3}], s{sT2} offen"]
    def dma_w(i, st):
        if "XD" in exp and st >= 3: return []
        return [f"s_add_u32 m0, s{sMw}, {(st % WRING)*WSLOT + 1024*i}", "s_nop 0", f"buffer_load_dwordx4 v{vOffW[i]}, s[{srdW}:{srdW+3}], s{sKw} offen lds"]
    def dma_x(u):
        if "XD" in exp and u >= 4: return []
        m, hf = u >> 1, u & 1
        return [f"s_add_u32 m0, s{sMx}, {(m % XRING)*XSLOT + hf*8192}", f"s_mov_b32 s{sKx}, {m*128 + hf*64*1280}", f"buffer_load_dwordx4 v{vOffX}, s[{srdX}:{srdX+3}], s{sKx} offen lds"]
    advw = [f"s_add_u32 s{sKw}, s{sKw}, s{sKwStep}"]
    c.e(f"""
    s_cmp_lt_u32 s{sW}, 8
    s_cbranch_scc0 {name}_PRO_NX
    """)
    if "SWAP" in exp:
        c.e(f"s_and_b32 s{sT0}, s{sRT}, 1\ns_cmp_eq_u32 s{sT0}, 1\ns_cbranch_scc1 {name}_SWP")
        c.e("\n".join(dma_x(0) + dma_w(0, 0) + dma_w(1, 0) + advw + dma_x(1)))
        c.e(f"s_branch {name}_SWD\n{name}_SWP:")
        c.e("\n".join(dma_w(0, 0) + dma_w(1, 0) + advw + dma_x(0) + dma_x(1)))
        c.label(f"{name}_SWD")
    else:
        c.e("\n".join(dma_x(0) + dma_w(0, 0) + dma_w(1, 0) + advw + dma_x(1)))
    c.e("\n".join(dma_w(0, 1) + dma_w(1, 1) + advw + dma_x(2) + dma_w(0, 2) + dma_w(1, 2) + advw + dma_x(3)))
    c.e(f"s_branch {name}_PRO_D")
    c.label(f"{name}_PRO_NX")
    c.e(f"s_cmp_lt_u32 s{sCG}, 6\ns_cbranch_scc1 {name}_PRO_H")
    for st in range(3): c.e("\n".join(dma_w(0, st) + dma_w(1, st) + advw))
    pf_setup(True); tlb_touch()
    c.e(f"s_branch {name}_PRO_D")
    c.label(f"{name}_PRO_H")
    for st in range(3): c.e("\n".join(dma_w(0, st) + advw))
    pf_setup(False); tlb_touch()
    c.label(f"{name}_PRO_D")
    c.e(f"""
    v_and_b32 v{vT[1]}, 15, v{vL}
    v_lshrrev_b32 v{vT[2]}, 4, v{vL}
    v_lshrrev_b32 v{vT[3]}, 1, v{vT[1]}
    v_xor_b32 v{vT[3]}, v{vT[3]}, v{vT[2]}
    v_lshlrev_b32 v{vT[3]}, 4, v{vT[3]}
    v_lshl_add_u32 v{vT[3]}, v{vT[1]}, 7, v{vT[3]}
    s_lshl_b32 s{sT0}, s{sTH}, 13
    s_lshl_b32 s{sT1}, s{sSub}, 12
    s_add_u32 s{sT0}, s{sT0}, s{sT1}
    s_add_u32 s{sT0}, s{sT0}, {XBASE}
    v_add_u32 v{vXA[0]}, s{sT0}, v{vT[3]}
    v_xor_b32 v{vXA[1]}, 64, v{vXA[0]}
    v_lshrrev_b32 v{vT[3]}, 2, v{vT[1]}
    v_lshl_add_u32 v{vT[4]}, v{vT[2]}, 3, v{vT[3]}
    v_lshrrev_b32 v{vT[3]}, 1, v{vT[3]}
    v_and_b32 v{vT[5]}, 1, v{vT[2]}
    v_lshl_or_b32 v{vT[3]}, v{vT[5]}, 1, v{vT[3]}
    v_and_b32 v{vT[5]}, 3, v{vT[1]}
    v_lshlrev_b32 v{vT[5]}, 3, v{vT[5]}
    s_cmp_lt_u32 s{sCG}, 6
    s_cbranch_scc0 {name}_RA_GLU
    v_mul_u32_u24 v{vT[4]}, 640, v{vT[4]}
    v_add_u32 v{vT[4]}, v{vT[4]}, v{vT[5]}
    s_lshl_b32 s{sT0}, s{sCQ}, 7
    v_add_u32 v{vT[4]}, s{sT0}, v{vT[4]}
    """)
    for fb in range(4):
        c.e(f"v_xor_b32 v{vT[6]}, {fb}, v{vT[3]}\nv_lshl_add_u32 v{vWA[fb]}, v{vT[6]}, 5, v{vT[4]}")
    c.e(f"s_branch {name}_RA")
    c.label(f"{name}_RA_GLU")
    c.e(f"""
    v_mul_u32_u24 v{vT[4]}, 384, v{vT[4]}
    v_add_u32 v{vT[4]}, v{vT[4]}, v{vT[5]}
    """)
    for f in range(2):
        c.e(f"""
        s_lshl_b32 s{sT0}, s{sCQ}, 1
        s_add_u32 s{sT0}, s{sT0}, {f}
        s_and_b32 s{sT1}, s{sT0}, 3
        s_andn2_b32 s{sT0}, s{sT0}, 3
        s_lshl_b32 s{sT0}, s{sT0}, 5
        v_xor_b32 v{vT[6]}, s{sT1}, v{vT[3]}
        v_lshl_add_u32 v{vT[6]}, v{vT[6]}, 5, v{vT[4]}
        v_add_u32 v{vWA[f]}, s{sT0}, v{vT[6]}
        v_add_u32 v{vWA[2+f]}, {UOFF}, v{vWA[f]}
        """)
    c.label(f"{name}_RA")
    for fb in range(4): c.e(f"v_add_u32 v{vWH[fb]}, {2*WSLOT}, v{vWA[fb]}")
    srd(c, srdWS, sWS, WS_BYTES)
    for r_ in aE + aO + aC: c.e(f"v_mov_b32 v{r_}, 0")
    c.e(f"s_cmp_lt_u32 s{sCG}, 6\ns_cbranch_scc0 {name}_NOEA")
    qkv_params(); c_addr()
    c.e(f"s_cmp_lt_u32 s{sCG}, 4\ns_cbranch_scc0 {name}_EAV")
    qk_addr()
    c.e(f"s_branch {name}_NOEA")
    c.label(f"{name}_EAV")
    v_addr()
    c.label(f"{name}_NOEA")
    ST.stamp(c)
    c.e(f"""
    s_cmp_lt_u32 s{sW}, 8
    s_cselect_b32 s{sT1}, 0, 1
    s_cmp_lt_u32 s{sCG}, 4
    s_cselect_b32 s{sT0}, 0, 2
    s_cmp_lt_u32 s{sCG}, 6
    s_cselect_b32 s{sT0}, s{sT0}, 4
    s_add_u32 s{sT0}, s{sT0}, s{sT1}
    """)
    variants = [("QK", 1, 4, 2), ("QK", 0, 2, 1), ("V", 1, 4, 2), ("V", 0, 2, 1), ("GLU", 1, 4, 2), ("GLU", 0, 4, 2)]
    for i in range(1, 6): c.e(f"s_cmp_eq_u32 s{sT0}, {i}\ns_cbranch_scc1 {name}_VAR{i}")
    def reads(st, rs, ntb=4):
        xs, ws_ = sets[st % 2]; p = st & 1; xslot = (st >> 1) % XRING; wsl = st % WRING
        base = vWA if wsl < 2 else vWH; so = (wsl & 1)*WSLOT
        L = []
        if "XR" in exp and st > 1: return ["s_nop 0"]*(8 + ntb)
        for i in range(4):
            L.append(f"ds_read_b64_tr_b16 {vr(ws_+4*i,2)}, v{base[i]} offset:{so}")
            L.append(f"ds_read_b64_tr_b16 {vr(ws_+4*i+2,2)}, v{base[i]} offset:{so + 4*rs}")
            if i < ntb: L.append(f"ds_read_b128 {vr(xs+4*i,4)}, v{vXA[p]} offset:{xslot*XSLOT + 2048*i}")
        return L
    def mfmas(st, role, ntb=4):
        if "XM" in exp and st > 0: return ["s_nop 0"]*(4*ntb)
        xs, ws_ = sets[st % 2]; L = []
        for fb in range(4):
            for tb in (range(ntb) if (fb % 2 == 0 or "SNAKE" not in exp) else reversed(range(ntb))):
                cz = 0 if st == 0 else None
                L.append(mfma16(D(fb, tb), ws_+4*fb, xs+4*tb, cz) if role != "V" else mfma16(D(fb, tb), xs+4*tb, ws_+4*fb, cz))
        return L
    for vi, (role, nx, ntb, nw) in enumerate(variants):
        if vi: c.label(f"{name}_VAR{vi}")
        rs = 384 if role == "GLU" else 640
        def cnt(x): return ((nw if x + 3 < NST else 0) + (nx if x + 4 < NST else 0))
        def wd(st): return sum([dma_w(i, st) for i in range(nw)], [])
        def allowed(st):
            if "XD" in exp: return 0
            n = cnt(st-2) + cnt(st-1)
            if nx == 0: n += sum(pf_n(x) for x in range(max(st-3, 0), st)) + (PF if (st <= 2 and 'PFW' not in exp) else 0) + (TCH if st <= 2 else 0)
            return n
        pfo = (lambda st: pf_ops(st, rs)) if nx == 0 else (lambda st: [])
        for st in range(NST + 1):
            rd = reads(st, rs, ntb) if st < NST else []
            if st == 0:
                c.e(f"s_waitcnt vmcnt({allowed(0)})\ns_barrier")
                c.e("\n".join(rd))
                c.e("\n".join(wd(3) + advw + (dma_x(4) if nx else []) + pfo(0)))
                continue
            m = mfmas(st - 1, role, ntb)
            nm = len(m)
            g = {}
            pre = [f"s_waitcnt vmcnt({allowed(st)})", "s_barrier"] if st < NST else []
            if ntb == 4:
                g[0] = pre + rd[0:2]
                k = 2
                for i in range(1, 11):
                    g[i] = rd[k:k+1]; k += 1
                if st < NST:
                    if st + 3 < NST:
                        g[11] = dma_w(0, st+3); g[13] = dma_w(1, st+3) + advw
                    if nx and st + 4 < NST: g[15] = dma_x(st+4)
                    g[15] = g.get(15, []) + pfo(st)
            else:
                g[0] = pre + rd[0:2]
                for i in range(1, 5): g[i] = rd[2*i:2*i+2]
                if st < NST and st + 3 < NST: g[6] = dma_w(0, st+3) + advw
                if st < NST: g[7] = pfo(st)
            c.e("s_waitcnt lgkmcnt(0)")
            out = []
            for i, x in enumerate(m):
                out.append(x); out += g.get(i, [])
            c.e("\n".join(out))
            if stamps and st in (3, 15):
                r = ST.s + 2*(5 if st == 3 else 6); c.e(f"{'s_memrealtime' if Stamps.RT else 's_memtime'} s[{r}:{r+1}]")
        c.e(f"s_branch {name}_EPI_{role}" + ("H" if ntb == 2 else ""))
    c.label(f"{name}_EPI_GLU")
    ST.i = 3; ST.stamp(c, wait=True)
    c.e(f"""
    s_lshl_b32 s{sT0}, s{sRT}, 2
    s_lshl_b32 s{sT1}, s{sTH}, 1
    s_add_u32 s{sT0}, s{sT0}, s{sT1}
    s_mul_i32 s{sBase}, s{sT0}, 108
    s_sub_u32 s{sT1}, s{sCG}, 6
    s_mul_i32 s{sT1}, s{sT1}, 12
    s_add_u32 s{sBase}, s{sBase}, s{sT1}
    s_lshl_b32 s{sT1}, s{sCQ}, 1
    s_add_u32 s{sBase}, s{sBase}, s{sT1}
    s_lshl_b32 s{sBase}, s{sBase}, 10
    s_add_u32 s{sBase}, s{sBase}, {HF_OFF}
    v_and_b32 v{vT[1]}, 15, v{vL}
    v_lshrrev_b32 v{vT[2]}, 4, v{vL}
    v_and_b32 v{vT[3]}, 1, v{vT[2]}
    v_lshlrev_b32 v{vT[3]}, 9, v{vT[3]}
    v_lshl_add_u32 v{vT[3]}, v{vT[1]}, 4, v{vT[3]}
    v_lshrrev_b32 v{vT[2]}, 1, v{vT[2]}
    v_lshl_add_u32 v{vT[0]}, v{vT[2]}, 3, v{vT[3]}
    s_mov_b32 s{sT1}, {hexf(-LOG2E)}
    s_add_u32 s{sT2}, s{sBase}, {108*1024}
    """)
    for tb in range(4):
        for f in range(2):
            g_, u_ = D(f, tb), D(2+f, tb)
            for r in range(4): c.e(f"v_mul_f32 v{g_+r}, s{sT1}, v{g_+r}")
        for f in range(2):
            for r in range(4): c.e(f"v_exp_f32 v{D(f,tb)+r}, v{D(f,tb)+r}")
        for f in range(2):
            for r in range(4): c.e(f"v_add_f32 v{D(f,tb)+r}, 1.0, v{D(f,tb)+r}")
        for f in range(2):
            for r in range(4): c.e(f"v_rcp_f32 v{D(f,tb)+r}, v{D(f,tb)+r}")
        for f in range(2):
            for r in range(4): c.e(f"v_mul_f32 v{D(f,tb)+r}, v{D(f,tb)+r}, v{D(2+f,tb)+r}")
        e = vE + 4*(tb % 4)
        for f in range(2):
            c.e(f"v_cvt_pk_bf16_f32 v{e+2*f}, v{D(f,tb)}, v{D(f,tb)+1}\nv_cvt_pk_bf16_f32 v{e+2*f+1}, v{D(f,tb)+2}, v{D(f,tb)+3}")
        for f in range(2):
            c.e(f"buffer_store_dwordx2 {vr(e+2*f,2)}, v{vT[0]}, s[{srdWS}:{srdWS+3}], s{sBase if tb < 2 else sT2} offen offset:{1024*f + 256*(tb & 1)}{SMH}")
    c.e(f"s_branch {name}_FIN")
    t2 = vE + 8
    for ntb in (4, 2):
        sfx = "" if ntb == 4 else "H"
        c.label(f"{name}_EPI_QK{sfx}")
        ST.i = 3; ST.stamp(c, wait=True)
        c.e("s_barrier")
        c.e(f"s_cmp_lt_u32 s{sCG}, 2\ns_cbranch_scc0 {name}_NOSCL{sfx}")
        if ntb == 2: c.e("s_nop 3")
        for fb in range(4):
            for tb in range(ntb):
                for r in range(4): c.e(f"v_mul_f32 v{D(fb,tb)+r}, s{sScale}, v{D(fb,tb)+r}")
        c.label(f"{name}_NOSCL{sfx}")
        if ntb == 2: c.e("s_nop 3")
        for fb in range(4):
            for tb in range(ntb):
                d = D(fb, tb)
                e = t2 + 2*((4*fb + tb) % 8)
                c.e(f"v_cvt_pk_bf16_f32 v{e}, v{d}, v{d+1}\nv_cvt_pk_bf16_f32 v{e+1}, v{d+2}, v{d+3}")
                c.e(f"ds_write_b64 v{aE[fb] if tb % 2 == 0 else aO[fb]}, {vr(e,2)} offset:{1280*(tb >> 1)}")
            c.e("s_waitcnt lgkmcnt(4)")
        c.e(f"s_branch {name}_COPY")
        c.label(f"{name}_EPI_V{sfx}")
        ST.i = 3; ST.stamp(c, wait=True)
        c.e("s_barrier")
        if ntb == 2: c.e("s_nop 5")
        for fb in range(4):
            for tb in range(ntb):
                d = D(fb, tb); e = t2 + 2*((4*fb + tb) % 8)
                c.e(f"v_cvt_pk_bf16_f32 v{e}, v{d}, v{d+1}\nv_cvt_pk_bf16_f32 v{e+1}, v{d+2}, v{d+3}")
                c.e(f"ds_write_b64 v{aE[fb]}, {vr(e,2)} offset:{1280*(tb >> 1) + 640*(tb & 1)}")
            c.e("s_waitcnt lgkmcnt(4)")
        c.e(f"s_branch {name}_COPY")
    c.label(f"{name}_COPY")
    c.e(f"""
    s_lshl_b32 s{sT0}, s{sRT}, 2
    s_mul_i32 s{sT0}, s{sT0}, s{sTS}
    s_add_u32 s{sBase}, s{sBase}, s{sT0}
    s_and_b32 s{sT0}, s{sCG}, 1
    s_lshl_b32 s{sT0}, s{sT0}, 4
    s_add_u32 s{sT0}, s{sT0}, s{sW}
    s_mul_i32 s{sT0}, s{sT0}, s{sHS}
    s_add_u32 s{sBase}, s{sBase}, s{sT0}
    s_mul_i32 s{sT1}, s{sW}, 5120
    v_lshl_add_u32 v{vT[0]}, v{vL}, 4, s{sT1}
    """)
    c.e("s_waitcnt lgkmcnt(0)\ns_barrier")
    c.label(f"{name}_CPL")
    for k in range(5): c.e(f"ds_read_b128 {vr(acc+4*k,4)}, v{vT[0]} offset:{1024*k}")
    for k in range(5):
        c.e(f"s_waitcnt lgkmcnt({4-k})")
        c.e(f"buffer_store_dwordx4 {vr(acc+4*k,4)}, v{aC[k]}, s[{srdWS}:{srdWS+3}], s{sBase} offen{SMQ}")
    c.e(f"""
    s_add_u32 s{sW}, s{sW}, 12
    s_cmp_lt_u32 s{sW}, 16
    s_cbranch_scc0 {name}_CPD
    s_mul_i32 s{sT0}, s{sHS}, 12
    s_add_u32 s{sBase}, s{sBase}, s{sT0}
    v_add_u32 v{vT[0]}, {12*5120}, v{vT[0]}
    s_branch {name}_CPL
    {name}_CPD:
    s_sub_u32 s{sW}, s{sW}, 12
    s_cmp_ge_u32 s{sW}, 12
    s_cselect_b32 s{sT0}, 12, 0
    s_sub_u32 s{sW}, s{sW}, s{sT0}
    s_branch {name}_FIN
    """)
    c.label(f"{name}_GATE")
    if PFG:
        c.e(f"s_cmp_ge_u32 s{sW}, 8\ns_cbranch_scc0 {name}_GATE2\ns_waitcnt lgkmcnt(0)")
        c.e(f"""
        s_lshl_b32 s{sT0}, s{sRT}, 2
        s_add_u32 s{sT0}, s{sT0}, s{sW}
        s_sub_u32 s{sT0}, s{sT0}, 8
        """)
        for (p, nl, per, sz) in ((sWD, 54, 5, 1728*1280), (8, 50, 2, 640*1280)):
            srd(c, srdP, p, sz)
            c.e(f"s_mul_i32 s{sT1}, s{sT0}, {nl*per*128}\nv_min_u32 v{vT[1]}, {nl-1}, v{vL}\nv_lshlrev_b32 v{vT[1]}, 7, v{vT[1]}")
            for i in range(per):
                c.e(f"buffer_load_dword v{vPF}, v{vT[1]}, s[{srdP}:{srdP+3}], s{sT1} offen\ns_add_u32 s{sT1}, s{sT1}, {nl*128}")
        if fused:
            c.e(f"s_cmp_eq_u32 s{sW}, 8\ns_cbranch_scc0 {name}_FIN")
            srd(c, srdWS, sWS, WS_BYTES); srd(c, srdP, sDB, 256)
            c.e(f"""
            s_mul_i32 s{sT0}, s{sRT}, {3*128}
            s_add_u32 s{sT0}, s{sT0}, {CNT_OFF}
            v_min_u32 v{vT[1]}, 2, v{vL}
            v_lshlrev_b32 v{vT[1]}, 7, v{vT[1]}
            v_mov_b32 v{vT[2]}, 0
            v_mov_b32 v{vT[3]}, 1
            s_mov_b64 exec, 7
            buffer_store_dword v{vT[2]}, v{vT[1]}, s[{srdWS}:{srdWS+3}], s{sT0} offen sc1
            s_waitcnt vmcnt(0)
            s_mov_b64 exec, 1
            buffer_atomic_add v{vT[3]}, v{vT[2]}, s[{srdP}:{srdP+3}], 0 offen
            s_mov_b64 exec, -1
            s_branch {name}_FIN
            """)
            c.e(f"{name}_GATE2:\ns_waitcnt lgkmcnt(0)")
        else:
            c.e(f"s_endpgm\n{name}_GATE2:\ns_waitcnt lgkmcnt(0)")
    else:
        c.e(f"s_cmp_ge_u32 s{sW}, 8\ns_cbranch_scc1 {name}_END\ns_waitcnt lgkmcnt(0)")
    srd(c, srdX, sAX, 2048*1280); srd(c, srdW, sGW, 1280); srd(c, srdWS, sWS, WS_BYTES)
    if not fused:
        c.e(f"""
        s_or_b32 s{sT0}, s{sRT}, s{sW}
        s_cmp_eq_u32 s{sT0}, 0
        s_cbranch_scc0 {name}_NOZ
        v_lshlrev_b32 v{vT[5]}, 7, v{vL}
        v_mov_b32 v{vT[4]}, 0
        s_mov_b32 s{sT0}, {CNT_OFF}
        s_mov_b64 exec, 0xff
        buffer_store_dword v{vT[4]}, v{vT[5]}, s[{srdWS}:{srdWS+3}], s{sT0} offen
        s_mov_b64 exec, -1
        {name}_NOZ:
        """)
    vGw = sets[0][0]; vGx = sets[0][0] + 8
    c.e(f"""
    v_lshlrev_b32 v{vT[5]}, 2, v{vL}
    s_lshl_b32 s{sT0}, s{sRT}, 7
    s_lshl_b32 s{sT1}, s{sW}, 4
    s_add_u32 s{sBase}, s{sT0}, s{sT1}
    s_mul_i32 s{sT1}, s{sBase}, 1280
    """)
    for i in range(5): c.e(f"buffer_load_dword v{vGw+i}, v{vT[5]}, s[{srdW}:{srdW+3}], 0 offen offset:{256*i}")
    NB_ = 8
    for bt in range(2):
        for rr in range(NB_):
            for i in range(5): c.e(f"buffer_load_dword v{vGx+5*rr+i}, v{vT[5]}, s[{srdX}:{srdX+3}], s{sT1} offen offset:{256*i}")
            c.e(f"s_add_u32 s{sT1}, s{sT1}, 1280")
        for rr in range(NB_):
            c.e(f"s_waitcnt vmcnt({5*(NB_-1-rr) + (rr if True else 0)})")
            for i in range(5):
                c.e(f"""
                v_lshlrev_b32 v{vT[0]}, 16, v{vGx+5*rr+i}
                v_and_b32 v{vT[1]}, 0xffff0000, v{vGx+5*rr+i}
                v_lshlrev_b32 v{vT[2]}, 16, v{vGw+i}
                v_and_b32 v{vT[3]}, 0xffff0000, v{vGw+i}
                v_mul_f32 v{vT[0]}, v{vT[0]}, v{vT[2]}
                v_mul_f32 v{vT[1]}, v{vT[1]}, v{vT[3]}
                v_cvt_pk_bf16_f32 v{vT[0]}, v{vT[0]}, v{vT[1]}
                v_lshlrev_b32 v{vT[2]}, 16, v{vT[0]}
                v_and_b32 v{vT[3]}, 0xffff0000, v{vT[0]}
                """)
                if i == 0: c.e(f"v_add_f32 v{vT[4]}, v{vT[2]}, v{vT[3]}")
                else: c.e(f"v_add_f32 v{vT[2]}, v{vT[2]}, v{vT[3]}\nv_add_f32 v{vT[4]}, v{vT[4]}, v{vT[2]}")
            for sh in ("row_shr:1", "row_shr:2", "row_shr:4", "row_shr:8"):
                c.e(f"s_nop 1\nv_add_f32_dpp v{vT[4]}, v{vT[4]}, v{vT[4]} {sh} row_mask:0xf bank_mask:0xf bound_ctrl:0")
            c.e(f"""
            s_nop 1
            v_readlane_b32 s{sT0}, v{vT[4]}, 15
            v_readlane_b32 s{sT2}, v{vT[4]}, 31
            v_readlane_b32 s{sT3}, v{vT[4]}, 47
            v_readlane_b32 s{sHS}, v{vT[4]}, 63
            s_nop 1
            v_mov_b32 v{vT[0]}, s{sT0}
            v_add_f32 v{vT[0]}, s{sT2}, v{vT[0]}
            v_add_f32 v{vT[0]}, s{sT3}, v{vT[0]}
            v_add_f32 v{vT[0]}, s{sHS}, v{vT[0]}
            v_cvt_pk_bf16_f32 v{vT[0]}, v{vT[0]}, v{vT[0]}
            v_lshlrev_b32 v{vT[0]}, 16, v{vT[0]}
            v_mul_f32 v{vT[0]}, {hexf(-LOG2E)}, v{vT[0]}
            v_exp_f32 v{vT[0]}, v{vT[0]}
            s_nop 0
            v_add_f32 v{vT[0]}, 1.0, v{vT[0]}
            v_rcp_f32 v{vT[0]}, v{vT[0]}
            s_nop 0
            v_cvt_pk_bf16_f32 v{vT[0]}, v{vT[0]}, v{vT[0]}
            v_lshlrev_b32 v{vT[6]}, 16, v{vT[0]}
            v_sub_f32 v{vT[1]}, 1.0, v{vT[6]}
            v_cvt_pk_bf16_f32 v{vT[1]}, v{vT[1]}, v{vT[1]}
            v_lshlrev_b32 v{vT[7]}, 16, v{vT[1]}
            s_lshl_b32 s{sT0}, s{sBase}, 3
            s_add_u32 s{sT0}, s{sT0}, {G_OFF}
            v_mov_b32 v{vT[2]}, 0
            s_mov_b64 exec, 1
            buffer_store_dwordx2 {vr(vT[6],2)}, v{vT[2]}, s[{srdWS}:{srdWS+3}], s{sT0} offen{" sc1" if fused else ""}
            s_mov_b64 exec, -1
            s_add_u32 s{sBase}, s{sBase}, 1
            """)
    if stamps:
        ST.i = 2; ST.stamp(c); ST.stamp(c)
    c.label(f"{name}_FIN")
    if fused:
        c.e("s_waitcnt lgkmcnt(0)")
        srd(c, srdWS, sWS, WS_BYTES); srd(c, srdP, sDB, 256)
        c.e(f"""
        v_mov_b32 v{vT[2]}, 0
        buffer_load_dword v{vT[4]}, v{vT[2]}, s[{srdP}:{srdP+3}], 0 offen sc1
        s_waitcnt vmcnt(0)
        """)
        if stamps:
            ST.i = 4; ST.stamp(c); c.e(f"s_memrealtime s[{ST.s+14}:{ST.s+15}]"); ST.i = 8
            c.e(f"s_cmp_ge_u32 s{sW}, 8\ns_cbranch_scc1 {name}_NOST")
            ST.flush(c, sW, srdWS, vT[2], vT[3], sT0)
            c.e(f"s_waitcnt vmcnt(0)\n{name}_NOST:")
        c.e(f"""
        s_barrier
        s_cmp_eq_u32 s{sW}, 0
        s_cbranch_scc0 {fused}
        s_mov_b32 s{sT2}, 0
        {name}_INITW:
        v_readfirstlane_b32 s{sT1}, v{vT[4]}
        s_add_u32 s{sT2}, s{sT2}, 1
        s_nop 3
        s_cmp_ge_u32 s{sT1}, 16
        s_cbranch_scc1 {name}_INITOK
        s_sleep 1
        v_mov_b32 v{vT[2]}, 0
        buffer_load_dword v{vT[4]}, v{vT[2]}, s[{srdP}:{srdP+3}], 0 offen sc1
        s_waitcnt vmcnt(0)
        s_cmp_lt_u32 s{sT2}, 0x40000
        s_cbranch_scc1 {name}_INITW
        {name}_INITOK:
        s_add_u32 s{sT0}, s{sRT}, {C_H}
        s_add_u32 s{sT1}, s{sRT}, {C_G}
        s_cmp_eq_u32 s{sCG}, 15
        s_cselect_b32 s{sT0}, s{sT1}, s{sT0}
        s_add_u32 s{sT1}, s{sCG}, {C_Q}
        s_cmp_lt_u32 s{sCG}, 6
        s_cselect_b32 s{sT0}, s{sT1}, s{sT0}
        s_lshl_b32 s{sT0}, s{sT0}, 7
        s_add_u32 s{sT0}, s{sT0}, {CNT_OFF}
        v_mov_b32 v{vT[2]}, 0
        v_mov_b32 v{vT[3]}, 1
        s_mov_b64 exec, 1
        buffer_atomic_add v{vT[3]}, v{vT[2]}, s[{srdWS}:{srdWS+3}], s{sT0} offen
        s_mov_b64 exec, -1
        s_branch {fused}
        """)
        c.e(f"{name}_END:\ns_endpgm")
    else:
        if stamps: c.e("s_waitcnt vmcnt(0)")
        ST.i = 4; ST.stamp(c)
        if stamps:
            c.e(f"s_memrealtime s[{ST.s+14}:{ST.s+15}]"); ST.i = 8
            c.e(f"s_cmp_ge_u32 s{sW}, 8\ns_cbranch_scc1 {name}_END")
        ST.flush(c, sW, srdWS, vT[2], vT[3], sT0)
        c.e(f"""
        {name}_END:
        s_endpgm
        """)
    def S(role, vi=0, idle=False):
        d = {f"{name}_END": False, f"{name}_GATE": role == "gate", f"{name}_GLU": role == "glu", f"{name}_RA_GLU": role == "glu",
             f"{name}_NOEA": role == "glu", f"{name}_EAV": role == "v", f"{name}_NOSCL": False, f"{name}_NOSCLH": False, f"{name}_NOZ": False, f"{name}_PRO_NX": vi % 2 == 1,
             f"{name}_PRO_H": role != "glu", f"{name}_QW": vi % 2 == 0, f"{name}_CPD": (lambda k: k >= 1)}
        for i in range(1, 6): d[f"{name}_VAR{i}"] = (i == vi)
        for i in range(12): d[f"{name}_TCH{i}"] = (i != 3)
        d[f"{name}_SWP"] = False; d[f"{name}_GATE2"] = True
        d[f"{name}_FIN"] = False; d[f"{name}_INITOK"] = (lambda k: k >= 1); d[f"{name}_INITW"] = True; d[f"{name}_NOST"] = False
        if fused: d[fused] = False
        return d
    scen = {"qk1": S("qk", 0), "qk0": S("qk", 1), "v1": S("v", 2), "v0": S("v", 3), "glu1": S("glu", 4), "glu0": S("glu", 5), "gate": S("gate")}
    return c, V.hi, scen, K1_LDS

if __name__ == "__main__":
    c, nv, scen, lds = gen_k1()
    errs = check(c.lines, scen, "k1")
    print("vgprs", nv, "lds", lds, "lines", len(c.lines))
    for e in errs[:40]: print(e)
```

```python
from common import *

CH = 10240
SLOT = 2*CH; RING = 3
DUMMY = SLOT*RING
FLAG = DUMMY + 1024
XCH = FLAG + 64
GRING = XCH + 8*3072
GSLOT = 6144; GWAVE = 3*GSLOT
K2_LDS = GRING + 4*GWAVE
FB_BARRIERS = 16 + 3 + 9 + 1

def gen_k2(name="k2_kernel", stamps=False, exp="", fused=False):
    c = Code()
    CS = "TOG" not in exp
    OM = " sc1" if "OS" in exp else (" nt" if "ON" in exp else (" sc0 sc1" if "OX" in exp else ""))
    SM = " sc1" if "SC1" in exp else (" sc0 sc1" if "SC01" in exp else ("" if ("PLAIN" in exp or "P2" in exp) else " nt"))
    V = Alloc(168, 1, "v"); Sg = Alloc(100, 12, "s")
    sWS = 4; sWD = 6; sWO = 8; sOUT = 10
    sX = Sg.take(); sJ = Sg.take(); sHead = Sg.take(); sQB = Sg.take(); sW = Sg.take(); sQG = Sg.take(); sKH = Sg.take()
    sT0 = Sg.take(); sT1 = Sg.take(); sT2 = Sg.take(); sT3 = Sg.take()
    srdWS = Sg.take(4, 4)
    sMaskLo = Sg.take(2, 2); sMaskV = Sg.take(2, 2); sU = Sg.take(2, 2); sU2 = Sg.take(2, 2)
    sSrc = Sg.take(); sM = [Sg.take() for _ in range(3)]; sSlotW = Sg.take(); sSlotR = Sg.take(); sC = Sg.take(); sMode = Sg.take()
    sSrc0 = Sg.take(); sTile = Sg.take(); sOb = Sg.take()
    ST = Stamps(Sg, stamps, 1)
    vL = V.take(); vT = [V.take() for _ in range(8)]
    vOff = V.take(); vOff3 = V.take()
    vK1a = V.take(); vK2a = V.take(); vVa = V.take()
    vK1c = V.take(); vK2c = V.take(); vVc = V.take()
    vG = [V.take(), V.take()]; vSt = [V.take() for _ in range(3)]; vGo = V.take(); vVm = V.take()
    Q1 = [V.take(4, 4), V.take(4, 4)]; Q2 = [V.take(2, 2), V.take(2, 2)]
    K1 = V.take(4, 4); K2 = V.take(2, 2); V0 = V.take(4, 4); V1 = V.take(4, 4)
    S_ = [V.take(16, 4), V.take(16, 4)]; O = [V.take(16, 4), V.take(16, 4)]
    P = [V.take(4, 4), V.take(4, 4)]; T4 = V.take(4, 4)
    vM = [V.take(), V.take()]
    NM = [V.take(16, 4), V.take(16, 4)]
    srd4 = f"s[{srdWS}:{srdWS+3}]"

    HS = " sc1" if (fused and "NOHS" not in exp) else ""
    if fused: c.label(f"{name}_ENTRY")
    else: c.e(f"s_cmp_ge_u32 s2, 256\ns_cbranch_scc1 {name}_END")
    c.e(f"""
    s_load_dwordx2 s[4:5], s[0:1], {KA_WS}
    s_load_dwordx2 s[6:7], s[0:1], {KA_WD}
    s_load_dwordx2 s[8:9], s[0:1], {KA_WO}
    s_load_dwordx2 s[10:11], s[0:1], {KA_OUT}
    v_and_b32 v{vL}, 63, v0
    v_lshrrev_b32 v{vT[0]}, 6, v0
    s_and_b32 s{sX}, s2, 7
    s_lshr_b32 s{sJ}, s2, 3
    v_readfirstlane_b32 s{sW}, v{vT[0]}
    s_lshr_b32 s{sT0}, s{sJ}, 3
    s_lshl_b32 s{sHead}, s{sX}, 2
    s_add_u32 s{sHead}, s{sHead}, s{sT0}
    s_and_b32 s{sQB}, s{sJ}, 7
    v_lshlrev_b32 v{vOff}, 4, v{vL}
    s_mul_i32 s{sSrc0}, s{sHead}, {KV_HS}
    s_add_u32 s{sSrc0}, s{sSrc0}, {KV_OFF}
    """)
    ST.stamp(c, real=True); ST.stamp(c)
    c.e(f"s_cmp_ge_u32 s{sW}, 8\ns_cbranch_scc1 {name}_GW")
    c.e(f"""
    s_and_b32 s{sQG}, s{sW}, 3
    s_lshr_b32 s{sKH}, s{sW}, 2
    s_mul_i32 s{sT0}, s{sKH}, {32*KV_TS}
    s_add_u32 s{sSrc0}, s{sSrc0}, s{sT0}
    s_lshl_b32 s{sT0}, s{sQG}, 10
    s_add_u32 s{sSrc0}, s{sSrc0}, s{sT0}
    s_mul_i32 s{sT1}, s{sKH}, {CH}
    s_add_u32 s{sM[0]}, s{sT1}, s{sT0}
    s_add_u32 s{sM[1]}, s{sM[0]}, 4096
    s_add_u32 s{sM[2]}, s{sM[0]}, 8192
    s_cmp_lt_u32 s{sQG}, 2
    s_cselect_b32 s{sT0}, 0, 0x7f000000
    v_add_u32 v{vOff3}, s{sT0}, v{vOff}
    s_mov_b32 s{sSrc}, s{sSrc0}
    s_mov_b32 s{sSlotW}, 0
    s_lshl_b32 s{sTile}, s{sQB}, 3
    s_lshl_b32 s{sT0}, s{sQG}, 1
    s_add_u32 s{sTile}, s{sTile}, s{sT0}
    s_waitcnt lgkmcnt(0)
    """)
    if stamps: c.e(f"s_memtime s[{ST.s+12}:{ST.s+13}]")
    srd(c, srdWS, sWS, WS_BYTES)
    def dma_parts():
        g0 = [f"s_add_u32 m0, s{sSlotW}, s{sM[0]}", f"s_add_u32 s{sT0}, s{sSrc}, 4096", f"buffer_load_dwordx4 v{vOff}, {srd4}, s{sSrc} offen{HS} lds"]
        g1 = [f"s_add_u32 m0, s{sSlotW}, s{sM[1]}", f"s_add_u32 s{sT1}, s{sSrc}, 8192", f"buffer_load_dwordx4 v{vOff}, {srd4}, s{sT0} offen{HS} lds"]
        g2 = [f"s_add_u32 s{sT0}, s{sSlotW}, s{sM[2]}", f"s_cmp_lt_u32 s{sQG}, 2", f"s_cselect_b32 m0, s{sT0}, {DUMMY}", f"s_add_u32 s{sSrc}, s{sSrc}, {CH}",
              f"buffer_load_dwordx4 v{vOff3}, {srd4}, s{sT1} offen{HS} lds",
              f"s_add_u32 s{sSlotW}, s{sSlotW}, {SLOT}", f"s_cmp_eq_u32 s{sSlotW}, {SLOT*RING}", f"s_cselect_b32 s{sSlotW}, 0, s{sSlotW}"]
        return g0, g1, g2
    def dma_chunk():
        g = dma_parts(); return g[0] + g[1] + g[2]
    def first_loads():
        c.e("\n".join(dma_chunk()))
    def poll(tag, vA, vTg, vV, nl):
        m = (1 << nl) - 1
        c.e(f"""
        s_mov_b32 s{sT2}, 0
        s_mov_b64 exec, {m}
        {name}_{tag}:
        buffer_load_dword v{vV}, v{vA}, {srd4}, 0 offen sc1
        s_waitcnt vmcnt(0)
        v_cmp_ge_u32 vcc, v{vV}, v{vTg}
        s_add_u32 s{sT2}, s{sT2}, 1
        s_nop 3
        s_cmp_eq_u64 vcc, exec
        s_cbranch_scc1 {name}_{tag}OK
        s_sleep 1
        s_cmp_lt_u32 s{sT2}, 0x40000
        s_cbranch_scc1 {name}_{tag}
        {name}_{tag}OK:
        s_mov_b64 exec, -1
        """)
    if fused:
        c.e(f"""
        s_cmp_eq_u32 s{sW}, 0
        s_cbranch_scc0 {name}_NOPOLL
        s_lshr_b32 s{sT0}, s{sHead}, 4
        s_add_u32 s{sT0}, s{sT0}, {C_Q}
        s_lshl_b32 s{sT1}, s{sQB}, 1
        s_add_u32 s{sT1}, s{sT1}, {C_G - 3}
        v_lshlrev_b32 v{vT[1]}, 1, v{vL}
        v_add_u32 v{vT[1]}, s{sT0}, v{vT[1]}
        v_add_u32 v{vT[2]}, s{sT1}, v{vL}
        v_cmp_lt_u32 vcc, 2, v{vL}
        v_mov_b32 v{vT[3]}, 16
        v_mov_b32 v{vT[4]}, 1
        v_cndmask_b32 v{vT[1]}, v{vT[1]}, v{vT[2]}, vcc
        v_cndmask_b32 v{vT[3]}, v{vT[3]}, v{vT[4]}, vcc
        v_lshlrev_b32 v{vT[1]}, 7, v{vT[1]}
        v_add_u32 v{vT[1]}, {CNT_OFF}, v{vT[1]}
        """)
        poll("POLLQ", vT[1], vT[3], vT[4], 5)
        c.e(f"{name}_NOPOLL:\ns_barrier")
    first_loads()
    c.e(f"""
    s_mul_i32 s{sT2}, s{sHead}, {QF_HS}
    s_mul_i32 s{sT1}, s{sTile}, {QF_TS}
    s_add_u32 s{sT2}, s{sT2}, s{sT1}
    s_add_u32 s{sT3}, s{sT2}, {QF_TS}
    v_and_b32 v{vT[0]}, 31, v{vL}
    v_lshlrev_b32 v{vT[1]}, 3, v{vT[0]}
    s_mov_b32 s{sMaskLo}, -1
    s_mov_b32 s{sMaskLo+1}, 0
    v_mov_b32 v{Q2[0]}, 0
    v_mov_b32 v{Q2[0]+1}, 0
    v_mov_b32 v{Q2[1]}, 0
    v_mov_b32 v{Q2[1]+1}, 0
    buffer_load_dwordx4 {vr(Q1[0],4)}, v{vOff}, {srd4}, s{sT2} offen{HS}
    buffer_load_dwordx4 {vr(Q1[1],4)}, v{vOff}, {srd4}, s{sT3} offen{HS}
    s_mov_b64 exec, s[{sMaskLo}:{sMaskLo+1}]
    buffer_load_dwordx2 {vr(Q2[0],2)}, v{vT[1]}, {srd4}, s{sT2} offen offset:1024{HS}
    buffer_load_dwordx2 {vr(Q2[1],2)}, v{vT[1]}, {srd4}, s{sT3} offen offset:1024{HS}
    s_mov_b64 exec, -1
    """)
    c.e(f"""
    v_mov_b32 v{vGo}, v{vT[1]}
    s_mov_b32 s{sMode}, 0
    s_mov_b32 s{sMaskV}, 0xfffff
    s_mov_b32 s{sMaskV+1}, 0xfffff
    s_mul_i32 s{sT0}, s{sKH}, {CH}
    v_add_u32 v{vK1a}, s{sT0}, v{vOff}
    v_add_u32 v{vK2a}, s{sT0}, v{vT[1]}
    v_lshrrev_b32 v{vT[2]}, 5, v{vL}
    v_mul_u32_u24 v{vT[7]}, 320, v{vT[2]}
    v_lshl_add_u32 v{vT[7]}, v{vT[0]}, 4, v{vT[7]}
    v_add_u32 v{vVa}, s{sT0}, v{vT[7]}
    """)
    if CS:
        CB = XCH - 1280 + ((16 - ((XCH - 1280)//16) % 16) % 16)*16
        assert CB % 256 == 0 and CB + 1280 >= XCH and CB + 3*KV_TS + 1280 + 640 + 320 + 13*16 <= XCH + 8*3072
        c.e(f"""
        v_mov_b32 v{vT[5]}, 5
        v_mov_b32 v{vT[6]}, 4
        v_cmp_eq_u32 vcc, 20, v{vT[0]}
        v_mov_b32 v{vT[4]}, 12
        s_nop 0
        v_cndmask_b32 v{vT[5]}, v{vT[5]}, v{vT[6]}, vcc
        v_cmp_lt_u32 vcc, 27, v{vT[0]}
        v_mul_u32_u24 v{vT[6]}, 320, v{vT[2]}
        s_nop 0
        v_cndmask_b32 v{vT[5]}, v{vT[5]}, v{vT[4]}, vcc
        v_lshl_add_u32 v{vT[5]}, v{vT[5]}, 4, v{vT[6]}
        v_add_u32 v{vT[5]}, {CB}, v{vT[5]}
        v_cmp_lt_u32 vcc, 19, v{vT[0]}
        v_mov_b32 v{vT[4]}, 1
        v_mov_b32 v{vT[6]}, 0
        v_cndmask_b32 v{vVa}, v{vVa}, v{vT[5]}, vcc
        v_cndmask_b32 v{vVm}, v{vT[4]}, v{vT[6]}, vcc
        """)
    c.e(f"""
    v_cmp_eq_u32 vcc, 20, v{vT[0]}
    v_mov_b32 v{vT[3]}, 0
    v_mov_b32 v{vT[4]}, 0x3f803f80
    v_cndmask_b32 v{vT[3]}, v{vT[3]}, v{vT[4]}, vcc
    """)
    for r in range(4): c.e(f"v_mov_b32 v{V0+r}, v{vT[3]}\nv_mov_b32 v{V1+r}, v{vT[3]}")
    c.e(f"v_mov_b32 v{K2}, 0\nv_mov_b32 v{K2+1}, 0")
    c.e(f"v_mov_b32 v{vT[3]}, 0\nv_mov_b32 v{vT[4]}, {FLAG}\nds_write_b32 v{vT[4]}, v{vT[3]}")
    c.e(f"""
    s_add_u32 s{sOb}, s{sTile}, s{sKH}
    s_mul_i32 s{sOb}, s{sOb}, {40*1024}
    s_add_u32 s{sOb}, s{sOb}, {OF_OFF}
    s_mul_i32 s{sT1}, s{sHead}, 5
    v_add_u32 v{vT[2]}, s{sT1}, v{vT[2]}
    v_lshlrev_b32 v{vT[3]}, 4, v{vT[0]}
    """)
    c.e(f"v_lshlrev_b32 v{vT[3]}, 3, v{vT[0]}")
    for g in range(3):
        c.e(f"""
        v_add_u32 v{vT[4]}, {2*g}, v{vT[2]}
        v_lshl_add_u32 v{vSt[g]}, v{vT[4]}, 8, v{vT[3]}
        """)
    def const_spots():
        if not CS: return
        CB = XCH - 1280 + ((16 - ((XCH - 1280)//16) % 16) % 16)*16
        c.e(f"""
        v_mul_u32_u24 v{vT[1]}, 21846, v{vL}
        v_lshrrev_b32 v{vT[1]}, 16, v{vT[1]}
        v_mul_u32_u24 v{vT[2]}, 3, v{vT[1]}
        v_sub_u32 v{vT[2]}, v{vL}, v{vT[2]}
        v_and_b32 v{vT[3]}, 1, v{vT[1]}
        v_mul_u32_u24 v{vT[3]}, 320, v{vT[3]}
        v_bfe_u32 v{vT[4]}, v{vT[1]}, 1, 1
        v_mul_u32_u24 v{vT[4]}, 640, v{vT[4]}
        v_lshrrev_b32 v{vT[1]}, 2, v{vT[1]}
        v_mul_u32_u24 v{vT[1]}, {KV_TS}, v{vT[1]}
        v_add3_u32 v{vT[1]}, v{vT[1]}, v{vT[3]}, v{vT[4]}
        v_mov_b32 v{vT[3]}, 4
        v_mov_b32 v{vT[4]}, 5
        v_cmp_eq_u32 vcc, 1, v{vT[2]}
        v_mov_b32 v{vT[5]}, 12
        v_mov_b32 v{vT[6]}, 0x3f803f80
        v_cndmask_b32 v{vT[3]}, v{vT[3]}, v{vT[4]}, vcc
        v_cmp_eq_u32 vcc, 2, v{vT[2]}
        v_mov_b32 v{vT[4]}, 0
        s_nop 0
        v_cndmask_b32 v{vT[3]}, v{vT[3]}, v{vT[5]}, vcc
        v_cmp_eq_u32 vcc, 0, v{vT[2]}
        v_lshl_add_u32 v{vT[1]}, v{vT[3]}, 4, v{vT[1]}
        v_add_u32 v{vT[1]}, {CB + 1280}, v{vT[1]}
        v_cndmask_b32 v{T4}, v{vT[4]}, v{vT[6]}, vcc
        v_cndmask_b32 v{T4+1}, v{vT[4]}, v{vT[6]}, vcc
        v_cndmask_b32 v{T4+2}, v{vT[4]}, v{vT[6]}, vcc
        v_cndmask_b32 v{T4+3}, v{vT[4]}, v{vT[6]}, vcc
        s_mov_b32 exec_lo, -1
        s_mov_b32 exec_hi, 0xffff
        ds_write_b128 v{vT[1]}, {vr(T4,4)}
        s_mov_b64 exec, -1
        """)
    def rdK(off):
        if "KZ" in exp:
            return [f"s_mov_b64 exec, s[{sMaskLo}:{sMaskLo+1}]", f"ds_read_b64 {vr(K2,2)}, v{vK2c} offset:{off+1024}", "s_mov_b64 exec, -1", f"ds_read_b128 {vr(K1,4)}, v{vK1c} offset:{off}"]
        return [f"ds_read_b64 {vr(K2,2)}, v{vK2c} offset:{off+1024}", f"ds_read_b128 {vr(K1,4)}, v{vK1c} offset:{off}"]
    def rdV(which, off):
        r = V0 if which == 0 else V1
        if CS: return [f"ds_read_b128 {vr(r,4)}, v{vVc} offset:{off + 1280 + 640*which}"]
        return [f"s_mov_b64 exec, s[{sMaskV}:{sMaskV+1}]", f"ds_read_b128 {vr(r,4)}, v{vVc} offset:{off + 1280 + 640*which}", "s_mov_b64 exec, -1"]
    def emit_pass(tag, fb):
        def qk(b): return [f"v_mfma_f32_32x32x16_bf16 {vr(S_[b],16)}, {vr(K1,4)}, {vr(Q1[b],4)}, " + (vr(NM[b],16) if fb else "0"), mfma32x8(S_[b], K2, Q2[b])]
        const_spots()
        for b in range(2):
            for r in range(16): c.e(f"v_mov_b32 v{O[b]+r}, 0")
        for r in range(4): c.e(f"v_mov_b32 v{P[1]+r}, 0\nv_mov_b32 v{T4+r}, 0")
        c.e(f"""
        s_mov_b32 s{sSlotR}, 0
        s_mov_b32 s{sC}, 0
        v_mov_b32 v{vK1c}, v{vK1a}
        v_mov_b32 v{vK2c}, v{vK2a}
        v_mov_b32 v{vVc}, v{vVa}
        """)
        if stamps and not fb: c.e(f"s_memtime s[{ST.s+14}:{ST.s+15}]")
        c.e(f"s_waitcnt vmcnt({3 if fb else 0}) lgkmcnt(0)\ns_barrier")
        c.e("\n".join(rdK(0) + rdV(0, 0)))
        if not fb:
            c.e("\n".join(dma_chunk()))
            c.e(f"""
            s_lshl_b32 s{sT2}, s{sTile}, 8
            s_add_u32 s{sT2}, s{sT2}, {G_OFF}
            buffer_load_dword v{vG[0]}, v{vGo}, {srd4}, s{sT2} offen{HS}
            buffer_load_dword v{vG[1]}, v{vGo}, {srd4}, s{sT2} offen offset:256{HS}
            """)
        c.e(f"s_waitcnt vmcnt({3 if fb else 5}) lgkmcnt(1)") if False else None
        c.e("s_waitcnt lgkmcnt(1)")
        c.e("\n".join(qk(0)))
        c.e("s_nop 7\ns_nop 3")
        if not fb: ST.i = 2; ST.stamp(c, wait=True)
        def half(b, tt):
            s = S_[b]; L = []
            src = lambda i: (s + i) if i < 12 else (T4 + i - 12)
            e = lambda i: f"v_exp_f32 v{src(i)}, v{s+i}"
            cv = lambda p: f"v_cvt_pk_bf16_f32 v{P[p//4] + p%4}, v{src(2*p)}, v{src(2*p+1)}"
            m = qk(1 - b)
            m3 = mfma32(O[b], V0, P[0]); m4p = mfma32(O[1-b], V1, P[1])
            cur = tt*KV_TS; nxt = ((tt + 1) % 4)*KV_TS
            d0 = d1 = d2 = []
            if b == 0 and tt == 0: pass
            if b == 1: L.append("s_waitcnt lgkmcnt(0)" if "W3" in exp else "s_waitcnt lgkmcnt(1)")
            L += [m[0], e(0), cv(6), e(1), cv(7), e(2), e(3), m[1]]
            if b == 0:
                if tt == 3:
                    L += ["s_waitcnt vmcnt(0)", "s_barrier",
                          f"s_add_u32 s{sSlotR}, s{sSlotR}, {SLOT}", f"s_cmp_eq_u32 s{sSlotR}, {SLOT*RING}", f"s_cselect_b32 s{sSlotR}, 0, s{sSlotR}",
                          f"v_add_u32 v{vK1c}, s{sSlotR}, v{vK1a}", f"v_add_u32 v{vK2c}, s{sSlotR}, v{vK2a}"]
                L += rdK(nxt)
            L += [e(4), e(5), cv(0), e(6), e(7), cv(1)]
            if b == 1 and "W3" not in exp: L.append("s_waitcnt lgkmcnt(0)")
            L.append(m4p)
            if b == 0: L += rdV(1, cur)
            if b == 0 and tt == 3: L += ([f"v_mad_u32_u24 v{vVc}, v{vVm}, s{sSlotR}, v{vVa}"] if CS else [f"v_add_u32 v{vVc}, s{sSlotR}, v{vVa}"])
            L += [e(8), cv(2), e(9), cv(3), e(10), e(11)]
            if b == 0: L.append("s_waitcnt lgkmcnt(3)")
            L.append(m3)
            if b == 1: L += rdV(0, nxt)
            L += [e(12), e(13), cv(4), e(14), e(15), cv(5)]
            return L
        lp = f"{name}_LOOP{tag}"
        c.label(lp)
        for tt in range(4):
            A = half(0, tt); B = half(1, tt)
            if tt == 3:
                g0, g1, g2 = dma_parts()
                c.e("\n".join(A))
                c.e(f"s_cmp_ge_u32 s{sC}, 6\ns_cbranch_scc1 {lp}_NODMA")
                c.e("\n".join(g0 + g1 + g2))
                c.label(f"{lp}_NODMA")
                c.e("\n".join(B))
            else:
                c.e("\n".join(A)); c.e("\n".join(B))
        c.e(f"""
        s_add_u32 s{sC}, s{sC}, 1
        s_cmp_lt_u32 s{sC}, 8
        s_cbranch_scc1 {lp}
        """)
        c.e(f"v_cvt_pk_bf16_f32 v{P[1]+2}, v{T4}, v{T4+1}\nv_cvt_pk_bf16_f32 v{P[1]+3}, v{T4+2}, v{T4+3}\ns_waitcnt lgkmcnt(0)\ns_nop 0")
        c.e(mfma32(O[1], V1, P[1]))
    if "PA" in exp: c.e("s_setprio 1")
    if "PH" in exp: c.e(f"s_cmp_eq_u32 s{sKH}, 1\ns_cbranch_scc0 {name}_NPH\ns_setprio 1\n{name}_NPH:")
    emit_pass("", False)
    c.label(f"{name}_EPI")
    ST.i = 3; ST.stamp(c, wait=True)
    c.e(f"""
    s_mul_i32 s{sT0}, s{sQG}, 3072
    s_mul_i32 s{sT1}, s{sKH}, {2*SLOT}
    s_add_u32 s{sT2}, s{sT0}, s{sT1}
    v_add_u32 v{vT[4]}, s{sT2}, v{vOff}
    s_sub_u32 s{sT1}, {2*SLOT}, s{sT1}
    s_add_u32 s{sT2}, s{sT0}, s{sT1}
    v_add_u32 v{vT[6]}, s{sT2}, v{vOff}
    v_mov_b32 v{vT[1]}, 0x7f800000
    v_mov_b32 v{vT[2]}, {hexf(2.0**63)}
    v_mov_b32 v{vT[3]}, {hexf(2.0**-63)}
    v_mov_b32 v{vT[5]}, {FLAG}
    s_nop 3
    s_cmp_eq_u32 s{sKH}, 0
    s_cbranch_scc1 {name}_NOSWAP
    """)
    for r in range(12): c.e(f"v_swap_b32 v{O[0]+r}, v{O[1]+r}")
    c.e(f"v_swap_b32 v{vG[0]}, v{vG[1]}")
    c.label(f"{name}_NOSWAP")
    for g in range(3): c.e(f"ds_write_b128 v{vT[4]}, {vr(O[1]+4*g,4)} offset:{1024*g}")
    c.e(f"v_add_f32 v{vT[0]}, |v{O[0]}|, |v{O[1]}|")
    for r in range(1, 12): c.e(f"v_add_f32 v{vT[0]}, |v{O[0]+r}|, v{vT[0]}\nv_add_f32 v{vT[0]}, |v{O[1]+r}|, v{vT[0]}")
    c.e(f"""
    v_min_f32 v{vT[7]}, v{O[0]+8}, v{O[1]+8}
    v_cmp_nlt_f32 s[{sU}:{sU+1}], v{vT[0]}, v{vT[1]}
    v_max_f32 v{vT[0]}, v{O[0]+8}, v{O[1]+8}
    v_cmp_nge_f32 s[{sU2}:{sU2+1}], v{vT[7]}, v{vT[3]}
    v_cmp_nle_f32 vcc, v{vT[0]}, v{vT[2]}
    s_nop 3
    s_or_b64 s[{sU2}:{sU2+1}], s[{sU2}:{sU2+1}], vcc
    s_andn2_b64 s[{sU2}:{sU2+1}], s[{sU2}:{sU2+1}], s[{sMaskLo}:{sMaskLo+1}]
    s_or_b64 s[{sU}:{sU+1}], s[{sU}:{sU+1}], s[{sU2}:{sU2+1}]
    s_cmp_eq_u64 s[{sU}:{sU+1}], 0
    s_cbranch_scc1 {name}_SAFE
    v_mov_b32 v{vT[3]}, 1
    ds_write_b32 v{vT[5]}, v{vT[3]}
    {name}_SAFE:
    s_waitcnt lgkmcnt(0)
    s_barrier
    ds_read_b32 v{vT[3]}, v{vT[5]}
    """)
    for g in range(3): c.e(f"ds_read_b128 {vr(S_[0]+4*g,4)}, v{vT[6]} offset:{1024*g}")
    c.e(f"""
    s_waitcnt lgkmcnt(3)
    v_readfirstlane_b32 s{sT0}, v{vT[3]}
    s_nop 3
    s_cmp_eq_u32 s{sMode}, 0
    s_cselect_b32 s{sT0}, s{sT0}, 0
    s_cmp_eq_u32 s{sT0}, 0
    s_cbranch_scc0 {name}_FALLBACK
    s_waitcnt vmcnt(0) lgkmcnt(0)
    """)
    for r in range(12): c.e(f"v_add_f32 v{O[0]+r}, v{O[0]+r}, v{S_[0]+r}")
    c.e(f"""
    v_mov_b32 v{vT[0]}, v{O[0]+8}
    v_mov_b32 v{vT[1]}, v{O[0]+8}
    s_nop 1
    v_permlane32_swap_b32 v{vT[0]}, v{vT[1]}
    s_nop 1
    v_rcp_f32 v{vT[1]}, v{vT[1]}
    s_nop 0
    v_mul_f32 v{vT[1]}, v{vT[1]}, v{vG[0]}
    """)
    for r in range(12): c.e(f"v_mul_f32 v{O[0]+r}, v{O[0]+r}, v{vT[1]}")
    for p in range(6): c.e(f"v_cvt_pk_bf16_f32 v{S_[1]+p}, v{O[0]+2*p}, v{O[0]+2*p+1}")
    for g in range(3):
        if g == 2: c.e(f"s_mov_b64 exec, s[{sMaskLo}:{sMaskLo+1}]")
        c.e(f"buffer_store_dwordx2 {vr(S_[1]+2*g,2)}, v{vSt[g]}, {srd4}, s{sOb} offen sc1")
    c.e(f"""
    s_mov_b64 exec, -1
    s_waitcnt vmcnt(0)
    s_barrier
    s_cmp_eq_u32 s{sW}, 0
    s_cbranch_scc0 {name}_FIN
    s_lshl_b32 s{sT0}, s{sQB}, 7
    s_add_u32 s{sT0}, s{sT0}, {CNT_OFF}
    v_mov_b32 v{vT[2]}, 0
    v_mov_b32 v{vT[3]}, 1
    s_mov_b64 exec, 1
    buffer_atomic_add v{vT[3]}, v{vT[2]}, {srd4}, s{sT0} offen
    s_mov_b64 exec, -1
    s_branch {name}_FIN
    """)
    c.label(f"{name}_FALLBACK")
    c.e("s_waitcnt vmcnt(0) lgkmcnt(0)")
    c.e(f"s_cmp_eq_u32 s{sKH}, 0\ns_cbranch_scc1 {name}_FB_NOSWAP\nv_swap_b32 v{vG[0]}, v{vG[1]}\n{name}_FB_NOSWAP:")
    c.e(f"""
    s_mov_b32 s{sMode}, 1
    v_mov_b32 v{vM[0]}, 0xff800000
    v_mov_b32 v{vM[1]}, 0xff800000
    s_mov_b32 s{sSrc}, s{sSrc0}
    s_mov_b32 s{sC}, 0
    {name}_FB_LOOP:
    s_barrier
    s_mov_b32 s{sSlotW}, 0
    """)
    c.e("\n".join(dma_chunk()))
    c.e(f"s_waitcnt vmcnt(0)\ns_barrier\nv_mov_b32 v{vK1c}, v{vK1a}\nv_mov_b32 v{vK2c}, v{vK2a}")
    for tt in range(4):
        c.e("\n".join(rdK(tt*KV_TS)))
        c.e("s_waitcnt lgkmcnt(0)")
        for b in range(2): c.e(mfma32(S_[b], K1, Q1[b], cz=0) + "\n" + mfma32x8(S_[b], K2, Q2[b]))
        c.e("s_nop 7\ns_nop 7")
        for b in range(2):
            for r in range(0, 16, 2): c.e(f"v_max3_f32 v{vM[b]}, v{S_[b]+r}, v{S_[b]+r+1}, v{vM[b]}")
    c.e(f"""
    s_add_u32 s{sC}, s{sC}, 1
    s_cmp_lt_u32 s{sC}, 8
    s_cbranch_scc1 {name}_FB_LOOP
    """)
    for b in range(2):
        c.e(f"""
        v_mov_b32 v{vT[0]}, v{vM[b]}
        v_mov_b32 v{vT[1]}, v{vM[b]}
        s_nop 1
        v_permlane32_swap_b32 v{vT[0]}, v{vT[1]}
        s_nop 1
        v_max_f32 v{vM[b]}, v{vT[0]}, v{vT[1]}
        """)
    c.e(f"""
    s_lshl_b32 s{sT0}, s{sW}, 9
    s_add_u32 s{sT0}, s{sT0}, {XCH}
    v_lshlrev_b32 v{vT[2]}, 2, v{vL}
    v_add_u32 v{vT[3]}, s{sT0}, v{vT[2]}
    s_barrier
    ds_write_b32 v{vT[3]}, v{vM[0]}
    ds_write_b32 v{vT[3]}, v{vM[1]} offset:256
    s_xor_b32 s{sT0}, s{sW}, 4
    s_lshl_b32 s{sT0}, s{sT0}, 9
    s_add_u32 s{sT0}, s{sT0}, {XCH}
    v_add_u32 v{vT[3]}, s{sT0}, v{vT[2]}
    s_waitcnt lgkmcnt(0)
    s_barrier
    ds_read_b32 v{vT[4]}, v{vT[3]}
    ds_read_b32 v{vT[5]}, v{vT[3]} offset:256
    s_waitcnt lgkmcnt(0)
    v_max_f32 v{vM[0]}, v{vM[0]}, v{vT[4]}
    v_max_f32 v{vM[1]}, v{vM[1]}, v{vT[5]}
    s_barrier
    """)
    for b in range(2):
        for r in range(16): c.e(f"v_sub_f32 v{NM[b]+r}, 0, v{vM[b]}")
    c.e(f"s_mov_b32 s{sSrc}, s{sSrc0}\ns_mov_b32 s{sSlotW}, 0")
    c.e("\n".join(dma_chunk())); c.e("\n".join(dma_chunk()))
    emit_pass("FB", True)
    c.e(f"s_branch {name}_EPI")
    Vg = Alloc(168, 2, "v")
    gOffW = [Vg.take() for _ in range(5)]; gOffA = Vg.take(); gWA = Vg.take(); gAA = Vg.take(); gOm = Vg.take()
    gT = [Vg.take() for _ in range(6)]
    gact = Vg.take(4, 4); gwf = Vg.take(20, 4); gacc = Vg.take(80, 4); goq = Vg.take(40, 4); gtmp = goq
    sRB, sCG, sKQ, sLB, sKs, sAct = sQG, sKH, sQB, sSrc, sSrc0, sTile
    srdW = Sg.take(4, 4); srdO = Sg.take(4, 4); sOmA = Sg.take()
    gAc_ = goq + 39
    NDOWN = 27; NSTEP = 37; DEFER = 0
    gs = Sg.take(16, 2) if stamps else 0
    gi = [0]
    def gstamp():
        if stamps:
            c.e(f"s_memrealtime s[{gs+2*gi[0]}:{gs+2*gi[0]+1}]\ns_waitcnt lgkmcnt(0)"); gi[0] += 1
    c.label(f"{name}_GW")
    c.e(f"""
    s_sub_u32 s{sKQ}, s{sW}, 8
    s_lshr_b32 s{sT0}, s{sJ}, 2
    s_lshl_b32 s{sRB}, s{sX}, 3
    s_add_u32 s{sRB}, s{sRB}, s{sT0}
    s_and_b32 s{sCG}, s{sJ}, 3
    s_mul_i32 s{sT0}, s{sCG}, 320
    """)
    for i in range(5):
        c.e(f"""
        v_add_u32 v{gT[1]}, {64*i}, v{vL}
        v_mul_u32_u24 v{gT[2]}, 3277, v{gT[1]}
        v_lshrrev_b32 v{gT[2]}, 16, v{gT[2]}
        v_mul_u32_u24 v{gT[3]}, 20, v{gT[2]}
        v_sub_u32 v{gT[3]}, v{gT[1]}, v{gT[3]}
        v_mul_u32_u24 v{gT[2]}, 1280, v{gT[2]}
        v_lshl_add_u32 v{gT[2]}, v{gT[3]}, 4, v{gT[2]}
        v_add_u32 v{gOffW[i]}, s{sT0}, v{gT[2]}
        """)
    c.e(f"""
    v_lshlrev_b32 v{gOffA}, 4, v{vL}
    s_mul_i32 s{sLB}, s{sKQ}, {GWAVE}
    s_add_u32 s{sLB}, s{sLB}, {GRING}
    s_mul_i32 s{sKs}, s{sKQ}, 20480
    s_mul_i32 s{sAct}, s{sRB}, 108
    s_add_u32 s{sAct}, s{sAct}, s{sKQ}
    s_lshl_b32 s{sAct}, s{sAct}, 10
    s_add_u32 s{sAct}, s{sAct}, {HF_OFF}
    s_waitcnt lgkmcnt(0)
    """)
    srd(c, srdWS, sWS, WS_BYTES); srd(c, srdW, sWD, 1728*1280); srd(c, srdO, sOUT, 2048*1280)
    if fused: c.e("s_barrier")
    def gdma(n):
        so = (n % 3)*GSLOT; L = []
        for i in range(5):
            L += [f"s_add_u32 m0, s{sLB}, {so + 1024*i}", "s_nop 0", f"buffer_load_dwordx4 v{gOffW[i]}, s[{srdW}:{srdW+3}], s{sKs} offen lds"]
        L += [f"s_add_u32 s{sKs}, s{sKs}, {4*20480}"]
        if n < NDOWN:
            L += [f"s_add_u32 m0, s{sLB}, {so + 5120}", "s_nop 0", f"buffer_load_dwordx4 v{gOffA}, {srd4}, s{sAct} offen{HS} lds", f"s_add_u32 s{sAct}, s{sAct}, 4096"]
        return L
    ndma = lambda n: 0 if n >= NDOWN else 6
    c.e(f"""
    v_and_b32 v{gT[0]}, 31, v{vL}
    v_lshlrev_b32 v{gT[1]}, 3, v{gT[0]}
    s_lshl_b32 s{sT0}, s{sRB}, 8
    s_add_u32 s{sT0}, s{sT0}, {G_OFF + 4}
    s_mov_b32 s{sOmA}, s{sT0}
    """)
    if not fused: c.e(f"buffer_load_dword v{gOm}, v{gT[1]}, {srd4}, s{sT0} offen")
    else: c.e(f"v_mov_b32 v{gAc_}, v{gT[1]}")
    if "TLB" in exp:
        c.e(f"""
        v_min_u32 v{gT[2]}, 6, v{vL}
        v_lshlrev_b32 v{gT[2]}, 20, v{gT[2]}
        s_mov_b32 s{sT0}, {OF_OFF}
        buffer_load_dword v{goq}, v{gT[2]}, {srd4}, s{sT0} offen
        v_min_u32 v{gT[2]}, 2, v{vL}
        v_lshlrev_b32 v{gT[2]}, 20, v{gT[2]}
        buffer_load_dword v{goq+1}, v{gT[2]}, s[{srdO}:{srdO+3}], 0 offen
        """)
    c.e(f"""
    v_and_b32 v{gT[3]}, 15, v{vL}
    v_lshrrev_b32 v{gT[4]}, 2, v{gT[3]}
    v_lshrrev_b32 v{gT[2]}, 5, v{vL}
    v_lshl_add_u32 v{gT[4]}, v{gT[2]}, 2, v{gT[4]}
    v_mul_u32_u24 v{gT[4]}, 320, v{gT[4]}
    v_and_b32 v{gT[3]}, 3, v{gT[3]}
    v_lshl_add_u32 v{gT[4]}, v{gT[3]}, 3, v{gT[4]}
    v_lshrrev_b32 v{gT[3]}, 4, v{vL}
    v_and_b32 v{gT[3]}, 1, v{gT[3]}
    v_lshl_add_u32 v{gT[4]}, v{gT[3]}, 5, v{gT[4]}
    v_add_u32 v{gWA}, s{sLB}, v{gT[4]}
    v_add_u32 v{gAA}, 5120, v{gOffA}
    v_add_u32 v{gAA}, s{sLB}, v{gAA}
    """)
    for r in range(80): c.e(f"v_mov_b32 v{gacc+r}, 0")
    if "PG" in exp: c.e("s_setprio 1")
    c.e("s_barrier")
    if fused:
        c.e(f"""
        s_lshr_b32 s{sT0}, s{sRB}, 2
        s_add_u32 s{sT1}, s{sT0}, {C_H}
        s_add_u32 s{sT0}, s{sT0}, {C_G}
        v_mov_b32 v{gT[2]}, s{sT1}
        v_mov_b32 v{gT[3]}, s{sT0}
        v_cmp_eq_u32 vcc, 0, v{vL}
        v_mov_b32 v{gT[4]}, 1
        v_mov_b32 v{gT[5]}, 9
        v_cndmask_b32 v{gT[2]}, v{gT[3]}, v{gT[2]}, vcc
        v_cndmask_b32 v{gT[4]}, v{gT[4]}, v{gT[5]}, vcc
        v_lshlrev_b32 v{gT[2]}, 7, v{gT[2]}
        v_add_u32 v{gT[2]}, {CNT_OFF}, v{gT[2]}
        """)
        poll("POLLH", gT[2], gT[4], gT[3], 2)
        c.e(f"buffer_load_dword v{gOm}, v{gAc_}, {srd4}, s{sOmA} offen sc1")
    c.e("\n".join(gdma(0) + gdma(1)))
    def sloc(n, loc=None):
        return loc if loc is not None else (gWA, (n % 3)*GSLOT)
    def rdW(jb, areg, so):
        return [f"ds_read_b64_tr_b16 {vr(gwf+4*jb,2)}, v{areg} offset:{so + 64*jb}", f"ds_read_b64_tr_b16 {vr(gwf+4*jb+2,2)}, v{areg} offset:{so + 64*jb + 2560}"]
    def step(n, wait, post=None, loc=None, midbar=False):
        areg, so = sloc(n, loc)
        c.e(wait)
        act = gact
        if n < NDOWN: c.e(f"ds_read_b128 {vr(gact,4)}, v{gAA} offset:{so}")
        else: act = goq + 4*(n - NDOWN)
        for jb in range(5): c.e("\n".join(rdW(jb, areg, so)))
        if n + 2 < NDOWN: c.e("\n".join(gdma(n + 2)))
        if midbar: c.e("s_barrier")
        for jb in range(5):
            c.e(f"s_waitcnt lgkmcnt({8 - 2*jb})")
            c.e(mfma32(gacc+16*jb, gwf+4*jb, act))
        if post: c.e("\n".join(post))
    def wo_steps(waits):
        areg, so = wloc(0)
        for jb in range(5): c.e("\n".join(rdW(jb, areg, so)))
        for i in range(10):
            c.e(f"s_waitcnt vmcnt({waits[i][0]})")
            nxt = wloc(i + 1) if i + 1 < 10 else None
            if nxt is not None and waits[i][1] is not None: pass
            for jb in range(5):
                c.e(f"s_waitcnt lgkmcnt({8 if nxt is not None else 8 - 2*jb})")
                c.e(mfma32(gacc+16*jb, gwf+4*jb, goq + 4*i))
                if nxt is not None:
                    if jb == 0 and waits[i][1] is not None: c.e(f"s_waitcnt vmcnt({waits[i][1]})")
                    c.e("\n".join(rdW(jb, nxt[0], nxt[1])))
            if i < 3: c.e("\n".join(wdma(7 + i)))
            if i == 0: gstamp()
    sched = [3, 4, 3, 4, 3, 4, 3, 3]; n = 0
    if 'GS1' in exp: sched = [2, 4, 4, 4, 4, 4, 3, 2]
    if 'GS2' in exp: sched = [4, 4, 4, 4, 4, 4, 3, 0]
    if 'GS3' in exp: sched = [1, 3, 4, 4, 4, 4, 4, 3]
    assert sum(sched) == NDOWN - DEFER
    gWB = gT[5]; sAB = sOb
    def wloc(i):
        if i < 3: return (gWA, GSLOT*i)
        if i < 7: return (gWB, 5120*(i - 3))
        return (gWA, GSLOT*(i - 7))
    def wdma(i):
        L = []
        base, off = (sLB, GSLOT*i) if i < 3 else ((sAB, 5120*(i - 3)) if i < 7 else (sLB, GSLOT*(i - 7)))
        for k in range(5):
            L += [f"s_add_u32 m0, s{base}, {off + 1024*k}", "s_nop 0", f"buffer_load_dwordx4 v{gOffW[k]}, s[{srdW}:{srdW+3}], s{sKs} offen lds"]
        L += [f"s_add_u32 s{sKs}, s{sKs}, {4*20480}"]
        return L
    HB = "NOHB" not in exp
    if HB:
        tot = 2*NDOWN; first = 5 if "HB2" in exp else 6
        pos = [first + round((tot - first)*k/7.0) for k in range(7)]
        for n_ in range(NDOWN):
            step(n_, f"s_waitcnt vmcnt({ndma(n_+1)})", midbar=(2*n_ + 1) in pos)
            if (2*n_ + 2) in pos: c.e("s_barrier")
        n = NDOWN
        sched = [0]*7 + [0]
    for k in range(8):
        if HB and k < 7: continue
        for _ in range(sched[k]):
            step(n, f"s_waitcnt vmcnt({ndma(n+1)})"); n += 1
        if k == 7:
            c.e(f"""
            s_mov_b32 s{srdW}, s{sWO}
            s_and_b32 s{srdW+1}, s{sWO+1}, 0xffff
            s_mov_b32 s{srdW+2}, {640*1280}
            s_mul_i32 s{sKs}, s{sKQ}, 20480
            s_mul_i32 s{sAB}, s{sKQ}, 20480
            v_subrev_u32 v{gWB}, s{sLB}, v{gWA}
            v_add_u32 v{gWB}, s{sAB}, v{gWB}
            """)
            for i in range(3): c.e("\n".join(wdma(i)))
        c.e("s_barrier")
    c.e("s_nop 7")
    for r in range(80): c.e(f"v_mul_f32 v{gacc+r}, v{gacc+r}, v{gOm}")
    c.e(f"""
    s_barrier
    v_mov_b32 v{gT[3]}, {FLAG}
    ds_read_b32 v{gT[3]}, v{gT[3]}
    s_waitcnt lgkmcnt(0)
    v_readfirstlane_b32 s{sT1}, v{gT[3]}
    s_nop 3
    s_cmp_eq_u32 s{sT1}, 0
    s_cbranch_scc1 {name}_GNOFB
    s_mov_b32 s{sT0}, {FB_BARRIERS}
    {name}_GFB:
    s_barrier
    s_sub_u32 s{sT0}, s{sT0}, 1
    s_cmp_lg_u32 s{sT0}, 0
    s_cbranch_scc1 {name}_GFB
    {name}_GNOFB:
    s_barrier
    """)
    gstamp()
    c.e(f"""
    s_lshr_b32 s{sT3}, s{sRB}, 3
    s_lshl_b32 s{sT3}, s{sT3}, 7
    s_add_u32 s{sT3}, s{sT3}, {CNT_OFF}
    v_mov_b32 v{gT[2]}, 0
    """)
    for i in range(3, 5): c.e("\n".join(wdma(i)))
    c.e(f"buffer_load_dword v{gT[3]}, v{gT[2]}, {srd4}, s{sT3} offen sc1")
    for i in range(5, 7): c.e("\n".join(wdma(i)))
    c.e(f"""
    s_waitcnt vmcnt(10)
    v_readfirstlane_b32 s{sT1}, v{gT[3]}
    s_nop 3
    s_cmp_ge_u32 s{sT1}, 32
    s_cbranch_scc1 {name}_GO
    """)
    gstamp()
    c.e(f"""
    s_lshr_b32 s{sT0}, s{sRB}, 3
    s_lshl_b32 s{sT0}, s{sT0}, 7
    s_add_u32 s{sT0}, s{sT0}, {CNT_OFF}
    v_mov_b32 v{gT[2]}, 0
    s_mov_b32 s{sT2}, 0
    {name}_POLL:
    buffer_load_dword v{gT[3]}, v{gT[2]}, {srd4}, s{sT0} offen sc1
    s_waitcnt vmcnt(0)
    v_readfirstlane_b32 s{sT1}, v{gT[3]}
    s_add_u32 s{sT2}, s{sT2}, 1
    s_nop 2
    s_cmp_ge_u32 s{sT1}, 32
    s_cbranch_scc1 {name}_GO
    s_sleep 1
    s_cmp_lt_u32 s{sT2}, 0x40000
    s_cbranch_scc1 {name}_POLL
    {name}_GO:
    s_mul_i32 s{sT0}, s{sRB}, 40
    s_add_u32 s{sT0}, s{sT0}, s{sKQ}
    s_lshl_b32 s{sT0}, s{sT0}, 10
    s_add_u32 s{sT0}, s{sT0}, {OF_OFF}
    """)
    gstamp()
    c.e(f"v_lshlrev_b32 v{gT[2]}, 3, v{vL}")
    for i in range(10):
        c.e(f"buffer_load_dwordx2 {vr(goq+4*i,2)}, v{gT[2]}, {srd4}, s{sT0} offen sc1\nbuffer_load_dwordx2 {vr(goq+4*i+2,2)}, v{gT[2]}, {srd4}, s{sT0} offen offset:512 sc1\ns_add_u32 s{sT0}, s{sT0}, 4096")
    waits = [(18, None), (21, None), (24, None), (27, None), (25, None), (23, None), (21, 10), (10, 5), (5, 0), (0, None)]
    wo_steps(waits)
    gstamp()
    own = [0,0,0,1,1,1,2,2,3,3]
    c.e("s_nop 7\ns_nop 3\ns_barrier")
    for kq in range(4):
        c.e(f"s_cmp_eq_u32 s{sKQ}, {kq}\ns_cbranch_scc0 {name}_GX{kq}")
        c.e(f"v_add_u32 v{gT[5]}, {GRING}, v{gOffA}\nv_add_u32 v{gT[4]}, {GRING + 30720}, v{gOffA}")
        cnt = 0
        for p in range(10):
            if own[p] == kq: continue
            slot = kq if kq < own[p] else kq - 1
            off = p*6144 + slot*2048
            a_, o = (gT[5], off) if off < 30720 else (gT[4], off - 30720)
            for h in range(2):
                c.e(f"ds_write_b128 v{a_}, {vr(gacc + 8*p + 4*h, 4)} offset:{o + 1024*h}"); cnt += 1
                if cnt % 8 == 0: c.e("s_waitcnt lgkmcnt(4)")
        c.e(f"""
        v_and_b32 v{gT[0]}, 31, v{vL}
        s_lshl_b32 s{sT0}, s{sRB}, 5
        v_add_u32 v{gT[0]}, s{sT0}, v{gT[0]}
        v_mul_u32_u24 v{gT[0]}, 1280, v{gT[0]}
        v_lshrrev_b32 v{gT[2]}, 5, v{vL}
        v_lshl_add_u32 v{gT[0]}, v{gT[2]}, 4, v{gT[0]}
        s_mul_i32 s{sT0}, s{sCG}, 320
        s_waitcnt lgkmcnt(0)
        s_barrier
        """)
        mine = [p for p in range(10) if own[p] == kq]
        for ip, p in enumerate(mine):
            off = p*6144
            a_, o = (gT[5], off) if off < 30720 else (gT[4], off - 30720)
            t = gtmp + 24 + 4*(ip % 2)
            for h in range(2):
                for sl in range(3): c.e(f"ds_read_b128 {vr(gtmp+12*h+4*sl,4)}, v{a_} offset:{o + 2048*sl + 1024*h}")
            for h in range(2):
                for sl in range(3):
                    c.e(f"s_waitcnt lgkmcnt({5 - 3*h - sl})")
                    for r in range(4): c.e(f"v_add_f32 v{gacc+8*p+4*h+r}, v{gacc+8*p+4*h+r}, v{gtmp+12*h+4*sl+r}")
            for q in range(4): c.e(f"v_cvt_pk_bf16_f32 v{t+q}, v{gacc+8*p+2*q}, v{gacc+8*p+2*q+1}")
            c.e(f"""
            s_nop 1
            v_permlane32_swap_b32 v{t}, v{t+2}
            v_permlane32_swap_b32 v{t+1}, v{t+3}
            s_add_u32 s{sT2}, s{sT0}, {32*p}
            s_nop 0
            buffer_store_dwordx4 {vr(t,4)}, v{gT[0]}, s[{srdO}:{srdO+3}], s{sT2} offen{OM}
            """)
        c.e(f"s_branch {name}_GEND")
        c.label(f"{name}_GX{kq}")
    c.label(f"{name}_GEND")
    if stamps:
        c.e("s_waitcnt vmcnt(0)")
        gstamp()
        c.e(f"""
        s_lshl_b32 s{sT0}, s2, 2
        s_add_u32 s{sT0}, s{sT0}, s{sKQ}
        s_lshl_b32 s{sT0}, s{sT0}, 5
        s_add_u32 s{sT0}, s{sT0}, {STAMP_OFF + 2*65536}
        v_mov_b32 v{gT[2]}, 0
        """)
        for i in range(gi[0]):
            c.e(f"v_mov_b32 v{gT[3]}, s{gs+2*i}\nbuffer_store_dword v{gT[3]}, v{gT[2]}, {srd4}, s{sT0} offen offset:{4*i}\ns_nop 1")
    c.e("s_endpgm")
    c.label(f"{name}_FIN")
    if stamps: c.e("s_waitcnt vmcnt(0)")
    ST.i = 4; ST.stamp(c); ST.stamp(c, real=True)
    if stamps: ST.i = 8
    ST.flush(c, sW, srdWS, vT[2], vT[3], sT0)
    c.e(f"""
    {name}_END:
    s_endpgm
    """)
    def S(kh, unsafe=False, fb=False):
        d = {f"{name}_END": False, f"{name}_LOOP_NODMA": (lambda k: k % 3 == 2), f"{name}_LOOPFB_NODMA": (lambda k: k % 3 == 2), f"{name}_NOSWAP": kh == 0, f"{name}_SAFE": not unsafe,
             f"{name}_FALLBACK": (lambda k: k == 0 and fb), f"{name}_FB_NOSWAP": kh == 0}
        return d
    scen = {"kh0": S(0), "kh1": S(1), "fb": S(1, True, True)}
    for k_ in scen:
        scen[k_][f"{name}_NOPOLL"] = (k_ == "kh1"); scen[k_][f"{name}_POLLQOK"] = (lambda k: k >= 1); scen[k_][f"{name}_POLLQ"] = True
    for k_ in scen: scen[k_][f"{name}_NPH"] = False
    for k_ in scen: scen[k_][f"{name}_GW"] = False; scen[k_][f"{name}_FIN"] = (k_ == "kh1")
    for kq in range(4):
        d = {f"{name}_END": False, f"{name}_GW": True, f"{name}_GNOFB": kq % 2 == 0, f"{name}_GO": ((lambda k: k >= 1) if kq != 1 else True), f"{name}_POLL": True, f"{name}_POLLHOK": (lambda k: k >= 1), f"{name}_POLLH": True}
        for q in range(4): d[f"{name}_GX{q}"] = (q != kq)
        scen[f"g{kq}"] = d
    return c, max(V.hi, Vg.hi), scen, K2_LDS
    return c, V.hi, scen, K2_LDS

if __name__ == "__main__":
    c, nv, scen, lds = gen_k2()
    errs = check(c.lines, scen, "k2")
    print("vgprs", nv, "lds", lds, "lines", len(c.lines))
    for e in errs[:40]: print(e)
```

```python
from common import *

CH = 10240
SLOT = 2*CH; RING = 3
DUMMY = SLOT*RING
FLAG = DUMMY + 1024
XCH = FLAG + 64
GRING = XCH + 8*3072
GSLOT = 6144; GWAVE = 3*GSLOT
K2_LDS = GRING + 4*GWAVE
FB_BARRIERS = 16 + 3 + 9 + 1

def gen_k2(name="k2_kernel", stamps=False, exp="", fused=False):
    c = Code()
    CS = "TOG" not in exp
    OM = " sc1" if "OS" in exp else (" nt" if "ON" in exp else (" sc0 sc1" if "OX" in exp else ""))
    SM = " sc1" if "SC1" in exp else (" sc0 sc1" if "SC01" in exp else ("" if ("PLAIN" in exp or "P2" in exp) else " nt"))
    V = Alloc(168, 1, "v"); Sg = Alloc(100, 12, "s")
    sWS = 4; sWD = 6; sWO = 8; sOUT = 10
    sX = Sg.take(); sJ = Sg.take(); sHead = Sg.take(); sQB = Sg.take(); sW = Sg.take(); sQG = Sg.take(); sKH = Sg.take()
    sT0 = Sg.take(); sT1 = Sg.take(); sT2 = Sg.take(); sT3 = Sg.take()
    srdWS = Sg.take(4, 4)
    sMaskLo = Sg.take(2, 2); sMaskV = Sg.take(2, 2); sU = Sg.take(2, 2); sU2 = Sg.take(2, 2)
    sSrc = Sg.take(); sM = [Sg.take() for _ in range(3)]; sSlotW = Sg.take(); sSlotR = Sg.take(); sC = Sg.take(); sMode = Sg.take()
    sSrc0 = Sg.take(); sTile = Sg.take(); sOb = Sg.take()
    ST = Stamps(Sg, stamps, 1)
    vL = V.take(); vT = [V.take() for _ in range(8)]
    vOff = V.take(); vOff3 = V.take()
    vK1a = V.take(); vK2a = V.take(); vVa = V.take()
    vK1c = V.take(); vK2c = V.take(); vVc = V.take()
    vG = [V.take(), V.take()]; vSt = [V.take() for _ in range(3)]; vGo = V.take(); vVm = V.take()
    Q1 = [V.take(4, 4), V.take(4, 4)]; Q2 = [V.take(2, 2), V.take(2, 2)]
    K1 = V.take(4, 4); K2 = V.take(2, 2); V0 = V.take(4, 4); V1 = V.take(4, 4)
    S_ = [V.take(16, 4), V.take(16, 4)]; O = [V.take(16, 4), V.take(16, 4)]
    P = [V.take(4, 4), V.take(4, 4)]; T4 = V.take(4, 4)
    vM = [V.take(), V.take()]
    NM = [V.take(16, 4), V.take(16, 4)]
    srd4 = f"s[{srdWS}:{srdWS+3}]"

    HS = " sc1" if (fused and "NOHS" not in exp) else ""
    if fused: c.label(f"{name}_ENTRY")
    else: c.e(f"s_cmp_ge_u32 s2, 256\ns_cbranch_scc1 {name}_END")
    c.e(f"""
    s_load_dwordx2 s[4:5], s[0:1], {KA_WS}
    s_load_dwordx2 s[6:7], s[0:1], {KA_WD}
    s_load_dwordx2 s[8:9], s[0:1], {KA_WO}
    s_load_dwordx2 s[10:11], s[0:1], {KA_OUT}
    v_and_b32 v{vL}, 63, v0
    v_lshrrev_b32 v{vT[0]}, 6, v0
    s_and_b32 s{sX}, s2, 7
    s_lshr_b32 s{sJ}, s2, 3
    v_readfirstlane_b32 s{sW}, v{vT[0]}
    s_lshr_b32 s{sT0}, s{sJ}, 3
    s_lshl_b32 s{sHead}, s{sX}, 2
    s_add_u32 s{sHead}, s{sHead}, s{sT0}
    s_and_b32 s{sQB}, s{sJ}, 7
    v_lshlrev_b32 v{vOff}, 4, v{vL}
    s_mul_i32 s{sSrc0}, s{sHead}, {KV_HS}
    s_add_u32 s{sSrc0}, s{sSrc0}, {KV_OFF}
    """)
    ST.stamp(c, real=True); ST.stamp(c)
    c.e(f"s_cmp_ge_u32 s{sW}, 8\ns_cbranch_scc1 {name}_GW")
    c.e(f"""
    s_and_b32 s{sQG}, s{sW}, 3
    s_lshr_b32 s{sKH}, s{sW}, 2
    s_mul_i32 s{sT0}, s{sKH}, {32*KV_TS}
    s_add_u32 s{sSrc0}, s{sSrc0}, s{sT0}
    s_lshl_b32 s{sT0}, s{sQG}, 10
    s_add_u32 s{sSrc0}, s{sSrc0}, s{sT0}
    s_mul_i32 s{sT1}, s{sKH}, {CH}
    s_add_u32 s{sM[0]}, s{sT1}, s{sT0}
    s_add_u32 s{sM[1]}, s{sM[0]}, 4096
    s_add_u32 s{sM[2]}, s{sM[0]}, 8192
    s_cmp_lt_u32 s{sQG}, 2
    s_cselect_b32 s{sT0}, 0, 0x7f000000
    v_add_u32 v{vOff3}, s{sT0}, v{vOff}
    s_mov_b32 s{sSrc}, s{sSrc0}
    s_mov_b32 s{sSlotW}, 0
    s_lshl_b32 s{sTile}, s{sQB}, 3
    s_lshl_b32 s{sT0}, s{sQG}, 1
    s_add_u32 s{sTile}, s{sTile}, s{sT0}
    s_waitcnt lgkmcnt(0)
    """)
    if stamps: c.e(f"s_memtime s[{ST.s+12}:{ST.s+13}]")
    srd(c, srdWS, sWS, WS_BYTES)
    def dma_parts():
        g0 = [f"s_add_u32 m0, s{sSlotW}, s{sM[0]}", f"s_add_u32 s{sT0}, s{sSrc}, 4096", f"buffer_load_dwordx4 v{vOff}, {srd4}, s{sSrc} offen{HS} lds"]
        g1 = [f"s_add_u32 m0, s{sSlotW}, s{sM[1]}", f"s_add_u32 s{sT1}, s{sSrc}, 8192", f"buffer_load_dwordx4 v{vOff}, {srd4}, s{sT0} offen{HS} lds"]
        g2 = [f"s_add_u32 s{sT0}, s{sSlotW}, s{sM[2]}", f"s_cmp_lt_u32 s{sQG}, 2", f"s_cselect_b32 m0, s{sT0}, {DUMMY}", f"s_add_u32 s{sSrc}, s{sSrc}, {CH}",
              f"buffer_load_dwordx4 v{vOff3}, {srd4}, s{sT1} offen{HS} lds",
              f"s_add_u32 s{sSlotW}, s{sSlotW}, {SLOT}", f"s_cmp_eq_u32 s{sSlotW}, {SLOT*RING}", f"s_cselect_b32 s{sSlotW}, 0, s{sSlotW}"]
        return g0, g1, g2
    def dma_chunk():
        g = dma_parts(); return g[0] + g[1] + g[2]
    def first_loads():
        c.e("\n".join(dma_chunk()))
    def poll(tag, vA, vTg, vV, nl):
        m = (1 << nl) - 1
        c.e(f"""
        s_mov_b32 s{sT2}, 0
        s_mov_b64 exec, {m}
        {name}_{tag}:
        buffer_load_dword v{vV}, v{vA}, {srd4}, 0 offen sc1
        s_waitcnt vmcnt(0)
        v_cmp_ge_u32 vcc, v{vV}, v{vTg}
        s_add_u32 s{sT2}, s{sT2}, 1
        s_nop 3
        s_cmp_eq_u64 vcc, exec
        s_cbranch_scc1 {name}_{tag}OK
        s_sleep 1
        s_cmp_lt_u32 s{sT2}, 0x40000
        s_cbranch_scc1 {name}_{tag}
        {name}_{tag}OK:
        s_mov_b64 exec, -1
        """)
    if fused:
        c.e(f"""
        s_cmp_eq_u32 s{sW}, 0
        s_cbranch_scc0 {name}_NOPOLL
        s_lshr_b32 s{sT0}, s{sHead}, 4
        s_add_u32 s{sT0}, s{sT0}, {C_Q}
        s_lshl_b32 s{sT1}, s{sQB}, 1
        s_add_u32 s{sT1}, s{sT1}, {C_G - 3}
        v_lshlrev_b32 v{vT[1]}, 1, v{vL}
        v_add_u32 v{vT[1]}, s{sT0}, v{vT[1]}
        v_add_u32 v{vT[2]}, s{sT1}, v{vL}
        v_cmp_lt_u32 vcc, 2, v{vL}
        v_mov_b32 v{vT[3]}, 16
        v_mov_b32 v{vT[4]}, 1
        v_cndmask_b32 v{vT[1]}, v{vT[1]}, v{vT[2]}, vcc
        v_cndmask_b32 v{vT[3]}, v{vT[3]}, v{vT[4]}, vcc
        v_lshlrev_b32 v{vT[1]}, 7, v{vT[1]}
        v_add_u32 v{vT[1]}, {CNT_OFF}, v{vT[1]}
        """)
        poll("POLLQ", vT[1], vT[3], vT[4], 5)
        c.e(f"{name}_NOPOLL:\ns_barrier")
    first_loads()
    c.e(f"""
    s_mul_i32 s{sT2}, s{sHead}, {QF_HS}
    s_mul_i32 s{sT1}, s{sTile}, {QF_TS}
    s_add_u32 s{sT2}, s{sT2}, s{sT1}
    s_add_u32 s{sT3}, s{sT2}, {QF_TS}
    v_and_b32 v{vT[0]}, 31, v{vL}
    v_lshlrev_b32 v{vT[1]}, 3, v{vT[0]}
    s_mov_b32 s{sMaskLo}, -1
    s_mov_b32 s{sMaskLo+1}, 0
    v_mov_b32 v{Q2[0]}, 0
    v_mov_b32 v{Q2[0]+1}, 0
    v_mov_b32 v{Q2[1]}, 0
    v_mov_b32 v{Q2[1]+1}, 0
    buffer_load_dwordx4 {vr(Q1[0],4)}, v{vOff}, {srd4}, s{sT2} offen{HS}
    buffer_load_dwordx4 {vr(Q1[1],4)}, v{vOff}, {srd4}, s{sT3} offen{HS}
    s_mov_b64 exec, s[{sMaskLo}:{sMaskLo+1}]
    buffer_load_dwordx2 {vr(Q2[0],2)}, v{vT[1]}, {srd4}, s{sT2} offen offset:1024{HS}
    buffer_load_dwordx2 {vr(Q2[1],2)}, v{vT[1]}, {srd4}, s{sT3} offen offset:1024{HS}
    s_mov_b64 exec, -1
    """)
    c.e(f"""
    v_mov_b32 v{vGo}, v{vT[1]}
    s_mov_b32 s{sMode}, 0
    s_mov_b32 s{sMaskV}, 0xfffff
    s_mov_b32 s{sMaskV+1}, 0xfffff
    s_mul_i32 s{sT0}, s{sKH}, {CH}
    v_add_u32 v{vK1a}, s{sT0}, v{vOff}
    v_add_u32 v{vK2a}, s{sT0}, v{vT[1]}
    v_lshrrev_b32 v{vT[2]}, 5, v{vL}
    v_mul_u32_u24 v{vT[7]}, 320, v{vT[2]}
    v_lshl_add_u32 v{vT[7]}, v{vT[0]}, 4, v{vT[7]}
    v_add_u32 v{vVa}, s{sT0}, v{vT[7]}
    """)
    if CS:
        CB = XCH - 1280 + ((16 - ((XCH - 1280)//16) % 16) % 16)*16
        assert CB % 256 == 0 and CB + 1280 >= XCH and CB + 3*KV_TS + 1280 + 640 + 320 + 13*16 <= XCH + 8*3072
        c.e(f"""
        v_mov_b32 v{vT[5]}, 5
        v_mov_b32 v{vT[6]}, 4
        v_cmp_eq_u32 vcc, 20, v{vT[0]}
        v_mov_b32 v{vT[4]}, 12
        s_nop 0
        v_cndmask_b32 v{vT[5]}, v{vT[5]}, v{vT[6]}, vcc
        v_cmp_lt_u32 vcc, 27, v{vT[0]}
        v_mul_u32_u24 v{vT[6]}, 320, v{vT[2]}
        s_nop 0
        v_cndmask_b32 v{vT[5]}, v{vT[5]}, v{vT[4]}, vcc
        v_lshl_add_u32 v{vT[5]}, v{vT[5]}, 4, v{vT[6]}
        v_add_u32 v{vT[5]}, {CB}, v{vT[5]}
        v_cmp_lt_u32 vcc, 19, v{vT[0]}
        v_mov_b32 v{vT[4]}, 1
        v_mov_b32 v{vT[6]}, 0
        v_cndmask_b32 v{vVa}, v{vVa}, v{vT[5]}, vcc
        v_cndmask_b32 v{vVm}, v{vT[4]}, v{vT[6]}, vcc
        """)
    c.e(f"""
    v_cmp_eq_u32 vcc, 20, v{vT[0]}
    v_mov_b32 v{vT[3]}, 0
    v_mov_b32 v{vT[4]}, 0x3f803f80
    v_cndmask_b32 v{vT[3]}, v{vT[3]}, v{vT[4]}, vcc
    """)
    for r in range(4): c.e(f"v_mov_b32 v{V0+r}, v{vT[3]}\nv_mov_b32 v{V1+r}, v{vT[3]}")
    c.e(f"v_mov_b32 v{K2}, 0\nv_mov_b32 v{K2+1}, 0")
    c.e(f"v_mov_b32 v{vT[3]}, 0\nv_mov_b32 v{vT[4]}, {FLAG}\nds_write_b32 v{vT[4]}, v{vT[3]}")
    c.e(f"""
    s_add_u32 s{sOb}, s{sTile}, s{sKH}
    s_mul_i32 s{sOb}, s{sOb}, {40*1024}
    s_add_u32 s{sOb}, s{sOb}, {OF_OFF}
    s_mul_i32 s{sT1}, s{sHead}, 5
    v_add_u32 v{vT[2]}, s{sT1}, v{vT[2]}
    v_lshlrev_b32 v{vT[3]}, 4, v{vT[0]}
    """)
    c.e(f"v_lshlrev_b32 v{vT[3]}, 3, v{vT[0]}")
    for g in range(3):
        c.e(f"""
        v_add_u32 v{vT[4]}, {2*g}, v{vT[2]}
        v_lshl_add_u32 v{vSt[g]}, v{vT[4]}, 8, v{vT[3]}
        """)
    def const_spots():
        if not CS: return
        CB = XCH - 1280 + ((16 - ((XCH - 1280)//16) % 16) % 16)*16
        c.e(f"""
        v_mul_u32_u24 v{vT[1]}, 21846, v{vL}
        v_lshrrev_b32 v{vT[1]}, 16, v{vT[1]}
        v_mul_u32_u24 v{vT[2]}, 3, v{vT[1]}
        v_sub_u32 v{vT[2]}, v{vL}, v{vT[2]}
        v_and_b32 v{vT[3]}, 1, v{vT[1]}
        v_mul_u32_u24 v{vT[3]}, 320, v{vT[3]}
        v_bfe_u32 v{vT[4]}, v{vT[1]}, 1, 1
        v_mul_u32_u24 v{vT[4]}, 640, v{vT[4]}
        v_lshrrev_b32 v{vT[1]}, 2, v{vT[1]}
        v_mul_u32_u24 v{vT[1]}, {KV_TS}, v{vT[1]}
        v_add3_u32 v{vT[1]}, v{vT[1]}, v{vT[3]}, v{vT[4]}
        v_mov_b32 v{vT[3]}, 4
        v_mov_b32 v{vT[4]}, 5
        v_cmp_eq_u32 vcc, 1, v{vT[2]}
        v_mov_b32 v{vT[5]}, 12
        v_mov_b32 v{vT[6]}, 0x3f803f80
        v_cndmask_b32 v{vT[3]}, v{vT[3]}, v{vT[4]}, vcc
        v_cmp_eq_u32 vcc, 2, v{vT[2]}
        v_mov_b32 v{vT[4]}, 0
        s_nop 0
        v_cndmask_b32 v{vT[3]}, v{vT[3]}, v{vT[5]}, vcc
        v_cmp_eq_u32 vcc, 0, v{vT[2]}
        v_lshl_add_u32 v{vT[1]}, v{vT[3]}, 4, v{vT[1]}
        v_add_u32 v{vT[1]}, {CB + 1280}, v{vT[1]}
        v_cndmask_b32 v{T4}, v{vT[4]}, v{vT[6]}, vcc
        v_cndmask_b32 v{T4+1}, v{vT[4]}, v{vT[6]}, vcc
        v_cndmask_b32 v{T4+2}, v{vT[4]}, v{vT[6]}, vcc
        v_cndmask_b32 v{T4+3}, v{vT[4]}, v{vT[6]}, vcc
        s_mov_b32 exec_lo, -1
        s_mov_b32 exec_hi, 0xffff
        ds_write_b128 v{vT[1]}, {vr(T4,4)}
        s_mov_b64 exec, -1
        """)
    def rdK(off):
        if "KZ" in exp:
            return [f"s_mov_b64 exec, s[{sMaskLo}:{sMaskLo+1}]", f"ds_read_b64 {vr(K2,2)}, v{vK2c} offset:{off+1024}", "s_mov_b64 exec, -1", f"ds_read_b128 {vr(K1,4)}, v{vK1c} offset:{off}"]
        return [f"ds_read_b64 {vr(K2,2)}, v{vK2c} offset:{off+1024}", f"ds_read_b128 {vr(K1,4)}, v{vK1c} offset:{off}"]
    def rdV(which, off):
        r = V0 if which == 0 else V1
        if CS: return [f"ds_read_b128 {vr(r,4)}, v{vVc} offset:{off + 1280 + 640*which}"]
        return [f"s_mov_b64 exec, s[{sMaskV}:{sMaskV+1}]", f"ds_read_b128 {vr(r,4)}, v{vVc} offset:{off + 1280 + 640*which}", "s_mov_b64 exec, -1"]
    def emit_pass(tag, fb):
        def qk(b): return [f"v_mfma_f32_32x32x16_bf16 {vr(S_[b],16)}, {vr(K1,4)}, {vr(Q1[b],4)}, " + (vr(NM[b],16) if fb else "0"), mfma32x8(S_[b], K2, Q2[b])]
        const_spots()
        for b in range(2):
            for r in range(16): c.e(f"v_mov_b32 v{O[b]+r}, 0")
        for r in range(4): c.e(f"v_mov_b32 v{P[1]+r}, 0\nv_mov_b32 v{T4+r}, 0")
        c.e(f"""
        s_mov_b32 s{sSlotR}, 0
        s_mov_b32 s{sC}, 0
        v_mov_b32 v{vK1c}, v{vK1a}
        v_mov_b32 v{vK2c}, v{vK2a}
        v_mov_b32 v{vVc}, v{vVa}
        """)
        if stamps and not fb: c.e(f"s_memtime s[{ST.s+14}:{ST.s+15}]")
        c.e(f"s_waitcnt vmcnt({3 if fb else 0}) lgkmcnt(0)\ns_barrier")
        c.e("\n".join(rdK(0) + rdV(0, 0)))
        if not fb:
            c.e("\n".join(dma_chunk()))
            c.e(f"""
            s_lshl_b32 s{sT2}, s{sTile}, 8
            s_add_u32 s{sT2}, s{sT2}, {G_OFF}
            buffer_load_dword v{vG[0]}, v{vGo}, {srd4}, s{sT2} offen{HS}
            buffer_load_dword v{vG[1]}, v{vGo}, {srd4}, s{sT2} offen offset:256{HS}
            """)
        c.e(f"s_waitcnt vmcnt({3 if fb else 5}) lgkmcnt(1)") if False else None
        c.e("s_waitcnt lgkmcnt(1)")
        c.e("\n".join(qk(0)))
        c.e("s_nop 7\ns_nop 3")
        if not fb: ST.i = 2; ST.stamp(c, wait=True)
        def half(b, tt):
            s = S_[b]; L = []
            src = lambda i: (s + i) if i < 12 else (T4 + i - 12)
            e = lambda i: f"v_exp_f32 v{src(i)}, v{s+i}"
            cv = lambda p: f"v_cvt_pk_bf16_f32 v{P[p//4] + p%4}, v{src(2*p)}, v{src(2*p+1)}"
            m = qk(1 - b)
            m3 = mfma32(O[b], V0, P[0]); m4p = mfma32(O[1-b], V1, P[1])
            cur = tt*KV_TS; nxt = ((tt + 1) % 4)*KV_TS
            d0 = d1 = d2 = []
            if b == 0 and tt == 0: pass
            if b == 1: L.append("s_waitcnt lgkmcnt(0)" if "W3" in exp else "s_waitcnt lgkmcnt(1)")
            L += [m[0], e(0), cv(6), e(1), cv(7), e(2), e(3), m[1]]
            if b == 0:
                if tt == 3:
                    L += ["s_waitcnt vmcnt(0)", "s_barrier",
                          f"s_add_u32 s{sSlotR}, s{sSlotR}, {SLOT}", f"s_cmp_eq_u32 s{sSlotR}, {SLOT*RING}", f"s_cselect_b32 s{sSlotR}, 0, s{sSlotR}",
                          f"v_add_u32 v{vK1c}, s{sSlotR}, v{vK1a}", f"v_add_u32 v{vK2c}, s{sSlotR}, v{vK2a}"]
                L += rdK(nxt)
            L += [e(4), e(5), cv(0), e(6), e(7), cv(1)]
            if b == 1 and "W3" not in exp: L.append("s_waitcnt lgkmcnt(0)")
            L.append(m4p)
            if b == 0: L += rdV(1, cur)
            if b == 0 and tt == 3: L += ([f"v_mad_u32_u24 v{vVc}, v{vVm}, s{sSlotR}, v{vVa}"] if CS else [f"v_add_u32 v{vVc}, s{sSlotR}, v{vVa}"])
            L += [e(8), cv(2), e(9), cv(3), e(10), e(11)]
            if b == 0: L.append("s_waitcnt lgkmcnt(3)")
            L.append(m3)
            if b == 1: L += rdV(0, nxt)
            L += [e(12), e(13), cv(4), e(14), e(15), cv(5)]
            return L
        lp = f"{name}_LOOP{tag}"
        c.label(lp)
        for tt in range(4):
            A = half(0, tt); B = half(1, tt)
            if tt == 3:
                g0, g1, g2 = dma_parts()
                c.e("\n".join(A))
                c.e(f"s_cmp_ge_u32 s{sC}, 6\ns_cbranch_scc1 {lp}_NODMA")
                c.e("\n".join(g0 + g1 + g2))
                c.label(f"{lp}_NODMA")
                c.e("\n".join(B))
            else:
                c.e("\n".join(A)); c.e("\n".join(B))
        c.e(f"""
        s_add_u32 s{sC}, s{sC}, 1
        s_cmp_lt_u32 s{sC}, 8
        s_cbranch_scc1 {lp}
        """)
        c.e(f"v_cvt_pk_bf16_f32 v{P[1]+2}, v{T4}, v{T4+1}\nv_cvt_pk_bf16_f32 v{P[1]+3}, v{T4+2}, v{T4+3}\ns_waitcnt lgkmcnt(0)\ns_nop 0")
        c.e(mfma32(O[1], V1, P[1]))
    if "PA" in exp: c.e("s_setprio 1")
    if "PH" in exp: c.e(f"s_cmp_eq_u32 s{sKH}, 1\ns_cbranch_scc0 {name}_NPH\ns_setprio 1\n{name}_NPH:")
    emit_pass("", False)
    c.label(f"{name}_EPI")
    ST.i = 3; ST.stamp(c, wait=True)
    c.e(f"""
    s_mul_i32 s{sT0}, s{sQG}, 3072
    s_mul_i32 s{sT1}, s{sKH}, {2*SLOT}
    s_add_u32 s{sT2}, s{sT0}, s{sT1}
    v_add_u32 v{vT[4]}, s{sT2}, v{vOff}
    s_sub_u32 s{sT1}, {2*SLOT}, s{sT1}
    s_add_u32 s{sT2}, s{sT0}, s{sT1}
    v_add_u32 v{vT[6]}, s{sT2}, v{vOff}
    v_mov_b32 v{vT[1]}, 0x7f800000
    v_mov_b32 v{vT[2]}, {hexf(2.0**63)}
    v_mov_b32 v{vT[3]}, {hexf(2.0**-63)}
    v_mov_b32 v{vT[5]}, {FLAG}
    s_nop 3
    s_cmp_eq_u32 s{sKH}, 0
    s_cbranch_scc1 {name}_NOSWAP
    """)
    for r in range(12): c.e(f"v_swap_b32 v{O[0]+r}, v{O[1]+r}")
    c.e(f"v_swap_b32 v{vG[0]}, v{vG[1]}")
    c.label(f"{name}_NOSWAP")
    for g in range(3): c.e(f"ds_write_b128 v{vT[4]}, {vr(O[1]+4*g,4)} offset:{1024*g}")
    c.e(f"v_add_f32 v{vT[0]}, |v{O[0]}|, |v{O[1]}|")
    for r in range(1, 12): c.e(f"v_add_f32 v{vT[0]}, |v{O[0]+r}|, v{vT[0]}\nv_add_f32 v{vT[0]}, |v{O[1]+r}|, v{vT[0]}")
    c.e(f"""
    v_min_f32 v{vT[7]}, v{O[0]+8}, v{O[1]+8}
    v_cmp_nlt_f32 s[{sU}:{sU+1}], v{vT[0]}, v{vT[1]}
    v_max_f32 v{vT[0]}, v{O[0]+8}, v{O[1]+8}
    v_cmp_nge_f32 s[{sU2}:{sU2+1}], v{vT[7]}, v{vT[3]}
    v_cmp_nle_f32 vcc, v{vT[0]}, v{vT[2]}
    s_nop 3
    s_or_b64 s[{sU2}:{sU2+1}], s[{sU2}:{sU2+1}], vcc
    s_andn2_b64 s[{sU2}:{sU2+1}], s[{sU2}:{sU2+1}], s[{sMaskLo}:{sMaskLo+1}]
    s_or_b64 s[{sU}:{sU+1}], s[{sU}:{sU+1}], s[{sU2}:{sU2+1}]
    s_cmp_eq_u64 s[{sU}:{sU+1}], 0
    s_cbranch_scc1 {name}_SAFE
    v_mov_b32 v{vT[3]}, 1
    ds_write_b32 v{vT[5]}, v{vT[3]}
    {name}_SAFE:
    s_waitcnt lgkmcnt(0)
    s_barrier
    ds_read_b32 v{vT[3]}, v{vT[5]}
    """)
    for g in range(3): c.e(f"ds_read_b128 {vr(S_[0]+4*g,4)}, v{vT[6]} offset:{1024*g}")
    c.e(f"""
    s_waitcnt lgkmcnt(3)
    v_readfirstlane_b32 s{sT0}, v{vT[3]}
    s_nop 3
    s_cmp_eq_u32 s{sMode}, 0
    s_cselect_b32 s{sT0}, s{sT0}, 0
    s_cmp_eq_u32 s{sT0}, 0
    s_cbranch_scc0 {name}_FALLBACK
    s_waitcnt vmcnt(0) lgkmcnt(0)
    """)
    for r in range(12): c.e(f"v_add_f32 v{O[0]+r}, v{O[0]+r}, v{S_[0]+r}")
    c.e(f"""
    v_mov_b32 v{vT[0]}, v{O[0]+8}
    v_mov_b32 v{vT[1]}, v{O[0]+8}
    s_nop 1
    v_permlane32_swap_b32 v{vT[0]}, v{vT[1]}
    s_nop 1
    v_rcp_f32 v{vT[1]}, v{vT[1]}
    s_nop 0
    v_mul_f32 v{vT[1]}, v{vT[1]}, v{vG[0]}
    """)
    for r in range(12): c.e(f"v_mul_f32 v{O[0]+r}, v{O[0]+r}, v{vT[1]}")
    for p in range(6): c.e(f"v_cvt_pk_bf16_f32 v{S_[1]+p}, v{O[0]+2*p}, v{O[0]+2*p+1}")
    for g in range(3):
        if g == 2: c.e(f"s_mov_b64 exec, s[{sMaskLo}:{sMaskLo+1}]")
        c.e(f"buffer_store_dwordx2 {vr(S_[1]+2*g,2)}, v{vSt[g]}, {srd4}, s{sOb} offen sc1")
    c.e(f"""
    s_mov_b64 exec, -1
    s_waitcnt vmcnt(0)
    s_barrier
    s_cmp_eq_u32 s{sW}, 0
    s_cbranch_scc0 {name}_FIN
    s_lshl_b32 s{sT0}, s{sQB}, 7
    s_add_u32 s{sT0}, s{sT0}, {CNT_OFF}
    v_mov_b32 v{vT[2]}, 0
    v_mov_b32 v{vT[3]}, 1
    s_mov_b64 exec, 1
    buffer_atomic_add v{vT[3]}, v{vT[2]}, {srd4}, s{sT0} offen
    s_mov_b64 exec, -1
    s_branch {name}_FIN
    """)
    c.label(f"{name}_FALLBACK")
    c.e("s_waitcnt vmcnt(0) lgkmcnt(0)")
    c.e(f"s_cmp_eq_u32 s{sKH}, 0\ns_cbranch_scc1 {name}_FB_NOSWAP\nv_swap_b32 v{vG[0]}, v{vG[1]}\n{name}_FB_NOSWAP:")
    c.e(f"""
    s_mov_b32 s{sMode}, 1
    v_mov_b32 v{vM[0]}, 0xff800000
    v_mov_b32 v{vM[1]}, 0xff800000
    s_mov_b32 s{sSrc}, s{sSrc0}
    s_mov_b32 s{sC}, 0
    {name}_FB_LOOP:
    s_barrier
    s_mov_b32 s{sSlotW}, 0
    """)
    c.e("\n".join(dma_chunk()))
    c.e(f"s_waitcnt vmcnt(0)\ns_barrier\nv_mov_b32 v{vK1c}, v{vK1a}\nv_mov_b32 v{vK2c}, v{vK2a}")
    for tt in range(4):
        c.e("\n".join(rdK(tt*KV_TS)))
        c.e("s_waitcnt lgkmcnt(0)")
        for b in range(2): c.e(mfma32(S_[b], K1, Q1[b], cz=0) + "\n" + mfma32x8(S_[b], K2, Q2[b]))
        c.e("s_nop 7\ns_nop 7")
        for b in range(2):
            for r in range(0, 16, 2): c.e(f"v_max3_f32 v{vM[b]}, v{S_[b]+r}, v{S_[b]+r+1}, v{vM[b]}")
    c.e(f"""
    s_add_u32 s{sC}, s{sC}, 1
    s_cmp_lt_u32 s{sC}, 8
    s_cbranch_scc1 {name}_FB_LOOP
    """)
    for b in range(2):
        c.e(f"""
        v_mov_b32 v{vT[0]}, v{vM[b]}
        v_mov_b32 v{vT[1]}, v{vM[b]}
        s_nop 1
        v_permlane32_swap_b32 v{vT[0]}, v{vT[1]}
        s_nop 1
        v_max_f32 v{vM[b]}, v{vT[0]}, v{vT[1]}
        """)
    c.e(f"""
    s_lshl_b32 s{sT0}, s{sW}, 9
    s_add_u32 s{sT0}, s{sT0}, {XCH}
    v_lshlrev_b32 v{vT[2]}, 2, v{vL}
    v_add_u32 v{vT[3]}, s{sT0}, v{vT[2]}
    s_barrier
    ds_write_b32 v{vT[3]}, v{vM[0]}
    ds_write_b32 v{vT[3]}, v{vM[1]} offset:256
    s_xor_b32 s{sT0}, s{sW}, 4
    s_lshl_b32 s{sT0}, s{sT0}, 9
    s_add_u32 s{sT0}, s{sT0}, {XCH}
    v_add_u32 v{vT[3]}, s{sT0}, v{vT[2]}
    s_waitcnt lgkmcnt(0)
    s_barrier
    ds_read_b32 v{vT[4]}, v{vT[3]}
    ds_read_b32 v{vT[5]}, v{vT[3]} offset:256
    s_waitcnt lgkmcnt(0)
    v_max_f32 v{vM[0]}, v{vM[0]}, v{vT[4]}
    v_max_f32 v{vM[1]}, v{vM[1]}, v{vT[5]}
    s_barrier
    """)
    for b in range(2):
        for r in range(16): c.e(f"v_sub_f32 v{NM[b]+r}, 0, v{vM[b]}")
    c.e(f"s_mov_b32 s{sSrc}, s{sSrc0}\ns_mov_b32 s{sSlotW}, 0")
    c.e("\n".join(dma_chunk())); c.e("\n".join(dma_chunk()))
    emit_pass("FB", True)
    c.e(f"s_branch {name}_EPI")
    Vg = Alloc(168, 2, "v")
    gOffW = [Vg.take() for _ in range(5)]; gOffA = Vg.take(); gWA = Vg.take(); gAA = Vg.take(); gOm = Vg.take()
    gT = [Vg.take() for _ in range(6)]
    gact = Vg.take(4, 4); gwf = Vg.take(20, 4); gacc = Vg.take(80, 4); goq = Vg.take(40, 4); gtmp = goq
    sRB, sCG, sKQ, sLB, sKs, sAct = sQG, sKH, sQB, sSrc, sSrc0, sTile
    srdW = Sg.take(4, 4); srdO = Sg.take(4, 4); sOmA = Sg.take()
    gAc_ = goq + 39
    NDOWN = 27; NSTEP = 37; DEFER = 0
    gs = Sg.take(16, 2) if stamps else 0
    gi = [0]
    def gstamp():
        if stamps:
            c.e(f"s_memrealtime s[{gs+2*gi[0]}:{gs+2*gi[0]+1}]\ns_waitcnt lgkmcnt(0)"); gi[0] += 1
    c.label(f"{name}_GW")
    c.e(f"""
    s_sub_u32 s{sKQ}, s{sW}, 8
    s_lshr_b32 s{sT0}, s{sJ}, 2
    s_lshl_b32 s{sRB}, s{sX}, 3
    s_add_u32 s{sRB}, s{sRB}, s{sT0}
    s_and_b32 s{sCG}, s{sJ}, 3
    s_mul_i32 s{sT0}, s{sCG}, 320
    """)
    for i in range(5):
        c.e(f"""
        v_add_u32 v{gT[1]}, {64*i}, v{vL}
        v_mul_u32_u24 v{gT[2]}, 3277, v{gT[1]}
        v_lshrrev_b32 v{gT[2]}, 16, v{gT[2]}
        v_mul_u32_u24 v{gT[3]}, 20, v{gT[2]}
        v_sub_u32 v{gT[3]}, v{gT[1]}, v{gT[3]}
        v_mul_u32_u24 v{gT[2]}, 1280, v{gT[2]}
        v_lshl_add_u32 v{gT[2]}, v{gT[3]}, 4, v{gT[2]}
        v_add_u32 v{gOffW[i]}, s{sT0}, v{gT[2]}
        """)
    c.e(f"""
    v_lshlrev_b32 v{gOffA}, 4, v{vL}
    s_mul_i32 s{sLB}, s{sKQ}, {GWAVE}
    s_add_u32 s{sLB}, s{sLB}, {GRING}
    s_mul_i32 s{sKs}, s{sKQ}, 20480
    s_mul_i32 s{sAct}, s{sRB}, 108
    s_add_u32 s{sAct}, s{sAct}, s{sKQ}
    s_lshl_b32 s{sAct}, s{sAct}, 10
    s_add_u32 s{sAct}, s{sAct}, {HF_OFF}
    s_waitcnt lgkmcnt(0)
    """)
    srd(c, srdWS, sWS, WS_BYTES); srd(c, srdW, sWD, 1728*1280); srd(c, srdO, sOUT, 2048*1280)
    if fused: c.e("s_barrier")
    def gdma(n):
        so = (n % 3)*GSLOT; L = []
        for i in range(5):
            L += [f"s_add_u32 m0, s{sLB}, {so + 1024*i}", "s_nop 0", f"buffer_load_dwordx4 v{gOffW[i]}, s[{srdW}:{srdW+3}], s{sKs} offen lds"]
        L += [f"s_add_u32 s{sKs}, s{sKs}, {4*20480}"]
        if n < NDOWN:
            L += [f"s_add_u32 m0, s{sLB}, {so + 5120}", "s_nop 0", f"buffer_load_dwordx4 v{gOffA}, {srd4}, s{sAct} offen{HS} lds", f"s_add_u32 s{sAct}, s{sAct}, 4096"]
        return L
    ndma = lambda n: 0 if n >= NDOWN else 6
    c.e(f"""
    v_and_b32 v{gT[0]}, 31, v{vL}
    v_lshlrev_b32 v{gT[1]}, 3, v{gT[0]}
    s_lshl_b32 s{sT0}, s{sRB}, 8
    s_add_u32 s{sT0}, s{sT0}, {G_OFF + 4}
    s_mov_b32 s{sOmA}, s{sT0}
    """)
    if not fused: c.e(f"buffer_load_dword v{gOm}, v{gT[1]}, {srd4}, s{sT0} offen")
    else: c.e(f"v_mov_b32 v{gAc_}, v{gT[1]}")
    if "TLB" in exp:
        c.e(f"""
        v_min_u32 v{gT[2]}, 6, v{vL}
        v_lshlrev_b32 v{gT[2]}, 20, v{gT[2]}
        s_mov_b32 s{sT0}, {OF_OFF}
        buffer_load_dword v{goq}, v{gT[2]}, {srd4}, s{sT0} offen
        v_min_u32 v{gT[2]}, 2, v{vL}
        v_lshlrev_b32 v{gT[2]}, 20, v{gT[2]}
        buffer_load_dword v{goq+1}, v{gT[2]}, s[{srdO}:{srdO+3}], 0 offen
        """)
    c.e(f"""
    v_and_b32 v{gT[3]}, 15, v{vL}
    v_lshrrev_b32 v{gT[4]}, 2, v{gT[3]}
    v_lshrrev_b32 v{gT[2]}, 5, v{vL}
    v_lshl_add_u32 v{gT[4]}, v{gT[2]}, 2, v{gT[4]}
    v_mul_u32_u24 v{gT[4]}, 320, v{gT[4]}
    v_and_b32 v{gT[3]}, 3, v{gT[3]}
    v_lshl_add_u32 v{gT[4]}, v{gT[3]}, 3, v{gT[4]}
    v_lshrrev_b32 v{gT[3]}, 4, v{vL}
    v_and_b32 v{gT[3]}, 1, v{gT[3]}
    v_lshl_add_u32 v{gT[4]}, v{gT[3]}, 5, v{gT[4]}
    v_add_u32 v{gWA}, s{sLB}, v{gT[4]}
    v_add_u32 v{gAA}, 5120, v{gOffA}
    v_add_u32 v{gAA}, s{sLB}, v{gAA}
    """)
    for r in range(80): c.e(f"v_mov_b32 v{gacc+r}, 0")
    if "PG" in exp: c.e("s_setprio 1")
    c.e("s_barrier")
    if fused:
        c.e(f"""
        s_lshr_b32 s{sT0}, s{sRB}, 2
        s_add_u32 s{sT1}, s{sT0}, {C_H}
        s_add_u32 s{sT0}, s{sT0}, {C_G}
        v_mov_b32 v{gT[2]}, s{sT1}
        v_mov_b32 v{gT[3]}, s{sT0}
        v_cmp_eq_u32 vcc, 0, v{vL}
        v_mov_b32 v{gT[4]}, 1
        v_mov_b32 v{gT[5]}, 9
        v_cndmask_b32 v{gT[2]}, v{gT[3]}, v{gT[2]}, vcc
        v_cndmask_b32 v{gT[4]}, v{gT[4]}, v{gT[5]}, vcc
        v_lshlrev_b32 v{gT[2]}, 7, v{gT[2]}
        v_add_u32 v{gT[2]}, {CNT_OFF}, v{gT[2]}
        """)
        poll("POLLH", gT[2], gT[4], gT[3], 2)
        c.e(f"buffer_load_dword v{gOm}, v{gAc_}, {srd4}, s{sOmA} offen sc1")
    c.e("\n".join(gdma(0) + gdma(1)))
    def sloc(n, loc=None):
        return loc if loc is not None else (gWA, (n % 3)*GSLOT)
    def rdW(jb, areg, so):
        return [f"ds_read_b64_tr_b16 {vr(gwf+4*jb,2)}, v{areg} offset:{so + 64*jb}", f"ds_read_b64_tr_b16 {vr(gwf+4*jb+2,2)}, v{areg} offset:{so + 64*jb + 2560}"]
    def step(n, wait, post=None, loc=None, midbar=False):
        areg, so = sloc(n, loc)
        c.e(wait)
        act = gact
        if n < NDOWN: c.e(f"ds_read_b128 {vr(gact,4)}, v{gAA} offset:{so}")
        else: act = goq + 4*(n - NDOWN)
        for jb in range(5): c.e("\n".join(rdW(jb, areg, so)))
        if n + 2 < NDOWN: c.e("\n".join(gdma(n + 2)))
        if midbar: c.e("s_barrier")
        for jb in range(5):
            c.e(f"s_waitcnt lgkmcnt({8 - 2*jb})")
            c.e(mfma32(gacc+16*jb, gwf+4*jb, act))
        if post: c.e("\n".join(post))
    def wo_steps(waits):
        areg, so = wloc(0)
        for jb in range(5): c.e("\n".join(rdW(jb, areg, so)))
        for i in range(10):
            c.e(f"s_waitcnt vmcnt({waits[i][0]})")
            nxt = wloc(i + 1) if i + 1 < 10 else None
            if nxt is not None and waits[i][1] is not None: pass
            for jb in range(5):
                c.e(f"s_waitcnt lgkmcnt({8 if nxt is not None else 8 - 2*jb})")
                c.e(mfma32(gacc+16*jb, gwf+4*jb, goq + 4*i))
                if nxt is not None:
                    if jb == 0 and waits[i][1] is not None: c.e(f"s_waitcnt vmcnt({waits[i][1]})")
                    c.e("\n".join(rdW(jb, nxt[0], nxt[1])))
            if i < 3: c.e("\n".join(wdma(7 + i)))
            if i == 0: gstamp()
    sched = [3, 4, 3, 4, 3, 4, 3, 3]; n = 0
    if 'GS1' in exp: sched = [2, 4, 4, 4, 4, 4, 3, 2]
    if 'GS2' in exp: sched = [4, 4, 4, 4, 4, 4, 3, 0]
    if 'GS3' in exp: sched = [1, 3, 4, 4, 4, 4, 4, 3]
    assert sum(sched) == NDOWN - DEFER
    gWB = gT[5]; sAB = sOb
    def wloc(i):
        if i < 3: return (gWA, GSLOT*i)
        if i < 7: return (gWB, 5120*(i - 3))
        return (gWA, GSLOT*(i - 7))
    def wdma(i):
        L = []
        base, off = (sLB, GSLOT*i) if i < 3 else ((sAB, 5120*(i - 3)) if i < 7 else (sLB, GSLOT*(i - 7)))
        for k in range(5):
            L += [f"s_add_u32 m0, s{base}, {off + 1024*k}", "s_nop 0", f"buffer_load_dwordx4 v{gOffW[k]}, s[{srdW}:{srdW+3}], s{sKs} offen lds"]
        L += [f"s_add_u32 s{sKs}, s{sKs}, {4*20480}"]
        return L
    DF = 2 if "DF2" in exp else (1 if "DF1" in exp else 0)
    NB = NDOWN - DF
    tot = 2*NB; first = 6
    pos = [first + round((tot - first)*k/7.0) for k in range(7)]
    for n_ in range(NB):
        step(n_, f"s_waitcnt vmcnt({ndma(n_+1)})", midbar=(2*n_ + 1) in pos)
        if (2*n_ + 2) in pos: c.e("s_barrier")
    c.e(f"""
    s_mov_b32 s{srdW}, s{sWO}
    s_and_b32 s{srdW+1}, s{sWO+1}, 0xffff
    s_mov_b32 s{srdW+2}, {640*1280}
    s_mul_i32 s{sKs}, s{sKQ}, 20480
    s_mul_i32 s{sAB}, s{sKQ}, 20480
    v_subrev_u32 v{gWB}, s{sLB}, v{gWA}
    v_add_u32 v{gWB}, s{sAB}, v{gWB}
    """)
    for i in range(3 - DF): c.e("\n".join(wdma(i)))
    c.e("s_barrier")
    if DF == 0:
        c.e("s_nop 7")
        for r in range(80): c.e(f"v_mul_f32 v{gacc+r}, v{gacc+r}, v{gOm}")
    c.e(f"""
    s_barrier
    v_mov_b32 v{gT[3]}, {FLAG}
    ds_read_b32 v{gT[3]}, v{gT[3]}
    s_waitcnt lgkmcnt(0)
    v_readfirstlane_b32 s{sT1}, v{gT[3]}
    s_nop 3
    s_cmp_eq_u32 s{sT1}, 0
    s_cbranch_scc1 {name}_GNOFB
    s_mov_b32 s{sT0}, {FB_BARRIERS}
    {name}_GFB:
    s_barrier
    s_sub_u32 s{sT0}, s{sT0}, 1
    s_cmp_lg_u32 s{sT0}, 0
    s_cbranch_scc1 {name}_GFB
    {name}_GNOFB:
    """)
    if DF == 2:
        step(25, "s_waitcnt vmcnt(11)", post=wdma(1)); step(26, "s_waitcnt vmcnt(10)", post=wdma(2))
    if DF == 1:
        step(26, "s_waitcnt vmcnt(10)", post=wdma(2))
    if DF:
        c.e("s_nop 3")
        for r in range(80): c.e(f"v_mul_f32 v{gacc+r}, v{gacc+r}, v{gOm}")
    c.e(f"""
    s_barrier
    """)
    gstamp()
    c.e(f"""
    s_lshr_b32 s{sT3}, s{sRB}, 3
    s_lshl_b32 s{sT3}, s{sT3}, 7
    s_add_u32 s{sT3}, s{sT3}, {CNT_OFF}
    v_mov_b32 v{gT[2]}, 0
    """)
    for i in range(3, 5): c.e("\n".join(wdma(i)))
    c.e(f"buffer_load_dword v{gT[3]}, v{gT[2]}, {srd4}, s{sT3} offen sc1")
    for i in range(5, 7): c.e("\n".join(wdma(i)))
    c.e(f"""
    s_waitcnt vmcnt(10)
    v_readfirstlane_b32 s{sT1}, v{gT[3]}
    s_nop 3
    s_cmp_ge_u32 s{sT1}, 32
    s_cbranch_scc1 {name}_GO
    """)
    gstamp()
    c.e(f"""
    s_lshr_b32 s{sT0}, s{sRB}, 3
    s_lshl_b32 s{sT0}, s{sT0}, 7
    s_add_u32 s{sT0}, s{sT0}, {CNT_OFF}
    v_mov_b32 v{gT[2]}, 0
    s_mov_b32 s{sT2}, 0
    {name}_POLL:
    buffer_load_dword v{gT[3]}, v{gT[2]}, {srd4}, s{sT0} offen sc1
    s_waitcnt vmcnt(0)
    v_readfirstlane_b32 s{sT1}, v{gT[3]}
    s_add_u32 s{sT2}, s{sT2}, 1
    s_nop 2
    s_cmp_ge_u32 s{sT1}, 32
    s_cbranch_scc1 {name}_GO
    s_sleep 1
    s_cmp_lt_u32 s{sT2}, 0x40000
    s_cbranch_scc1 {name}_POLL
    {name}_GO:
    s_mul_i32 s{sT0}, s{sRB}, 40
    s_add_u32 s{sT0}, s{sT0}, s{sKQ}
    s_lshl_b32 s{sT0}, s{sT0}, 10
    s_add_u32 s{sT0}, s{sT0}, {OF_OFF}
    """)
    gstamp()
    c.e(f"v_lshlrev_b32 v{gT[2]}, 3, v{vL}")
    for i in range(10):
        c.e(f"buffer_load_dwordx2 {vr(goq+4*i,2)}, v{gT[2]}, {srd4}, s{sT0} offen sc1\nbuffer_load_dwordx2 {vr(goq+4*i+2,2)}, v{gT[2]}, {srd4}, s{sT0} offen offset:512 sc1\ns_add_u32 s{sT0}, s{sT0}, 4096")
    waits = [(18, None), (21, None), (24, None), (27, None), (25, None), (23, None), (21, 10), (10, 5), (5, 0), (0, None)]
    wo_steps(waits)
    gstamp()
    own = [0,0,0,1,1,1,2,2,3,3]
    c.e("s_nop 7\ns_nop 3\ns_barrier")
    for kq in range(4):
        c.e(f"s_cmp_eq_u32 s{sKQ}, {kq}\ns_cbranch_scc0 {name}_GX{kq}")
        c.e(f"v_add_u32 v{gT[5]}, {GRING}, v{gOffA}\nv_add_u32 v{gT[4]}, {GRING + 30720}, v{gOffA}")
        cnt = 0
        for p in range(10):
            if own[p] == kq: continue
            slot = kq if kq < own[p] else kq - 1
            off = p*6144 + slot*2048
            a_, o = (gT[5], off) if off < 30720 else (gT[4], off - 30720)
            for h in range(2):
                c.e(f"ds_write_b128 v{a_}, {vr(gacc + 8*p + 4*h, 4)} offset:{o + 1024*h}"); cnt += 1
                if cnt % 8 == 0: c.e("s_waitcnt lgkmcnt(4)")
        c.e(f"""
        v_and_b32 v{gT[0]}, 31, v{vL}
        s_lshl_b32 s{sT0}, s{sRB}, 5
        v_add_u32 v{gT[0]}, s{sT0}, v{gT[0]}
        v_mul_u32_u24 v{gT[0]}, 1280, v{gT[0]}
        v_lshrrev_b32 v{gT[2]}, 5, v{vL}
        v_lshl_add_u32 v{gT[0]}, v{gT[2]}, 4, v{gT[0]}
        s_mul_i32 s{sT0}, s{sCG}, 320
        s_waitcnt lgkmcnt(0)
        s_barrier
        """)
        mine = [p for p in range(10) if own[p] == kq]
        for ip, p in enumerate(mine):
            off = p*6144
            a_, o = (gT[5], off) if off < 30720 else (gT[4], off - 30720)
            t = gtmp + 24 + 4*(ip % 2)
            for h in range(2):
                for sl in range(3): c.e(f"ds_read_b128 {vr(gtmp+12*h+4*sl,4)}, v{a_} offset:{o + 2048*sl + 1024*h}")
            for h in range(2):
                for sl in range(3):
                    c.e(f"s_waitcnt lgkmcnt({5 - 3*h - sl})")
                    for r in range(4): c.e(f"v_add_f32 v{gacc+8*p+4*h+r}, v{gacc+8*p+4*h+r}, v{gtmp+12*h+4*sl+r}")
            for q in range(4): c.e(f"v_cvt_pk_bf16_f32 v{t+q}, v{gacc+8*p+2*q}, v{gacc+8*p+2*q+1}")
            c.e(f"""
            s_nop 1
            v_permlane32_swap_b32 v{t}, v{t+2}
            v_permlane32_swap_b32 v{t+1}, v{t+3}
            s_add_u32 s{sT2}, s{sT0}, {32*p}
            s_nop 0
            buffer_store_dwordx4 {vr(t,4)}, v{gT[0]}, s[{srdO}:{srdO+3}], s{sT2} offen{OM}
            """)
        c.e(f"s_branch {name}_GEND")
        c.label(f"{name}_GX{kq}")
    c.label(f"{name}_GEND")
    if stamps:
        c.e("s_waitcnt vmcnt(0)")
        gstamp()
        c.e(f"""
        s_lshl_b32 s{sT0}, s2, 2
        s_add_u32 s{sT0}, s{sT0}, s{sKQ}
        s_lshl_b32 s{sT0}, s{sT0}, 5
        s_add_u32 s{sT0}, s{sT0}, {STAMP_OFF + 2*65536}
        v_mov_b32 v{gT[2]}, 0
        """)
        for i in range(gi[0]):
            c.e(f"v_mov_b32 v{gT[3]}, s{gs+2*i}\nbuffer_store_dword v{gT[3]}, v{gT[2]}, {srd4}, s{sT0} offen offset:{4*i}\ns_nop 1")
    c.e("s_endpgm")
    c.label(f"{name}_FIN")
    if stamps: c.e("s_waitcnt vmcnt(0)")
    ST.i = 4; ST.stamp(c); ST.stamp(c, real=True)
    if stamps: ST.i = 8
    ST.flush(c, sW, srdWS, vT[2], vT[3], sT0)
    c.e(f"""
    {name}_END:
    s_endpgm
    """)
    def S(kh, unsafe=False, fb=False):
        d = {f"{name}_END": False, f"{name}_LOOP_NODMA": (lambda k: k % 3 == 2), f"{name}_LOOPFB_NODMA": (lambda k: k % 3 == 2), f"{name}_NOSWAP": kh == 0, f"{name}_SAFE": not unsafe,
             f"{name}_FALLBACK": (lambda k: k == 0 and fb), f"{name}_FB_NOSWAP": kh == 0}
        return d
    scen = {"kh0": S(0), "kh1": S(1), "fb": S(1, True, True)}
    for k_ in scen:
        scen[k_][f"{name}_NOPOLL"] = (k_ == "kh1"); scen[k_][f"{name}_POLLQOK"] = (lambda k: k >= 1); scen[k_][f"{name}_POLLQ"] = True
    for k_ in scen: scen[k_][f"{name}_NPH"] = False
    for k_ in scen: scen[k_][f"{name}_GW"] = False; scen[k_][f"{name}_FIN"] = (k_ == "kh1")
    for kq in range(4):
        d = {f"{name}_END": False, f"{name}_GW": True, f"{name}_GNOFB": kq % 2 == 0, f"{name}_GO": ((lambda k: k >= 1) if kq != 1 else True), f"{name}_POLL": True, f"{name}_POLLHOK": (lambda k: k >= 1), f"{name}_POLLH": True}
        for q in range(4): d[f"{name}_GX{q}"] = (q != kq)
        scen[f"g{kq}"] = d
    return c, max(V.hi, Vg.hi), scen, K2_LDS
    return c, V.hi, scen, K2_LDS

if __name__ == "__main__":
    c, nv, scen, lds = gen_k2()
    errs = check(c.lines, scen, "k2")
    print("vgprs", nv, "lds", lds, "lines", len(c.lines))
    for e in errs[:40]: print(e)
```

```python
from common import *

CH = 10240
SLOT = 2*CH; RING = 3
DUMMY = SLOT*RING
FLAG = DUMMY + 1024
XCH = FLAG + 64
GRING = XCH + 8*3072
GSLOT = 6144; GWAVE = 3*GSLOT
K2_LDS = GRING + 4*GWAVE
FB_BARRIERS = 16 + 3 + 9 + 1

def gen_k2(name="k2_kernel", stamps=False, exp="", fused=False):
    c = Code()
    CS = "TOG" not in exp
    OM = " sc1" if "OS" in exp else (" nt" if "ON" in exp else (" sc0 sc1" if "OX" in exp else ""))
    SM = " sc1" if "SC1" in exp else (" sc0 sc1" if "SC01" in exp else ("" if ("PLAIN" in exp or "P2" in exp) else " nt"))
    V = Alloc(168, 1, "v"); Sg = Alloc(100, 12, "s")
    sWS = 4; sWD = 6; sWO = 8; sOUT = 10
    sX = Sg.take(); sJ = Sg.take(); sHead = Sg.take(); sQB = Sg.take(); sW = Sg.take(); sQG = Sg.take(); sKH = Sg.take()
    sT0 = Sg.take(); sT1 = Sg.take(); sT2 = Sg.take(); sT3 = Sg.take()
    srdWS = Sg.take(4, 4)
    sMaskLo = Sg.take(2, 2); sMaskV = Sg.take(2, 2); sU = Sg.take(2, 2); sU2 = Sg.take(2, 2)
    sSrc = Sg.take(); sM = [Sg.take() for _ in range(3)]; sSlotW = Sg.take(); sSlotR = Sg.take(); sC = Sg.take(); sMode = Sg.take()
    sSrc0 = Sg.take(); sTile = Sg.take(); sOb = Sg.take()
    ST = Stamps(Sg, stamps, 1)
    vL = V.take(); vT = [V.take() for _ in range(8)]
    vOff = V.take(); vOff3 = V.take()
    vK1a = V.take(); vK2a = V.take(); vVa = V.take()
    vK1c = V.take(); vK2c = V.take(); vVc = V.take()
    vG = [V.take(), V.take()]; vSt = [V.take() for _ in range(3)]; vGo = V.take(); vVm = V.take()
    Q1 = [V.take(4, 4), V.take(4, 4)]; Q2 = [V.take(2, 2), V.take(2, 2)]
    K1 = V.take(4, 4); K2 = V.take(2, 2); V0 = V.take(4, 4); V1 = V.take(4, 4)
    S_ = [V.take(16, 4), V.take(16, 4)]; O = [V.take(16, 4), V.take(16, 4)]
    P = [V.take(4, 4), V.take(4, 4)]; T4 = V.take(4, 4)
    vM = [V.take(), V.take()]
    NM = [V.take(16, 4), V.take(16, 4)]
    srd4 = f"s[{srdWS}:{srdWS+3}]"

    HS = " sc1" if (fused and "NOHS" not in exp) else ""
    if fused: c.label(f"{name}_ENTRY")
    else: c.e(f"s_cmp_ge_u32 s2, 256\ns_cbranch_scc1 {name}_END")
    c.e(f"""
    s_load_dwordx2 s[4:5], s[0:1], {KA_WS}
    s_load_dwordx2 s[6:7], s[0:1], {KA_WD}
    s_load_dwordx2 s[8:9], s[0:1], {KA_WO}
    s_load_dwordx2 s[10:11], s[0:1], {KA_OUT}
    v_and_b32 v{vL}, 63, v0
    v_lshrrev_b32 v{vT[0]}, 6, v0
    s_and_b32 s{sX}, s2, 7
    s_lshr_b32 s{sJ}, s2, 3
    v_readfirstlane_b32 s{sW}, v{vT[0]}
    s_lshr_b32 s{sT0}, s{sJ}, 3
    s_lshl_b32 s{sHead}, s{sX}, 2
    s_add_u32 s{sHead}, s{sHead}, s{sT0}
    s_and_b32 s{sQB}, s{sJ}, 7
    v_lshlrev_b32 v{vOff}, 4, v{vL}
    s_mul_i32 s{sSrc0}, s{sHead}, {KV_HS}
    s_add_u32 s{sSrc0}, s{sSrc0}, {KV_OFF}
    """)
    ST.stamp(c, real=True); ST.stamp(c)
    c.e(f"s_cmp_ge_u32 s{sW}, 8\ns_cbranch_scc1 {name}_GW")
    c.e(f"""
    s_and_b32 s{sQG}, s{sW}, 3
    s_lshr_b32 s{sKH}, s{sW}, 2
    s_mul_i32 s{sT0}, s{sKH}, {32*KV_TS}
    s_add_u32 s{sSrc0}, s{sSrc0}, s{sT0}
    s_lshl_b32 s{sT0}, s{sQG}, 10
    s_add_u32 s{sSrc0}, s{sSrc0}, s{sT0}
    s_mul_i32 s{sT1}, s{sKH}, {CH}
    s_add_u32 s{sM[0]}, s{sT1}, s{sT0}
    s_add_u32 s{sM[1]}, s{sM[0]}, 4096
    s_add_u32 s{sM[2]}, s{sM[0]}, 8192
    s_cmp_lt_u32 s{sQG}, 2
    s_cselect_b32 s{sT0}, 0, 0x7f000000
    v_add_u32 v{vOff3}, s{sT0}, v{vOff}
    s_mov_b32 s{sSrc}, s{sSrc0}
    s_mov_b32 s{sSlotW}, 0
    s_lshl_b32 s{sTile}, s{sQB}, 3
    s_lshl_b32 s{sT0}, s{sQG}, 1
    s_add_u32 s{sTile}, s{sTile}, s{sT0}
    s_waitcnt lgkmcnt(0)
    """)
    if stamps: c.e(f"s_memtime s[{ST.s+12}:{ST.s+13}]")
    srd(c, srdWS, sWS, WS_BYTES)
    def dma_parts():
        g0 = [f"s_add_u32 m0, s{sSlotW}, s{sM[0]}", f"s_add_u32 s{sT0}, s{sSrc}, 4096", f"buffer_load_dwordx4 v{vOff}, {srd4}, s{sSrc} offen{HS} lds"]
        g1 = [f"s_add_u32 m0, s{sSlotW}, s{sM[1]}", f"s_add_u32 s{sT1}, s{sSrc}, 8192", f"buffer_load_dwordx4 v{vOff}, {srd4}, s{sT0} offen{HS} lds"]
        g2 = [f"s_add_u32 s{sT0}, s{sSlotW}, s{sM[2]}", f"s_cmp_lt_u32 s{sQG}, 2", f"s_cselect_b32 m0, s{sT0}, {DUMMY}", f"s_add_u32 s{sSrc}, s{sSrc}, {CH}",
              f"buffer_load_dwordx4 v{vOff3}, {srd4}, s{sT1} offen{HS} lds",
              f"s_add_u32 s{sSlotW}, s{sSlotW}, {SLOT}", f"s_cmp_eq_u32 s{sSlotW}, {SLOT*RING}", f"s_cselect_b32 s{sSlotW}, 0, s{sSlotW}"]
        return g0, g1, g2
    def dma_chunk():
        g = dma_parts(); return g[0] + g[1] + g[2]
    def first_loads():
        c.e("\n".join(dma_chunk()))
    def poll(tag, vA, vTg, vV, nl):
        m = (1 << nl) - 1
        c.e(f"""
        s_mov_b32 s{sT2}, 0
        s_mov_b64 exec, {m}
        {name}_{tag}:
        buffer_load_dword v{vV}, v{vA}, {srd4}, 0 offen sc1
        s_waitcnt vmcnt(0)
        v_cmp_ge_u32 vcc, v{vV}, v{vTg}
        s_add_u32 s{sT2}, s{sT2}, 1
        s_nop 3
        s_cmp_eq_u64 vcc, exec
        s_cbranch_scc1 {name}_{tag}OK
        s_sleep 1
        s_cmp_lt_u32 s{sT2}, 0x40000
        s_cbranch_scc1 {name}_{tag}
        {name}_{tag}OK:
        s_mov_b64 exec, -1
        """)
    if fused:
        c.e(f"""
        s_cmp_eq_u32 s{sW}, 0
        s_cbranch_scc0 {name}_NOPOLL
        s_lshr_b32 s{sT0}, s{sHead}, 4
        s_add_u32 s{sT0}, s{sT0}, {C_Q}
        s_lshl_b32 s{sT1}, s{sQB}, 1
        s_add_u32 s{sT1}, s{sT1}, {C_G - 3}
        v_lshlrev_b32 v{vT[1]}, 1, v{vL}
        v_add_u32 v{vT[1]}, s{sT0}, v{vT[1]}
        v_add_u32 v{vT[2]}, s{sT1}, v{vL}
        v_cmp_lt_u32 vcc, 2, v{vL}
        v_mov_b32 v{vT[3]}, 16
        v_mov_b32 v{vT[4]}, 1
        v_cndmask_b32 v{vT[1]}, v{vT[1]}, v{vT[2]}, vcc
        v_cndmask_b32 v{vT[3]}, v{vT[3]}, v{vT[4]}, vcc
        v_lshlrev_b32 v{vT[1]}, 7, v{vT[1]}
        v_add_u32 v{vT[1]}, {CNT_OFF}, v{vT[1]}
        """)
        poll("POLLQ", vT[1], vT[3], vT[4], 5)
        c.e(f"{name}_NOPOLL:\ns_barrier")
    first_loads()
    c.e(f"""
    s_mul_i32 s{sT2}, s{sHead}, {QF_HS}
    s_mul_i32 s{sT1}, s{sTile}, {QF_TS}
    s_add_u32 s{sT2}, s{sT2}, s{sT1}
    s_add_u32 s{sT3}, s{sT2}, {QF_TS}
    v_and_b32 v{vT[0]}, 31, v{vL}
    v_lshlrev_b32 v{vT[1]}, 3, v{vT[0]}
    s_mov_b32 s{sMaskLo}, -1
    s_mov_b32 s{sMaskLo+1}, 0
    v_mov_b32 v{Q2[0]}, 0
    v_mov_b32 v{Q2[0]+1}, 0
    v_mov_b32 v{Q2[1]}, 0
    v_mov_b32 v{Q2[1]+1}, 0
    buffer_load_dwordx4 {vr(Q1[0],4)}, v{vOff}, {srd4}, s{sT2} offen{HS}
    buffer_load_dwordx4 {vr(Q1[1],4)}, v{vOff}, {srd4}, s{sT3} offen{HS}
    s_mov_b64 exec, s[{sMaskLo}:{sMaskLo+1}]
    buffer_load_dwordx2 {vr(Q2[0],2)}, v{vT[1]}, {srd4}, s{sT2} offen offset:1024{HS}
    buffer_load_dwordx2 {vr(Q2[1],2)}, v{vT[1]}, {srd4}, s{sT3} offen offset:1024{HS}
    s_mov_b64 exec, -1
    """)
    c.e(f"""
    v_mov_b32 v{vGo}, v{vT[1]}
    s_mov_b32 s{sMode}, 0
    s_mov_b32 s{sMaskV}, 0xfffff
    s_mov_b32 s{sMaskV+1}, 0xfffff
    s_mul_i32 s{sT0}, s{sKH}, {CH}
    v_add_u32 v{vK1a}, s{sT0}, v{vOff}
    v_add_u32 v{vK2a}, s{sT0}, v{vT[1]}
    v_lshrrev_b32 v{vT[2]}, 5, v{vL}
    v_mul_u32_u24 v{vT[7]}, 320, v{vT[2]}
    v_lshl_add_u32 v{vT[7]}, v{vT[0]}, 4, v{vT[7]}
    v_add_u32 v{vVa}, s{sT0}, v{vT[7]}
    """)
    if CS:
        CB = XCH - 1280 + ((16 - ((XCH - 1280)//16) % 16) % 16)*16
        assert CB % 256 == 0 and CB + 1280 >= XCH and CB + 3*KV_TS + 1280 + 640 + 320 + 13*16 <= XCH + 8*3072
        c.e(f"""
        v_mov_b32 v{vT[5]}, 5
        v_mov_b32 v{vT[6]}, 4
        v_cmp_eq_u32 vcc, 20, v{vT[0]}
        v_mov_b32 v{vT[4]}, 12
        s_nop 0
        v_cndmask_b32 v{vT[5]}, v{vT[5]}, v{vT[6]}, vcc
        v_cmp_lt_u32 vcc, 27, v{vT[0]}
        v_mul_u32_u24 v{vT[6]}, 320, v{vT[2]}
        s_nop 0
        v_cndmask_b32 v{vT[5]}, v{vT[5]}, v{vT[4]}, vcc
        v_lshl_add_u32 v{vT[5]}, v{vT[5]}, 4, v{vT[6]}
        v_add_u32 v{vT[5]}, {CB}, v{vT[5]}
        v_cmp_lt_u32 vcc, 19, v{vT[0]}
        v_mov_b32 v{vT[4]}, 1
        v_mov_b32 v{vT[6]}, 0
        v_cndmask_b32 v{vVa}, v{vVa}, v{vT[5]}, vcc
        v_cndmask_b32 v{vVm}, v{vT[4]}, v{vT[6]}, vcc
        """)
    c.e(f"""
    v_cmp_eq_u32 vcc, 20, v{vT[0]}
    v_mov_b32 v{vT[3]}, 0
    v_mov_b32 v{vT[4]}, 0x3f803f80
    v_cndmask_b32 v{vT[3]}, v{vT[3]}, v{vT[4]}, vcc
    """)
    for r in range(4): c.e(f"v_mov_b32 v{V0+r}, v{vT[3]}\nv_mov_b32 v{V1+r}, v{vT[3]}")
    c.e(f"v_mov_b32 v{K2}, 0\nv_mov_b32 v{K2+1}, 0")
    c.e(f"v_mov_b32 v{vT[3]}, 0\nv_mov_b32 v{vT[4]}, {FLAG}\nds_write_b32 v{vT[4]}, v{vT[3]}")
    c.e(f"""
    s_add_u32 s{sOb}, s{sTile}, s{sKH}
    s_mul_i32 s{sOb}, s{sOb}, {40*1024}
    s_add_u32 s{sOb}, s{sOb}, {OF_OFF}
    s_mul_i32 s{sT1}, s{sHead}, 5
    v_add_u32 v{vT[2]}, s{sT1}, v{vT[2]}
    v_lshlrev_b32 v{vT[3]}, 4, v{vT[0]}
    """)
    c.e(f"v_lshlrev_b32 v{vT[3]}, 3, v{vT[0]}")
    for g in range(3):
        c.e(f"""
        v_add_u32 v{vT[4]}, {2*g}, v{vT[2]}
        v_lshl_add_u32 v{vSt[g]}, v{vT[4]}, 8, v{vT[3]}
        """)
    def const_spots():
        if not CS: return
        CB = XCH - 1280 + ((16 - ((XCH - 1280)//16) % 16) % 16)*16
        c.e(f"""
        v_mul_u32_u24 v{vT[1]}, 21846, v{vL}
        v_lshrrev_b32 v{vT[1]}, 16, v{vT[1]}
        v_mul_u32_u24 v{vT[2]}, 3, v{vT[1]}
        v_sub_u32 v{vT[2]}, v{vL}, v{vT[2]}
        v_and_b32 v{vT[3]}, 1, v{vT[1]}
        v_mul_u32_u24 v{vT[3]}, 320, v{vT[3]}
        v_bfe_u32 v{vT[4]}, v{vT[1]}, 1, 1
        v_mul_u32_u24 v{vT[4]}, 640, v{vT[4]}
        v_lshrrev_b32 v{vT[1]}, 2, v{vT[1]}
        v_mul_u32_u24 v{vT[1]}, {KV_TS}, v{vT[1]}
        v_add3_u32 v{vT[1]}, v{vT[1]}, v{vT[3]}, v{vT[4]}
        v_mov_b32 v{vT[3]}, 4
        v_mov_b32 v{vT[4]}, 5
        v_cmp_eq_u32 vcc, 1, v{vT[2]}
        v_mov_b32 v{vT[5]}, 12
        v_mov_b32 v{vT[6]}, 0x3f803f80
        v_cndmask_b32 v{vT[3]}, v{vT[3]}, v{vT[4]}, vcc
        v_cmp_eq_u32 vcc, 2, v{vT[2]}
        v_mov_b32 v{vT[4]}, 0
        s_nop 0
        v_cndmask_b32 v{vT[3]}, v{vT[3]}, v{vT[5]}, vcc
        v_cmp_eq_u32 vcc, 0, v{vT[2]}
        v_lshl_add_u32 v{vT[1]}, v{vT[3]}, 4, v{vT[1]}
        v_add_u32 v{vT[1]}, {CB + 1280}, v{vT[1]}
        v_cndmask_b32 v{T4}, v{vT[4]}, v{vT[6]}, vcc
        v_cndmask_b32 v{T4+1}, v{vT[4]}, v{vT[6]}, vcc
        v_cndmask_b32 v{T4+2}, v{vT[4]}, v{vT[6]}, vcc
        v_cndmask_b32 v{T4+3}, v{vT[4]}, v{vT[6]}, vcc
        s_mov_b32 exec_lo, -1
        s_mov_b32 exec_hi, 0xffff
        ds_write_b128 v{vT[1]}, {vr(T4,4)}
        s_mov_b64 exec, -1
        """)
    def rdK(off):
        if "KZ" in exp:
            return [f"s_mov_b64 exec, s[{sMaskLo}:{sMaskLo+1}]", f"ds_read_b64 {vr(K2,2)}, v{vK2c} offset:{off+1024}", "s_mov_b64 exec, -1", f"ds_read_b128 {vr(K1,4)}, v{vK1c} offset:{off}"]
        return [f"ds_read_b64 {vr(K2,2)}, v{vK2c} offset:{off+1024}", f"ds_read_b128 {vr(K1,4)}, v{vK1c} offset:{off}"]
    def rdV(which, off):
        r = V0 if which == 0 else V1
        if CS: return [f"ds_read_b128 {vr(r,4)}, v{vVc} offset:{off + 1280 + 640*which}"]
        return [f"s_mov_b64 exec, s[{sMaskV}:{sMaskV+1}]", f"ds_read_b128 {vr(r,4)}, v{vVc} offset:{off + 1280 + 640*which}", "s_mov_b64 exec, -1"]
    def emit_pass(tag, fb):
        def qk(b): return [f"v_mfma_f32_32x32x16_bf16 {vr(S_[b],16)}, {vr(K1,4)}, {vr(Q1[b],4)}, " + (vr(NM[b],16) if fb else "0"), mfma32x8(S_[b], K2, Q2[b])]
        const_spots()
        for b in range(2):
            for r in range(16): c.e(f"v_mov_b32 v{O[b]+r}, 0")
        for r in range(4): c.e(f"v_mov_b32 v{P[1]+r}, 0\nv_mov_b32 v{T4+r}, 0")
        c.e(f"""
        s_mov_b32 s{sSlotR}, 0
        s_mov_b32 s{sC}, 0
        v_mov_b32 v{vK1c}, v{vK1a}
        v_mov_b32 v{vK2c}, v{vK2a}
        v_mov_b32 v{vVc}, v{vVa}
        """)
        if stamps and not fb: c.e(f"s_memtime s[{ST.s+14}:{ST.s+15}]")
        c.e(f"s_waitcnt vmcnt({3 if fb else 0}) lgkmcnt(0)\ns_barrier")
        c.e("\n".join(rdK(0) + rdV(0, 0)))
        if not fb:
            c.e("\n".join(dma_chunk()))
            c.e(f"""
            s_lshl_b32 s{sT2}, s{sTile}, 8
            s_add_u32 s{sT2}, s{sT2}, {G_OFF}
            buffer_load_dword v{vG[0]}, v{vGo}, {srd4}, s{sT2} offen{HS}
            buffer_load_dword v{vG[1]}, v{vGo}, {srd4}, s{sT2} offen offset:256{HS}
            """)
        c.e(f"s_waitcnt vmcnt({3 if fb else 5}) lgkmcnt(1)") if False else None
        c.e("s_waitcnt lgkmcnt(1)")
        c.e("\n".join(qk(0)))
        c.e("s_nop 7\ns_nop 3")
        if not fb: ST.i = 2; ST.stamp(c, wait=True)
        def half(b, tt):
            s = S_[b]; L = []
            src = lambda i: (s + i) if i < 12 else (T4 + i - 12)
            e = lambda i: f"v_exp_f32 v{src(i)}, v{s+i}"
            cv = lambda p: f"v_cvt_pk_bf16_f32 v{P[p//4] + p%4}, v{src(2*p)}, v{src(2*p+1)}"
            m = qk(1 - b)
            m3 = mfma32(O[b], V0, P[0]); m4p = mfma32(O[1-b], V1, P[1])
            if "NQ8" in exp: m[1] = "s_nop 0"
            if "NPV" in exp: m3 = "s_nop 0"; m4p = "s_nop 0"
            if "NQK" in exp: m[0] = "s_nop 0"; m[1] = "s_nop 0"
            cur = tt*KV_TS; nxt = ((tt + 1) % 4)*KV_TS
            d0 = d1 = d2 = []
            if b == 0 and tt == 0: pass
            if b == 1: L.append("s_waitcnt lgkmcnt(0)" if "W3" in exp else "s_waitcnt lgkmcnt(1)")
            L += [m[0], e(0), cv(6), e(1), cv(7), e(2), e(3), m[1]]
            if b == 0:
                if tt == 3:
                    L += ["s_waitcnt vmcnt(0)", "s_barrier",
                          f"s_add_u32 s{sSlotR}, s{sSlotR}, {SLOT}", f"s_cmp_eq_u32 s{sSlotR}, {SLOT*RING}", f"s_cselect_b32 s{sSlotR}, 0, s{sSlotR}",
                          f"v_add_u32 v{vK1c}, s{sSlotR}, v{vK1a}", f"v_add_u32 v{vK2c}, s{sSlotR}, v{vK2a}"]
                L += rdK(nxt)
            L += [e(4), e(5), cv(0), e(6), e(7), cv(1)]
            if b == 1 and "W3" not in exp: L.append("s_waitcnt lgkmcnt(0)")
            L.append(m4p)
            if b == 0: L += rdV(1, cur)
            if b == 0 and tt == 3: L += ([f"v_mad_u32_u24 v{vVc}, v{vVm}, s{sSlotR}, v{vVa}"] if CS else [f"v_add_u32 v{vVc}, s{sSlotR}, v{vVa}"])
            L += [e(8), cv(2), e(9), cv(3), e(10), e(11)]
            if b == 0: L.append("s_waitcnt lgkmcnt(3)")
            L.append(m3)
            if b == 1: L += rdV(0, nxt)
            L += [e(12), e(13), cv(4), e(14), e(15), cv(5)]
            return L
        lp = f"{name}_LOOP{tag}"
        c.label(lp)
        for tt in range(4):
            A = half(0, tt); B = half(1, tt)
            if tt == 3:
                g0, g1, g2 = dma_parts()
                c.e("\n".join(A))
                c.e(f"s_cmp_ge_u32 s{sC}, 6\ns_cbranch_scc1 {lp}_NODMA")
                c.e("\n".join(g0 + g1 + g2))
                c.label(f"{lp}_NODMA")
                c.e("\n".join(B))
            else:
                c.e("\n".join(A)); c.e("\n".join(B))
        c.e(f"""
        s_add_u32 s{sC}, s{sC}, 1
        s_cmp_lt_u32 s{sC}, 8
        s_cbranch_scc1 {lp}
        """)
        c.e(f"v_cvt_pk_bf16_f32 v{P[1]+2}, v{T4}, v{T4+1}\nv_cvt_pk_bf16_f32 v{P[1]+3}, v{T4+2}, v{T4+3}\ns_waitcnt lgkmcnt(0)\ns_nop 0")
        c.e(mfma32(O[1], V1, P[1]))
    if "PA" in exp: c.e("s_setprio 1")
    if "PH" in exp: c.e(f"s_cmp_eq_u32 s{sKH}, 1\ns_cbranch_scc0 {name}_NPH\ns_setprio 1\n{name}_NPH:")
    emit_pass("", False)
    c.label(f"{name}_EPI")
    ST.i = 3; ST.stamp(c, wait=True)
    c.e(f"""
    s_mul_i32 s{sT0}, s{sQG}, 3072
    s_mul_i32 s{sT1}, s{sKH}, {2*SLOT}
    s_add_u32 s{sT2}, s{sT0}, s{sT1}
    v_add_u32 v{vT[4]}, s{sT2}, v{vOff}
    s_sub_u32 s{sT1}, {2*SLOT}, s{sT1}
    s_add_u32 s{sT2}, s{sT0}, s{sT1}
    v_add_u32 v{vT[6]}, s{sT2}, v{vOff}
    v_mov_b32 v{vT[1]}, 0x7f800000
    v_mov_b32 v{vT[2]}, {hexf(2.0**63)}
    v_mov_b32 v{vT[3]}, {hexf(2.0**-63)}
    v_mov_b32 v{vT[5]}, {FLAG}
    s_nop 3
    s_cmp_eq_u32 s{sKH}, 0
    s_cbranch_scc1 {name}_NOSWAP
    """)
    for r in range(12): c.e(f"v_swap_b32 v{O[0]+r}, v{O[1]+r}")
    c.e(f"v_swap_b32 v{vG[0]}, v{vG[1]}")
    c.label(f"{name}_NOSWAP")
    for g in range(3): c.e(f"ds_write_b128 v{vT[4]}, {vr(O[1]+4*g,4)} offset:{1024*g}")
    c.e(f"v_add_f32 v{vT[0]}, |v{O[0]}|, |v{O[1]}|")
    for r in range(1, 12): c.e(f"v_add_f32 v{vT[0]}, |v{O[0]+r}|, v{vT[0]}\nv_add_f32 v{vT[0]}, |v{O[1]+r}|, v{vT[0]}")
    c.e(f"""
    v_min_f32 v{vT[7]}, v{O[0]+8}, v{O[1]+8}
    v_cmp_nlt_f32 s[{sU}:{sU+1}], v{vT[0]}, v{vT[1]}
    v_max_f32 v{vT[0]}, v{O[0]+8}, v{O[1]+8}
    v_cmp_nge_f32 s[{sU2}:{sU2+1}], v{vT[7]}, v{vT[3]}
    v_cmp_nle_f32 vcc, v{vT[0]}, v{vT[2]}
    s_nop 3
    s_or_b64 s[{sU2}:{sU2+1}], s[{sU2}:{sU2+1}], vcc
    s_andn2_b64 s[{sU2}:{sU2+1}], s[{sU2}:{sU2+1}], s[{sMaskLo}:{sMaskLo+1}]
    s_or_b64 s[{sU}:{sU+1}], s[{sU}:{sU+1}], s[{sU2}:{sU2+1}]
    s_cmp_eq_u64 s[{sU}:{sU+1}], 0
    s_cbranch_scc1 {name}_SAFE
    v_mov_b32 v{vT[3]}, 1
    ds_write_b32 v{vT[5]}, v{vT[3]}
    {name}_SAFE:
    s_waitcnt lgkmcnt(0)
    s_barrier
    ds_read_b32 v{vT[3]}, v{vT[5]}
    """)
    for g in range(3): c.e(f"ds_read_b128 {vr(S_[0]+4*g,4)}, v{vT[6]} offset:{1024*g}")
    c.e(f"""
    s_waitcnt lgkmcnt(3)
    v_readfirstlane_b32 s{sT0}, v{vT[3]}
    s_nop 3
    s_cmp_eq_u32 s{sMode}, 0
    s_cselect_b32 s{sT0}, s{sT0}, 0
    s_cmp_eq_u32 s{sT0}, 0
    s_cbranch_scc0 {name}_FALLBACK
    s_waitcnt vmcnt(0) lgkmcnt(0)
    """)
    for r in range(12): c.e(f"v_add_f32 v{O[0]+r}, v{O[0]+r}, v{S_[0]+r}")
    c.e(f"""
    v_mov_b32 v{vT[0]}, v{O[0]+8}
    v_mov_b32 v{vT[1]}, v{O[0]+8}
    s_nop 1
    v_permlane32_swap_b32 v{vT[0]}, v{vT[1]}
    s_nop 1
    v_rcp_f32 v{vT[1]}, v{vT[1]}
    s_nop 0
    v_mul_f32 v{vT[1]}, v{vT[1]}, v{vG[0]}
    """)
    for r in range(12): c.e(f"v_mul_f32 v{O[0]+r}, v{O[0]+r}, v{vT[1]}")
    for p in range(6): c.e(f"v_cvt_pk_bf16_f32 v{S_[1]+p}, v{O[0]+2*p}, v{O[0]+2*p+1}")
    for g in range(3):
        if g == 2: c.e(f"s_mov_b64 exec, s[{sMaskLo}:{sMaskLo+1}]")
        c.e(f"buffer_store_dwordx2 {vr(S_[1]+2*g,2)}, v{vSt[g]}, {srd4}, s{sOb} offen sc1")
    c.e(f"""
    s_mov_b64 exec, -1
    s_waitcnt vmcnt(0)
    s_barrier
    s_cmp_eq_u32 s{sW}, 0
    s_cbranch_scc0 {name}_FIN
    s_lshl_b32 s{sT0}, s{sQB}, 7
    s_add_u32 s{sT0}, s{sT0}, {CNT_OFF}
    v_mov_b32 v{vT[2]}, 0
    v_mov_b32 v{vT[3]}, 1
    s_mov_b64 exec, 1
    buffer_atomic_add v{vT[3]}, v{vT[2]}, {srd4}, s{sT0} offen
    s_mov_b64 exec, -1
    s_branch {name}_FIN
    """)
    c.label(f"{name}_FALLBACK")
    c.e("s_waitcnt vmcnt(0) lgkmcnt(0)")
    c.e(f"s_cmp_eq_u32 s{sKH}, 0\ns_cbranch_scc1 {name}_FB_NOSWAP\nv_swap_b32 v{vG[0]}, v{vG[1]}\n{name}_FB_NOSWAP:")
    c.e(f"""
    s_mov_b32 s{sMode}, 1
    v_mov_b32 v{vM[0]}, 0xff800000
    v_mov_b32 v{vM[1]}, 0xff800000
    s_mov_b32 s{sSrc}, s{sSrc0}
    s_mov_b32 s{sC}, 0
    {name}_FB_LOOP:
    s_barrier
    s_mov_b32 s{sSlotW}, 0
    """)
    c.e("\n".join(dma_chunk()))
    c.e(f"s_waitcnt vmcnt(0)\ns_barrier\nv_mov_b32 v{vK1c}, v{vK1a}\nv_mov_b32 v{vK2c}, v{vK2a}")
    for tt in range(4):
        c.e("\n".join(rdK(tt*KV_TS)))
        c.e("s_waitcnt lgkmcnt(0)")
        for b in range(2): c.e(mfma32(S_[b], K1, Q1[b], cz=0) + "\n" + mfma32x8(S_[b], K2, Q2[b]))
        c.e("s_nop 7\ns_nop 7")
        for b in range(2):
            for r in range(0, 16, 2): c.e(f"v_max3_f32 v{vM[b]}, v{S_[b]+r}, v{S_[b]+r+1}, v{vM[b]}")
    c.e(f"""
    s_add_u32 s{sC}, s{sC}, 1
    s_cmp_lt_u32 s{sC}, 8
    s_cbranch_scc1 {name}_FB_LOOP
    """)
    for b in range(2):
        c.e(f"""
        v_mov_b32 v{vT[0]}, v{vM[b]}
        v_mov_b32 v{vT[1]}, v{vM[b]}
        s_nop 1
        v_permlane32_swap_b32 v{vT[0]}, v{vT[1]}
        s_nop 1
        v_max_f32 v{vM[b]}, v{vT[0]}, v{vT[1]}
        """)
    c.e(f"""
    s_lshl_b32 s{sT0}, s{sW}, 9
    s_add_u32 s{sT0}, s{sT0}, {XCH}
    v_lshlrev_b32 v{vT[2]}, 2, v{vL}
    v_add_u32 v{vT[3]}, s{sT0}, v{vT[2]}
    s_barrier
    ds_write_b32 v{vT[3]}, v{vM[0]}
    ds_write_b32 v{vT[3]}, v{vM[1]} offset:256
    s_xor_b32 s{sT0}, s{sW}, 4
    s_lshl_b32 s{sT0}, s{sT0}, 9
    s_add_u32 s{sT0}, s{sT0}, {XCH}
    v_add_u32 v{vT[3]}, s{sT0}, v{vT[2]}
    s_waitcnt lgkmcnt(0)
    s_barrier
    ds_read_b32 v{vT[4]}, v{vT[3]}
    ds_read_b32 v{vT[5]}, v{vT[3]} offset:256
    s_waitcnt lgkmcnt(0)
    v_max_f32 v{vM[0]}, v{vM[0]}, v{vT[4]}
    v_max_f32 v{vM[1]}, v{vM[1]}, v{vT[5]}
    s_barrier
    """)
    for b in range(2):
        for r in range(16): c.e(f"v_sub_f32 v{NM[b]+r}, 0, v{vM[b]}")
    c.e(f"s_mov_b32 s{sSrc}, s{sSrc0}\ns_mov_b32 s{sSlotW}, 0")
    c.e("\n".join(dma_chunk())); c.e("\n".join(dma_chunk()))
    emit_pass("FB", True)
    c.e(f"s_branch {name}_EPI")
    Vg = Alloc(168, 2, "v")
    gOffW = [Vg.take() for _ in range(5)]; gOffA = Vg.take(); gWA = Vg.take(); gAA = Vg.take(); gOm = Vg.take()
    gT = [Vg.take() for _ in range(6)]
    gact = Vg.take(4, 4); gwf = Vg.take(20, 4); gacc = Vg.take(80, 4); goq = Vg.take(40, 4); gtmp = goq
    sRB, sCG, sKQ, sLB, sKs, sAct = sQG, sKH, sQB, sSrc, sSrc0, sTile
    srdW = Sg.take(4, 4); srdO = Sg.take(4, 4); sOmA = Sg.take()
    gAc_ = goq + 39
    NDOWN = 27; NSTEP = 37; DEFER = 0
    gs = Sg.take(16, 2) if stamps else 0
    gi = [0]
    def gstamp():
        if stamps:
            c.e(f"s_memrealtime s[{gs+2*gi[0]}:{gs+2*gi[0]+1}]\ns_waitcnt lgkmcnt(0)"); gi[0] += 1
    c.label(f"{name}_GW")
    c.e(f"""
    s_sub_u32 s{sKQ}, s{sW}, 8
    s_lshr_b32 s{sT0}, s{sJ}, 2
    s_lshl_b32 s{sRB}, s{sX}, 3
    s_add_u32 s{sRB}, s{sRB}, s{sT0}
    s_and_b32 s{sCG}, s{sJ}, 3
    s_mul_i32 s{sT0}, s{sCG}, 320
    """)
    for i in range(5):
        c.e(f"""
        v_add_u32 v{gT[1]}, {64*i}, v{vL}
        v_mul_u32_u24 v{gT[2]}, 3277, v{gT[1]}
        v_lshrrev_b32 v{gT[2]}, 16, v{gT[2]}
        v_mul_u32_u24 v{gT[3]}, 20, v{gT[2]}
        v_sub_u32 v{gT[3]}, v{gT[1]}, v{gT[3]}
        v_mul_u32_u24 v{gT[2]}, 1280, v{gT[2]}
        v_lshl_add_u32 v{gT[2]}, v{gT[3]}, 4, v{gT[2]}
        v_add_u32 v{gOffW[i]}, s{sT0}, v{gT[2]}
        """)
    c.e(f"""
    v_lshlrev_b32 v{gOffA}, 4, v{vL}
    s_mul_i32 s{sLB}, s{sKQ}, {GWAVE}
    s_add_u32 s{sLB}, s{sLB}, {GRING}
    s_mul_i32 s{sKs}, s{sKQ}, 20480
    s_mul_i32 s{sAct}, s{sRB}, 108
    s_add_u32 s{sAct}, s{sAct}, s{sKQ}
    s_lshl_b32 s{sAct}, s{sAct}, 10
    s_add_u32 s{sAct}, s{sAct}, {HF_OFF}
    s_waitcnt lgkmcnt(0)
    """)
    srd(c, srdWS, sWS, WS_BYTES); srd(c, srdW, sWD, 1728*1280); srd(c, srdO, sOUT, 2048*1280)
    if fused: c.e("s_barrier")
    def gdma(n):
        so = (n % 3)*GSLOT; L = []
        if "NGD" in exp: return []
        for i in range(5):
            L += [f"s_add_u32 m0, s{sLB}, {so + 1024*i}", "s_nop 0", f"buffer_load_dwordx4 v{gOffW[i]}, s[{srdW}:{srdW+3}], s{sKs} offen lds"]
        L += [f"s_add_u32 s{sKs}, s{sKs}, {4*20480}"]
        if n < NDOWN:
            L += [f"s_add_u32 m0, s{sLB}, {so + 5120}", "s_nop 0", f"buffer_load_dwordx4 v{gOffA}, {srd4}, s{sAct} offen{HS} lds", f"s_add_u32 s{sAct}, s{sAct}, 4096"]
        return L
    ndma = lambda n: 0 if n >= NDOWN else 6
    c.e(f"""
    v_and_b32 v{gT[0]}, 31, v{vL}
    v_lshlrev_b32 v{gT[1]}, 3, v{gT[0]}
    s_lshl_b32 s{sT0}, s{sRB}, 8
    s_add_u32 s{sT0}, s{sT0}, {G_OFF + 4}
    s_mov_b32 s{sOmA}, s{sT0}
    """)
    if not fused: c.e(f"buffer_load_dword v{gOm}, v{gT[1]}, {srd4}, s{sT0} offen")
    else: c.e(f"v_mov_b32 v{gAc_}, v{gT[1]}")
    if "TLB" in exp:
        c.e(f"""
        v_min_u32 v{gT[2]}, 6, v{vL}
        v_lshlrev_b32 v{gT[2]}, 20, v{gT[2]}
        s_mov_b32 s{sT0}, {OF_OFF}
        buffer_load_dword v{goq}, v{gT[2]}, {srd4}, s{sT0} offen
        v_min_u32 v{gT[2]}, 2, v{vL}
        v_lshlrev_b32 v{gT[2]}, 20, v{gT[2]}
        buffer_load_dword v{goq+1}, v{gT[2]}, s[{srdO}:{srdO+3}], 0 offen
        """)
    c.e(f"""
    v_and_b32 v{gT[3]}, 15, v{vL}
    v_lshrrev_b32 v{gT[4]}, 2, v{gT[3]}
    v_lshrrev_b32 v{gT[2]}, 5, v{vL}
    v_lshl_add_u32 v{gT[4]}, v{gT[2]}, 2, v{gT[4]}
    v_mul_u32_u24 v{gT[4]}, 320, v{gT[4]}
    v_and_b32 v{gT[3]}, 3, v{gT[3]}
    v_lshl_add_u32 v{gT[4]}, v{gT[3]}, 3, v{gT[4]}
    v_lshrrev_b32 v{gT[3]}, 4, v{vL}
    v_and_b32 v{gT[3]}, 1, v{gT[3]}
    v_lshl_add_u32 v{gT[4]}, v{gT[3]}, 5, v{gT[4]}
    v_add_u32 v{gWA}, s{sLB}, v{gT[4]}
    v_add_u32 v{gAA}, 5120, v{gOffA}
    v_add_u32 v{gAA}, s{sLB}, v{gAA}
    """)
    for r in range(80): c.e(f"v_mov_b32 v{gacc+r}, 0")
    if "PG" in exp: c.e("s_setprio 1")
    c.e("s_barrier")
    if fused:
        c.e(f"""
        s_lshr_b32 s{sT0}, s{sRB}, 2
        s_add_u32 s{sT1}, s{sT0}, {C_H}
        s_add_u32 s{sT0}, s{sT0}, {C_G}
        v_mov_b32 v{gT[2]}, s{sT1}
        v_mov_b32 v{gT[3]}, s{sT0}
        v_cmp_eq_u32 vcc, 0, v{vL}
        v_mov_b32 v{gT[4]}, 1
        v_mov_b32 v{gT[5]}, 9
        v_cndmask_b32 v{gT[2]}, v{gT[3]}, v{gT[2]}, vcc
        v_cndmask_b32 v{gT[4]}, v{gT[4]}, v{gT[5]}, vcc
        v_lshlrev_b32 v{gT[2]}, 7, v{gT[2]}
        v_add_u32 v{gT[2]}, {CNT_OFF}, v{gT[2]}
        """)
        poll("POLLH", gT[2], gT[4], gT[3], 2)
        c.e(f"buffer_load_dword v{gOm}, v{gAc_}, {srd4}, s{sOmA} offen sc1")
    if "NGW" not in exp: c.e("\n".join(gdma(0) + gdma(1)))
    def sloc(n, loc=None):
        return loc if loc is not None else (gWA, (n % 3)*GSLOT)
    def rdW(jb, areg, so):
        return [f"ds_read_b64_tr_b16 {vr(gwf+4*jb,2)}, v{areg} offset:{so + 64*jb}", f"ds_read_b64_tr_b16 {vr(gwf+4*jb+2,2)}, v{areg} offset:{so + 64*jb + 2560}"]
    def step(n, wait, post=None, loc=None, midbar=False):
        if "NGW" in exp and n < NDOWN:
            if midbar: c.e("s_barrier")
            return
        areg, so = sloc(n, loc)
        c.e(wait)
        act = gact
        if n < NDOWN: c.e(f"ds_read_b128 {vr(gact,4)}, v{gAA} offset:{so}")
        else: act = goq + 4*(n - NDOWN)
        if "NGR" not in exp or n >= NDOWN or n < 1:
            for jb in range(5): c.e("\n".join(rdW(jb, areg, so)))
        if n + 2 < NDOWN: c.e("\n".join(gdma(n + 2)))
        if midbar: c.e("s_barrier")
        for jb in range(5):
            c.e(f"s_waitcnt lgkmcnt({8 - 2*jb})")
            if "NGM" in exp and n < NDOWN: c.e("s_nop 0")
            elif "G16" in exp:
                for q in range(2): c.e(f"v_mfma_f32_16x16x32_bf16 {vr(gacc+16*jb+4*q+8*(n%2),4)}, {vr(gwf+4*jb,4)}, {vr(act,4)}, {vr(gacc+16*jb+4*q+8*(n%2),4)}")
            else: c.e(mfma32(gacc+16*jb, gwf+4*jb, act))
        if post: c.e("\n".join(post))
    def wo_steps(waits):
        areg, so = wloc(0)
        for jb in range(5): c.e("\n".join(rdW(jb, areg, so)))
        for i in range(10):
            c.e(f"s_waitcnt vmcnt({waits[i][0]})")
            nxt = wloc(i + 1) if i + 1 < 10 else None
            if nxt is not None and waits[i][1] is not None: pass
            for jb in range(5):
                c.e(f"s_waitcnt lgkmcnt({8 if nxt is not None else 8 - 2*jb})")
                c.e(mfma32(gacc+16*jb, gwf+4*jb, goq + 4*i))
                if nxt is not None:
                    if jb == 0 and waits[i][1] is not None: c.e(f"s_waitcnt vmcnt({waits[i][1]})")
                    c.e("\n".join(rdW(jb, nxt[0], nxt[1])))
            if i < 3: c.e("\n".join(wdma(7 + i)))
            if i == 0: gstamp()
    sched = [3, 4, 3, 4, 3, 4, 3, 3]; n = 0
    if 'GS1' in exp: sched = [2, 4, 4, 4, 4, 4, 3, 2]
    if 'GS2' in exp: sched = [4, 4, 4, 4, 4, 4, 3, 0]
    if 'GS3' in exp: sched = [1, 3, 4, 4, 4, 4, 4, 3]
    assert sum(sched) == NDOWN - DEFER
    gWB = gT[5]; sAB = sOb
    def wloc(i):
        if i < 3: return (gWA, GSLOT*i)
        if i < 7: return (gWB, 5120*(i - 3))
        return (gWA, GSLOT*(i - 7))
    def wdma(i):
        L = []
        base, off = (sLB, GSLOT*i) if i < 3 else ((sAB, 5120*(i - 3)) if i < 7 else (sLB, GSLOT*(i - 7)))
        for k in range(5):
            L += [f"s_add_u32 m0, s{base}, {off + 1024*k}", "s_nop 0", f"buffer_load_dwordx4 v{gOffW[k]}, s[{srdW}:{srdW+3}], s{sKs} offen lds"]
        L += [f"s_add_u32 s{sKs}, s{sKs}, {4*20480}"]
        return L
    DF = 2 if "DF2" in exp else (1 if "DF1" in exp else 0)
    NB = NDOWN - DF
    tot = 2*NB; first = 6
    pos = [first + round((tot - first)*k/7.0) for k in range(7)]
    for n_ in range(NB):
        step(n_, f"s_waitcnt vmcnt({ndma(n_+1)})", midbar=(2*n_ + 1) in pos)
        if (2*n_ + 2) in pos: c.e("s_barrier")
    c.e(f"""
    s_mov_b32 s{srdW}, s{sWO}
    s_and_b32 s{srdW+1}, s{sWO+1}, 0xffff
    s_mov_b32 s{srdW+2}, {640*1280}
    s_mul_i32 s{sKs}, s{sKQ}, 20480
    s_mul_i32 s{sAB}, s{sKQ}, 20480
    v_subrev_u32 v{gWB}, s{sLB}, v{gWA}
    v_add_u32 v{gWB}, s{sAB}, v{gWB}
    """)
    for i in range(3 - DF): c.e("\n".join(wdma(i)))
    c.e("s_barrier")
    if DF == 0:
        c.e("s_nop 7")
        for r in range(80): c.e(f"v_mul_f32 v{gacc+r}, v{gacc+r}, v{gOm}")
    c.e(f"""
    s_barrier
    v_mov_b32 v{gT[3]}, {FLAG}
    ds_read_b32 v{gT[3]}, v{gT[3]}
    s_waitcnt lgkmcnt(0)
    v_readfirstlane_b32 s{sT1}, v{gT[3]}
    s_nop 3
    s_cmp_eq_u32 s{sT1}, 0
    s_cbranch_scc1 {name}_GNOFB
    s_mov_b32 s{sT0}, {FB_BARRIERS}
    {name}_GFB:
    s_barrier
    s_sub_u32 s{sT0}, s{sT0}, 1
    s_cmp_lg_u32 s{sT0}, 0
    s_cbranch_scc1 {name}_GFB
    {name}_GNOFB:
    """)
    if DF == 2:
        step(25, "s_waitcnt vmcnt(11)", post=wdma(1)); step(26, "s_waitcnt vmcnt(10)", post=wdma(2))
    if DF == 1:
        step(26, "s_waitcnt vmcnt(10)", post=wdma(2))
    if DF:
        c.e("s_nop 3")
        for r in range(80): c.e(f"v_mul_f32 v{gacc+r}, v{gacc+r}, v{gOm}")
    c.e(f"""
    s_barrier
    """)
    gstamp()
    c.e(f"""
    s_lshr_b32 s{sT3}, s{sRB}, 3
    s_lshl_b32 s{sT3}, s{sT3}, 7
    s_add_u32 s{sT3}, s{sT3}, {CNT_OFF}
    v_mov_b32 v{gT[2]}, 0
    """)
    for i in range(3, 5): c.e("\n".join(wdma(i)))
    c.e(f"buffer_load_dword v{gT[3]}, v{gT[2]}, {srd4}, s{sT3} offen sc1")
    for i in range(5, 7): c.e("\n".join(wdma(i)))
    c.e(f"""
    s_waitcnt vmcnt(10)
    v_readfirstlane_b32 s{sT1}, v{gT[3]}
    s_nop 3
    s_cmp_ge_u32 s{sT1}, 32
    s_cbranch_scc1 {name}_GO
    """)
    gstamp()
    c.e(f"""
    s_lshr_b32 s{sT0}, s{sRB}, 3
    s_lshl_b32 s{sT0}, s{sT0}, 7
    s_add_u32 s{sT0}, s{sT0}, {CNT_OFF}
    v_mov_b32 v{gT[2]}, 0
    s_mov_b32 s{sT2}, 0
    {name}_POLL:
    buffer_load_dword v{gT[3]}, v{gT[2]}, {srd4}, s{sT0} offen sc1
    s_waitcnt vmcnt(0)
    v_readfirstlane_b32 s{sT1}, v{gT[3]}
    s_add_u32 s{sT2}, s{sT2}, 1
    s_nop 2
    s_cmp_ge_u32 s{sT1}, 32
    s_cbranch_scc1 {name}_GO
    s_sleep 1
    s_cmp_lt_u32 s{sT2}, 0x40000
    s_cbranch_scc1 {name}_POLL
    {name}_GO:
    s_mul_i32 s{sT0}, s{sRB}, 40
    s_add_u32 s{sT0}, s{sT0}, s{sKQ}
    s_lshl_b32 s{sT0}, s{sT0}, 10
    s_add_u32 s{sT0}, s{sT0}, {OF_OFF}
    """)
    gstamp()
    c.e(f"v_lshlrev_b32 v{gT[2]}, 3, v{vL}")
    for i in range(10):
        c.e(f"buffer_load_dwordx2 {vr(goq+4*i,2)}, v{gT[2]}, {srd4}, s{sT0} offen sc1\nbuffer_load_dwordx2 {vr(goq+4*i+2,2)}, v{gT[2]}, {srd4}, s{sT0} offen offset:512 sc1\ns_add_u32 s{sT0}, s{sT0}, 4096")
    waits = [(18, None), (21, None), (24, None), (27, None), (25, None), (23, None), (21, 10), (10, 5), (5, 0), (0, None)]
    wo_steps(waits)
    gstamp()
    own = [0,0,0,1,1,1,2,2,3,3]
    c.e("s_nop 7\ns_nop 3\ns_barrier")
    for kq in range(4):
        c.e(f"s_cmp_eq_u32 s{sKQ}, {kq}\ns_cbranch_scc0 {name}_GX{kq}")
        c.e(f"v_add_u32 v{gT[5]}, {GRING}, v{gOffA}\nv_add_u32 v{gT[4]}, {GRING + 30720}, v{gOffA}")
        cnt = 0
        for p in range(10):
            if own[p] == kq: continue
            slot = kq if kq < own[p] else kq - 1
            off = p*6144 + slot*2048
            a_, o = (gT[5], off) if off < 30720 else (gT[4], off - 30720)
            for h in range(2):
                c.e(f"ds_write_b128 v{a_}, {vr(gacc + 8*p + 4*h, 4)} offset:{o + 1024*h}"); cnt += 1
                if cnt % 8 == 0: c.e("s_waitcnt lgkmcnt(4)")
        c.e(f"""
        v_and_b32 v{gT[0]}, 31, v{vL}
        s_lshl_b32 s{sT0}, s{sRB}, 5
        v_add_u32 v{gT[0]}, s{sT0}, v{gT[0]}
        v_mul_u32_u24 v{gT[0]}, 1280, v{gT[0]}
        v_lshrrev_b32 v{gT[2]}, 5, v{vL}
        v_lshl_add_u32 v{gT[0]}, v{gT[2]}, 4, v{gT[0]}
        s_mul_i32 s{sT0}, s{sCG}, 320
        s_waitcnt lgkmcnt(0)
        s_barrier
        """)
        mine = [p for p in range(10) if own[p] == kq]
        for ip, p in enumerate(mine):
            off = p*6144
            a_, o = (gT[5], off) if off < 30720 else (gT[4], off - 30720)
            t = gtmp + 24 + 4*(ip % 2)
            for h in range(2):
                for sl in range(3): c.e(f"ds_read_b128 {vr(gtmp+12*h+4*sl,4)}, v{a_} offset:{o + 2048*sl + 1024*h}")
            for h in range(2):
                for sl in range(3):
                    c.e(f"s_waitcnt lgkmcnt({5 - 3*h - sl})")
                    for r in range(4): c.e(f"v_add_f32 v{gacc+8*p+4*h+r}, v{gacc+8*p+4*h+r}, v{gtmp+12*h+4*sl+r}")
            for q in range(4): c.e(f"v_cvt_pk_bf16_f32 v{t+q}, v{gacc+8*p+2*q}, v{gacc+8*p+2*q+1}")
            c.e(f"""
            s_nop 1
            v_permlane32_swap_b32 v{t}, v{t+2}
            v_permlane32_swap_b32 v{t+1}, v{t+3}
            s_add_u32 s{sT2}, s{sT0}, {32*p}
            s_nop 0
            buffer_store_dwordx4 {vr(t,4)}, v{gT[0]}, s[{srdO}:{srdO+3}], s{sT2} offen{OM}
            """)
        c.e(f"s_branch {name}_GEND")
        c.label(f"{name}_GX{kq}")
    c.label(f"{name}_GEND")
    if stamps:
        c.e("s_waitcnt vmcnt(0)")
        gstamp()
        c.e(f"""
        s_lshl_b32 s{sT0}, s2, 2
        s_add_u32 s{sT0}, s{sT0}, s{sKQ}
        s_lshl_b32 s{sT0}, s{sT0}, 5
        s_add_u32 s{sT0}, s{sT0}, {STAMP_OFF + 2*65536}
        v_mov_b32 v{gT[2]}, 0
        """)
        for i in range(gi[0]):
            c.e(f"v_mov_b32 v{gT[3]}, s{gs+2*i}\nbuffer_store_dword v{gT[3]}, v{gT[2]}, {srd4}, s{sT0} offen offset:{4*i}\ns_nop 1")
    c.e("s_endpgm")
    c.label(f"{name}_FIN")
    if stamps: c.e("s_waitcnt vmcnt(0)")
    ST.i = 4; ST.stamp(c); ST.stamp(c, real=True)
    if stamps: ST.i = 8
    ST.flush(c, sW, srdWS, vT[2], vT[3], sT0)
    c.e(f"""
    {name}_END:
    s_endpgm
    """)
    def S(kh, unsafe=False, fb=False):
        d = {f"{name}_END": False, f"{name}_LOOP_NODMA": (lambda k: k % 3 == 2), f"{name}_LOOPFB_NODMA": (lambda k: k % 3 == 2), f"{name}_NOSWAP": kh == 0, f"{name}_SAFE": not unsafe,
             f"{name}_FALLBACK": (lambda k: k == 0 and fb), f"{name}_FB_NOSWAP": kh == 0}
        return d
    scen = {"kh0": S(0), "kh1": S(1), "fb": S(1, True, True)}
    for k_ in scen:
        scen[k_][f"{name}_NOPOLL"] = (k_ == "kh1"); scen[k_][f"{name}_POLLQOK"] = (lambda k: k >= 1); scen[k_][f"{name}_POLLQ"] = True
    for k_ in scen: scen[k_][f"{name}_NPH"] = False
    for k_ in scen: scen[k_][f"{name}_GW"] = False; scen[k_][f"{name}_FIN"] = (k_ == "kh1")
    for kq in range(4):
        d = {f"{name}_END": False, f"{name}_GW": True, f"{name}_GNOFB": kq % 2 == 0, f"{name}_GO": ((lambda k: k >= 1) if kq != 1 else True), f"{name}_POLL": True, f"{name}_POLLHOK": (lambda k: k >= 1), f"{name}_POLLH": True}
        for q in range(4): d[f"{name}_GX{q}"] = (q != kq)
        scen[f"g{kq}"] = d
    return c, max(V.hi, Vg.hi), scen, K2_LDS
    return c, V.hi, scen, K2_LDS

if __name__ == "__main__":
    c, nv, scen, lds = gen_k2()
    errs = check(c.lines, scen, "k2")
    print("vgprs", nv, "lds", lds, "lines", len(c.lines))
    for e in errs[:40]: print(e)
```
